```python
import torch

def _softmax(x, axis=-1):
    return torch.softmax(x, dim=axis)
def _gelu(x):
    return torch.nn.functional.gelu(x, approximate="tanh")
def _silu(x):
    return torch.nn.functional.silu(x)
def _sigmoid(x):
    return torch.sigmoid(x)
def _layernorm(x, axis=-1, eps=1e-5):
    m = x.mean(dim=axis, keepdim=True)
    v = x.var(dim=axis, keepdim=True, unbiased=False)
    return (x - m) / torch.sqrt(v + eps)
def _scatter_add(tgt, idx, src, axis=0):
    return tgt.clone().index_add_(axis, idx, src)
def _segment_sum(src, seg, n):
    out = torch.zeros((n,) + src.shape[1:], dtype=src.dtype)
    return out.index_add_(0, seg, src)
def _pad(x, pw):
    flat = tuple(v for pair in reversed(pw) for v in pair)
    return torch.nn.functional.pad(x, flat)

kernel_name = 'recurrent_scan__compressed_kv_cla__dense_activation_gelu__prompt'

def setup_inputs():

    _w = (lambda a: (lambda t: t.to(torch.bfloat16) if t.is_floating_point() else t)(torch.as_tensor(a)))
    def _A_setup():
        B, H, Sq, Sk, D, M = 1, 32, 2048, 2048, 128, 512
        Dc = 4 * D
        return {
            "x": _w((lambda *s: torch.randn(*s, dtype=torch.bfloat16) * 0.05)(B, Sq, M)),
            "c_kv": _w((lambda *s: torch.randn(*s, dtype=torch.bfloat16) * 0.8)(B, Sk, Dc)),
            "w_q": _w((lambda *s: torch.randn(*s, dtype=torch.bfloat16) * 1.6)(M, H, D) * (M ** -0.5)),
            "w_uk": _w((lambda *s: torch.randn(*s, dtype=torch.bfloat16) * 1.6)(Dc, H, D) * (Dc ** -0.5)),
            "w_uv": _w((lambda *s: torch.randn(*s, dtype=torch.bfloat16) * 0.8)(Dc, H, D) * (Dc ** -0.5)),
            "w_o": _w((lambda *s: torch.randn(*s, dtype=torch.bfloat16) * 0.8)(H, D, M) * ((H * D) ** -0.5)),
        }
    _A_in = _A_setup()

    def _B_setup():
        B, S, D, F = 1, 2048, 512, 1376
        return {
            "x": _w((lambda *s: torch.randn(*s, dtype=torch.bfloat16) * 0.05)(B, S, D)),
            "w1": _w((lambda *s: torch.randn(*s, dtype=torch.bfloat16) * 0.8)(D, F) * (D ** -0.5)),
            "b1": _w((lambda *s: torch.randn(*s, dtype=torch.bfloat16) * 0.8)(F) * 0.01),
            "w2": _w((lambda *s: torch.randn(*s, dtype=torch.bfloat16) * 0.2)(F, D) * (F ** -0.5)),
            "b2": _w((lambda *s: torch.randn(*s, dtype=torch.bfloat16) * 0.2)(D) * 0.01),
        }
    _B_in = _B_setup()

    return {
        "A_x": _A_in["x"],
        "A_c_kv": _A_in["c_kv"],
        "A_w_q": _A_in["w_q"],
        "A_w_uk": _A_in["w_uk"],
        "A_w_uv": _A_in["w_uv"],
        "A_w_o": _A_in["w_o"],
        "B_x": _B_in["x"],
        "B_w1": _B_in["w1"],
        "B_b1": _B_in["b1"],
        "B_w2": _B_in["w2"],
        "B_b2": _B_in["b2"],
    }

def reference(A_x, A_c_kv, A_w_q, A_w_uk, A_w_uv, A_w_o, B_x, B_w1, B_b1, B_w2, B_b2):
    def _A_ref(x, c_kv, w_q, w_uk, w_uv, w_o):
        B, Sq, M = x.shape[0], x.shape[1], x.shape[2]
        Sk = c_kv.shape[1]
        H, D = w_q.shape[1], w_q.shape[2]
        q = torch.einsum("bqm,mhd->bhqd", x, w_q)
        k = torch.einsum("bkc,chd->bhkd", c_kv, w_uk)
        v = torch.einsum("bkc,chd->bhkd", c_kv, w_uv)
        scores = torch.einsum("bhqd,bhkd->bhqk", q, k) * (D ** -0.5)
        off = Sk - Sq
        qi = torch.arange(Sq)[:, None]
        kj = torch.arange(Sk)[None, :]
        cmask = kj <= (qi + off)
        scores = torch.where(cmask[None, None], scores, -1e9)
        p = _softmax(scores, axis=-1)
        ctx = torch.einsum("bhqk,bhkd->bhqd", p, v)
        return torch.einsum("bhqd,hdm->bqm", ctx, w_o)

    def _B_ref(x, w1, b1, w2, b2):
        h = torch.einsum("bsd,df->bsf", x, w1) + b1
        h = _gelu(h)
        return torch.einsum("bsf,fd->bsd", h, w2) + b2

    x = A_x
    xn = _layernorm(x, axis=-1)
    s = _A_ref(xn, A_c_kv, A_w_q, A_w_uk, A_w_uv, A_w_o)
    g = _silu(_B_ref(xn, B_w1, B_b1, B_w2, B_b2))
    return x + s * g
```

```python
import re

def v(i, n=1): return f"v{i}" if n == 1 else f"v[{i}:{i+n-1}]"
def a(i, n=1): return f"a{i}" if n == 1 else f"a[{i}:{i+n-1}]"
def s(i, n=1): return f"s{i}" if n == 1 else f"s[{i}:{i+n-1}]"

_REG = re.compile(r"\b([vas])(?:(\d+)\b|\[(\d+):(\d+)\])")

def regs_of(op):
    out = set()
    for m in _REG.finditer(op):
        k = m.group(1)
        if m.group(2) is not None:
            out.add((k, int(m.group(2))))
        else:
            for i in range(int(m.group(3)), int(m.group(4)) + 1):
                out.add((k, i))
    if re.search(r"\bvcc\b", op): out.add(("s", 106)); out.add(("s", 107))
    if re.search(r"\bm0\b", op): out.add(("s", 124))
    if re.search(r"\bexec(_hi|_lo)?\b", op): out.add(("s", 126)); out.add(("s", 127))
    return out

TRANS = ("v_exp_f32", "v_log_f32", "v_rcp_f32", "v_rsq_f32", "v_sqrt_f32", "v_sin_f32", "v_cos_f32")

class Ins:
    __slots__ = ("text", "op", "kind", "dst", "src", "srcC", "dpp", "npass", "nops")
    def __init__(self, text):
        self.text = text
        t = text.split(";")[0].strip()
        parts = t.split(None, 1)
        self.op = parts[0]
        rest = parts[1] if len(parts) > 1 else ""
        ops = [x.strip() for x in rest.split(",")]
        self.dst = set(); self.src = set(); self.srcC = set(); self.dpp = False; self.npass = 0; self.nops = 1
        op = self.op
        if op.startswith("v_mfma"):
            self.kind = "mfma"
            self.dst = regs_of(ops[0]); self.src = regs_of(ops[1]) | regs_of(ops[2]); self.srcC = regs_of(ops[3])
            self.npass = 4 if "16x16x32" in op else 8
        elif op.startswith("buffer_") or op.startswith("global_"):
            self.kind = "vmem"
            if op in ("buffer_inv", "buffer_wbl2"):
                pass
            elif "_load" in op and (" lds" in (" " + rest) and op.startswith("buffer_") or "load_lds" in op):
                self.src = regs_of(rest) | {("s", 124)}
                self.kind = "dma"
            elif "_load" in op:
                self.dst = regs_of(ops[0]); self.src = set().union(*[regs_of(o) for o in ops[1:]])
            elif "_store" in op:
                self.src = regs_of(rest)
                self.kind = "store"
                if op.startswith("buffer_"): self.srcC = regs_of(ops[0])
                else: self.srcC = regs_of(ops[1])
            elif "atomic" in op:
                self.src = regs_of(rest)
                if " sc0" in rest: self.dst = regs_of(ops[0])
            else:
                raise ValueError(text)
        elif op.startswith("ds_"):
            self.kind = "ds"
            if op.startswith("ds_read") or op.startswith("ds_swizzle") or op.startswith("ds_bpermute"):
                self.dst = regs_of(ops[0]); self.src = set().union(*[regs_of(o) for o in ops[1:]])
            else:
                self.src = regs_of(rest)
        elif op.startswith("v_"):
            self.kind = "trans" if op.replace("_e32","").replace("_e64","") in TRANS else "valu"
            if op.startswith("v_cmp"):
                self.dst = regs_of(ops[0]); self.src = set().union(*[regs_of(o) for o in ops[1:]])
            elif op.startswith("v_permlane") and "swap" in op:
                self.dst = regs_of(ops[0]) | regs_of(ops[1]); self.src = set(self.dst)
            elif op.startswith("v_readfirstlane") or op.startswith("v_readlane"):
                self.dst = regs_of(ops[0]); self.src = set().union(*[regs_of(o) for o in ops[1:]])
            elif op.startswith("v_writelane"):
                self.dst = regs_of(ops[0]); self.src = regs_of(ops[1])
            elif op in ("v_add_co_u32", "v_addc_co_u32", "v_sub_co_u32"):
                self.dst = regs_of(ops[0]) | regs_of(ops[1]); self.src = set().union(*[regs_of(o) for o in ops[2:]])
            elif op == "v_nop":
                pass
            else:
                self.dst = regs_of(ops[0]); self.src = set().union(*[regs_of(o) for o in ops[1:]])
                if op.startswith("v_fmac") or op.startswith("v_dot2c"): self.src |= self.dst
            if "row_" in rest or "quad_perm" in rest or "wave_" in rest: self.dpp = True
        elif op.startswith("s_"):
            self.kind = "salu"
            if op == "s_nop":
                self.nops = int(ops[0], 0) + 1
            elif op in ("s_waitcnt", "s_barrier", "s_endpgm", "s_setprio", "s_sleep") or op.startswith("s_cbranch") or op == "s_branch":
                pass
            elif op.startswith("s_cmp") or op.startswith("s_bitcmp"):
                self.src = regs_of(rest)
            elif op.startswith("s_load") or op.startswith("s_memtime") or op.startswith("s_memrealtime") or op.startswith("s_getpc"):
                self.kind = "smem" if not op.startswith("s_getpc") else "salu"
                self.dst = regs_of(ops[0]); self.src = set().union(*[regs_of(o) for o in ops[1:]]) if len(ops) > 1 else set()
            elif op.startswith("s_setpc"):
                self.src = regs_of(rest)
            else:
                self.dst = regs_of(ops[0]); self.src = set().union(*[regs_of(o) for o in ops[1:]]) if len(ops) > 1 else set()
                if "saveexec" in op: self.dst |= {("s",126),("s",127)}
        else:
            raise ValueError("unknown instr: " + text)

def required_gap(p, c):
    need = 0
    isvalu = lambda x: x.kind in ("valu", "trans")
    pv = {r for r in p.dst if r[0] in "va"}
    ps = {r for r in p.dst if r[0] == "s"}
    if isvalu(p):
        if c.kind == "mfma" and pv & (c.src | c.srcC): need = max(need, 2)
        if c.dpp and pv & c.src: need = max(need, 2)
        if c.op.startswith("v_permlane") and pv & c.src: need = max(need, 2)
        if (c.op.startswith("v_readfirstlane") or c.op.startswith("v_readlane")) and pv & c.src: need = max(need, 1)
        if p.kind == "trans" and c.kind == "valu" and pv & c.src: need = max(need, 1)
        if p.kind == "trans" and c.kind in ("vmem", "store", "ds", "dma") and pv & c.src: need = max(need, 1)
        if ps:
            if c.kind in ("vmem", "store", "dma") and ps & c.src: need = max(need, 5)
            if isvalu(c) and ps & c.src: need = max(need, 4 if c.op.startswith("v_readlane") or c.op.startswith("v_writelane") else 2)
            if c.kind in ("salu", "smem") and ps & c.src: need = max(need, 1)
        if ("s",126) in ps:
            if c.kind == "mfma": need = max(need, 4)
            if c.dpp: need = max(need, 5)
    if p.kind == "mfma":
        n = p.npass
        tD = {2:5, 4:8, 8:12, 16:20}[n]
        tC = {2:4, 4:6, 8:10, 16:18}[n]
        if c.kind == "mfma":
            if p.dst & c.src: need = max(need, tD)
            if p.dst & c.srcC:
                if not (p.dst == c.srcC and p.npass == c.npass): need = max(need, tC)
            elif p.dst & c.dst:
                need = max(need, tC)
        else:
            if p.dst & (c.src | c.dst): need = max(need, tD)
            if isvalu(c) and p.srcC & c.dst: need = max(need, {2:1,4:3,8:7,16:15}[n])
    if p.kind == "store" and ("x4" in p.op or "x3" in p.op):
        if p.srcC & c.dst and c.kind != "salu": need = max(need, 2)
    if p.kind == "salu" and ("s",124) in p.dst and c.kind == "dma": need = max(need, 1)
    if p.kind == "salu" and ("s",126) in p.dst and (c.dpp): need = max(need, 1)
    return need

class Asm:
    def __init__(self):
        self.items = []
    def I(self, text):
        if text is None: return
        for t in text.split("\n"):
            t = t.strip()
            if not t: continue
            if t.startswith(";") or t.startswith(".") or t.endswith(":"):
                self.items.append(t)
            else:
                self.items.append(Ins(t))
    def label(self, name): self.items.append(name + ":")
    def comment(self, c): self.items.append("; " + c)
    def check(self, seq=None, fix=False, name=""):
        items = self.items if seq is None else seq
        probs = []
        out = []
        hist = []
        pos = 0
        for it in items:
            if not isinstance(it, Ins):
                out.append(it); continue
            need_extra = 0
            for (p, ppos) in hist[-24:]:
                g = required_gap(p, it)
                have = pos - ppos - p.nops
                if g > have:
                    need_extra = max(need_extra, g - have)
                    if not fix: probs.append(f"{name}: need {g} have {have}: [{p.text}] -> [{it.text}]")
            if fix and need_extra:
                nop = Ins(f"s_nop {need_extra-1}")
                out.append(nop); hist.append((nop, pos)); pos += nop.nops
            out.append(it); hist.append((it, pos)); pos += it.nops
            if it.op in ("s_branch", "s_endpgm", "s_setpc_b64"):
                hist = []
        if fix and seq is None: self.items = out
        return probs if not fix else out
    def text(self):
        o = []
        for it in self.items:
            if isinstance(it, Ins): o.append("  " + it.text)
            else: o.append(it)
        return "\n".join(o) + "\n"

class Cnt:
    def __init__(self, name, maxv): self.name = name; self.q = []; self.maxv = maxv
    def issue(self, tag):
        self.q.append(tag)
    def need(self, tag):
        idx = [i for i, t in enumerate(self.q) if t == tag or (isinstance(tag, (list, tuple, set)) and t in tag)]
        if not idx: return None
        n = len(self.q) - 1 - idx[-1]
        self.q = self.q[idx[-1]+1:]
        return min(n, self.maxv)
    def wait(self, tag):
        n = self.need(tag)
        return None if n is None else f"s_waitcnt {self.name}({n})"
    def drain(self): self.q = []
```

```python
from asmlib import *
MB = 1 << 20
WS_XN   = 0
WS_KV   = 2 * MB
WS_H    = 34 * MB
WS_CTX  = 40 * MB
WS_PART = 56 * MB
WS_QST  = 72 * MB
WS_END  = 96 * MB
KA = dict(x=0, ckv=8, wq=16, wuk=24, wuv=32, wo=40, bx=48, w1=56, b1=64, w2=72, b2=80, out=88, dbg=96, ws=104)

def mf(d, A, B, C): return f"v_mfma_f32_16x16x32_bf16 {d}, {A}, {B}, {C}"

def order_gap(lst):
    def key(t):
        op = t.split()[0]
        if op.startswith("s_"): return 0
        if op.startswith("ds_") or op.startswith("buffer_") or op.startswith("global_"): return 1
        return 2
    return sorted(lst, key=key)

def emit_spine(A, mfmas, gaps, keep_order=False):
    for i, m in enumerate(mfmas):
        A.I(m)
        g = gaps[i] if keep_order else order_gap(gaps[i])
        for x in g: A.I(x)

def srd(A, dst, ptr, nbytes):
    A.I(f"s_mov_b32 s{dst}, s{ptr}")
    A.I(f"s_mov_b32 s{dst+1}, s{ptr+1}")
    A.I(f"s_mov_b32 s{dst+2}, {nbytes}")
    A.I(f"s_mov_b32 s{dst+3}, 0x20000")

def kd(name, vgpr=512, accum=256, sgpr=96):
    return f""".p2align 6
.amdhsa_kernel {name}
  .amdhsa_next_free_vgpr {vgpr}
  .amdhsa_next_free_sgpr {sgpr}
  .amdhsa_accum_offset {accum}
  .amdhsa_group_segment_fixed_size 0
  .amdhsa_kernarg_size 112
  .amdhsa_user_sgpr_count 2
  .amdhsa_user_sgpr_kernarg_segment_ptr 1
  .amdhsa_system_sgpr_workgroup_id_x 1
  .amdhsa_float_denorm_mode_32 3
  .amdhsa_float_denorm_mode_16_64 3
.end_amdhsa_kernel
"""

def header(A, name):
    A.I(f".globl {name}")
    A.I(".p2align 8")
    A.I(f".type {name},@function")
    A.label(name)

def row_allreduce32(A, x, t, op="v_add_f32"):
    for r in (8, 4, 2, 1):
        A.I("s_nop 1")
        A.I(f"{op} {v(x)}, {v(x)}, {v(x)} row_ror:{r}")
    A.I(f"v_mov_b32 {v(t)}, {v(x)}")
    A.I("s_nop 1")
    A.I(f"v_permlane16_swap_b32 {v(x)}, {v(t)}")
    A.I("s_nop 1")
    A.I(f"{op} {v(x)}, {v(x)}, {v(t)}")

WS_STAMP = 200 * MB
class Stamps:
    def __init__(self, A, on, kidx): self.A = A; self.on = on; self.n = 0; self.kidx = kidx
    def stamp(self):
        if not self.on: return
        self.A.I(f"s_memrealtime s[{64+2*self.n}:{65+2*self.n}]")
        self.n += 1
        assert self.n <= 14
    def cyc(self):
        if not self.on: return
        self.A.I(f"s_memtime s[{64+2*self.n}:{65+2*self.n}]")
        self.n += 1
    def flush(self, ws_ptr, wave_sgpr):
        if not self.on: return
        A = self.A
        A.I("s_waitcnt vmcnt(0)")
        self.stamp()
        A.I("s_waitcnt lgkmcnt(0)")
        A.I(f"s_mov_b32 s96, s{ws_ptr}")
        A.I(f"s_mov_b32 s97, s{ws_ptr+1}")
        A.I(f"s_mov_b32 s98, {256*MB}")
        A.I("s_mov_b32 s99, 0x20000")
        A.I("s_lshl_b32 s94, s2, 2")
        A.I(f"s_add_u32 s94, s94, s{wave_sgpr}")
        A.I("s_lshl_b32 s94, s94, 6")
        A.I(f"s_add_u32 s94, s94, {WS_STAMP + self.kidx*MB}")
        A.I("v_mov_b32 v1, 0")
        for i in range(self.n):
            A.I(f"v_mov_b32 v0, s{64+2*i}")
            A.I(f"buffer_store_dword v0, v1, s[96:99], s94 offen offset:{4*i}")
WS_FLAG = 92 * MB
```

```python
from common import *

def gen_k1(name="kvproj_kernel", code_bytes=32768, prof=False):
    A = Asm(); ST = Stamps(A, prof, 0)
    vm = Cnt("vmcnt", 63); lg = Cnt("lgkmcnt", 15)
    header(A, name)
    A.I("s_cmp_ge_u32 s2, 256")
    A.I(f"s_cbranch_scc1 L_{name}_end")
    ST.stamp()
    A.I(f"s_load_dwordx4 s[4:7], s[0:1], {KA['x']}")
    A.I(f"s_load_dwordx4 s[8:11], s[0:1], {KA['wuk']}")
    A.I(f"s_load_dwordx2 s[12:13], s[0:1], {KA['ws']}")
    A.I("s_getpc_b64 s[50:51]")
    A.I("v_and_b32 v1, 63, v0")
    A.I("v_lshrrev_b32 v248, 6, v0")
    A.I("s_and_b32 s37, s2, 7")
    A.I("v_readfirstlane_b32 s36, v248")
    A.I("s_lshr_b32 s39, s2, 3")
    A.I("s_lshl_b32 s37, s37, 2")
    A.I("s_and_b32 s47, s39, 3")
    A.I("s_add_u32 s37, s37, s47")
    A.I("s_lshr_b32 s38, s39, 2")
    A.I("v_lshlrev_b32 v3, 4, v1")
    A.I("s_lshl_b32 s47, s39, 2")
    A.I("s_add_u32 s47, s47, s36")
    A.I("s_lshl_b32 s47, s47, 10")
    A.I(f"s_and_b32 s47, s47, {code_bytes-1}")
    A.I("v_add_u32 v249, s47, v3")
    A.I("global_load_dwordx4 v[252:255], v249, s[50:51]"); vm.issue("pf")
    A.I("v_and_b32 v248, 15, v1")
    A.I("v_lshrrev_b32 v249, 4, v1")
    A.I("v_and_b32 v250, 7, v1")
    A.I("v_xor_b32 v250, v250, v249")
    A.I("v_lshrrev_b32 v251, 3, v1")
    A.I("v_lshlrev_b32 v251, 10, v251")
    A.I("v_lshl_add_u32 v208, v250, 4, v251")
    A.I("v_xor_b32 v250, 4, v250")
    A.I("v_lshl_add_u32 v209, v250, 4, v251")
    A.I(f"v_add_u32 v210, {2*(8192-1024)}, v208")
    A.I(f"v_add_u32 v211, {3*(8192-1024)}, v209")
    A.I(f"v_add_u32 v209, {8192-1024}, v209")
    A.I("v_lshrrev_b32 v250, 1, v248")
    A.I("v_xor_b32 v250, v250, v249")
    A.I("s_lshl_b32 s47, s36, 13")
    A.I("v_lshlrev_b32 v251, 7, v248")
    A.I("v_add_u32 v251, s47, v251")
    A.I("v_lshl_add_u32 v212, v250, 4, v251")
    A.I("v_xor_b32 v250, 4, v250")
    A.I("v_lshl_add_u32 v213, v250, 4, v251")
    A.I("v_add_u32 v214, 0x10000, v212")
    A.I("v_add_u32 v215, 0x10000, v213")
    A.I("v_lshrrev_b32 v250, 1, v248")
    A.I("v_xor_b32 v250, v250, v249")
    A.I("v_and_b32 v251, 1, v248")
    A.I("v_lshlrev_b32 v251, 4, v251")
    A.I("v_lshl_add_u32 v251, v249, 13, v251")
    A.I("v_lshl_add_u32 v4, v250, 5, v251")
    A.I(f"v_add_u32 v5, {32768-1024}, v4")
    A.I("v_xor_b32 v250, 4, v250")
    A.I("v_lshl_add_u32 v6, v250, 5, v251")
    A.I(f"v_add_u32 v6, {2*(32768-1024)}, v6")
    A.I(f"v_add_u32 v7, {32768-1024}, v6")
    A.I("v_bfe_u32 v248, v1, 2, 2")
    A.I("v_lshlrev_b32 v250, 3, v249")
    A.I("v_add_u32 v250, v250, v248")
    A.I("v_lshlrev_b32 v250, 8, v250")
    A.I("v_and_b32 v251, 3, v1")
    A.I("v_lshl_add_u32 v250, v251, 3, v250")
    A.I("v_add_u32 v250, 98304, v250")
    A.I("v_and_b32 v251, 1, v249")
    A.I("v_lshl_add_u32 v248, v251, 2, v248")
    for nb in range(8):
        A.I(f"v_xor_b32 v251, {nb}, v248")
        A.I(f"v_lshl_add_u32 v{8+nb}, v251, 5, v250")
    A.I("s_waitcnt lgkmcnt(0)")
    srd(A, 16, 4, 2*MB); srd(A, 20, 6, 2*MB); srd(A, 24, 8, 4*MB); srd(A, 28, 10, 4*MB); srd(A, 32, 12, WS_END)
    A.I("s_lshl_b32 s47, s2, 3")
    A.I("s_lshl_b32 s48, s36, 1")
    A.I("s_add_u32 s47, s47, s48")
    A.I("v_lshrrev_b32 v248, 5, v1")
    A.I("v_add_u32 v248, s47, v248")
    A.I("v_and_b32 v249, 31, v1")
    A.I("v_lshlrev_b32 v250, 10, v248")
    A.I("v_lshl_add_u32 v250, v249, 4, v250")
    A.I("buffer_load_dwordx4 v[144:147], v250, s[16:19], 0 offen"); vm.issue("x")
    A.I("buffer_load_dwordx4 v[148:151], v250, s[16:19], 0 offen offset:512"); vm.issue("x")
    A.I("v_lshrrev_b32 v250, 4, v248")
    A.I("v_lshlrev_b32 v250, 14, v250")
    A.I("v_lshrrev_b32 v251, 2, v249")
    A.I("v_lshl_add_u32 v250, v251, 10, v250")
    A.I("v_and_b32 v251, 3, v249")
    A.I("v_lshl_add_u32 v250, v251, 8, v250")
    A.I("v_and_b32 v251, 15, v248")
    A.I("v_lshl_add_u32 v240, v251, 4, v250")
    A.I("v_mov_b32 v184, 0"); A.I("v_mov_b32 v185, 0"); A.I("v_mov_b32 v186, 0"); A.I("v_mov_b32 v187, 0")
    A.I("v_cmp_eq_u32 vcc, 0, v0")
    A.I("v_mov_b32 v188, 0x40000000")
    A.I("s_and_b32 s47, s2, 63")
    A.I("v_cndmask_b32 v188, v188, v184, vcc")
    A.I("s_lshl_b32 s47, s47, 8")
    A.I(f"s_add_u32 s47, s47, {WS_FLAG}")
    A.I("buffer_store_dwordx4 v[184:187], v188, s[32:35], s47 offen"); vm.issue("fl")
    A.I("s_lshl_b32 s40, s38, 8")
    A.I("s_lshl_b32 s47, s36, 6")
    A.I("s_add_u32 s40, s40, s47")
    A.I("s_lshl_b32 s40, s40, 10")
    A.I("s_lshl_b32 s41, s36, 13")
    A.I("s_lshl_b32 s44, s36, 17")
    A.I("s_lshl_b32 s47, s37, 8")
    A.I("s_add_u32 s44, s44, s47")
    A.I("s_lshl_b32 s45, s36, 12")
    A.I("s_lshl_b32 s46, s37, 5")
    A.I("s_lshl_b32 s47, s38, 2")
    A.I("s_add_u32 s46, s46, s47")
    A.I("s_add_u32 s46, s46, s36")
    A.I("s_lshl_b32 s46, s46, 15")
    A.I(f"s_add_u32 s46, s46, {WS_KV}")

    def wdma(which, t, slot):
        sr = 24 if which == "k" else 28
        pre = [f"s_add_u32 m0, s45, {slot*16384}", f"s_add_u32 s49, s44, {t*64*8192}"]
        d = [f"buffer_load_dwordx4 v{4+j}, s[{sr}:{sr+3}], s49 offen offset:{j*1024} lds" for j in range(4)]
        return pre, d
    def cdma(t):
        r = []
        for i in range(8):
            pre = None
            if i % 4 == 0:
                pre = [f"s_add_u32 m0, s41, {(t%3)*32768 + (i//4)*4096}", f"s_add_u32 s49, s40, {t*128 + (i//4)*32768}"]
            r.append((pre, f"buffer_load_dwordx4 v{208+i%4}, s[20:23], s49 offen offset:{(i%4)*1024} lds"))
        return r
    def ccopy(t):
        r = []
        for kk in range(2):
            for kb in range(4):
                st_ = t % 3
                areg = (212 if st_ < 2 else 214) + kk
                off = (st_ % 2)*32768 + kb*2048
                r.append(f"ds_read_b128 {a((kb*16+2*t+kk)*4,4)}, v{areg} offset:{off}")
        return r
    def issue_c(t):
        for pre, d in cdma(t):
            if pre:
                for x in pre: A.I(x)
                A.I("s_nop 0")
            A.I(d); vm.issue(f"C{t}")
    def issue_w(t):
        pre, d = wdma("k", t, 6 + t % 4)
        for x in pre: A.I(x)
        A.I("s_nop 0")
        for x in d: A.I(x); vm.issue(f"Wk{t}")
    issue_w(0); issue_c(0); issue_w(1); issue_c(1); issue_w(2); issue_c(2); issue_w(3)
    ST.stamp()
    A.I(vm.wait("x"))
    X = 152
    for i in range(8):
        A.I(f"v_lshlrev_b32 v{X+2*i}, 16, v{144+i}")
        A.I(f"v_and_b32 v{X+2*i+1}, 0xffff0000, v{144+i}")
    A.I(f"v_add_f32 v170, v{X}, v{X+1}")
    A.I(f"v_add_f32 v171, v{X+2}, v{X+3}")
    for i in range(4, 16, 2):
        A.I(f"v_add_f32 v170, v170, v{X+i}")
        A.I(f"v_add_f32 v171, v171, v{X+i+1}")
    A.I("v_add_f32 v170, v170, v171")
    row_allreduce32(A, 170, 171)
    A.I("v_mul_f32 v170, 0x3b000000, v170")
    A.I("v_mov_b32 v172, 0")
    A.I("v_mov_b32 v173, 0")
    for i in range(16):
        A.I(f"v_sub_f32 v174, v{X+i}, v170")
        A.I(f"v_fmac_f32 v{172+i%2}, v174, v174")
    A.I("v_add_f32 v172, v172, v173")
    row_allreduce32(A, 172, 171)
    A.I("v_mul_f32 v172, 0x3b000000, v172")
    A.I("v_cvt_pk_bf16_f32 v170, v170, v172")
    A.I("v_and_b32 v172, 0xffff0000, v170")
    A.I("v_lshlrev_b32 v170, 16, v170")
    A.I("v_add_f32 v172, 0x3727c5ac, v172")
    A.I("v_cvt_pk_bf16_f32 v172, v172, v172")
    A.I("v_lshlrev_b32 v172, 16, v172")
    A.I("v_sqrt_f32 v172, v172")
    A.I("s_nop 0")
    A.I("v_cvt_pk_bf16_f32 v172, v172, v172")
    A.I("v_lshlrev_b32 v172, 16, v172")
    A.I("v_rcp_f32 v172, v172")
    for i in range(16):
        A.I(f"v_sub_f32 v{X+i}, v{X+i}, v170")
    for i in range(8):
        A.I(f"v_cvt_pk_bf16_f32 v{144+i}, v{X+2*i}, v{X+2*i+1}")
    for i in range(8):
        A.I(f"v_lshlrev_b32 v{X+2*i}, 16, v{144+i}")
        A.I(f"v_and_b32 v{X+2*i+1}, 0xffff0000, v{144+i}")
        A.I(f"v_mul_f32 v{X+2*i}, v{X+2*i}, v172")
        A.I(f"v_mul_f32 v{X+2*i+1}, v{X+2*i+1}, v172")
    for i in range(8):
        A.I(f"v_cvt_pk_bf16_f32 v{176+i}, v{X+2*i}, v{X+2*i+1}")
    A.I("buffer_store_dwordx4 v[176:179], v240, s[32:35], 0 offen"); vm.issue("xs")
    A.I("s_mov_b32 s47, 8192")
    A.I("buffer_store_dwordx4 v[180:183], v240, s[32:35], s47 offen"); vm.issue("xs")

    WF = 144
    def wfrag(db, kk): return WF + (db*2+kk)*4
    def tr(dst, areg, off): return f"ds_read_b64_tr_b16 {v(dst,2)}, v{areg} offset:{off}"
    def reads1(t, db):
        r = []
        for kk in range(2):
            off = (t % 4)*16384 + kk*8192
            r.append(tr(wfrag(db,kk), 8+db, off))
            r.append(tr(wfrag(db,kk)+2, 8+db, off+1024))
        return r
    accK = lambda db, kb: 16 + (db*4+kb)*4
    ST.stamp()
    A.I(vm.wait("C0"))
    A.I("s_barrier")
    for x in ccopy(0): A.I(x); lg.issue("c0")
    for db in range(7):
        for x in reads1(0, db): A.I(x); lg.issue(f"R0_{db}")
    A.I(lg.wait("c0"))
    issue_c(3)
    vslot = lambda tt: [4,5,6,0,1,7,2,3][tt]
    def p2addr(G):
        p, ksg, dbl = G//8, (G//2) % 4, G % 2
        return p, ksg, dbl
    def p2areg(p, dbl, win): return 240 + (p % 2)*4 + dbl*2 + win
    def reads2(G):
        p, ksg, dbl = p2addr(G)
        r = []
        for k4 in range(4):
            ks = ksg*4 + k4
            byte = vslot(ks//2)*16384 + (ks % 2)*8192
            win = byte // 65536; off = byte % 65536
            dst = WF + (G % 4)*16 + k4*4
            r.append(tr(dst, p2areg(p, dbl, win), off))
            r.append(tr(dst+2, p2areg(p, dbl, win), off+1024))
        return r
    def p2setup(p, base_shift):
        r = []
        for dbl in range(2):
            for win in (0, 1):
                r.append(f"v_subrev_u32 v{p2areg(p,dbl,win)}, {98304 - win*65536}, v{8+2*p+dbl}")
        return r
    plan = {0: [("c",4)], 1: [("k",4),("c",5)], 2: [("k",5),("c",6)], 3: [("k",6),("c",7)],
            4: [("k",7)], 5: [("v",0),("v",1),("v",2)], 6: [("v",3),("v",4),("v",5)], 7: [("v",6),("v",7)]}
    for t in range(8):
        M = []
        for db in range(8):
            for kb in range(4):
                for kk in range(2):
                    c = v(accK(db,kb),4)
                    M.append(mf(c, v(wfrag(db,kk),4), a((kb*16+2*t+kk)*4,4), "0" if (t==0 and kk==0) else c))
        w = lg.wait([f"R{t}_0", f"c{t}"])
        if w: A.I(w)
        if t in (0, 2, 4, 6): ST.stamp()
        ops = []
        if t < 7:
            ops += [("ds", x, f"c{t+1}", None) for x in ccopy(t+1)]
        for it in plan[t]:
            if it[0] == "c":
                for j, (pre, d) in enumerate(cdma(it[1])):
                    ops.append(("cd0" if j == 0 else "vm", d, f"C{it[1]}", pre))
            else:
                which, tt = it
                pre, d = wdma(which, tt, 6 + tt % 4 if which == "k" else vslot(tt))
                ops += [("vm", x, f"W{which}{tt}", pre if j == 0 else None) for j, x in enumerate(d)]
        odd = [g for g in range(9, 64) if g % 2 == 1]
        assert len(ops) <= len(odd)
        vpos = {}
        for i, op in enumerate(ops):
            vpos[odd[i + (4 if (t == 0 and i >= 8) else 0)] if t < 4 else odd[(i*len(odd))//len(ops)]] = op
        for g in range(64):
            db = g // 8; q = g % 8
            A.I(M[g])
            if g == 7:
                if t < 7: w = vm.wait([f"Wk{t+1}", f"C{t+1}"])
                else: w = vm.wait(["Wv0", "Wv1", "Wv2", "Wv3"])
                if w: A.I(w)
                A.I("s_barrier")
            if g+1 in vpos and vpos[g+1][3]:
                for x in vpos[g+1][3]: A.I(x)
            if g+1 in vpos and vpos[g+1][0] == "cd0":
                w = lg.wait(f"c{t+1}")
                if w: A.I(w)
            if q == 7 and db < 7:
                w = lg.wait(f"R{t}_{db+1}")
                if w: A.I(w)
            if q % 2 == 0:
                rd = None
                if db == 0: rd = (reads1(t, 7)[q//2], f"R{t}_7")
                elif t < 7: rd = (reads1(t+1, db-1)[q//2], f"R{t+1}_{db-1}")
                elif db >= 2:
                    G = (db-2)//2
                    rd = (reads2(G)[((db-2) % 2)*4 + q//2], f"S{G}")
                if rd:
                    A.I(rd[0]); lg.issue(rd[1])
                if t == 7 and db == 1 and q == 0:
                    for x in p2setup(0, 0): A.I(x)
            if g in vpos:
                A.I(vpos[g][1])
                (lg if vpos[g][0] == "ds" else vm).issue(vpos[g][2])
    ST.stamp()
    def cvt_frag(r0, r1):
        return [f"v_cvt_pk_bf16_f32 v{r0}, v{r0}, v{r0+1}", f"v_cvt_pk_bf16_f32 v{r0+1}, v{r0+2}, v{r0+3}",
                f"v_cvt_pk_bf16_f32 v{r0+2}, v{r1}, v{r1+1}", f"v_cvt_pk_bf16_f32 v{r0+3}, v{r1+2}, v{r1+3}"]
    def store_frag(r0, f):
        return [f"s_add_u32 s47, s46, {(f>>2)*4096}", f"buffer_store_dwordx4 {v(r0,4)}, v3, s[32:35], s47 offen offset:{(f&3)*1024}"]
    accV = lambda p, dbl, kb: (208 if p % 2 == 0 else 16) + (dbl*4+kb)*4
    epi = {}
    kj = [(accK(2*s_,kb), accK(2*s_+1,kb), kb*4+s_) for s_ in range(4) for kb in range(4)]
    for i, job in enumerate(kj): epi.setdefault(i//2, []).append(job)
    for p in range(3):
        vj = [(accV(p,dbl,2*j), accV(p,dbl,2*j+1), 16 + j*8 + 2*p+dbl) for dbl in range(2) for j in range(2)]
        for i, job in enumerate(vj): epi.setdefault((p+1)*8 + 1 + i, []).append(job)
    for G in range(32):
        p, ksg, dbl = p2addr(G)
        M = []
        for kb in range(4):
            for k4 in range(4):
                ks = ksg*4+k4
                c = v(accV(p,dbl,kb),4)
                M.append(mf(c, a((kb*16+ks)*4,4), v(WF + (G%4)*16 + k4*4,4), "0" if ks == 0 else c))
        w = lg.wait(f"S{G}")
        if w: A.I(w)
        jobs = epi.get(G, [])
        cv = []; st = {}
        for i, (r0, r1, f) in enumerate(jobs):
            cv += cvt_frag(r0, r1)
            st[7 + 8*i if len(jobs) > 1 else 9] = store_frag(r0, f)
        for g in range(16):
            A.I(M[g])
            if G == 0 and g == 15:
                w = vm.wait("Wv5")
                if w: A.I(w)
                A.I("s_barrier")
            if G == 2 and g == 15:
                w = vm.wait("Wv7")
                if w: A.I(w)
                A.I("s_barrier")
            if g in st: A.I(st[g][0])
            if g % 2 == 0 and G+3 < 32:
                A.I(reads2(G+3)[g//2]); lg.issue(f"S{G+3}")
            if g in st:
                A.I(st[g][1]); vm.issue("st")
            if len(jobs) > 1:
                if g % 2 == 0 and g < 8: A.I(cv[g//2])
                elif g % 2 == 0: A.I(cv[4 + (g-8)//2])
            elif len(jobs) == 1 and g % 2 == 0 and g < 8:
                A.I(cv[g//2])
            if (G+4) % 8 == 0 and G+4 < 32 and g in (1, 3, 5, 11):
                A.I(p2setup((G+4)//8, 0)[(1,3,5,11).index(g)])
    ST.stamp()
    A.I("s_nop 7")
    for dbl in range(2):
        for j in range(2):
            r0, r1 = accV(3,dbl,2*j), accV(3,dbl,2*j+1)
            for x in cvt_frag(r0, r1): A.I(x)
            for x in store_frag(r0, 16 + j*8 + 6+dbl): A.I(x)
    ST.flush(12, 36)
    A.label(f"L_{name}_end")
    A.I("s_endpgm")
    return A
```

```python
from common import *
import math, struct
def f2u(x): return struct.unpack("<I", struct.pack("<f", x))[0]

QSCALE = f2u(math.log2(math.e) / math.sqrt(128.0))
G1 = f2u(-2.0 * math.log2(math.e) * math.sqrt(2.0 / math.pi))
G2 = f2u(-2.0 * math.log2(math.e) * math.sqrt(2.0 / math.pi) * 0.044715)
LTHR = f2u(2.0 ** 62)
OOB = 0x40000000

V_LANE, V_L16, V_K, V_V = 1, 2, 3, 19
accQ = lambda db, qb: 32 + (db*4+qb)*4
accF = lambda fb, qb: 160 + (fb*4+qb)*4
Qf = lambda qb, s_: accQ(2*s_, qb)
def Sreg(buf, kbl, qb):
    i = buf*8 + kbl*4 + qb
    return accQ(2*(i//4)+1, i % 4)
Preg = lambda buf, qb: 208 + buf*16 + qb*4
NEGM = lambda qb: 240 + qb*4
TMP = 160
Oreg = lambda db, qb: (db*4+qb)*4
VA, KA_, VB, KB = 128, 144, 160, 176
Lreg = lambda qb: 192 + qb*4
ONES = 208
S_WAVE, S_H, S_T, S_I = 36, 37, 38, 39
S_KVB = 40
S_W4K = 41
S_K0, S_V0, S_K1, S_V1 = 42, 43, 44, 45
S_AK, S_AV = 46, 47
S_STRM = 48
S_T2 = 49
S_TMP, S_TMP2 = 50, 51
S_RET = 52
S_CNT = 54
S_FAIL = 55
S_Q0 = 56
S_QA = 57
S_MASK = 8
S_MK, S_MV = 58, 59
S_SAFE = 60
SRD_WS, SRD_WQ, SRD_W1, SRD_B1 = 16, 20, 24, 28
WRING = 61440; WSLOT = 25600

def dma4(soff, m0expr):
    return [f"buffer_load_dwordx4 v{V_L16}, s[{SRD_WS}:{SRD_WS+3}], s{soff} offen offset:{j*1024} lds" for j in range(4)]

def tile_calc(dst, nadd, strm, voff):
    r = [f"s_add_u32 s{S_TMP}, s{S_I}, {nadd}",
         f"s_lshl_b32 s{S_TMP2}, s{S_TMP}, 1",
         f"s_sub_u32 s{S_TMP2}, s{S_TMP2}, s{S_T2}",
         f"s_add_i32 s{S_TMP2}, s{S_TMP2}, {strm-2}",
         f"s_add_u32 s{dst}, s{S_T2}, 2",
         f"s_cmp_lt_u32 s{S_TMP}, s{dst}"]
    if strm == 0:
        r += [f"s_cselect_b32 s{S_TMP2}, s{S_TMP}, s{S_TMP2}"]
    else:
        r += [f"s_cselect_b32 s{S_TMP2}, 0x8000, s{S_TMP2}"]
    r += [f"s_cmp_gt_u32 s{S_TMP}, 16",
          f"s_cselect_b32 s{S_TMP2}, 0x8000, s{S_TMP2}",
          f"s_lshl_b32 s{S_TMP2}, s{S_TMP2}, 15",
          f"s_add_u32 s{dst}, s{S_TMP2}, s{S_KVB}"]
    if voff: r += [f"s_add_u32 s{dst}, s{dst}, {voff}"]
    return r

def lds_calc():
    return [f"s_and_b32 s{S_TMP}, s{S_I}, 1",
            f"s_lshl_b32 s{S_TMP}, s{S_TMP}, 14",
            f"s_add_u32 s{S_TMP2}, s{S_I}, 2",
            f"s_sub_u32 s{S_TMP2}, s{S_TMP2}, s{S_T2}",
            f"s_cmp_ge_i32 s{S_TMP2}, 2",
            f"s_cselect_b32 s{S_AK}, s{S_STRM}, 0",
            f"s_add_u32 s{S_AK}, s{S_AK}, s{S_TMP}",
            f"s_cmp_ge_i32 s{S_TMP2}, 3",
            f"s_cselect_b32 s{S_AV}, s{S_STRM}, 0",
            f"s_xor_b32 s{S_TMP2}, s{S_TMP}, 0x4000",
            f"s_add_u32 s{S_AV}, s{S_AV}, s{S_TMP2}",
            f"s_add_u32 s{S_AV}, s{S_AV}, 0x8000",
            f"s_add_u32 s{S_MK}, s{S_TMP2}, s{S_W4K}",
            f"s_add_u32 s{S_MV}, s{S_TMP}, s{S_W4K}",
            f"s_add_u32 s{S_MV}, s{S_MV}, 0x8000"]

def rdfrag(dst, areg, f): return f"ds_read_b128 {a(dst,4)}, v{areg} offset:{f*1024}"

def body(A, qk, pv, first, adma, lg):
    for per in range(2):
        spine = [None]*68; gaps = [[] for _ in range(68)]
        pre = [[] for _ in range(68)]
        eb = 1 - per
        etype = pv if per == 0 else qk
        if pv:
            qbs = [2, 3] if (pv == "diag" and per == 1) else [0, 1, 2, 3]
            cz = first and per == 0
            for qb in qbs:
                d = a(Lreg(qb), 4)
                spine[qb] = mf(d, a(ONES, 4), v(Preg(per, qb), 4), "0" if cz else d)
                for db in range(8):
                    d = a(Oreg(db, qb), 4)
                    fr = (VA if db < 4 else VB) + (db % 4)*4
                    spine[(4 if db < 4 else 36) + (db % 4)*4 + qb] = mf(d, a(fr, 4), v(Preg(per, qb), 4), "0" if cz else d)
        if qk:
            for kbl in range(2):
                kb = per*2 + kbl
                for qb in range(4):
                    if qk == "diag" and kb > qb: continue
                    for s_ in range(4):
                        d = v(Sreg(per, kbl, qb), 4)
                        spine[(20 if kbl == 0 else 52) + qb*4 + s_] = mf(d, a((KA_ if kbl == 0 else KB) + s_*4, 4), v(Qf(qb, s_), 4), v(NEGM(qb), 4) if s_ == 0 else d)
        if etype:
            ehalf = 1 if per == 0 else 0
            for e in range(32):
                qb, kbl, r = e//8, (e//4) % 2, e % 4
                kb = ehalf*2 + kbl
                reg = Sreg(eb, kbl, qb) + r
                if etype == "diag" and ehalf == 1 and qb < 2: continue
                if etype == "diag" and kb > qb:
                    gaps[2*e].append(f"v_mov_b32 v{reg}, 0")
                else:
                    gaps[2*e].append(f"v_exp_f32 v{reg}, v{reg}")
                    if etype == "diag" and kb == qb:
                        gaps[2*e+1].append(f"v_cndmask_b32 v{reg}, 0, v{reg}, s[{S_MASK+2*r}:{S_MASK+2*r+1}]")
            for c in range(16):
                qb, k = c//4, c % 4
                if etype == "diag" and ehalf == 1 and qb < 2: continue
                src = Sreg(eb, k//2, qb) + (k % 2)*2
                gaps[4*c+3].append(f"v_cvt_pk_bf16_f32 v{Preg(eb,qb)+k}, v{src}, v{src+1}")
        kbpos = [3, 7, 11, 15] if per == 0 else [1, 3, 5, 7]
        rd = {}
        for i in range(4):
            rd[kbpos[i]] = (rdfrag(KB + 4*i, V_K, (per*2+1)*4 + i), "KB")
            rd[23+4*i] = (rdfrag(VA + 4*i, V_V, (1-per)*8 + i), "VA")
            rd[39+4*i] = (rdfrag(KA_ + 4*i, V_K, ((1-per)*2)*4 + i), "KA")
            rd[55+4*i] = (rdfrag(VB + 4*i, V_V, (1-per)*8 + 4 + i), "VB")
        waits = {2: "VA", 18: "KA", 34: "VB", 50: "KB"}
        dm = {}
        salu = []
        if per == 0:
            if adma:
                for i, x in enumerate(dma4(S_K1, None)): dm[5+4*i] = x
                for i, x in enumerate(dma4(S_V1, None)): dm[21+4*i] = x
                pre[4].append(f"s_add_u32 m0, s{S_MK}, 0x10000")
                pre[20].append(f"s_add_u32 m0, s{S_MV}, 0x10000")
            salu = tile_calc(S_K0, 3, 0, 0) + tile_calc(S_V0, 2, 0, 16384)
            spos = [g for g in range(22, 64, 2) if g not in (34, 50)] + [64, 65, 65, 66, 66]
        else:
            for i, x in enumerate(dma4(S_K0, None)): dm[25+4*i] = x
            for i, x in enumerate(dma4(S_V0, None)): dm[41+4*i] = x
            pre[24].append(f"s_mov_b32 m0, s{S_MK}")
            pre[40].append(f"s_mov_b32 m0, s{S_MV}")
            lc = lds_calc()
            for i, x in enumerate(lc): pre[[0,4,6,8,9,9,10,11,12,13,13,14,16,17,17][i]].append(x)
            salu = tile_calc(S_K1, 3, 1, 0) + tile_calc(S_V1, 2, 1, 16384) + [f"s_add_u32 s{S_I}, s{S_I}, 1"]
            spos = [g for g in range(26, 64, 2) if g not in (34, 40, 50)] + [57, 57, 61, 61, 64, 65, 65, 66, 66]
            spos.sort()
        assert len(salu) <= len(spos), (len(salu), len(spos))
        for i, x in enumerate(salu): pre[spos[i]].append(x)
        for g in range(68):
            if spine[g]: A.I(spine[g])
            for x in pre[g]: A.I(x)
            if g in waits:
                w = lg.wait(waits[g])
                if w: A.I(w)
            if per == 1 and g == 19:
                A.I("s_waitcnt vmcnt(0) lgkmcnt(0)"); lg.drain()
                A.I("s_barrier")
            if per == 1 and g == 21:
                A.I(f"v_add_u32 v{V_K}, s{S_AK}, v{V_L16}")
                A.I(f"v_add_u32 v{V_V}, s{S_AV}, v{V_L16}")
            if g in rd:
                A.I(rd[g][0]); lg.issue(rd[g][1])
            if g in dm: A.I(dm[g])
            for x in gaps[g]: A.I(x)

def entry_lg():
    lg = Cnt("lgkmcnt", 15)
    for t in ["VA"]*4 + ["KA"]*4 + ["VB"]*4: lg.issue(t)
    return lg

def gen_k2(name="attn_kernel", code_bytes=65536, prof=False):
    A = Asm(); ST = Stamps(A, prof, 1)
    vm = Cnt("vmcnt", 63); lg = Cnt("lgkmcnt", 15)
    L = lambda x: f"L_{name}_{x}"
    header(A, name)
    A.I("s_cmp_ge_u32 s2, 256")
    A.I(f"s_cbranch_scc1 {L('end')}")
    ST.stamp()
    A.I(f"s_load_dwordx2 s[4:5], s[0:1], {KA['wq']}")
    A.I(f"s_load_dwordx4 s[8:11], s[0:1], {KA['w1']}")
    A.I(f"s_load_dwordx2 s[6:7], s[0:1], {KA['ws']}")
    A.I("s_getpc_b64 s[62:63]")
    A.I(f"s_mov_b32 s{S_SAFE}, 0")
    A.I(f"v_and_b32 v{V_LANE}, 63, v0")
    A.I("v_lshrrev_b32 v208, 6, v0")
    A.I(f"s_and_b32 s{S_H}, s2, 7")
    A.I(f"v_readfirstlane_b32 s{S_WAVE}, v208")
    A.I(f"s_lshr_b32 s{S_TMP}, s2, 3")
    A.I(f"s_lshl_b32 s{S_H}, s{S_H}, 2")
    A.I(f"s_and_b32 s{S_TMP2}, s{S_TMP}, 3")
    A.I(f"s_add_u32 s{S_H}, s{S_H}, s{S_TMP2}")
    A.I(f"s_lshr_b32 s{S_T}, s{S_TMP}, 2")
    A.I(f"s_lshl_b32 s{S_T2}, s{S_T}, 1")
    A.I(f"v_lshlrev_b32 v{V_L16}, 4, v{V_LANE}")
    A.I(f"s_lshl_b32 s{S_TMP}, s{S_TMP}, 2")
    A.I(f"s_add_u32 s{S_TMP}, s{S_TMP}, s{S_WAVE}")
    A.I(f"s_lshl_b32 s{S_TMP}, s{S_TMP}, 10")
    A.I(f"s_and_b32 s{S_TMP}, s{S_TMP}, {code_bytes-1}")
    A.I(f"v_add_u32 v209, s{S_TMP}, v{V_L16}")
    A.I("global_load_dwordx4 v[252:255], v209, s[62:63]"); vm.issue("pf")
    A.I(f"s_lshl_b32 s{S_W4K}, s{S_WAVE}, 12")
    A.I(f"s_lshr_b32 s{S_STRM}, s{S_WAVE}, 1")
    A.I(f"s_lshl_b32 s{S_STRM}, s{S_STRM}, 16")
    A.I(f"s_and_b32 s{S_TMP}, s{S_WAVE}, 1")
    A.I(f"s_lshl_b32 s{S_TMP}, s{S_TMP}, 2")
    A.I(f"s_sub_u32 s{S_QA}, 15, s{S_T}")
    A.I(f"s_lshl_b32 s{S_QA}, s{S_QA}, 3")
    A.I(f"s_add_u32 s{S_QA}, s{S_QA}, s{S_TMP}")
    A.I(f"s_lshl_b32 s{S_Q0}, s{S_T}, 3")
    A.I(f"s_add_u32 s{S_Q0}, s{S_Q0}, s{S_TMP}")
    A.I(f"s_cmp_lt_u32 s{S_WAVE}, 2")
    A.I(f"s_cselect_b32 s{S_Q0}, s{S_QA}, s{S_Q0}")
    A.I(f"s_lshl_b32 s{S_KVB}, s{S_H}, 20")
    A.I(f"s_add_u32 s{S_KVB}, s{S_KVB}, s{S_W4K}")
    A.I(f"s_add_u32 s{S_KVB}, s{S_KVB}, {WS_KV}")
    A.I(f"v_and_b32 v208, 15, v{V_LANE}")
    A.I(f"v_lshrrev_b32 v209, 4, v{V_LANE}")
    A.I("v_lshrrev_b32 v210, 1, v208")
    A.I("v_xor_b32 v210, v210, v209")
    A.I("v_and_b32 v211, 1, v208")
    A.I("v_lshlrev_b32 v211, 4, v211")
    A.I("v_lshl_add_u32 v211, v209, 13, v211")
    A.I("v_lshl_add_u32 v4, v210, 5, v211")
    A.I(f"v_add_u32 v5, {32768-1024}, v4")
    A.I("v_xor_b32 v210, 4, v210")
    A.I("v_lshl_add_u32 v6, v210, 5, v211")
    A.I(f"v_add_u32 v6, {2*(32768-1024)}, v6")
    A.I(f"v_add_u32 v7, {32768-1024}, v6")
    A.I(f"v_bfe_u32 v208, v{V_LANE}, 2, 2")
    A.I("v_lshlrev_b32 v210, 3, v209")
    A.I("v_add_u32 v210, v210, v208")
    A.I("v_lshlrev_b32 v210, 8, v210")
    A.I(f"v_and_b32 v211, 3, v{V_LANE}")
    A.I("v_lshl_add_u32 v210, v211, 3, v210")
    A.I(f"v_add_u32 v210, {WRING}, v210")
    A.I("v_mul_u32_u24 v18, 1152, v209")
    A.I("v_mul_u32_u24 v212, 96, v208")
    A.I("v_add_u32 v18, v18, v212")
    A.I("v_lshl_add_u32 v18, v211, 3, v18")
    A.I(f"v_add_u32 v18, {WRING+16384}, v18")
    A.I("v_and_b32 v211, 1, v209")
    A.I("v_lshl_add_u32 v208, v211, 2, v208")
    for nb in range(8):
        A.I(f"v_xor_b32 v211, {nb}, v208")
        A.I(f"v_lshl_add_u32 v{8+nb}, v211, 5, v210")
    A.I(f"v_mul_u32_u24 v208, 43, v{V_LANE}")
    A.I("v_lshrrev_b32 v208, 8, v208")
    A.I("v_mul_u32_u24 v210, 6, v208")
    A.I(f"v_sub_u32 v210, v{V_LANE}, v210")
    A.I("v_mul_u32_u24 v16, 2752, v208")
    A.I("v_lshl_add_u32 v16, v210, 4, v16")
    A.I(f"v_cmp_gt_u32 vcc, 48, v{V_LANE}")
    A.I(f"v_mov_b32 v208, {OOB}")
    A.I("s_nop 0")
    A.I("v_cndmask_b32 v16, v208, v16, vcc")
    A.I(f"v_add_u32 v17, {8*2752-1152}, v16")
    A.I("s_waitcnt lgkmcnt(0)")
    srd(A, SRD_WS, 6, WS_END); srd(A, SRD_WQ, 4, 4*MB); srd(A, SRD_W1, 8, 512*2752); srd(A, SRD_B1, 10, 2752)
    A.label(L("restart"))
    A.I(f"v_and_b32 v208, 15, v{V_LANE}")
    A.I(f"v_lshrrev_b32 v209, 4, v{V_LANE}")
    A.I("v_lshlrev_b32 v210, 2, v209")
    for r in range(4):
        A.I(f"v_add_u32 v211, {r}, v210")
        A.I(f"v_cmp_le_u32 s[{S_MASK+2*r}:{S_MASK+2*r+1}], v211, v208")
    A.I(f"s_mul_i32 s{S_TMP}, s{S_H}, 96")
    A.I("v_lshlrev_b32 v210, 3, v209")
    for fb in range(3):
        A.I(f"buffer_load_dwordx2 v[{212+2*fb}:{213+2*fb}], v210, s[{SRD_B1}:{SRD_B1+3}], s{S_TMP} offen offset:{fb*32}"); vm.issue("b")
    A.I(f"s_lshl_b32 s32, s{S_WAVE}, 17")
    A.I(f"s_lshl_b32 s{S_TMP2}, s{S_H}, 8")
    A.I(f"s_add_u32 s32, s32, s{S_TMP2}")
    A.I(f"s_mul_i32 s33, s{S_WAVE}, {16*2752}")
    A.I(f"s_add_u32 s33, s33, s{S_TMP}")
    A.I(f"s_lshl_b32 s34, s{S_Q0}, 14")
    A.I(f"s_mul_i32 s35, s{S_WAVE}, 2304")
    def wdma(t):
        slot = WRING + (t % 4)*WSLOT
        return [([f"s_add_u32 m0, s{S_W4K}, {slot}", f"s_add_u32 s{S_TMP}, s32, {t*64*8192}"], f"buffer_load_dwordx4 v4, s[{SRD_WQ}:{SRD_WQ+3}], s{S_TMP} offen lds")] + \
               [(None, f"buffer_load_dwordx4 v{4+j}, s[{SRD_WQ}:{SRD_WQ+3}], s{S_TMP} offen offset:{j*1024} lds") for j in range(1, 4)] + \
               [([f"s_add_u32 m0, s35, {slot+16384}", f"s_add_u32 s{S_TMP}, s33, {t*64*2752}"], f"buffer_load_dwordx4 v16, s[{SRD_W1}:{SRD_W1+3}], s{S_TMP} offen lds"),
                (None, f"buffer_load_dwordx4 v17, s[{SRD_W1}:{SRD_W1+3}], s{S_TMP} offen offset:1152 lds")]
    def xload(t):
        r = []
        for qb in range(4):
            for kk in range(2):
                ks = 2*t+kk
                pre = [f"s_add_u32 s{S_TMP2}, s34, {qb*16384 + (ks>>2)*4096}"] if kk == 0 else None
                r.append((pre, f"buffer_load_dwordx4 {a((qb*16+ks)*4,4)}, v{V_L16}, s[{SRD_WS}:{SRD_WS+3}], s{S_TMP2} offen offset:{(ks&3)*1024}"))
        return r
    def kvdma(tile, voff, ldsoff):
        return [([f"s_add_u32 m0, s{S_W4K}, {ldsoff}", f"s_add_u32 s{S_TMP}, s{S_KVB}, {tile*32768+voff}"] if j == 0 else None,
                 f"buffer_load_dwordx4 v{V_L16}, s[{SRD_WS}:{SRD_WS+3}], s{S_TMP} offen offset:{j*1024} lds") for j in range(4)]
    def issue(lst, tag):
        for pre, x in lst:
            if pre:
                for y in pre: A.I(y)
                A.I("s_nop 0")
            A.I(x); vm.issue(tag)
    for t in range(4):
        issue(wdma(t), f"W{t}"); issue(xload(t), f"X{t}")
    ST.stamp()
    A.I(vm.wait("b"))
    for fb in range(3):
        for k in range(2):
            A.I(f"v_lshlrev_b32 v{20+fb*4+2*k}, 16, v{212+2*fb+k}")
            A.I(f"v_and_b32 v{21+fb*4+2*k}, 0xffff0000, v{212+2*fb+k}")
    WR = 208
    def breads(n):
        t, cb = n//11, n % 11
        r = []
        for kk in range(2):
            dst = WR + (n % 6)*8 + kk*4
            if cb < 8:
                off = (t % 2)*WSLOT + kk*8192; areg = 8+cb; h2 = 1024
            else:
                off = (t % 2)*WSLOT + kk*4608 + (cb-8)*32; areg = 18; h2 = 384
            r.append(f"ds_read_b64_tr_b16 {v(dst,2)}, v{areg} offset:{off}")
            r.append(f"ds_read_b64_tr_b16 {v(dst+2,2)}, v{areg} offset:{off+h2}")
        return r
    def bump(n):
        t, cb = n//11, n % 11
        if t % 2 == 0 and t > 0 and (cb <= 8):
            areg = 8+cb if cb < 8 else 18
            return [f"v_add_u32 v{areg}, {2*WSLOT}, v{areg}" if t % 4 == 2 else f"v_subrev_u32 v{areg}, {2*WSLOT}, v{areg}"]
        return []
    A.I(vm.wait("W0"))
    A.I("s_barrier")
    for n in range(5):
        for x in breads(n): A.I(x); lg.issue(f"R{n}")
    ST.stamp()
    pend = []
    for n in range(88):
        t, cb = n//11, n % 11
        if cb == 0:
            w = vm.wait(f"X{t}")
            if w: A.I(w)
            if t < 4: pend += [(p, x, f"X{t+4}") for p, x in xload(t+4)]
            if t == 5: pend += [(p, x, "KV0") for p, x in kvdma(0, 0, 0) + kvdma(1, 0, 16384)]
            if t == 6: pend += [(p, x, "KV0") for p, x in kvdma(0, 16384, 32768)]
        w = lg.wait(f"R{n}")
        if w: A.I(w)
        if cb == 6 and t < 7:
            w = vm.wait(f"W{t+1}")
            if w: A.I(w)
            A.I("s_barrier")
            if 1 <= t <= 4: pend = [(p, x, f"W{t+3}") for p, x in wdma(t+3)] + pend
        nx = n+5
        rds = breads(nx) if nx < 88 else []
        if nx < 88:
            for x in bump(nx): A.I(x)
        i = 0
        for qb in range(4):
            for kk in range(2):
                if cb < 8: d = v(accQ(cb, qb), 4); c0 = "0"
                else: d = v(accF(cb-8, qb), 4); c0 = v(20+(cb-8)*4, 4)
                A.I(mf(d, v(WR + (n % 6)*8 + kk*4, 4), a((qb*16+2*t+kk)*4, 4), c0 if (t == 0 and kk == 0) else d))
                if i % 2 == 0:
                    if pend and pend[0][0]:
                        for y in pend[0][0]: A.I(y)
                    if rds: A.I(rds[i//2]); lg.issue(f"R{nx}")
                elif pend and i < 7:
                    p, x, tag = pend.pop(0)
                    A.I(x); vm.issue(tag)
                i += 1
    assert not pend
    ST.stamp()
    A.I(f"s_mov_b32 s{S_TMP}, {QSCALE}")
    A.I("s_waitcnt vmcnt(0)"); vm.drain()
    A.I("s_barrier")
    A.I(f"v_mov_b32 v{V_K}, v{V_L16}")
    for kb, base in enumerate((KA_, KB, VA, VB)):
        for s_ in range(4):
            A.I(rdfrag(base+4*s_, V_K, kb*4+s_)); lg.issue(f"k{kb}")
    for s_ in range(4):
        for qb in range(4):
            r0, r1 = accQ(2*s_, qb), accQ(2*s_+1, qb)
            for r in range(4):
                A.I(f"v_mul_f32 v{r0+r}, s{S_TMP}, v{r0+r}")
                A.I(f"v_mul_f32 v{r1+r}, s{S_TMP}, v{r1+r}")
            A.I(f"v_cvt_pk_bf16_f32 v{r0}, v{r0}, v{r0+1}")
            A.I(f"v_cvt_pk_bf16_f32 v{r0+1}, v{r0+2}, v{r0+3}")
            A.I(f"v_cvt_pk_bf16_f32 v{r0+2}, v{r1}, v{r1+1}")
            A.I(f"v_cvt_pk_bf16_f32 v{r0+3}, v{r1+2}, v{r1+3}")
    A.I(f"v_and_b32 v208, 3, v{V_LANE}")
    A.I("v_cmp_eq_u32 vcc, 0, v208")
    A.I("v_mov_b32 v209, 0x3f803f80")
    A.I(f"s_mov_b32 s{S_FAIL}, 0")
    A.I("v_cndmask_b32 v208, 0, v209, vcc")
    for i in range(4): A.I(f"v_accvgpr_write_b32 a{ONES+i}, v208")
    A.I(f"s_lshl_b32 s61, s2, 1")
    A.I(f"s_and_b32 s{S_TMP}, s{S_WAVE}, 1")
    A.I(f"s_add_u32 s61, s61, s{S_TMP}")
    A.I(f"s_lshl_b32 s61, s61, 15")
    A.I(f"s_add_u32 s61, s61, {WS_QST}")
    A.I(f"s_cmp_ge_u32 s{S_WAVE}, 2")
    A.I(f"s_cbranch_scc1 {L('nostash')}")
    for qb in range(4):
        A.I(f"s_add_u32 s{S_TMP}, s61, {qb*4096}")
        for s_ in range(4):
            A.I(f"buffer_store_dwordx4 {v(Qf(qb,s_),4)}, v{V_L16}, s[{SRD_WS}:{SRD_WS+3}], s{S_TMP} offen offset:{s_*1024}")
    A.label(L("nostash"))
    gel = []
    A.I(f"s_mov_b32 s32, {G2}")
    A.I(f"s_mov_b32 s33, {G1}")
    A.I("v_mov_b32 v4, s33")
    A.I(f"s_mul_i32 s34, s{S_Q0}, 49152")
    A.I(f"s_add_u32 s34, s34, {WS_H}")
    for fb in range(3):
        A.I(f"s_mul_i32 s{S_TMP}, s{S_H}, 3")
        A.I(f"s_add_u32 s{S_TMP}, s{S_TMP}, {fb}")
        A.I(f"s_lshr_b32 s{S_TMP2}, s{S_TMP}, 1")
        A.I(f"s_lshl_b32 s{S_TMP2}, s{S_TMP2}, 10")
        A.I(f"s_and_b32 s{S_TMP}, s{S_TMP}, 1")
        A.I(f"s_lshl_b32 s{S_TMP}, s{S_TMP}, 3")
        A.I(f"s_add_u32 s{S_TMP}, s{S_TMP}, s{S_TMP2}")
        A.I(f"v_add_u32 v{5+fb}, s{S_TMP}, v{V_L16}")
    for fb in range(3):
        for qb in range(4):
            x0 = accF(fb, qb)
            T = [8, 9, 10, 11]
            seq = []
            for r in range(4): seq.append(f"v_mul_f32 v{T[r]}, v{x0+r}, v{x0+r}")
            for r in range(4): seq.append(f"v_fma_f32 v{T[r]}, v{T[r]}, s32, v4")
            for r in range(4): seq.append(f"v_mul_f32 v{T[r]}, v{T[r]}, v{x0+r}")
            for r in range(4): seq.append(f"v_exp_f32 v{T[r]}, v{T[r]}")
            for r in range(4): seq.append(f"v_add_f32 v{T[r]}, 1.0, v{T[r]}")
            for r in range(4): seq.append(f"v_rcp_f32 v{T[r]}, v{T[r]}")
            for r in range(4): seq.append(f"v_mul_f32 v{x0+r}, v{x0+r}, v{T[r]}")
            seq.append(f"v_cvt_pk_bf16_f32 v{x0}, v{x0}, v{x0+1}")
            seq.append(f"v_cvt_pk_bf16_f32 v{x0+1}, v{x0+2}, v{x0+3}")
            seq.append(f"s_add_u32 s35, s34, {qb*49152}")
            seq.append(f"buffer_store_dwordx2 {v(x0,2)}, v{5+fb}, s[{SRD_WS}:{SRD_WS+3}], s35 offen")
            gel += seq
    gi = 0
    for kb, base in enumerate((KA_, KB, VA, VB)):
        A.I(lg.wait(f"k{kb}") or "s_nop 0")
        for qb in range(4):
            for s_ in range(4):
                d = v(Sreg(kb//2, kb % 2, qb), 4)
                A.I(mf(d, a(base+4*s_, 4), v(Qf(qb, s_), 4), "0" if s_ == 0 else d))
                budget = 2
                while budget > 0 and gi < len(gel):
                    x = gel[gi]
                    cost = 2 if ("v_exp" in x or "v_rcp" in x or "buffer" in x) else (0 if x.startswith("s_") else 1)
                    if cost > budget: break
                    A.I(x); gi += 1; budget -= cost
    A.I("s_barrier")
    A.I(f"s_mov_b32 s{S_I}, -1")
    for x in tile_calc(S_K0, 3, 0, 0) + tile_calc(S_V0, 2, 0, 16384) + lds_calc(): A.I(x)
    A.I(f"s_mov_b32 m0, s{S_MK}")
    A.I(f"v_add_u32 v{V_K}, s{S_AK}, v{V_L16}")
    for x in dma4(S_K0, None): A.I(x)
    A.I(f"s_mov_b32 m0, s{S_MV}")
    A.I(f"v_add_u32 v{V_V}, s{S_AV}, v{V_L16}")
    for x in dma4(S_V0, None): A.I(x)
    for x in tile_calc(S_K1, 3, 1, 0) + tile_calc(S_V1, 2, 1, 16384): A.I(x)
    A.I(f"s_mov_b32 s{S_I}, 0")
    for i in range(4): A.I(rdfrag(VA+4*i, V_V, i))
    for i in range(4): A.I(rdfrag(KA_+4*i, V_K, i))
    for i in range(4): A.I(rdfrag(VB+4*i, V_V, 4+i))
    while gi < len(gel):
        A.I(gel[gi]); gi += 1
    ST.stamp()
    A.I(f"s_cmp_lg_u32 s{S_Q0}, 0")
    A.I(f"s_cbranch_scc1 {L('nodiag0')}")
    A.I("v_mov_b32 v8, 0xff7fffff")
    for kb in range(4):
        for qb in range(4):
            for r in range(4):
                reg = Sreg(kb//2, kb % 2, qb) + r
                if kb > qb: A.I(f"v_mov_b32 v{reg}, v8")
                elif kb == qb: A.I(f"v_cndmask_b32 v{reg}, v8, v{reg}, s[{S_MASK+2*r}:{S_MASK+2*r+1}]")
    A.label(L("nodiag0"))
    for qb in range(4):
        regs = [Sreg(kb//2, kb % 2, qb) + r for kb in range(4) for r in range(4)]
        m = NEGM(qb)
        A.I(f"v_max3_f32 v{m}, v{regs[0]}, v{regs[1]}, v{regs[2]}")
        for i in range(3, 15, 2): A.I(f"v_max3_f32 v{m}, v{m}, v{regs[i]}, v{regs[i+1]}")
        A.I(f"v_max_f32 v{m}, v{m}, v{regs[15]}")
    for swp in ("v_permlane16_swap_b32", "v_permlane32_swap_b32"):
        for qb in range(4): A.I(f"v_mov_b32 v{NEGM(qb)+1}, v{NEGM(qb)}")
        A.I("s_nop 0")
        for qb in range(4): A.I(f"{swp} v{NEGM(qb)}, v{NEGM(qb)+1}")
        A.I("s_nop 0")
        for qb in range(4): A.I(f"v_max_f32 v{NEGM(qb)}, v{NEGM(qb)}, v{NEGM(qb)+1}")
    for qb in range(4):
        A.I(f"v_sub_f32 v{NEGM(qb)}, 0, v{NEGM(qb)}")
        for r in range(1, 4): A.I(f"v_mov_b32 v{NEGM(qb)+r}, v{NEGM(qb)}")
    A.I(f"s_cmp_ge_u32 s{S_WAVE}, 2")
    A.I(f"s_cbranch_scc1 {L('nostash2')}")
    for qb in range(4): A.I(f"v_mov_b32 v{8+qb}, v{NEGM(qb)}")
    A.I(f"s_add_u32 s{S_TMP}, s61, 16384")
    A.I(f"buffer_store_dwordx4 v[8:11], v{V_L16}, s[{SRD_WS}:{SRD_WS+3}], s{S_TMP} offen")
    A.label(L("nostash2"))
    for buf in range(2):
        for kbl in range(2):
            for qb in range(4):
                for r in range(4):
                    reg = Sreg(buf, kbl, qb) + r
                    A.I(f"v_add_f32 v{reg}, v{reg}, v{NEGM(qb)}")
    for qb in range(4):
        for kbl in range(2):
            for r in range(4):
                reg = Sreg(0, kbl, qb) + r
                A.I(f"v_exp_f32 v{reg}, v{reg}")
        A.I("s_nop 0")
        for k in range(4):
            src = Sreg(0, k//2, qb) + (k % 2)*2
            A.I(f"v_cvt_pk_bf16_f32 v{Preg(0,qb)+k}, v{src}, v{src+1}")
    ST.stamp()
    used = {}
    def call(qk, pv, first=False):
        key = f"b_{qk}_{pv}_{int(first)}"
        used[key] = (qk, pv, first)
        A.I(f"s_call_b64 s[{S_RET}:{S_RET+1}], {L(key)}")
    def loop(kind, last_expr_sgpr_or_imm, uniq):
        A.I(f"s_mov_b32 s{S_CNT}, {last_expr_sgpr_or_imm}")
        A.I(f"s_cmp_gt_i32 s{S_I}, s{S_CNT}")
        A.I(f"s_cbranch_scc1 {L('skip_'+uniq)}")
        A.I(f"s_call_b64 s[{S_RET}:{S_RET+1}], {L('main_'+kind)}")
        A.label(L("skip_"+uniq))
    def epilogue_B(u):
        A.I("s_nop 7")
        for qb in range(4): A.I(f"v_accvgpr_read_b32 v{8+qb}, a{Lreg(qb)}")
        A.I(f"v_mov_b32 v12, {LTHR}")
        for qb in range(4):
            A.I(f"v_cmp_nle_f32 vcc, v{8+qb}, v12")
            A.I(f"s_or_b32 s{S_FAIL}, s{S_FAIL}, vcc_lo")
            A.I(f"s_or_b32 s{S_FAIL}, s{S_FAIL}, vcc_hi")
        for qb in range(4): A.I(f"v_rcp_f32 v{8+qb}, v{8+qb}")
        A.I(f"s_lshl_b32 s32, s{S_Q0}, 5")
        A.I(f"s_add_u32 s32, s32, s{S_H}")
        A.I(f"s_lshl_b32 s32, s32, 12")
        A.I(f"s_add_u32 s32, s32, {WS_CTX}")
        n = 0
        for qb in range(4):
            A.I(f"s_add_u32 s33, s32, {qb*32*4096}")
            for s_ in range(4):
                T = TMP + (n % 4)*8; n += 1
                for i in range(8): A.I(f"v_accvgpr_read_b32 v{T+i}, a{Oreg(2*s_ + i//4, qb) + i % 4}")
                for i in range(8): A.I(f"v_mul_f32 v{T+i}, v{T+i}, v{8+qb}")
                for i in range(4): A.I(f"v_cvt_pk_bf16_f32 v{T+i}, v{T+2*i}, v{T+2*i+1}")
                A.I(f"buffer_store_dwordx4 {v(T,4)}, v{V_L16}, s[{SRD_WS}:{SRD_WS+3}], s33 offen offset:{s_*1024}")
    def load_QA():
        for qb in range(4):
            A.I(f"s_add_u32 s{S_TMP}, s61, {qb*4096}")
            for s_ in range(4):
                A.I(f"buffer_load_dwordx4 {v(Qf(qb,s_),4)}, v{V_L16}, s[{SRD_WS}:{SRD_WS+3}], s{S_TMP} offen offset:{s_*1024}")
        A.I(f"s_add_u32 s{S_TMP}, s61, 16384")
        A.I(f"buffer_load_dwordx4 v[20:23], v{V_L16}, s[{SRD_WS}:{SRD_WS+3}], s{S_TMP} offen")
    def fin_QA():
        A.I("s_waitcnt vmcnt(0)")
        for qb in range(4):
            for r in range(4): A.I(f"v_mov_b32 v{NEGM(qb)+r}, v{20+qb}")
        A.I("s_nop 1")
    A.I(f"s_sub_u32 s32, s{S_T2}, 1")
    A.I(f"s_sub_u32 s33, s{S_T2}, 2")
    A.I(f"s_cmp_eq_u32 s{S_WAVE}, 2")
    A.I(f"s_cbranch_scc1 {L('role2')}")
    A.I(f"s_cmp_eq_u32 s{S_WAVE}, 3")
    A.I(f"s_cbranch_scc1 {L('role3')}")
    call("full", "full", True)
    loop("d", "s32", "r01d")
    loop("s", 14, "r01s")
    A.I(f"s_cmp_eq_u32 s{S_WAVE}, 0")
    A.I(f"s_cbranch_scc1 {L('role0t')}")
    call("full", "full"); call(None, "full")
    A.I(f"s_branch {L('merge')}")
    A.label(L("role0t"))
    call("diag", "full"); call(None, "diag")
    A.I(f"s_branch {L('merge')}")
    A.label(L("role2"))
    A.I(f"s_cmp_eq_u32 s{S_T}, 0")
    A.I(f"s_cbranch_scc1 {L('role2_t0')}")
    call("full", "full", True)
    loop("d", "s33", "r2d")
    call("diag", "full")
    call(None, "diag")
    A.I(f"s_branch {L('role2_b')}")
    A.label(L("role2_t0"))
    call(None, "diag", True)
    A.label(L("role2_b"))
    load_QA()
    epilogue_B("r2")
    fin_QA()
    A.I(f"s_cmp_eq_u32 s{S_T}, 7")
    A.I(f"s_cbranch_scc1 {L('role2_t7')}")
    call("full", None)
    call("full", "full", True)
    loop("s", 14, "r2s")
    call(None, "full")
    call(None, None)
    A.I(f"s_branch {L('merge')}")
    A.label(L("role2_t7"))
    for i in range(128): A.I(f"v_accvgpr_write_b32 a{i}, 0")
    for i in range(16): A.I(f"v_accvgpr_write_b32 a{Lreg(0)+i}, 0")
    call(None, None); call(None, None)
    A.I(f"s_branch {L('merge')}")
    A.label(L("role3"))
    A.I(f"s_cmp_eq_u32 s{S_T}, 0")
    A.I(f"s_cbranch_scc1 {L('role3_t0')}")
    call("full", "full", True)
    loop("d", "s32", "r3d")
    call("diag", "full")
    A.I(f"s_branch {L('role3_b')}")
    A.label(L("role3_t0"))
    call("diag", "full", True)
    A.label(L("role3_b"))
    load_QA(); fin_QA()
    A.I(f"s_cmp_eq_u32 s{S_T}, 7")
    A.I(f"s_cbranch_scc1 {L('role3_t7')}")
    call("full", "diag")
    epilogue_B("r3")
    call("full", "full", True)
    loop("s", 14, "r3s")
    call("diag", "full"); call(None, "diag")
    A.I(f"s_branch {L('merge')}")
    A.label(L("role3_t7"))
    call("diag", "diag")
    epilogue_B("r3b")
    call(None, "diag", True)
    A.label(L("merge"))
    ST.stamp()
    A.I("s_waitcnt vmcnt(0) lgkmcnt(0)")
    A.I("s_barrier")
    for qb in range(4): A.I(f"v_accvgpr_read_b32 v{8+qb}, a{Lreg(qb)}")
    A.I(f"v_mov_b32 v12, {LTHR}")
    for qb in range(4):
        A.I(f"v_cmp_nle_f32 vcc, v{8+qb}, v12")
        A.I(f"s_or_b32 s{S_FAIL}, s{S_FAIL}, vcc_lo")
        A.I(f"s_or_b32 s{S_FAIL}, s{S_FAIL}, vcc_hi")
    A.I(f"s_mul_i32 s32, s{S_WAVE}, 20480")
    A.I(f"s_xor_b32 s33, s{S_WAVE}, 2")
    A.I(f"s_mul_i32 s33, s33, 20480")
    A.I(f"v_add_u32 v13, s32, v{V_L16}")
    A.I(f"v_add_u32 v14, s33, v{V_L16}")
    A.I(f"ds_write_b128 v13, v[8:11] offset:16384")
    A.I(f"v_mov_b32 v15, s{S_FAIL}")
    A.I(f"s_lshl_b32 s34, s{S_WAVE}, 2")
    A.I(f"s_add_u32 s34, s34, {4*20480}")
    A.I(f"v_mov_b32 v12, s34")
    A.I(f"ds_write_b32 v12, v15")
    A.I(f"s_cmp_ge_u32 s{S_WAVE}, 2")
    A.I(f"s_cbranch_scc1 {L('mhi')}")
    def merge_half(keep, u):
        send = [q for q in range(4) if q not in keep]
        for i, qb in enumerate(send):
            for db in range(8):
                A.I(f"ds_write_b128 v13, {a(Oreg(db,qb),4)} offset:{(i*8+db)*1024}")
        A.I("s_waitcnt lgkmcnt(0)")
        A.I("s_barrier")
        A.I(f"v_mov_b32 v12, {4*20480}")
        A.I(f"ds_read_b128 v[20:23], v12")
        A.I(f"ds_read_b128 v[16:19], v14 offset:16384")
        R = 64
        for i in range(16):
            A.I(f"ds_read_b128 {v(R+4*i,4)}, v14 offset:{i*1024}")
        A.I(f"s_lshl_b32 s32, s{S_QA}, 5")
        A.I(f"s_add_u32 s32, s32, s{S_H}")
        A.I(f"s_lshl_b32 s32, s32, 12")
        A.I(f"s_add_u32 s32, s32, {WS_CTX}")
        A.I("s_waitcnt lgkmcnt(15)")
        A.I("v_or_b32 v20, v20, v21")
        A.I("v_or3_b32 v20, v20, v22, v23")
        for qb in keep:
            A.I(f"v_add_f32 v{8+qb}, v{8+qb}, v{16+qb}")
        A.I(f"v_readfirstlane_b32 s{S_FAIL}, v20")
        for qb in keep:
            A.I(f"v_rcp_f32 v{8+qb}, v{8+qb}")
        n = 0
        for i, qb in enumerate(keep):
            A.I(f"s_add_u32 s33, s32, {qb*32*4096}")
            for s_ in range(4):
                T = TMP + (n % 4)*8; n += 1
                for k in range(8): A.I(f"v_accvgpr_read_b32 v{T+k}, a{Oreg(2*s_ + k//4, qb) + k % 4}")
                A.I(f"s_waitcnt lgkmcnt({14 - (i*8+2*s_)})")
                for k in range(8): A.I(f"v_add_f32 v{T+k}, v{T+k}, v{R + (i*8+2*s_)*4 + k}")
                for k in range(8): A.I(f"v_mul_f32 v{T+k}, v{T+k}, v{8+qb}")
                for k in range(4): A.I(f"v_cvt_pk_bf16_f32 v{T+k}, v{T+2*k}, v{T+2*k+1}")
                A.I(f"buffer_store_dwordx4 {v(T,4)}, v{V_L16}, s[{SRD_WS}:{SRD_WS+3}], s33 offen offset:{s_*1024}")
    merge_half([0, 1], "lo")
    A.I(f"s_branch {L('done')}")
    A.label(L("mhi"))
    merge_half([2, 3], "hi")
    A.label(L("done"))
    ST.flush(6, S_WAVE)
    A.label(L("end"))
    A.I("s_endpgm")
    bodies = {}
    for kind, adma in (("d", False), ("s", True)):
        A.I(".p2align 6")
        A.label(L("main_"+kind))
        B = Asm(); l2 = entry_lg(); body(B, "full", "full", False, adma, l2)
        assert l2.q == entry_lg().q, l2.q
        probs = B.check(seq=B.items + B.items, name="main_"+kind)
        for p in probs: print("HAZARD(main)", p)
        A.items += B.items
        A.I(f"s_cmp_le_i32 s{S_I}, s{S_CNT}")
        A.I(f"s_cbranch_scc1 {L('main_'+kind)}")
        A.I(f"s_setpc_b64 s[{S_RET}:{S_RET+1}]")
    for key, (qk, pv, first) in used.items():
        A.I(".p2align 6")
        A.label(L(key))
        B = Asm(); B.I("s_nop 7"); l2 = entry_lg(); body(B, qk, pv, first, True, l2)
        B.I("s_nop 7")
        A.items += B.check(fix=True, seq=B.items)
        A.I(f"s_setpc_b64 s[{S_RET}:{S_RET+1}]")
    return A
```

```python
from common import *
import math, struct
def f2u(x): return struct.unpack("<I", struct.pack("<f", x))[0]
NLOG2E = f2u(-math.log2(math.e))
OOB = 0x40000000

def gen_k3(name="oproj_kernel", code_bytes=16384, prof=False):
    A = Asm(); ST = Stamps(A, prof, 2)
    vm = Cnt("vmcnt", 63); lg = Cnt("lgkmcnt", 15)
    L = lambda x: f"L_{name}_{x}"
    SW, SP, SRT, SCT, SQH, SKH = 36, 37, 38, 39, 40, 41
    SBB, SBS, SNV, SWB, SM0 = 42, 43, 44, 45, 46
    T0, T1, T2 = 47, 48, 49
    STILE = 50
    WS, WW, SX, SO, SB2 = 16, 20, 24, 28, 32
    header(A, name)
    A.I("s_cmp_ge_u32 s2, 256")
    A.I(f"s_cbranch_scc1 {L('end')}")
    ST.stamp()
    A.I(f"s_load_dwordx2 s[4:5], s[0:1], {KA['x']}")
    A.I(f"s_load_dwordx2 s[6:7], s[0:1], {KA['ws']}")
    A.I(f"s_load_dwordx2 s[8:9], s[0:1], {KA['wo']}")
    A.I(f"s_load_dwordx4 s[12:15], s[0:1], {KA['w2']}")
    A.I(f"s_load_dwordx2 s[10:11], s[0:1], {KA['out']}")
    A.I("s_getpc_b64 s[52:53]")
    A.I("v_and_b32 v1, 63, v0")
    A.I("v_lshrrev_b32 v16, 6, v0")
    A.I(f"s_and_b32 s{SP}, s2, 3")
    A.I(f"v_readfirstlane_b32 s{SW}, v16")
    A.I(f"s_lshr_b32 s{T0}, s2, 3")
    A.I(f"s_and_b32 s{SCT}, s{T0}, 3")
    A.I(f"s_lshr_b32 s{SRT}, s{T0}, 2")
    A.I(f"s_and_b32 s{T1}, s2, 4")
    A.I(f"s_lshl_b32 s{T1}, s{T1}, 1")
    A.I(f"s_add_u32 s{SRT}, s{SRT}, s{T1}")
    A.I(f"s_lshl_b32 s{STILE}, s{SRT}, 2")
    A.I(f"s_add_u32 s{STILE}, s{STILE}, s{SCT}")
    A.I(f"s_and_b32 s{SQH}, s{SW}, 1")
    A.I(f"s_lshr_b32 s{SKH}, s{SW}, 1")
    A.I("v_lshlrev_b32 v2, 4, v1")
    A.I(f"s_lshl_b32 s{T0}, s{T0}, 2")
    A.I(f"s_add_u32 s{T0}, s{T0}, s{SW}")
    A.I(f"s_lshl_b32 s{T0}, s{T0}, 10")
    A.I(f"s_and_b32 s{T0}, s{T0}, {code_bytes-1}")
    A.I(f"v_add_u32 v16, s{T0}, v2")
    A.I("global_load_dwordx4 v[60:63], v16, s[52:53]"); vm.issue("pf")
    A.I(f"s_lshl_b32 s{T0}, s{SP}, 1")
    A.I(f"s_add_u32 s{T0}, s{T0}, s{SKH}")
    A.I(f"s_cmp_eq_u32 s{T0}, 5")
    A.I(f"s_cselect_b32 s{SNV}, 18, 22")
    A.I(f"s_sub_u32 s{T1}, 22, s{SKH}")
    A.I(f"s_cmp_eq_u32 s{SP}, 3")
    A.I(f"s_cselect_b32 s{SNV}, s{T1}, s{SNV}")
    A.I(f"s_cselect_b32 s{T0}, s{SKH}, s{T0}")
    A.I(f"s_mov_b32 s{T2}, 131072")
    A.I(f"s_cselect_b32 s{SBS}, 49152, s{T2}")
    A.I(f"s_mov_b32 s{T2}, {WS_CTX}")
    A.I(f"s_cselect_b32 s{SBB}, {WS_H}, s{T2}")
    A.I(f"s_mul_i32 s{T0}, s{T0}, 22")
    A.I(f"s_lshl_b32 s{T1}, s{SRT}, 3")
    A.I(f"s_lshl_b32 s{T2}, s{SQH}, 2")
    A.I(f"s_add_u32 s{T1}, s{T1}, s{T2}")
    A.I(f"s_mul_i32 s{T1}, s{T1}, s{SBS}")
    A.I(f"s_add_u32 s{SBB}, s{SBB}, s{T1}")
    A.I(f"s_lshl_b32 s{T1}, s{T0}, 10")
    A.I(f"s_add_u32 s{SBB}, s{SBB}, s{T1}")
    A.I(f"s_add_u32 s{T0}, s{T0}, s{SQH}")
    A.I(f"s_lshl_b32 s{SWB}, s{T0}, 15")
    A.I(f"s_lshl_b32 s{T1}, s{SCT}, 8")
    A.I(f"s_add_u32 s{SWB}, s{SWB}, s{T1}")
    A.I(f"s_lshl_b32 s{SM0}, s{SKH}, 16")
    A.I(f"s_lshl_b32 s{T1}, s{SQH}, 13")
    A.I(f"s_add_u32 s{SM0}, s{SM0}, s{T1}")
    A.I("v_and_b32 v16, 15, v1")
    A.I("v_lshrrev_b32 v17, 4, v1")
    A.I("v_lshrrev_b32 v18, 1, v16")
    A.I("v_xor_b32 v18, v18, v17")
    A.I("v_and_b32 v19, 1, v16")
    A.I("v_lshlrev_b32 v19, 4, v19")
    A.I("v_lshl_add_u32 v19, v17, 10, v19")
    A.I("v_lshl_add_u32 v4, v18, 5, v19")
    A.I("v_xor_b32 v18, 4, v18")
    A.I("v_lshl_add_u32 v5, v18, 5, v19")
    A.I(f"v_add_u32 v6, {2*3072}, v4")
    A.I(f"v_add_u32 v7, {3*3072}, v5")
    A.I(f"v_add_u32 v5, {3072}, v5")
    A.I("v_bfe_u32 v16, v1, 2, 2")
    A.I("v_lshl_add_u32 v18, v17, 2, v16")
    A.I("v_lshlrev_b32 v18, 8, v18")
    A.I("v_and_b32 v19, 3, v1")
    A.I("v_lshl_add_u32 v18, v19, 3, v18")
    A.I(f"s_lshl_b32 s{T1}, s{SKH}, 16")
    A.I(f"v_add_u32 v18, s{T1}, v18")
    A.I("v_and_b32 v19, 1, v17")
    A.I("v_lshl_add_u32 v16, v19, 2, v16")
    for nb in range(8):
        A.I(f"v_xor_b32 v19, {nb}, v16")
        A.I(f"v_lshl_add_u32 v{8+nb}, v19, 5, v18")
    A.I("s_waitcnt lgkmcnt(0)")
    srd(A, WS, 6, WS_END); srd(A, SX, 4, 2*MB); srd(A, SO, 10, 2*MB); srd(A, SB2, 14, 1024)
    A.I(f"s_cmp_eq_u32 s{SP}, 3")
    A.I(f"s_cselect_b32 s{WW}, s12, s8")
    A.I(f"s_cselect_b32 s{WW+1}, s13, s9")
    A.I(f"s_mov_b32 s{T1}, {4*MB}")
    A.I(f"s_cselect_b32 s{WW+2}, {1376*1024}, s{T1}")
    A.I(f"s_mov_b32 s{WW+3}, 0x20000")
    def wdma(u):
        r = []
        for i in range(8):
            pre = [f"s_add_u32 m0, s{SM0}, {(u%4)*16384 + (i//4)*4096}", f"s_add_u32 s{T0}, s{SWB}, {u*65536 + (i//4)*16384}"] if i % 4 == 0 else None
            r.append((pre, f"buffer_load_dwordx4 v{4+i%4}, s[{WW}:{WW+3}], s{T0} offen offset:{(i%4)*1024} lds"))
        return r
    Bf = lambda u, qb, kk: (u % 4)*32 + (qb*2+kk)*4
    def bload(u):
        r = []
        for qb in range(4):
            for kk in range(2):
                ks = 2*u+kk
                pre = []
                if qb == 0 and kk == 0: pre.append(f"s_add_u32 s{T1}, s{SBB}, {(ks>>2)*4096}")
                elif kk == 0: pre.append(f"s_add_u32 s{T1}, s{T1}, s{SBS}")
                so = T1
                if ks >= 18:
                    pre += [f"s_cmp_gt_u32 s{SNV}, {ks}", f"s_cselect_b32 s{T2}, s{T1}, {OOB}"]
                    so = T2
                r.append((pre or None, f"buffer_load_dwordx4 {a(Bf(u,qb,kk),4)}, v2, s[{WS}:{WS+3}], s{so} offen offset:{(ks&3)*1024}"))
        return r
    def issue(lst, tag):
        for pre, x in lst:
            if pre:
                for y in pre: A.I(y)
                if "lds" in x: A.I("s_nop 0")
            A.I(x); vm.issue(tag)
    for u in range(3):
        issue(wdma(u), f"W{u}"); issue(bload(u), f"B{u}")
    ST.stamp()
    WF = 192
    wfrag = lambda mb, kk: WF + (mb*2+kk)*4
    def reads(u, mb):
        r = []
        for kk in range(2):
            off = (u % 4)*16384 + kk*8192
            r.append(f"ds_read_b64_tr_b16 {v(wfrag(mb,kk),2)}, v{8+mb} offset:{off}")
            r.append(f"ds_read_b64_tr_b16 {v(wfrag(mb,kk)+2,2)}, v{8+mb} offset:{off+4096}")
        return r
    acc = lambda mb, qb: 64 + (mb*4+qb)*4
    A.I(vm.wait("W0"))
    A.I("s_barrier")
    for mb in range(7):
        for x in reads(0, mb): A.I(x); lg.issue(f"R0_{mb}")
    NU = 11
    for u in range(NU):
        w = vm.wait(f"B{u}")
        if w: A.I(w)
        w = lg.wait(f"R{u}_0")
        if w: A.I(w)
        if u == 0: ST.stamp()
        ops = []
        if u+3 < NU:
            ops = [(p, x, f"W{u+3}") for p, x in wdma(u+3)] + [(p, x, f"B{u+3}") for p, x in bload(u+3)]
        odd = [g for g in range(9, 64) if g % 2 == 1]
        vpos = {odd[(i*len(odd))//len(ops)]: op for i, op in enumerate(ops)} if ops else {}
        g = 0
        for mb in range(8):
            for qb in range(4):
                for kk in range(2):
                    q = g % 8
                    c = v(acc(mb,qb),4)
                    A.I(mf(c, v(wfrag(mb,kk),4), a(Bf(u,qb,kk),4), "0" if (u == 0 and kk == 0) else c))
                    if g == 7 and u+1 < NU:
                        w = vm.wait(f"W{u+1}")
                        if w: A.I(w)
                        A.I("s_barrier")
                    if g+1 in vpos and vpos[g+1][0]:
                        for x in vpos[g+1][0]: A.I(x)
                    if q == 7 and mb < 7:
                        w = lg.wait(f"R{u}_{mb+1}")
                        if w: A.I(w)
                    if q % 2 == 0:
                        rd = None
                        if mb == 0: rd = (reads(u, 7)[q//2], f"R{u}_7")
                        elif u+1 < NU: rd = (reads(u+1, mb-1)[q//2], f"R{u+1}_{mb-1}")
                        if rd: A.I(rd[0]); lg.issue(rd[1])
                    if g in vpos:
                        A.I(vpos[g][1]); vm.issue(vpos[g][2])
                    g += 1
    ST.stamp()
    A.I(f"s_lshl_b32 s{T0}, s{SRT}, 7")
    A.I(f"s_lshl_b32 s{T1}, s{SQH}, 6")
    A.I(f"s_add_u32 s{T0}, s{T0}, s{T1}")
    A.I(f"s_lshl_b32 s{T1}, s{SKH}, 5")
    A.I(f"s_add_u32 s{T0}, s{T0}, s{T1}")
    A.I(f"s_lshl_b32 s{T0}, s{T0}, 10")
    A.I(f"s_lshl_b32 s{T1}, s{SCT}, 8")
    A.I(f"s_lshl_b32 s{T2}, s{SP}, 6")
    A.I(f"s_add_u32 s{T1}, s{T1}, s{T2}")
    A.I(f"s_add_u32 s54, s{T0}, s{T1}")
    A.I("v_and_b32 v16, 15, v1")
    A.I("v_lshrrev_b32 v17, 4, v1")
    A.I("v_lshlrev_b32 v18, 3, v17")
    A.I("v_lshl_add_u32 v19, v16, 10, v18")
    A.I("v_add_u32 v20, 16384, v19")
    for i in range(2):
        for j in range(2):
            A.I(f"buffer_load_dwordx2 v[{24+(i*2+j)*2}:{25+(i*2+j)*2}], v{19+i}, s[{SX}:{SX+3}], s54 offen offset:{j*32}")
    for j in range(2):
        A.I(f"buffer_load_dwordx2 v[{32+j*2}:{33+j*2}], v18, s[{SB2}:{SB2+3}], s{T1} offen offset:{j*32}")
    A.I("s_barrier")
    A.I(f"s_lshl_b32 s{T0}, s{SW}, 14")
    A.I(f"s_xor_b32 s{T1}, s{SW}, 2")
    A.I(f"s_lshl_b32 s{T1}, s{T1}, 14")
    A.I(f"v_add_u32 v21, s{T0}, v2")
    A.I(f"v_add_u32 v22, s{T1}, v2")
    A.I(f"s_lshl_b32 s55, s{STILE}, 4")
    A.I(f"s_add_u32 s55, s55, s{SW}")
    A.I(f"s_lshl_b32 s55, s55, 14")
    A.I(f"s_add_u32 s55, s55, {WS_PART}")
    A.I(f"s_lshl_b32 s{T0}, s{SP}, 16")
    A.I(f"s_add_u32 s56, s55, s{T0}")
    A.I(f"s_cmp_eq_u32 s{SKH}, 1")
    A.I(f"s_cbranch_scc1 {L('kh1')}")
    def red(keep):
        send = [q for q in range(4) if q not in keep]
        for mb in range(8):
            for i, qb in enumerate(send):
                A.I(f"ds_write_b128 v21, {v(acc(mb,qb),4)} offset:{(mb*2+i)*1024}")
        A.I("s_waitcnt lgkmcnt(0)")
        A.I("s_barrier")
        for b in range(16):
            A.I(f"ds_read_b128 {v(WF+4*b,4)}, v22 offset:{b*1024}")
        for b in range(16):
            mb, i = b//2, b % 2
            r = acc(mb, keep[i])
            A.I(f"s_waitcnt lgkmcnt({15-b})")
            for k in range(4): A.I(f"v_add_f32 v{r+k}, v{r+k}, v{WF+4*b+k}")
            if b % 4 == 0: A.I(f"s_add_u32 s{T0}, s56, {(b//4)*4096}")
            A.I(f"buffer_store_dwordx4 {v(r,4)}, v2, s[{WS}:{WS+3}], s{T0} offen offset:{(b%4)*1024} sc0 sc1")
    red([0, 1])
    A.I(f"s_branch {L('pub')}")
    A.label(L("kh1"))
    red([2, 3])
    A.label(L("pub"))
    ST.stamp()
    A.I("s_waitcnt vmcnt(0)")
    A.I("s_barrier")
    A.I(f"s_cmp_lg_u32 s{SW}, 0")
    A.I(f"s_cbranch_scc1 {L('wait')}")
    A.I(f"s_lshl_b32 s{T0}, s{STILE}, 8")
    A.I(f"s_add_u32 s{T0}, s{T0}, {WS_FLAG}")
    A.I(f"s_lshl_b32 s{T1}, s{SP}, 2")
    A.I(f"v_mov_b32 v36, s{T1}")
    A.I("v_mov_b32 v37, 1")
    A.I("v_mov_b32 v38, 0")
    A.I("s_mov_b64 exec, 1")
    A.I(f"buffer_store_dword v37, v36, s[{WS}:{WS+3}], s{T0} offen sc0 sc1")
    A.I(f"s_mov_b32 s{T1}, 0")
    A.label(L("poll"))
    A.I(f"buffer_load_dwordx4 v[40:43], v38, s[{WS}:{WS+3}], s{T0} offen sc0 sc1")
    A.I(f"s_add_u32 s{T1}, s{T1}, 1")
    A.I("s_waitcnt vmcnt(0)")
    A.I("v_and_b32 v40, v40, v41")
    A.I("v_and_b32 v42, v42, v43")
    A.I("v_and_b32 v40, v40, v42")
    A.I("s_nop 0")
    A.I(f"v_readfirstlane_b32 s{T2}, v40")
    A.I(f"s_cmp_gt_u32 s{T1}, 0x100000")
    A.I(f"s_cbranch_scc1 {L('polldone')}")
    A.I(f"s_cmp_eq_u32 s{T2}, 0")
    A.I(f"s_cbranch_scc1 {L('poll')}")
    A.label(L("polldone"))
    A.I("s_mov_b64 exec, -1")
    A.label(L("wait"))
    A.I("s_barrier")
    ST.stamp()
    A.I(f"s_lshl_b32 s{T0}, s{SP}, 12")
    A.I(f"s_add_u32 s55, s55, s{T0}")
    for src in range(4):
        A.I(f"s_add_u32 s{T0}, s55, {src*65536}")
        for b in range(4):
            A.I(f"buffer_load_dwordx4 {v(64+(src*4+b)*4,4)}, v2, s[{WS}:{WS+3}], s{T0} offen offset:{b*1024} sc0 sc1")
    for n in range(4):
        for k in range(2):
            A.I(f"v_lshlrev_b32 v{128+n*4+2*k}, 16, v{24+n*2+k}")
            A.I(f"v_and_b32 v{128+n*4+2*k+1}, 0xffff0000, v{24+n*2+k}")
    for j in range(2):
        for k in range(2):
            A.I(f"v_lshlrev_b32 v{144+j*4+2*k}, 16, v{32+j*2+k}")
            A.I(f"v_and_b32 v{144+j*4+2*k+1}, 0xffff0000, v{32+j*2+k}")
    A.I(f"s_mov_b32 s{T2}, {NLOG2E}")
    A.I("s_waitcnt vmcnt(0)")
    for b in range(4):
        j, i = b//2, b % 2
        n = i*2+j
        S0, S1, S2, Y = 64+b*4, 80+b*4, 96+b*4, 112+b*4
        for k in range(4): A.I(f"v_add_f32 v{Y+k}, v{Y+k}, v{144+j*4+k}")
        for k in range(4): A.I(f"v_mul_f32 v{152+k}, s{T2}, v{Y+k}")
        for k in range(4): A.I(f"v_exp_f32 v{152+k}, v{152+k}")
        for k in range(4): A.I(f"v_add_f32 v{S0+k}, v{S0+k}, v{S1+k}")
        for k in range(4): A.I(f"v_add_f32 v{152+k}, 1.0, v{152+k}")
        for k in range(4): A.I(f"v_rcp_f32 v{152+k}, v{152+k}")
        for k in range(4): A.I(f"v_add_f32 v{S0+k}, v{S0+k}, v{S2+k}")
        for k in range(4): A.I(f"v_mul_f32 v{Y+k}, v{Y+k}, v{152+k}")
        for k in range(4): A.I(f"v_fma_f32 v{S0+k}, v{S0+k}, v{Y+k}, v{128+n*4+k}")
        A.I(f"v_cvt_pk_bf16_f32 v{S0}, v{S0}, v{S0+1}")
        A.I(f"v_cvt_pk_bf16_f32 v{S0+1}, v{S0+2}, v{S0+3}")
        A.I(f"buffer_store_dwordx2 {v(S0,2)}, v{19+i}, s[{SO}:{SO+3}], s54 offen offset:{j*32}")
    ST.flush(6, SW)
    A.label(L("end"))
    A.I("s_endpgm")
    return A
```

```python
import sys
from common import *
import k1, k2, k3
HDR = open("recurrent_scan__compressed_kv_cla__dense_activation_gelu__prompt.s.ref").read().split("; Override launch")[0]
def build(kernels, path):
    out = HDR
    for n, A, grid, block, lds, k in kernels:
        out += f"; @launch kernel={n} grid=({grid},1,1) block=({block},1,1) lds={lds}\n"
    out += '.amdgcn_target "amdgcn-amd-amdhsa--gfx950"\n.text\n'
    for n, A, grid, block, lds, k in kernels:
        probs = A.check(name=n)
        for p in probs: print("HAZARD", p)
        out += A.text()
    out += ".fill 16384, 4, 0xbf800000\ns_endpgm\n"
    out += '.section .rodata,"a"\n'
    for n, A, grid, block, lds, k in kernels: out += k
    open(path, "w").write(out)
def all_kernels(prof):
    sg = 102 if prof else 64
    return [("kvproj_kernel", k1.gen_k1(prof=prof), 256, 256, 163840, kd("kvproj_kernel", sgpr=sg)),
          ("attn_kernel", k2.gen_k2(prof=prof), 256, 256, 163840, kd("attn_kernel", sgpr=sg)),
          ("oproj_kernel", k3.gen_k3(prof=prof), 256, 256, 131072, kd("oproj_kernel", vgpr=384, sgpr=sg))]
if __name__ == "__main__":
    build(all_kernels(True), "t3.s")
    build(all_kernels(False), "recurrent_scan__compressed_kv_cla__dense_activation_gelu__prompt.s")
```

```python
import sys
from common import *
import kf
HDR = open("recurrent_scan__compressed_kv_cla__dense_activation_gelu__prompt.s.ref").read().split("; Override launch")[0]
def build(kernels, path):
    out = HDR
    for n, A, grid, block, lds, k in kernels:
        out += f"; @launch kernel={n} grid=({grid},1,1) block=({block},1,1) lds={lds}\n"
    out += '.amdgcn_target "amdgcn-amd-amdhsa--gfx950"\n.text\n'
    for n, A, grid, block, lds, k in kernels:
        probs = A.check(name=n)
        for p in probs: print("HAZARD", p)
        out += A.text()
    out += ".fill 16384, 4, 0xbf800000\ns_endpgm\n"
    out += '.section .rodata,"a"\n'
    for n, A, grid, block, lds, k in kernels: out += k
    open(path, "w").write(out)
NAME = "recurrent_scan__compressed_kv_cla__dense_activation_gelu__prompt_kernel"
def build1(A, path, sgpr):
    out = HDR + "; @launch grid=(256,1,1) block=(256,1,1) lds=163840\n"
    out += '.amdgcn_target "amdgcn-amd-amdhsa--gfx950"\n.text\n'
    for p in A.check(name="k"): print("HAZARD", p)
    out += A.text() + ".fill 16384, 4, 0xbf800000\ns_endpgm\n" + '.section .rodata,"a"\n' + kd(NAME, sgpr=sgpr)
    open(path, "w").write(out)
if __name__ == "__main__":
    build1(kf.gen(NAME, prof=True), "t4.s", 102)
    build1(kf.gen(NAME, prof=False), "recurrent_scan__compressed_kv_cla__dense_activation_gelu__prompt.s", 80)
```

```python
from asmlib import *
MB = 1 << 20
WS_XN   = 0
WS_KV   = 2 * MB
WS_H    = 34 * MB
WS_CTX  = 40 * MB
WS_PART = 56 * MB
WS_QST  = 72 * MB
WS_END  = 96 * MB
KA = dict(x=0, ckv=8, wq=16, wuk=24, wuv=32, wo=40, bx=48, w1=56, b1=64, w2=72, b2=80, out=88, dbg=96, ws=104)

def mf(d, A, B, C): return f"v_mfma_f32_16x16x32_bf16 {d}, {A}, {B}, {C}"

def order_gap(lst):
    def key(t):
        op = t.split()[0]
        if op.startswith("s_"): return 0
        if op.startswith("ds_") or op.startswith("buffer_") or op.startswith("global_"): return 1
        return 2
    return sorted(lst, key=key)

def emit_spine(A, mfmas, gaps, keep_order=False):
    for i, m in enumerate(mfmas):
        A.I(m)
        g = gaps[i] if keep_order else order_gap(gaps[i])
        for x in g: A.I(x)

def srd(A, dst, ptr, nbytes):
    A.I(f"s_mov_b32 s{dst}, s{ptr}")
    A.I(f"s_mov_b32 s{dst+1}, s{ptr+1}")
    A.I(f"s_mov_b32 s{dst+2}, {nbytes}")
    A.I(f"s_mov_b32 s{dst+3}, 0x20000")

def kd(name, vgpr=512, accum=256, sgpr=96):
    return f""".p2align 6
.amdhsa_kernel {name}
  .amdhsa_next_free_vgpr {vgpr}
  .amdhsa_next_free_sgpr {sgpr}
  .amdhsa_accum_offset {accum}
  .amdhsa_group_segment_fixed_size 0
  .amdhsa_kernarg_size 112
  .amdhsa_user_sgpr_count 2
  .amdhsa_user_sgpr_kernarg_segment_ptr 1
  .amdhsa_system_sgpr_workgroup_id_x 1
  .amdhsa_float_denorm_mode_32 3
  .amdhsa_float_denorm_mode_16_64 3
.end_amdhsa_kernel
"""

def header(A, name):
    A.I(f".globl {name}")
    A.I(".p2align 8")
    A.I(f".type {name},@function")
    A.label(name)

def row_allreduce32(A, x, t, op="v_add_f32"):
    for r in (8, 4, 2, 1):
        A.I("s_nop 1")
        A.I(f"{op} {v(x)}, {v(x)}, {v(x)} row_ror:{r}")
    A.I(f"v_mov_b32 {v(t)}, {v(x)}")
    A.I("s_nop 1")
    A.I(f"v_permlane16_swap_b32 {v(x)}, {v(t)}")
    A.I("s_nop 1")
    A.I(f"{op} {v(x)}, {v(x)}, {v(t)}")

WS_STAMP = 200 * MB
class Stamps:
    def __init__(self, A, on, kidx): self.A = A; self.on = on; self.n = 0; self.kidx = kidx
    def stamp(self):
        if not self.on: return
        n = self.n
        if n >= 1: self.A.I(f"v_writelane_b32 v0, s{72+2*((n-1)%2)}, {n-1}")
        self.A.I(f"{'s_memtime' if self.on == 2 else 's_memrealtime'} s[{72+2*(n%2)}:{73+2*(n%2)}]")
        self.n += 1
    def flush(self, ws_ptr, wave_sgpr):
        if not self.on: return
        A = self.A
        A.I("s_waitcnt vmcnt(0) lgkmcnt(0)")
        self.stamp()
        A.I("s_waitcnt lgkmcnt(0)")
        A.I(f"v_writelane_b32 v0, s{72+2*((self.n-1)%2)}, {self.n-1}")
        A.I(f"s_mov_b32 s96, s{ws_ptr}")
        A.I(f"s_mov_b32 s97, s{ws_ptr+1}")
        A.I(f"s_mov_b32 s98, {256*MB}")
        A.I("s_mov_b32 s99, 0x20000")
        A.I("s_lshl_b32 s94, s2, 2")
        A.I(f"s_add_u32 s94, s94, s{wave_sgpr}")
        A.I("s_lshl_b32 s94, s94, 8")
        A.I(f"s_add_u32 s94, s94, {WS_STAMP + self.kidx*MB}")
        A.I("v_lshlrev_b32 v1, 2, v1")
        A.I(f"buffer_store_dword v0, v1, s[96:99], s94 offen")
WS_FLAG = 92 * MB
```

```python
from common import *
import math, struct
def f2u(x): return struct.unpack("<I", struct.pack("<f", x))[0]

QSCALE = f2u(math.log2(math.e) / math.sqrt(128.0))
G1 = f2u(-2.0 * math.log2(math.e) * math.sqrt(2.0 / math.pi))
G2 = f2u(-2.0 * math.log2(math.e) * math.sqrt(2.0 / math.pi) * 0.044715)
LTHR = f2u(2.0 ** 62)
OOB = 0x40000000

V_LANE, V_L16, V_K, V_V = 1, 2, 3, 19
accQ = lambda db, qb: 32 + (db*4+qb)*4
accF = lambda fb, qb: 160 + (fb*4+qb)*4
Qf = lambda qb, s_: accQ(2*s_, qb)
def Sreg(buf, kbl, qb):
    i = buf*8 + kbl*4 + qb
    return accQ(2*(i//4)+1, i % 4)
Preg = lambda buf, qb: 208 + buf*16 + qb*4
NEGM = lambda qb: 240 + qb*4
TMP = 160
Oreg = lambda db, qb: (db*4+qb)*4
VA, KA_, VB, KB = 128, 144, 160, 176
Lreg = lambda qb: 192 + qb*4
ONES = 208
S_WAVE, S_H, S_T, S_I = 36, 37, 38, 39
S_KVB = 40
S_W4K = 41
S_K0, S_V0, S_K1, S_V1 = 42, 43, 44, 45
S_AK, S_AV = 46, 47
S_STRM = 48
S_T2 = 49
S_TMP, S_TMP2 = 50, 51
S_RET = 52
S_CNT = 54
S_FAIL = 55
S_Q0 = 56
S_QA = 57
S_MASK = 8
S_MK, S_MV = 58, 59
S_SAFE = 60
SRD_WS, SRD_WQ, SRD_W1, SRD_B1 = 16, 20, 24, 28
WRING = 61440; WSLOT = 25600

def dma4(soff, m0expr):
    return [f"buffer_load_dwordx4 v{V_L16}, s[{SRD_WS}:{SRD_WS+3}], s{soff} offen offset:{j*1024} lds" for j in range(4)]

def tile_calc(dst, nadd, strm, voff):
    r = [f"s_add_u32 s{S_TMP}, s{S_I}, {nadd}",
         f"s_lshl_b32 s{S_TMP2}, s{S_TMP}, 1",
         f"s_sub_u32 s{S_TMP2}, s{S_TMP2}, s{S_T2}",
         f"s_add_i32 s{S_TMP2}, s{S_TMP2}, {strm-2}",
         f"s_add_u32 s{dst}, s{S_T2}, 2",
         f"s_cmp_lt_u32 s{S_TMP}, s{dst}"]
    if strm == 0:
        r += [f"s_cselect_b32 s{S_TMP2}, s{S_TMP}, s{S_TMP2}"]
    else:
        r += [f"s_cselect_b32 s{S_TMP2}, 0x8000, s{S_TMP2}"]
    r += [f"s_cmp_gt_u32 s{S_TMP}, 16",
          f"s_cselect_b32 s{S_TMP2}, 0x8000, s{S_TMP2}",
          f"s_lshl_b32 s{S_TMP2}, s{S_TMP2}, 15",
          f"s_add_u32 s{dst}, s{S_TMP2}, s{S_KVB}"]
    if voff: r += [f"s_add_u32 s{dst}, s{dst}, {voff}"]
    return r

def lds_calc():
    return [f"s_and_b32 s{S_TMP}, s{S_I}, 1",
            f"s_lshl_b32 s{S_TMP}, s{S_TMP}, 14",
            f"s_add_u32 s{S_TMP2}, s{S_I}, 2",
            f"s_sub_u32 s{S_TMP2}, s{S_TMP2}, s{S_T2}",
            f"s_cmp_ge_i32 s{S_TMP2}, 2",
            f"s_cselect_b32 s{S_AK}, s{S_STRM}, 0",
            f"s_add_u32 s{S_AK}, s{S_AK}, s{S_TMP}",
            f"s_cmp_ge_i32 s{S_TMP2}, 3",
            f"s_cselect_b32 s{S_AV}, s{S_STRM}, 0",
            f"s_xor_b32 s{S_TMP2}, s{S_TMP}, 0x4000",
            f"s_add_u32 s{S_AV}, s{S_AV}, s{S_TMP2}",
            f"s_add_u32 s{S_AV}, s{S_AV}, 0x8000",
            f"s_add_u32 s{S_MK}, s{S_TMP2}, s{S_W4K}",
            f"s_add_u32 s{S_MV}, s{S_TMP}, s{S_W4K}",
            f"s_add_u32 s{S_MV}, s{S_MV}, 0x8000"]

def rdfrag(dst, areg, f): return f"ds_read_b128 {a(dst,4)}, v{areg} offset:{f*1024}"

def body(A, qk, pv, first, adma, lg):
    for per in range(2):
        spine = [None]*68; gaps = [[] for _ in range(68)]
        pre = [[] for _ in range(68)]
        eb = 1 - per
        etype = pv if per == 0 else qk
        if pv:
            qbs = [2, 3] if (pv == "diag" and per == 1) else [0, 1, 2, 3]
            cz = first and per == 0
            for qb in qbs:
                d = a(Lreg(qb), 4)
                spine[qb] = mf(d, a(ONES, 4), v(Preg(per, qb), 4), "0" if cz else d)
                for db in range(8):
                    d = a(Oreg(db, qb), 4)
                    fr = (VA if db < 4 else VB) + (db % 4)*4
                    spine[(4 if db < 4 else 36) + (db % 4)*4 + qb] = mf(d, a(fr, 4), v(Preg(per, qb), 4), "0" if cz else d)
        if qk:
            for kbl in range(2):
                kb = per*2 + kbl
                for qb in range(4):
                    if qk == "diag" and kb > qb: continue
                    for s_ in range(4):
                        d = v(Sreg(per, kbl, qb), 4)
                        spine[(20 if kbl == 0 else 52) + qb*4 + s_] = mf(d, a((KA_ if kbl == 0 else KB) + s_*4, 4), v(Qf(qb, s_), 4), v(NEGM(qb), 4) if s_ == 0 else d)
        if etype:
            ehalf = 1 if per == 0 else 0
            for e in range(32):
                qb, kbl, r = e//8, (e//4) % 2, e % 4
                kb = ehalf*2 + kbl
                reg = Sreg(eb, kbl, qb) + r
                if etype == "diag" and ehalf == 1 and qb < 2: continue
                if etype == "diag" and kb > qb:
                    gaps[2*e].append(f"v_mov_b32 v{reg}, 0")
                else:
                    gaps[2*e].append(f"v_exp_f32 v{reg}, v{reg}")
                    if etype == "diag" and kb == qb:
                        gaps[2*e+1].append(f"v_cndmask_b32 v{reg}, 0, v{reg}, s[{S_MASK+2*r}:{S_MASK+2*r+1}]")
            for c in range(16):
                qb, k = c//4, c % 4
                if etype == "diag" and ehalf == 1 and qb < 2: continue
                src = Sreg(eb, k//2, qb) + (k % 2)*2
                gaps[4*c+3].append(f"v_cvt_pk_bf16_f32 v{Preg(eb,qb)+k}, v{src}, v{src+1}")
        kbpos = [3, 7, 11, 15] if per == 0 else [1, 3, 5, 7]
        rd = {}
        for i in range(4):
            rd[kbpos[i]] = (rdfrag(KB + 4*i, V_K, (per*2+1)*4 + i), "KB")
            rd[23+4*i] = (rdfrag(VA + 4*i, V_V, (1-per)*8 + i), "VA")
            rd[39+4*i] = (rdfrag(KA_ + 4*i, V_K, ((1-per)*2)*4 + i), "KA")
            rd[55+4*i] = (rdfrag(VB + 4*i, V_V, (1-per)*8 + 4 + i), "VB")
        waits = {2: "VA", 18: "KA", 34: "VB", 50: "KB"}
        dm = {}
        salu = []
        if per == 0:
            if adma:
                for i, x in enumerate(dma4(S_K1, None)): dm[5+4*i] = x
                for i, x in enumerate(dma4(S_V1, None)): dm[21+4*i] = x
                pre[4].append(f"s_add_u32 m0, s{S_MK}, 0x10000")
                pre[20].append(f"s_add_u32 m0, s{S_MV}, 0x10000")
            salu = tile_calc(S_K0, 3, 0, 0) + tile_calc(S_V0, 2, 0, 16384)
            spos = [g for g in range(22, 64, 2) if g not in (34, 50)] + [64, 65, 65, 66, 66]
        else:
            for i, x in enumerate(dma4(S_K0, None)): dm[25+4*i] = x
            for i, x in enumerate(dma4(S_V0, None)): dm[41+4*i] = x
            pre[24].append(f"s_mov_b32 m0, s{S_MK}")
            pre[40].append(f"s_mov_b32 m0, s{S_MV}")
            lc = lds_calc()
            for i, x in enumerate(lc): pre[[0,4,6,8,9,9,10,11,12,13,13,14,16,17,17][i]].append(x)
            salu = tile_calc(S_K1, 3, 1, 0) + tile_calc(S_V1, 2, 1, 16384) + [f"s_add_u32 s{S_I}, s{S_I}, 1"]
            spos = [g for g in range(26, 64, 2) if g not in (34, 40, 50)] + [57, 57, 61, 61, 64, 65, 65, 66, 66]
            spos.sort()
        assert len(salu) <= len(spos), (len(salu), len(spos))
        for i, x in enumerate(salu): pre[spos[i]].append(x)
        for g in range(68):
            if spine[g]: A.I(spine[g])
            for x in pre[g]: A.I(x)
            if g in waits:
                w = lg.wait(waits[g])
                if w: A.I(w)
            if per == 1 and g == 19:
                A.I("s_waitcnt vmcnt(0) lgkmcnt(0)"); lg.drain()
                A.I("s_barrier")
            if per == 1 and g == 21:
                A.I(f"v_add_u32 v{V_K}, s{S_AK}, v{V_L16}")
                A.I(f"v_add_u32 v{V_V}, s{S_AV}, v{V_L16}")
            if g in rd:
                A.I(rd[g][0]); lg.issue(rd[g][1])
            if g in dm: A.I(dm[g])
            for x in gaps[g]: A.I(x)

def entry_lg():
    lg = Cnt("lgkmcnt", 15)
    for t in ["VA"]*4 + ["KA"]*4 + ["VB"]*4: lg.issue(t)
    return lg

def attention(A, L, ST, vm, lg, set_flag, F_H, F_B, F_A, code_pf, oproj_setup, oproj):
    WSS = f"s[{SRD_WS}:{SRD_WS+3}]"
    A.I(f"s_mov_b32 s{S_TMP}, {QSCALE}")
    A.I("s_waitcnt vmcnt(0)"); vm.drain()
    A.I("s_barrier")
    A.I(f"v_mov_b32 v{V_K}, v{V_L16}")
    for kb, base in enumerate((KA_, KB, VA, VB)):
        for s_ in range(4):
            A.I(rdfrag(base+4*s_, V_K, kb*4+s_)); lg.issue(f"k{kb}")
    for s_ in range(4):
        for qb in range(4):
            r0, r1 = accQ(2*s_, qb), accQ(2*s_+1, qb)
            for r in range(4):
                A.I(f"v_mul_f32 v{r0+r}, s{S_TMP}, v{r0+r}")
                A.I(f"v_mul_f32 v{r1+r}, s{S_TMP}, v{r1+r}")
            A.I(f"v_cvt_pk_bf16_f32 v{r0}, v{r0}, v{r0+1}")
            A.I(f"v_cvt_pk_bf16_f32 v{r0+1}, v{r0+2}, v{r0+3}")
            A.I(f"v_cvt_pk_bf16_f32 v{r0+2}, v{r1}, v{r1+1}")
            A.I(f"v_cvt_pk_bf16_f32 v{r0+3}, v{r1+2}, v{r1+3}")
    A.I(f"v_and_b32 v208, 15, v{V_LANE}")
    A.I(f"v_lshrrev_b32 v209, 4, v{V_LANE}")
    A.I("v_lshlrev_b32 v210, 2, v209")
    for r in range(4):
        A.I(f"v_add_u32 v211, {r}, v210")
        A.I(f"v_cmp_le_u32 s[{S_MASK+2*r}:{S_MASK+2*r+1}], v211, v208")
    A.I(f"v_and_b32 v208, 3, v{V_LANE}")
    A.I("v_cmp_eq_u32 vcc, 0, v208")
    A.I("v_mov_b32 v209, 0x3f803f80")
    A.I(f"s_mov_b32 s{S_FAIL}, 0")
    A.I("v_cndmask_b32 v208, 0, v209, vcc")
    for i in range(4): A.I(f"v_accvgpr_write_b32 a{ONES+i}, v208")
    A.I(f"s_lshl_b32 s61, s2, 1")
    A.I(f"s_and_b32 s{S_TMP}, s{S_WAVE}, 1")
    A.I(f"s_add_u32 s61, s61, s{S_TMP}")
    A.I(f"s_lshl_b32 s61, s61, 15")
    A.I(f"s_add_u32 s61, s61, {WS_QST}")
    A.I(f"s_cmp_ge_u32 s{S_WAVE}, 2")
    A.I(f"s_cbranch_scc1 {L('nostash')}")
    for qb in range(4):
        A.I(f"s_add_u32 s{S_TMP}, s61, {qb*4096}")
        for s_ in range(4):
            A.I(f"buffer_store_dwordx4 {v(Qf(qb,s_),4)}, v{V_L16}, s[{SRD_WS}:{SRD_WS+3}], s{S_TMP} offen offset:{s_*1024}")
    A.label(L("nostash"))
    gel = []
    A.I(f"s_mov_b32 s32, {G2}")
    A.I(f"s_mov_b32 s33, {G1}")
    A.I("v_mov_b32 v4, s33")
    A.I(f"s_mul_i32 s34, s{S_Q0}, 49152")
    A.I(f"s_add_u32 s34, s34, {WS_H}")
    for fb in range(3):
        A.I(f"s_mul_i32 s{S_TMP}, s{S_H}, 3")
        A.I(f"s_add_u32 s{S_TMP}, s{S_TMP}, {fb}")
        A.I(f"s_lshr_b32 s{S_TMP2}, s{S_TMP}, 1")
        A.I(f"s_lshl_b32 s{S_TMP2}, s{S_TMP2}, 10")
        A.I(f"s_and_b32 s{S_TMP}, s{S_TMP}, 1")
        A.I(f"s_lshl_b32 s{S_TMP}, s{S_TMP}, 3")
        A.I(f"s_add_u32 s{S_TMP}, s{S_TMP}, s{S_TMP2}")
        A.I(f"v_add_u32 v{5+fb}, s{S_TMP}, v{V_L16}")
    for fb in range(3):
        for qb in range(4):
            x0 = accF(fb, qb)
            T = [8, 9, 10, 11]
            seq = []
            for r in range(4): seq.append(f"v_mul_f32 v{T[r]}, v{x0+r}, v{x0+r}")
            for r in range(4): seq.append(f"v_fma_f32 v{T[r]}, v{T[r]}, s32, v4")
            for r in range(4): seq.append(f"v_mul_f32 v{T[r]}, v{T[r]}, v{x0+r}")
            for r in range(4): seq.append(f"v_exp_f32 v{T[r]}, v{T[r]}")
            for r in range(4): seq.append(f"v_add_f32 v{T[r]}, 1.0, v{T[r]}")
            for r in range(4): seq.append(f"v_rcp_f32 v{T[r]}, v{T[r]}")
            for r in range(4): seq.append(f"v_mul_f32 v{x0+r}, v{x0+r}, v{T[r]}")
            seq.append(f"v_cvt_pk_bf16_f32 v{x0}, v{x0}, v{x0+1}")
            seq.append(f"v_cvt_pk_bf16_f32 v{x0+1}, v{x0+2}, v{x0+3}")
            seq.append(f"s_add_u32 s35, s34, {qb*49152}")
            seq.append(f"buffer_store_dwordx2 {v(x0,2)}, v{5+fb}, s[{SRD_WS}:{SRD_WS+3}], s35 offen sc1")
            gel += seq
    gi = 0
    for kb, base in enumerate((KA_, KB, VA, VB)):
        A.I(lg.wait(f"k{kb}") or "s_nop 0")
        for qb in range(4):
            for s_ in range(4):
                d = v(Sreg(kb//2, kb % 2, qb), 4)
                A.I(mf(d, a(base+4*s_, 4), v(Qf(qb, s_), 4), "0" if s_ == 0 else d))
                budget = 2
                while budget > 0 and gi < len(gel):
                    x = gel[gi]
                    cost = 2 if ("v_exp" in x or "v_rcp" in x or "buffer" in x) else (0 if x.startswith("s_") else 1)
                    if cost > budget: break
                    A.I(x); gi += 1; budget -= cost
    A.I("s_barrier")
    A.I(f"s_mov_b32 s{S_I}, -1")
    for x in tile_calc(S_K0, 3, 0, 0) + tile_calc(S_V0, 2, 0, 16384) + lds_calc(): A.I(x)
    A.I(f"s_mov_b32 m0, s{S_MK}")
    A.I(f"v_add_u32 v{V_K}, s{S_AK}, v{V_L16}")
    for x in dma4(S_K0, None): A.I(x)
    A.I(f"s_mov_b32 m0, s{S_MV}")
    A.I(f"v_add_u32 v{V_V}, s{S_AV}, v{V_L16}")
    for x in dma4(S_V0, None): A.I(x)
    for x in tile_calc(S_K1, 3, 1, 0) + tile_calc(S_V1, 2, 1, 16384): A.I(x)
    A.I(f"s_mov_b32 s{S_I}, 0")
    for i in range(4): A.I(rdfrag(VA+4*i, V_V, i))
    for i in range(4): A.I(rdfrag(KA_+4*i, V_K, i))
    for i in range(4): A.I(rdfrag(VB+4*i, V_V, 4+i))
    while gi < len(gel):
        A.I(gel[gi]); gi += 1
    ST.stamp()
    A.I(f"s_cmp_lg_u32 s{S_Q0}, 0")
    A.I(f"s_cbranch_scc1 {L('nodiag0')}")
    A.I("v_mov_b32 v8, 0xff7fffff")
    for kb in range(4):
        for qb in range(4):
            for r in range(4):
                reg = Sreg(kb//2, kb % 2, qb) + r
                if kb > qb: A.I(f"v_mov_b32 v{reg}, v8")
                elif kb == qb: A.I(f"v_cndmask_b32 v{reg}, v8, v{reg}, s[{S_MASK+2*r}:{S_MASK+2*r+1}]")
    A.label(L("nodiag0"))
    for qb in range(4):
        regs = [Sreg(kb//2, kb % 2, qb) + r for kb in range(4) for r in range(4)]
        m = NEGM(qb)
        A.I(f"v_max3_f32 v{m}, v{regs[0]}, v{regs[1]}, v{regs[2]}")
        for i in range(3, 15, 2): A.I(f"v_max3_f32 v{m}, v{m}, v{regs[i]}, v{regs[i+1]}")
        A.I(f"v_max_f32 v{m}, v{m}, v{regs[15]}")
    for swp in ("v_permlane16_swap_b32", "v_permlane32_swap_b32"):
        for qb in range(4): A.I(f"v_mov_b32 v{NEGM(qb)+1}, v{NEGM(qb)}")
        A.I("s_nop 0")
        for qb in range(4): A.I(f"{swp} v{NEGM(qb)}, v{NEGM(qb)+1}")
        A.I("s_nop 0")
        for qb in range(4): A.I(f"v_max_f32 v{NEGM(qb)}, v{NEGM(qb)}, v{NEGM(qb)+1}")
    for qb in range(4):
        A.I(f"v_sub_f32 v{NEGM(qb)}, 0, v{NEGM(qb)}")
        for r in range(1, 4): A.I(f"v_mov_b32 v{NEGM(qb)+r}, v{NEGM(qb)}")
    A.I(f"s_cmp_ge_u32 s{S_WAVE}, 2")
    A.I(f"s_cbranch_scc1 {L('nostash2')}")
    for qb in range(4): A.I(f"v_mov_b32 v{8+qb}, v{NEGM(qb)}")
    A.I(f"s_add_u32 s{S_TMP}, s61, 16384")
    A.I(f"buffer_store_dwordx4 v[8:11], v{V_L16}, s[{SRD_WS}:{SRD_WS+3}], s{S_TMP} offen")
    A.label(L("nostash2"))
    for buf in range(2):
        for kbl in range(2):
            for qb in range(4):
                for r in range(4):
                    reg = Sreg(buf, kbl, qb) + r
                    A.I(f"v_add_f32 v{reg}, v{reg}, v{NEGM(qb)}")
    for qb in range(4):
        for kbl in range(2):
            for r in range(4):
                reg = Sreg(0, kbl, qb) + r
                A.I(f"v_exp_f32 v{reg}, v{reg}")
        A.I("s_nop 0")
        for k in range(4):
            src = Sreg(0, k//2, qb) + (k % 2)*2
            A.I(f"v_cvt_pk_bf16_f32 v{Preg(0,qb)+k}, v{src}, v{src+1}")
    ST.stamp()
    used = {}
    def call(qk, pv, first=False):
        key = f"b_{qk}_{pv}_{int(first)}"
        used[key] = (qk, pv, first)
        A.I(f"s_call_b64 s[{S_RET}:{S_RET+1}], {L(key)}")
    def loop(kind, last_expr_sgpr_or_imm, uniq):
        A.I(f"s_mov_b32 s{S_CNT}, {last_expr_sgpr_or_imm}")
        A.I(f"s_cmp_gt_i32 s{S_I}, s{S_CNT}")
        A.I(f"s_cbranch_scc1 {L('skip_'+uniq)}")
        A.I(f"s_call_b64 s[{S_RET}:{S_RET+1}], {L('main_'+kind)}")
        A.label(L("skip_"+uniq))
    def epilogue_B(u):
        A.I("s_nop 7")
        for qb in range(4): A.I(f"v_accvgpr_read_b32 v{192+qb}, a{Lreg(qb)}")
        A.I(f"v_mov_b32 v196, {LTHR}")
        for qb in range(4):
            A.I(f"v_cmp_nle_f32 vcc, v{192+qb}, v196")
            A.I(f"s_or_b32 s{S_FAIL}, s{S_FAIL}, vcc_lo")
            A.I(f"s_or_b32 s{S_FAIL}, s{S_FAIL}, vcc_hi")
        for qb in range(4): A.I(f"v_rcp_f32 v{192+qb}, v{192+qb}")
        A.I(f"s_lshl_b32 s32, s{S_Q0}, 5")
        A.I(f"s_add_u32 s32, s32, s{S_H}")
        A.I(f"s_lshl_b32 s32, s32, 12")
        A.I(f"s_add_u32 s32, s32, {WS_CTX}")
        n = 0
        for qb in range(4):
            A.I(f"s_add_u32 s33, s32, {qb*32*4096}")
            for s_ in range(4):
                T = TMP + (n % 4)*8; n += 1
                for i in range(8): A.I(f"v_accvgpr_read_b32 v{T+i}, a{Oreg(2*s_ + i//4, qb) + i % 4}")
                for i in range(8): A.I(f"v_mul_f32 v{T+i}, v{T+i}, v{192+qb}")
                for i in range(4): A.I(f"v_cvt_pk_bf16_f32 v{T+i}, v{T+2*i}, v{T+2*i+1}")
                A.I(f"buffer_store_dwordx4 {v(T,4)}, v{V_L16}, s[{SRD_WS}:{SRD_WS+3}], s33 offen offset:{s_*1024} sc1")
    def load_QA():
        for qb in range(4):
            A.I(f"s_add_u32 s{S_TMP}, s61, {qb*4096}")
            for s_ in range(4):
                A.I(f"buffer_load_dwordx4 {v(Qf(qb,s_),4)}, v{V_L16}, s[{SRD_WS}:{SRD_WS+3}], s{S_TMP} offen offset:{s_*1024}")
        A.I(f"s_add_u32 s{S_TMP}, s61, 16384")
        A.I(f"buffer_load_dwordx4 v[200:203], v{V_L16}, s[{SRD_WS}:{SRD_WS+3}], s{S_TMP} offen")
    def fin_QA():
        A.I("s_waitcnt vmcnt(0)")
        for qb in range(4):
            for r in range(4): A.I(f"v_mov_b32 v{NEGM(qb)+r}, v{200+qb}")
        A.I("s_nop 1")
    def flag(kind, cond=False):
        if cond:
            u = f"nf{len(A.items)}"
            A.I(f"s_cmp_lg_u32 s{S_FAIL}, 0")
            A.I(f"s_cbranch_scc1 {L(u)}")
        for x in set_flag(kind, 204, 205, 34): A.I(x)
        if cond: A.label(L(u))
    A.I(f"s_sub_u32 s32, s{S_T2}, 1")
    A.I(f"s_sub_u32 s33, s{S_T2}, 2")
    A.I(f"s_cmp_eq_u32 s{S_WAVE}, 2")
    A.I(f"s_cbranch_scc1 {L('role2')}")
    A.I(f"s_cmp_eq_u32 s{S_WAVE}, 3")
    A.I(f"s_cbranch_scc1 {L('role3')}")
    call("full", "full", True); flag(F_H)
    loop("d", "s32", "r01d")
    loop("s", 14, "r01s")
    A.I(f"s_cmp_eq_u32 s{S_WAVE}, 0")
    A.I(f"s_cbranch_scc1 {L('role0t')}")
    call("full", "full"); call(None, "full")
    A.I(f"s_branch {L('merge')}")
    A.label(L("role0t"))
    call("diag", "full"); call(None, "diag")
    A.I(f"s_branch {L('merge')}")
    A.label(L("role2"))
    A.I(f"s_cmp_eq_u32 s{S_T}, 0")
    A.I(f"s_cbranch_scc1 {L('role2_t0')}")
    call("full", "full", True); flag(F_H)
    loop("d", "s33", "r2d")
    call("diag", "full")
    call(None, "diag")
    A.I(f"s_branch {L('role2_b')}")
    A.label(L("role2_t0"))
    call(None, "diag", True); flag(F_H)
    A.label(L("role2_b"))
    load_QA()
    epilogue_B("r2")
    fin_QA()
    flag(F_B, True)
    A.I(f"s_cmp_eq_u32 s{S_T}, 7")
    A.I(f"s_cbranch_scc1 {L('role2_t7')}")
    call("full", None)
    call("full", "full", True)
    loop("s", 14, "r2s")
    call(None, "full")
    call(None, None)
    A.I(f"s_branch {L('merge')}")
    A.label(L("role2_t7"))
    for i in range(128): A.I(f"v_accvgpr_write_b32 a{i}, 0")
    for i in range(16): A.I(f"v_accvgpr_write_b32 a{Lreg(0)+i}, 0")
    call(None, None); call(None, None)
    A.I(f"s_branch {L('merge')}")
    A.label(L("role3"))
    A.I(f"s_cmp_eq_u32 s{S_T}, 0")
    A.I(f"s_cbranch_scc1 {L('role3_t0')}")
    call("full", "full", True); flag(F_H)
    loop("d", "s32", "r3d")
    call("diag", "full")
    A.I(f"s_branch {L('role3_b')}")
    A.label(L("role3_t0"))
    call("diag", "full", True); flag(F_H)
    A.label(L("role3_b"))
    load_QA(); fin_QA()
    A.I(f"s_cmp_eq_u32 s{S_T}, 7")
    A.I(f"s_cbranch_scc1 {L('role3_t7')}")
    call("full", "diag")
    epilogue_B("r3")
    call("full", "full", True); flag(F_B, True)
    loop("s", 14, "r3s")
    call("diag", "full"); call(None, "diag")
    A.I(f"s_branch {L('merge')}")
    A.label(L("role3_t7"))
    call("diag", "diag")
    epilogue_B("r3b")
    call(None, "diag", True); flag(F_B, True)
    A.label(L("merge"))
    ST.stamp()
    oproj_setup(0)
    for qb in range(4): A.I(f"v_accvgpr_read_b32 v{192+qb}, a{Lreg(qb)}")
    A.I(f"v_mov_b32 v196, {LTHR}")
    for qb in range(4):
        A.I(f"v_cmp_nle_f32 vcc, v{192+qb}, v196")
        A.I(f"s_or_b32 s{S_FAIL}, s{S_FAIL}, vcc_lo")
        A.I(f"s_or_b32 s{S_FAIL}, s{S_FAIL}, vcc_hi")
    A.I(f"s_lshr_b32 s32, s{S_WAVE}, 1")
    A.I(f"s_lshl_b32 s32, s32, 16")
    A.I(f"s_and_b32 s33, s{S_WAVE}, 1")
    A.I(f"s_lshl_b32 s33, s33, 14")
    A.I(f"s_add_u32 s32, s32, s33")
    A.I(f"s_xor_b32 s33, s32, 0x10000")
    A.I(f"v_add_u32 v197, s32, v{V_L16}")
    A.I(f"v_add_u32 v198, s33, v{V_L16}")
    A.I(f"s_lshl_b32 s32, s{S_WAVE}, 10")
    A.I(f"s_add_u32 s32, s32, 49152")
    A.I(f"s_xor_b32 s33, s32, 2048")
    A.I(f"v_add_u32 v199, s32, v{V_L16}")
    A.I(f"v_add_u32 v200, s33, v{V_L16}")
    A.I(f"s_lshl_b32 s34, s{S_WAVE}, 2")
    A.I(f"s_add_u32 s34, s34, {49152+4096}")
    A.I(f"v_mov_b32 v201, s34")
    A.I(f"v_mov_b32 v202, s{S_FAIL}")
    A.I("s_waitcnt lgkmcnt(0)")
    A.I("s_barrier")
    A.I(f"ds_write_b128 v199, v[192:195]")
    A.I(f"ds_write_b32 v201, v202")
    A.I(f"s_cmp_ge_u32 s{S_WAVE}, 2")
    A.I(f"s_cbranch_scc1 {L('mhi')}")
    def merge_half(keep, u):
        send = [q for q in range(4) if q not in keep]
        for i, qb in enumerate(send):
            for db in range(8):
                A.I(f"ds_write_b128 v197, {a(Oreg(db,qb),4)} offset:{(i*8+db)*1024}")
        oproj_setup(1)
        A.I("s_waitcnt lgkmcnt(0)")
        A.I("s_barrier")
        A.I(f"v_mov_b32 v201, {49152+4096}")
        A.I(f"ds_read_b128 v[204:207], v201")
        A.I(f"ds_read_b128 v[208:211], v200")
        R = 64
        for i in range(16):
            A.I(f"ds_read_b128 {v(R+4*i,4)}, v198 offset:{i*1024}")
        A.I(f"s_lshl_b32 s32, s{S_QA}, 5")
        A.I(f"s_add_u32 s32, s32, s{S_H}")
        A.I(f"s_lshl_b32 s32, s32, 12")
        A.I(f"s_add_u32 s32, s32, {WS_CTX}")
        A.I("s_waitcnt lgkmcnt(15)")
        A.I("v_or_b32 v204, v204, v205")
        A.I("v_or3_b32 v204, v204, v206, v207")
        for qb in keep:
            A.I(f"v_add_f32 v{192+qb}, v{192+qb}, v{208+qb}")
        A.I(f"v_readfirstlane_b32 s{S_FAIL}, v204")
        for qb in keep:
            A.I(f"v_rcp_f32 v{192+qb}, v{192+qb}")
        n = 0
        for i, qb in enumerate(keep):
            A.I(f"s_add_u32 s33, s32, {qb*32*4096}")
            for s_ in range(4):
                T = TMP + (n % 4)*8; n += 1
                for k in range(8): A.I(f"v_accvgpr_read_b32 v{T+k}, a{Oreg(2*s_ + k//4, qb) + k % 4}")
                A.I(f"s_waitcnt lgkmcnt({14 - (i*8+2*s_)})")
                for k in range(8): A.I(f"v_add_f32 v{T+k}, v{T+k}, v{R + (i*8+2*s_)*4 + k}")
                for k in range(8): A.I(f"v_mul_f32 v{T+k}, v{T+k}, v{192+qb}")
                for k in range(4): A.I(f"v_cvt_pk_bf16_f32 v{T+k}, v{T+2*k}, v{T+2*k+1}")
                A.I(f"buffer_store_dwordx4 {v(T,4)}, v{V_L16}, s[{SRD_WS}:{SRD_WS+3}], s33 offen offset:{s_*1024} sc1")
    merge_half([0, 1], "lo")
    A.I(f"s_branch {L('done')}")
    A.label(L("mhi"))
    merge_half([2, 3], "hi")
    A.label(L("done"))
    ST.stamp()
    A.I("s_waitcnt vmcnt(16)")
    A.I("s_barrier")
    oproj_setup(2)
    A.I("s_waitcnt vmcnt(16)")
    for x in set_flag(F_A, 204, 205, 34): A.I(x)
    oproj()
    A.label(L("end"))
    A.I("s_endpgm")
    bodies = {}
    for kind, adma in (("d", False), ("s", True)):
        A.I(".p2align 6")
        A.label(L("main_"+kind))
        B = Asm(); l2 = entry_lg(); body(B, "full", "full", False, adma, l2)
        assert l2.q == entry_lg().q, l2.q
        probs = B.check(seq=B.items + B.items, name="main_"+kind)
        for p in probs: print("HAZARD(main)", p)
        A.items += B.items
        A.I(f"s_cmp_le_i32 s{S_I}, s{S_CNT}")
        A.I(f"s_cbranch_scc1 {L('main_'+kind)}")
        A.I(f"s_setpc_b64 s[{S_RET}:{S_RET+1}]")
    for key, (qk, pv, first) in used.items():
        A.I(".p2align 6")
        A.label(L(key))
        B = Asm(); B.I("s_nop 7"); l2 = entry_lg(); body(B, qk, pv, first, True, l2)
        B.I("s_nop 7")
        A.items += B.check(fix=True, seq=B.items)
        A.I(f"s_setpc_b64 s[{S_RET}:{S_RET+1}]")
    return A
```

```python
from common import *
import k2
from k2 import *
import math, struct

F_XN, F_KV, F_H, F_B, F_A, F_P, F_ID = range(7)
S_ID = 45
def flag_base(kind): return WS_FLAG + kind*65536
NLOG2E = f2u(-math.log2(math.e))
S_NONCE = 3
S_ROT = 39

def gen(name, prof=False, rot=True, xsc=' sc1', csc=' sc1', xdiag=0, upfront=1):
    A = Asm(); ST = Stamps(A, prof, 0)
    vm = Cnt("vmcnt", 63); lg = Cnt("lgkmcnt", 15)
    L = lambda x: f"L_{x}"
    WS = f"s[{SRD_WS}:{SRD_WS+3}]"
    uniq = [0]
    def set_flag(kind, vz, vd, st, val=S_NONCE):
        return [f"s_lshl_b32 s{st}, s2, 5", f"s_add_u32 s{st}, s{st}, s{S_WAVE}", f"s_lshl_b32 s{st}, s{st}, 2",
                f"s_add_u32 s{st}, s{st}, {flag_base(kind)}",
                f"v_mov_b32 v{vz}, 0", f"v_mov_b32 v{vd}, s{val}",
                f"buffer_store_dword v{vd}, v{vz}, {WS}, s{st} offen sc0 sc1"]
    def poll_check(vaddr, vdat, st, vmask=None):
        u = uniq[0]; uniq[0] += 1
        A.I(f"s_mov_b32 s{st}, 0")
        A.label(L(f"poll{u}"))
        if vmask is not None:
            A.I(f"v_and_b32 v{vmask}, 0xffffff00, v{vdat}")
            A.I(f"v_cmp_ne_u32 vcc, s{S_NONCE}, v{vmask}")
        else:
            A.I(f"v_cmp_ne_u32 vcc, s{S_NONCE}, v{vdat}")
        A.I(f"s_cbranch_vccz {L(f'pollok{u}')}")
        A.I(f"s_add_u32 s{st}, s{st}, 1")
        A.I(f"s_cmp_gt_u32 s{st}, 0x80000")
        A.I(f"s_cbranch_scc1 {L(f'pollok{u}')}")
        A.I("s_sleep 2")
        A.I(f"buffer_load_dword v{vdat}, v{vaddr}, {WS}, 0 offen sc0 sc1")
        A.I("s_waitcnt vmcnt(0)")
        A.I(f"s_branch {L(f'poll{u}')}")
        A.label(L(f"pollok{u}"))
    def code_pf(off, nbytes, vt, vd):
        return [f"s_lshr_b32 s{S_TMP}, s2, 3", f"s_lshl_b32 s{S_TMP}, s{S_TMP}, 2", f"s_add_u32 s{S_TMP}, s{S_TMP}, s{S_WAVE}",
                f"s_lshl_b32 s{S_TMP}, s{S_TMP}, 10", f"s_and_b32 s{S_TMP}, s{S_TMP}, {nbytes-1}", f"s_add_u32 s{S_TMP}, s{S_TMP}, {off}",
                f"v_add_u32 v{vt}, s{S_TMP}, v{V_L16}", f"global_load_dwordx4 {v(vd,4)}, v{vt}, s[62:63]"]

    header(A, name)
    A.I("s_cmp_ge_u32 s2, 256")
    A.I(f"s_cbranch_scc1 {L('end')}")
    ST.stamp()
    A.I(f"s_load_dwordx4 s[4:7], s[0:1], {KA['x']}")
    A.I(f"s_load_dwordx4 s[8:11], s[0:1], {KA['wuk']}")
    A.I(f"s_load_dwordx4 s[12:15], s[0:1], {KA['dbg']}")
    A.I("s_memrealtime s[52:53]")
    A.I("s_getpc_b64 s[62:63]")
    A.I(f"s_mov_b32 s{S_SAFE}, 0")
    A.I("v_and_b32 v1, 63, v0")
    A.I("v_lshrrev_b32 v248, 6, v0")
    A.I(f"s_and_b32 s{S_H}, s2, 7")
    A.I(f"v_readfirstlane_b32 s{S_WAVE}, v248")
    A.I(f"s_lshr_b32 s47, s2, 3")
    A.I(f"s_lshl_b32 s{S_H}, s{S_H}, 2")
    A.I(f"s_and_b32 s48, s47, 3")
    A.I(f"s_add_u32 s{S_H}, s{S_H}, s48")
    A.I(f"s_lshr_b32 s{S_T}, s47, 2")
    A.I(f"s_lshl_b32 s{S_ROT}, s48, 1")
    A.I(f"s_and_b32 s48, s{S_T}, 1")
    A.I(f"s_add_u32 s{S_ROT}, s{S_ROT}, s48")
    if not rot: A.I(f"s_mov_b32 s{S_ROT}, 0")
    A.I(f"v_lshlrev_b32 v{V_L16}, 4, v1")
    for x in code_pf(0, 32768, 249, 252): A.I(x)
    vm.issue("pf")
    A.I("v_and_b32 v248, 15, v1")
    A.I("v_lshrrev_b32 v249, 4, v1")
    A.I("v_and_b32 v250, 7, v1")
    A.I("v_xor_b32 v250, v250, v249")
    A.I("v_lshrrev_b32 v251, 3, v1")
    A.I("v_lshlrev_b32 v251, 10, v251")
    A.I("v_lshl_add_u32 v208, v250, 4, v251")
    A.I("v_xor_b32 v250, 4, v250")
    A.I("v_lshl_add_u32 v209, v250, 4, v251")
    A.I(f"v_add_u32 v210, {2*(8192-1024)}, v208")
    A.I(f"v_add_u32 v211, {3*(8192-1024)}, v209")
    A.I(f"v_add_u32 v209, {8192-1024}, v209")
    A.I("v_lshrrev_b32 v250, 1, v248")
    A.I("v_xor_b32 v250, v250, v249")
    A.I("v_and_b32 v251, 1, v248")
    A.I("v_lshlrev_b32 v251, 4, v251")
    A.I("v_lshl_add_u32 v251, v249, 13, v251")
    A.I("v_lshl_add_u32 v4, v250, 5, v251")
    A.I(f"v_add_u32 v5, {32768-1024}, v4")
    A.I("v_xor_b32 v250, 4, v250")
    A.I("v_lshl_add_u32 v6, v250, 5, v251")
    A.I(f"v_add_u32 v6, {2*(32768-1024)}, v6")
    A.I(f"v_add_u32 v7, {32768-1024}, v6")
    A.I("s_lshl_b32 s47, s2, 3")
    A.I(f"s_lshl_b32 s48, s{S_WAVE}, 1")
    A.I("s_add_u32 s47, s47, s48")
    A.I("v_lshrrev_b32 v241, 5, v1")
    A.I("v_add_u32 v241, s47, v241")
    A.I("v_and_b32 v242, 31, v1")
    A.I("v_lshlrev_b32 v243, 10, v241")
    A.I("v_lshl_add_u32 v243, v242, 4, v243")
    A.I(f"s_lshl_b32 s40, s{S_T}, 8")
    A.I(f"s_lshl_b32 s47, s{S_WAVE}, 6")
    A.I("s_add_u32 s40, s40, s47")
    A.I("s_lshl_b32 s40, s40, 10")
    A.I(f"s_lshl_b32 s42, s{S_WAVE}, 13")
    A.I(f"s_lshl_b32 s44, s{S_WAVE}, 17")
    A.I(f"s_lshl_b32 s47, s{S_H}, 8")
    A.I("s_add_u32 s44, s44, s47")
    A.I(f"s_lshl_b32 s{S_W4K}, s{S_WAVE}, 12")
    A.I("s_waitcnt lgkmcnt(0)")
    srd(A, 32, 4, 2*MB); srd(A, 20, 6, 2*MB); srd(A, 24, 8, 4*MB); srd(A, SRD_WS, 14, WS_END); srd(A, 28, 10, 4*MB)
    A.I("buffer_load_dwordx4 v[216:219], v243, s[32:35], 0 offen"); vm.issue("x")
    A.I("buffer_load_dwordx4 v[220:223], v243, s[32:35], 0 offen offset:512"); vm.issue("x")

    def rotk(t, shift, base, dst):
        return [f"s_add_u32 s{dst}, s{S_ROT}, {t}", f"s_and_b32 s{dst}, s{dst}, 7", f"s_lshl_b32 s{dst}, s{dst}, {shift}", f"s_add_u32 s{dst}, s{dst}, s{base}"]
    def wdma(which, t, slot):
        sr = 24 if which == "k" else 28
        pre = rotk(t, 19, 44, 49) + [f"s_add_u32 m0, s{S_W4K}, {slot*16384}"]
        return [(pre if j == 0 else None, f"buffer_load_dwordx4 v{4+j}, s[{sr}:{sr+3}], s49 offen offset:{j*1024} lds") for j in range(4)]
    def cdma(t):
        r = []
        for i in range(8):
            pre = None
            if i == 0: pre = rotk(t, 7, 40, 43) + [f"s_add_u32 m0, s42, {(t%3)*32768}"]
            if i == 4: pre = [f"s_add_u32 s43, s43, 32768", f"s_add_u32 m0, s42, {(t%3)*32768 + 4096}"]
            r.append((pre, f"buffer_load_dwordx4 v{208+i%4}, s[20:23], s43 offen offset:{(i%4)*1024} lds"))
        return r
    def ccopy(t):
        r = []
        for kk in range(2):
            for kb in range(4):
                st_ = t % 3
                r.append(f"ds_read_b128 {a((kb*16+2*t+kk)*4,4)}, v{(212 if st_ < 2 else 214) + kk} offset:{(st_ % 2)*32768 + kb*2048}")
        return r
    def issue(lst, tag):
        for pre, x in lst:
            if pre:
                for y in pre: A.I(y)
                if "lds" in x: A.I("s_nop 0")
            A.I(x); vm.issue(tag)
    issue(wdma("k", 0, 6), "Wk0"); issue(cdma(0), "C0")
    A.I("s_lshl_b32 s54, s2, 2")
    A.I(f"s_add_u32 s54, s54, s{S_WAVE}")
    A.I("s_lshl_b32 s55, s54, 12")
    A.I("s_lshl_b32 s54, s54, 11")
    prer = [(None, f"buffer_load_dwordx4 v[252:255], v{V_L16}, s[20:23], s53 offen offset:{j*1024}") for j in range(2)] + \
           [(None, f"buffer_load_dwordx4 v[252:255], v{V_L16}, s[24:27], s55 offen offset:{j*1024}") for j in range(4)]
    A.I("s_mov_b32 s53, s54")
    A.I(f"s_load_dwordx2 s[56:57], s[0:1], {KA['wq']}")
    A.I(f"s_load_dwordx2 s[58:59], s[0:1], {KA['wo']}")
    A.I(f"s_load_dwordx2 s[64:65], s[0:1], {KA['w1']}")
    A.I(f"s_load_dwordx2 s[66:67], s[0:1], {KA['w2']}")
    if upfront == 0:
        issue(prer, "pr"); issue(wdma("k", 1, 7), "Wk1"); issue(cdma(1), "C1")
    elif upfront == 1:
        issue(prer, "pr")
    elif upfront == 2:
        issue(wdma("k", 1, 7), "Wk1"); issue(cdma(1), "C1")
    A.I(f"s_or_b32 s47, s2, s{S_WAVE}")
    A.I(f"s_cmp_lg_u32 s47, 0")
    A.I(f"s_cbranch_scc1 {L('nocas')}")
    A.I("s_and_b32 s52, s52, 0xffffff00")
    A.I("s_or_b32 s52, s52, 0x100")
    A.I("v_mov_b32 v184, s52")
    A.I("v_mov_b32 v185, 0")
    A.I("global_store_dword v185, v184, s[12:13] sc0 sc1")
    A.label(L("nocas"))
    ST.stamp()
    A.I("v_lshrrev_b32 v250, 1, v248")
    A.I("v_xor_b32 v250, v250, v249")
    A.I("v_lshlrev_b32 v251, 7, v248")
    A.I("v_add_u32 v251, s42, v251")
    A.I("v_lshl_add_u32 v212, v250, 4, v251")
    A.I("v_xor_b32 v250, 4, v250")
    A.I("v_lshl_add_u32 v213, v250, 4, v251")
    A.I("v_add_u32 v214, 0x10000, v212")
    A.I("v_add_u32 v215, 0x10000, v213")
    A.I("v_bfe_u32 v248, v1, 2, 2")
    A.I("v_lshlrev_b32 v250, 3, v249")
    A.I("v_add_u32 v250, v250, v248")
    A.I("v_lshlrev_b32 v250, 8, v250")
    A.I("v_and_b32 v251, 3, v1")
    A.I("v_lshl_add_u32 v250, v251, 3, v250")
    A.I("v_add_u32 v250, 98304, v250")
    A.I("v_and_b32 v251, 1, v249")
    A.I("v_lshl_add_u32 v248, v251, 2, v248")
    for nb in range(8):
        A.I(f"v_xor_b32 v251, {nb}, v248")
        A.I(f"v_lshl_add_u32 v{8+nb}, v251, 5, v250")
    A.I("v_lshrrev_b32 v250, 4, v241")
    A.I("v_lshlrev_b32 v250, 14, v250")
    A.I("v_lshrrev_b32 v251, 2, v242")
    A.I("v_lshl_add_u32 v250, v251, 10, v250")
    A.I("v_and_b32 v251, 3, v242")
    A.I("v_lshl_add_u32 v250, v251, 8, v250")
    A.I("v_and_b32 v251, 15, v241")
    A.I("v_lshl_add_u32 v240, v251, 4, v250")
    A.I(f"s_lshl_b32 s46, s{S_H}, 5")
    A.I(f"s_lshl_b32 s47, s{S_T}, 2")
    A.I("s_add_u32 s46, s46, s47")
    A.I(f"s_add_u32 s46, s46, s{S_WAVE}")
    A.I("s_lshl_b32 s46, s46, 15")
    A.I(f"s_add_u32 s46, s46, {WS_KV}")
    A.I("v_and_b32 v3, 31, v1")
    A.I("v_lshlrev_b32 v3, 7, v3")
    A.I("v_add_u32 v3, s55, v3")
    A.I("s_mul_i32 s54, s54, 11")
    A.I("s_lshr_b32 s54, s54, 4")
    A.I("v_min_u32 v250, 10, v1")
    A.I("v_lshlrev_b32 v250, 7, v250")
    A.I("v_add_u32 v250, s54, v250")
    A.I(f"v_min_u32 v250, {1376*1024-4}, v250")
    LN = Asm()
    X = 224
    for i in range(8):
        LN.I(f"v_lshlrev_b32 v{X+2*i}, 16, v{216+i}")
        LN.I(f"v_and_b32 v{X+2*i+1}, 0xffff0000, v{216+i}")
    LN.I(f"v_add_f32 v243, v{X}, v{X+1}")
    LN.I(f"v_add_f32 v244, v{X+2}, v{X+3}")
    for i in range(4, 16, 2):
        LN.I(f"v_add_f32 v243, v243, v{X+i}")
        LN.I(f"v_add_f32 v244, v244, v{X+i+1}")
    LN.I("v_add_f32 v243, v243, v244")
    row_allreduce32(LN, 243, 244)
    LN.I("v_mul_f32 v243, 0x3b000000, v243")
    LN.I("v_mov_b32 v245, 0")
    LN.I("v_mov_b32 v246, 0")
    for i in range(16):
        LN.I(f"v_sub_f32 v247, v{X+i}, v243")
        LN.I(f"v_fmac_f32 v{245+i%2}, v247, v247")
    LN.I("v_add_f32 v245, v245, v246")
    row_allreduce32(LN, 245, 244)
    LN.I("v_mul_f32 v245, 0x3b000000, v245")
    LN.I("v_cvt_pk_bf16_f32 v243, v243, v245")
    LN.I("v_and_b32 v245, 0xffff0000, v243")
    LN.I("v_lshlrev_b32 v243, 16, v243")
    LN.I("v_add_f32 v245, 0x3727c5ac, v245")
    LN.I("v_cvt_pk_bf16_f32 v245, v245, v245")
    LN.I("v_lshlrev_b32 v245, 16, v245")
    LN.I("v_sqrt_f32 v245, v245")
    LN.I("s_nop 0")
    LN.I("v_cvt_pk_bf16_f32 v245, v245, v245")
    LN.I("v_lshlrev_b32 v245, 16, v245")
    LN.I("v_rcp_f32 v245, v245")
    for i in range(16):
        LN.I(f"v_sub_f32 v{X+i}, v{X+i}, v243")
    for i in range(8):
        LN.I(f"v_cvt_pk_bf16_f32 v{216+i}, v{X+2*i}, v{X+2*i+1}")
    for i in range(8):
        LN.I(f"v_lshlrev_b32 v{X+2*i}, 16, v{216+i}")
        LN.I(f"v_and_b32 v{X+2*i+1}, 0xffff0000, v{216+i}")
        LN.I(f"v_mul_f32 v{X+2*i}, v{X+2*i}, v245")
        LN.I(f"v_mul_f32 v{X+2*i+1}, v{X+2*i+1}, v245")
    for i in range(8):
        LN.I(f"v_cvt_pk_bf16_f32 v{216+i}, v{X+2*i}, v{X+2*i+1}")
    lnq = [x.text for x in LN.items if not x.text.startswith("s_nop")]
    A.I("v_add_u32 v241, 8192, v240")
    A.I(f"s_getreg_b32 s{S_ID}, hwreg(HW_REG_XCC_ID)")
    A.I(f"s_lshr_b32 s47, s{S_ID}, 12")
    A.I(f"s_and_b32 s47, s47, 0xf0")
    A.I(f"s_and_b32 s{S_ID}, s{S_ID}, 15")
    A.I(f"s_or_b32 s{S_ID}, s{S_ID}, s47")

    WF = 144
    wfrag = lambda db, kk: WF + (db*2+kk)*4
    tr = lambda dst, areg, off: f"ds_read_b64_tr_b16 {v(dst,2)}, v{areg} offset:{off}"
    def reads1(t, db):
        r = []
        for kk in range(2):
            off = (t % 4)*16384 + kk*8192
            r += [tr(wfrag(db,kk), 8+db, off), tr(wfrag(db,kk)+2, 8+db, off+1024)]
        return r
    accK = lambda db, kb: 16 + (db*4+kb)*4
    ST.stamp()
    A.I("s_waitcnt lgkmcnt(0)")
    A.I(vm.wait("C0"))
    A.I("s_barrier")
    for x in ccopy(0): A.I(x); lg.issue("c0")
    for db in range(7):
        for x in reads1(0, db): A.I(x); lg.issue(f"R0_{db}")
    if upfront == 1:
        issue(wdma("k", 1, 7), "Wk1"); issue(cdma(1), "C1")
    elif upfront == 2:
        issue(prer, "pr")
    vslot = lambda tt: [4,5,6,0,1,7,2,3][tt]
    p2addr = lambda G: (G//8, (G//2) % 4, G % 2)
    p2areg = lambda p, dbl, win: 240 + (p % 2)*4 + dbl*2 + win
    def reads2(G):
        p, ksg, dbl = p2addr(G)
        r = []
        for k4 in range(4):
            ks = ksg*4 + k4
            byte = vslot(ks//2)*16384 + (ks % 2)*8192
            dst = WF + (G % 4)*16 + k4*4
            r += [tr(dst, p2areg(p, dbl, byte//65536), byte % 65536), tr(dst+2, p2areg(p, dbl, byte//65536), byte % 65536 + 1024)]
        return r
    def p2setup(p):
        return [f"v_subrev_u32 v{p2areg(p,dbl,win)}, {98304 - win*65536}, v{8+2*p+dbl}" for dbl in range(2) for win in (0, 1)]
    plan = {0: [("k",2),("c",2),("c",3)], 1: [("k",3),("c",4),("k",4)], 2: [("k",5),("c",5)], 3: [("k",6),("c",6)],
            4: [("k",7),("c",7)], 5: [("v",0),("v",1),("v",2)], 6: [("v",3),("v",4),("v",5)], 7: [("v",6),("v",7)]}
    lastln = [None]
    for t in range(8):
        M = []
        for db in range(8):
            for kb in range(4):
                for kk in range(2):
                    c = v(accK(db,kb),4)
                    M.append(mf(c, v(wfrag(db,kk),4), a((kb*16+2*t+kk)*4,4), "0" if (t==0 and kk==0) else c))
        w = lg.wait([f"R{t}_0", f"c{t}"])
        if w: A.I(w)
        if t in (0, 1, 2, 3, 4, 6): ST.stamp()
        ops = []
        for it in plan[t]:
            if it[0] == "c": ops += [("vm", d, f"C{it[1]}", pre) for pre, d in cdma(it[1])]
            else: ops += [("vm", d, f"W{it[0]}{it[1]}", pre) for pre, d in wdma(it[0], it[1], 6 + it[1] % 4 if it[0] == "k" else vslot(it[1]))]
        cp = [("ds", x, f"c{t+1}", None) for x in ccopy(t+1)] if t < 7 else []
        if t == 0:
            odd = [1, 3, 5] + [g for g in range(9, 64) if g % 2 == 1]
            seq = ops[:12] + cp + ops[12:]
            seq = ops[:3] + [x for pair in zip(ops[3:11], cp) for x in pair] + ops[11:]
        else:
            odd = [g for g in range(9, 64) if g % 2 == 1]
            seq = ops + cp if t < 5 else cp + ops
            seq = ops[:4] + cp + ops[4:]
        assert len(seq) <= len(odd), (t, len(seq))
        vpos = {(odd[i] if t < 2 else odd[(i*len(odd))//len(seq)]): op for i, op in enumerate(seq)}
        for g in range(64):
            db = g // 8; q = g % 8
            A.I(M[g])
            if g == 7:
                tags = [f"Wk{t+1}", f"C{t+1}"] if t < 7 else ["Wv0", "Wv1", "Wv2", "Wv3"]
                w = vm.wait(tags)
                if w: A.I(w)
                A.I("s_barrier")
            if t == 1 and g == 61:
                A.I(f"buffer_load_dword v252, v3, s[28:31], 0 offen"); vm.issue("pr")
            if t == 2 and g == 63:
                assert not lnq
                A.I(f"buffer_store_dwordx4 v[216:219], v240, {WS}, 0 offen sc1"); vm.issue("xs")
                A.I(f"buffer_store_dwordx4 v[220:223], v241, {WS}, 0 offen sc1"); vm.issue("xs")
                A.I("v_mov_b32 v248, 0")
                A.I("global_load_dword v249, v248, s[12:13] sc0 sc1"); vm.issue("nonce")
            if t == 5 and g == 8:
                assert vm.need("nonce") is None
                A.I(f"s_mov_b32 s47, 0")
                A.label(L("npoll"))
                A.I(f"v_readfirstlane_b32 s{S_NONCE}, v249")
                A.I("s_nop 0")
                A.I(f"s_cmp_lg_u32 s{S_NONCE}, 0")
                A.I(f"s_cbranch_scc1 {L('npollok')}")
                A.I("s_add_u32 s47, s47, 1")
                A.I("s_cmp_gt_u32 s47, 0x80000")
                A.I(f"s_cbranch_scc1 {L('npollok')}")
                A.I("s_sleep 2")
                A.I("global_load_dword v249, v248, s[12:13] sc0 sc1")
                A.I("s_waitcnt vmcnt(0)")
                A.I(f"s_branch {L('npoll')}")
                A.label(L("npollok"))
                A.I(f"s_add_u32 s{S_ID}, s{S_ID}, s{S_NONCE}")
                for x in set_flag(F_XN, 248, 249, 47): A.I(x)
                vm.issue("fl")
                for x in set_flag(F_ID, 248, 251, 47, S_ID): A.I(x)
                vm.issue("fl")
            if g+1 in vpos and vpos[g+1][3]:
                for x in vpos[g+1][3]: A.I(x)
            if g == 0 and 1 in vpos: A.I("s_nop 0")
            if q == 7 and db < 7:
                w = lg.wait(f"R{t}_{db+1}")
                if w: A.I(w)
            if q % 2 == 0:
                rd = None
                if db == 0: rd = (reads1(t, 7)[q//2], f"R{t}_7")
                elif t < 7: rd = (reads1(t+1, db-1)[q//2], f"R{t+1}_{db-1}")
                elif db >= 2:
                    G = (db-2)//2
                    rd = (reads2(G)[((db-2) % 2)*4 + q//2], f"S{G}")
                if rd:
                    A.I(rd[0]); lg.issue(rd[1])
                if t == 7 and db == 1 and q == 0:
                    for x in p2setup(0): A.I(x)
            if g in vpos:
                A.I(vpos[g][1])
                (lg if vpos[g][0] == "ds" else vm).issue(vpos[g][2])
            nln = 0 if (g in vpos and vpos[g][0] == "vm") else (1 if (q % 2 == 0 or g in vpos) else 2)
            while nln and lnq:
                x = lnq[0]
                sp = ("row_ror" in x or "permlane" in x or "sqrt" in x or "rcp" in x)
                if sp and nln == 2 and lastln[0] == (t, g): break
                A.I(lnq.pop(0)); nln -= 1
                dep = sp or (lnq and ("row_ror" in lnq[0] or "permlane" in lnq[0]))
                lastln[0] = (t, g)
                if dep:
                    if lnq and ("row_ror" in lnq[0] or "permlane" in lnq[0]): A.I("s_nop 0")
                    break
        if t == 2: assert not lnq, len(lnq)
    ST.stamp()
    def cvt_frag(r0, r1):
        return [f"v_cvt_pk_bf16_f32 v{r0}, v{r0}, v{r0+1}", f"v_cvt_pk_bf16_f32 v{r0+1}, v{r0+2}, v{r0+3}",
                f"v_cvt_pk_bf16_f32 v{r0+2}, v{r1}, v{r1+1}", f"v_cvt_pk_bf16_f32 v{r0+3}, v{r1+2}, v{r1+3}"]
    def store_frag(r0, f):
        return [f"s_add_u32 s47, s46, {(f>>2)*4096}", f"buffer_store_dwordx4 {v(r0,4)}, v{V_L16}, {WS}, s47 offen offset:{(f&3)*1024}"]
    accV = lambda p, dbl, kb: (208 if p % 2 == 0 else 112) + (dbl*4+kb)*4
    epi = {}
    kj = [(accK(2*s_,kb), accK(2*s_+1,kb), kb*4+s_) for s_ in range(4) for kb in range(4)]
    for i, job in enumerate(kj): epi.setdefault(i//2, []).append(job)
    for p in range(3):
        vj = [(accV(p,dbl,2*j), accV(p,dbl,2*j+1), 16 + j*8 + 2*p+dbl) for dbl in range(2) for j in range(2)]
        for i, job in enumerate(vj): epi.setdefault((p+1)*8 + (1 if p < 2 else 0) + i, []).append(job)
    RB = [138240, 87040, 61440, 112640]
    QBASE = 87040
    def qwdma(t):
        slot = RB[t % 4]
        return [(rotk(t, 19, 44, S_TMP) + [f"s_add_u32 m0, s{S_W4K}, {slot}"], f"buffer_load_dwordx4 v4, s[{SRD_WQ}:{SRD_WQ+3}], s{S_TMP} offen lds")] + \
               [(None, f"buffer_load_dwordx4 v{4+j}, s[{SRD_WQ}:{SRD_WQ+3}], s{S_TMP} offen offset:{j*1024} lds") for j in range(1, 4)] + \
               [([f"s_add_u32 s{S_TMP}, s{S_ROT}, {t}", f"s_and_b32 s{S_TMP}, s{S_TMP}, 7", f"s_mul_i32 s{S_TMP}, s{S_TMP}, {64*2752}", f"s_add_u32 s{S_TMP}, s{S_TMP}, s33",
                  f"s_add_u32 m0, s35, {slot+16384}"], f"buffer_load_dwordx4 v16, s[{SRD_W1}:{SRD_W1+3}], s{S_TMP} offen lds"),
                (None, f"buffer_load_dwordx4 v17, s[{SRD_W1}:{SRD_W1+3}], s{S_TMP} offen offset:1152 lds")]
    def xload(t):
        r = []
        for qb in range(4):
            for kk in range(2):
                pre = None
                if qb == 0 and kk == 0: pre = rotk(t, 11, 34, S_TMP2)
                elif kk == 0: pre = [f"s_add_u32 s{S_TMP2}, s{S_TMP2}, 16384"]
                r.append((pre, f"buffer_load_dwordx4 {a((qb*16+2*t+kk)*4,4)}, v{V_L16}, {WS}, s{S_TMP2} offen offset:{kk*1024}{xsc}"))
        return r
    WR = 208
    def breads(n):
        t, cb = n//11, n % 11
        r = []
        so = RB[t % 4] - QBASE
        if so < 0: so = 0
        for kk in range(2):
            dst = WR + (n % 6)*8 + kk*4
            if cb < 8: off = so + kk*8192; areg = 8+cb; h2 = 1024
            else: off = so + kk*4608 + (cb-8)*32; areg = 18; h2 = 384
            r += [tr(dst, areg, off), tr(dst+2, areg, off+h2)]
        return r
    def bump(n):
        t, cb = n//11, n % 11
        if cb <= 8 and t % 4 in (2, 3):
            areg = 8+cb if cb < 8 else 18
            return [f"v_subrev_u32 v{areg}, {WSLOT}, v{areg}" if t % 4 == 2 else f"v_add_u32 v{areg}, {WSLOT}, v{areg}"]
        return []
    q_setup_s = [
        f"s_load_dwordx2 s[4:5], s[0:1], {KA['wq']}", f"s_load_dwordx4 s[8:11], s[0:1], {KA['w1']}",
        f"s_lshl_b32 s{S_T2}, s{S_T}, 1",
        f"s_lshr_b32 s{S_STRM}, s{S_WAVE}, 1", f"s_lshl_b32 s{S_STRM}, s{S_STRM}, 16",
        f"s_and_b32 s{S_TMP}, s{S_WAVE}, 1", f"s_lshl_b32 s{S_TMP}, s{S_TMP}, 2",
        f"s_sub_u32 s{S_QA}, 15, s{S_T}", f"s_lshl_b32 s{S_QA}, s{S_QA}, 3", f"s_add_u32 s{S_QA}, s{S_QA}, s{S_TMP}",
        f"s_lshl_b32 s{S_Q0}, s{S_T}, 3", f"s_add_u32 s{S_Q0}, s{S_Q0}, s{S_TMP}",
        f"s_cmp_lt_u32 s{S_WAVE}, 2", f"s_cselect_b32 s{S_Q0}, s{S_QA}, s{S_Q0}",
        f"s_lshl_b32 s{S_KVB}, s{S_H}, 20", f"s_add_u32 s{S_KVB}, s{S_KVB}, s{S_W4K}", f"s_add_u32 s{S_KVB}, s{S_KVB}, {WS_KV}",
        f"s_mul_i32 s32, s{S_H}, 96", f"s_mul_i32 s33, s{S_WAVE}, {16*2752}", f"s_add_u32 s33, s33, s32",
        f"s_lshl_b32 s34, s{S_Q0}, 14", f"s_add_u32 s34, s34, {xdiag}", f"s_mul_i32 s35, s{S_WAVE}, 2304"]
    q_setup_v = [
        f"v_mul_u32_u24 v20, 43, v1", "v_lshrrev_b32 v20, 8, v20", "v_mul_u32_u24 v21, 6, v20", "v_sub_u32 v21, v1, v21",
        "v_mul_u32_u24 v16, 2752, v20", "v_lshl_add_u32 v16, v21, 4, v16", "v_cmp_gt_u32 vcc, 48, v1", f"v_mov_b32 v20, {OOB}",
        "v_lshrrev_b32 v21, 4, v1", "v_cndmask_b32 v16, v20, v16, vcc", f"v_add_u32 v17, {8*2752-1152}, v16",
        "v_mul_u32_u24 v18, 1152, v21", "v_bfe_u32 v22, v1, 2, 2", "v_mul_u32_u24 v22, 96, v22", "v_add_u32 v18, v18, v22",
        "v_and_b32 v22, 3, v1", "v_lshl_add_u32 v18, v22, 3, v18", f"v_add_u32 v18, {QBASE+16384}, v18",
        "v_lshlrev_b32 v19, 3, v21",
        "v_bfe_u32 v24, v1, 2, 3", "v_lshlrev_b32 v24, 7, v24", "v_lshl_add_u32 v24, v22, 2, v24"]
    def srd_list(dst, ptr, nbytes):
        return [f"s_mov_b32 s{dst}, s{ptr}", f"s_mov_b32 s{dst+1}, s{ptr+1}", f"s_mov_b32 s{dst+2}, {nbytes}", f"s_mov_b32 s{dst+3}, 0x20000"]
    extra = {}
    def put(G, g, items): extra.setdefault((G, g), []).extend(items)
    for i, x in enumerate(q_setup_s): put(3 + i//8, 1 + 2*(i % 8), [x])
    for i, x in enumerate(q_setup_v): put(5 + i//8, (1, 3, 5, 6, 9, 11, 13, 14)[i % 8], [x])
    put(5, 15, ["s_waitcnt lgkmcnt(0)"])
    put(1, 1, [("global_load_dword v252, v3, s[56:57]", "pr")]); put(1, 3, [("global_load_dword v253, v250, s[64:65]", "pr")])
    put(2, 1, [("global_load_dword v252, v3, s[58:59]", "pr")]); put(2, 3, [("global_load_dword v253, v250, s[66:67]", "pr")])
    for i, x in enumerate(srd_list(SRD_WQ, 4, 4*MB) + srd_list(SRD_W1, 8, 512*2752) + srd_list(SRD_B1, 10, 2752)): put(6, i, [x])
    put(8, 1, [f"s_lshl_b32 s{S_TMP}, s{S_Q0}, 8", f"s_add_u32 s{S_TMP}, s{S_TMP}, {flag_base(F_XN)}"])
    put(8, 3, [f"v_add_u32 v24, s{S_TMP}, v24"])
    put(8, 5, [(f"buffer_load_dword v25, v24, {WS}, 0 offen sc0 sc1", "pollx")])
    for fb in range(3):
        put(8, 7+2*fb, [(f"buffer_load_dwordx2 v[{26+2*fb}:{27+2*fb}], v19, s[{SRD_B1}:{SRD_B1+3}], s32 offen offset:{fb*32}", "b")])
    def put_ops(G0, g0, lst, tag, step=2):
        G, g = G0, g0
        for pre, x in lst:
            if pre: put(G, g-1, [("P", y) for y in pre])
            put(G, g, [(x, tag)])
            g += step
            while g > 15: G += 1; g -= 16
        return G, g
    cp2 = code_pf(32768, 32768, 32, 44)
    put(9, 1, cp2[:3]); put(9, 3, cp2[3:6]); put(9, 5, [cp2[6]]); put(9, 7, [(cp2[7], "pf2")])
    put(9, 11, ["v_add_u32 v33, 0x8000, v32"]); put(9, 13, [("global_load_dwordx4 v[44:47], v33, s[62:63]", "pf2")])
    put_ops(21, 3, qwdma(0), "W0", 6)
    XS = 48
    xs01 = [(pre, x.replace(x.split()[1], v(XS + i*4, 4) + ",")) for i, (pre, x) in enumerate(xload(0) + xload(1))]
    put_ops(12, 7, xs01, "X01", 8)
    for nb in range(8): put(23, 1+2*nb, [f"v_subrev_u32 v{8+nb}, {98304-QBASE}, v{8+nb}"])
    put(27, 0, ["WAITX"])
    mv = []
    for i in range(16):
        t_, qb, kk = i//8, (i//2) % 4, i % 2
        mv += [f"v_accvgpr_write_b32 a{(qb*16+2*t_+kk)*4+r}, v{XS+i*4+r}" for r in range(4)]
    for i, x in enumerate(mv): put(27 + i//16, 1 + 2*((i % 16)//2), [x])
    put_ops(28, 3, qwdma(1), "W1", 4)
    put_ops(30, 1, xload(2), "X2", 4)
    for G in range(32):
        p, ksg, dbl = p2addr(G)
        M = []
        for kb in range(4):
            for k4 in range(4):
                ks = ksg*4+k4
                c = v(accV(p,dbl,kb),4)
                M.append(mf(c, a((kb*16+ks)*4,4), v(WF + (G%4)*16 + k4*4,4), "0" if ks == 0 else c))
        w = lg.wait(f"S{G}")
        if w: A.I(w)
        if G in (4, 12, 20, 27): ST.stamp()
        if G == 12:
            A.I(vm.wait(["pollx", "b"]))
            poll_check(24, 25, S_TMP)
            for fb in range(3):
                for k in range(2):
                    A.I(f"v_lshlrev_b32 v{32+fb*4+2*k}, 16, v{26+2*fb+k}")
                    A.I(f"v_and_b32 v{33+fb*4+2*k}, 0xffff0000, v{26+2*fb+k}")
            for i in range(12): A.I(f"v_mov_b32 v{20+i}, v{32+i}")
        if G == 28:
            A.I(vm.wait("W0"))
            A.I("s_barrier")
        jobs = epi.get(G, [])
        cv = []; st = {}
        for i, (r0, r1, f) in enumerate(jobs):
            cv += cvt_frag(r0, r1)
            st[7 + 8*i if len(jobs) > 1 else 8] = store_frag(r0, f)
        for g in range(16):
            A.I(M[g])
            if (G == 0 and g == 15) or (G == 2 and g == 15):
                w = vm.wait("Wv5" if G == 0 else "Wv7")
                if w: A.I(w)
                A.I("s_barrier")
            ex = extra.get((G, g), [])
            for x in ex:
                if x == "WAITX": A.I(vm.wait("X01"))
                elif isinstance(x, tuple) and x[0] == "P": A.I(x[1])
                elif isinstance(x, str) and x.startswith("s_"):
                    A.I(x)
                    if x == "s_waitcnt lgkmcnt(0)": lg.drain()
            if g in st: A.I(st[g][0])
            if g % 2 == 0 and G+3 < 32 and not (len(jobs) == 1 and g == 8):
                k = g//2
                A.I(reads2(G+3)[k]); lg.issue(f"S{G+3}")
            if len(jobs) == 1 and g == 9 and G+3 < 32:
                A.I(reads2(G+3)[4]); lg.issue(f"S{G+3}")
            if G >= 29 and g % 2 == 0:
                n = (G-29)*2 + g//8
                if n < 5: A.I(breads(n)[(g//2) % 4]); lg.issue(f"R{n}")
            if g in st:
                A.I(st[g][1]); vm.issue("st")
            for x in ex:
                if isinstance(x, tuple) and x[0] != "P": A.I(x[0]); vm.issue(x[1])
                elif isinstance(x, str) and not x.startswith("s_") and x != "WAITX": A.I(x)
            if len(jobs) > 1:
                if g % 2 == 0: A.I(cv[g//2])
            elif len(jobs) == 1 and g % 2 == 0 and g < 8:
                A.I(cv[g//2])
            if (G+4) % 8 == 0 and G+4 < 32 and g in (1, 3, 5, 11):
                A.I(p2setup((G+4)//8)[(1,3,5,11).index(g)])
    A.I("s_barrier")
    for dbl in range(2):
        for j in range(2):
            r0, r1 = accV(3,dbl,2*j), accV(3,dbl,2*j+1)
            for x in cvt_frag(r0, r1): A.I(x)
            for x in store_frag(r0, 16 + j*8 + 6+dbl): A.I(x)
            vm.issue("st")
    ST.stamp()
    A.label(L("qgemm"))
    def kvdma(tile, voff, ldsoff):
        return [([f"s_add_u32 s{S_TMP}, s{S_KVB}, {tile*32768+voff}", f"s_add_u32 m0, s{S_W4K}, {ldsoff}"] if j == 0 else None,
                 f"buffer_load_dwordx4 v{V_L16}, {WS}, s{S_TMP} offen offset:{j*1024} sc1 lds") for j in range(4)]
    xt = {t: f"X{t}" for t in range(8)}
    pend = [(p, x, "W2") for p, x in qwdma(2)] + [(p, x, "W3") for p, x in qwdma(3)]
    for n in range(88):
        t, cb = n//11, n % 11
        if cb == 0:
            w = vm.wait(xt[t])
            if w: A.I(w)
            if t <= 4: pend += [(p, x, f"X{t+3}") for p, x in xload(t+3)]
            if t == 0:
                A.I(f"s_and_b32 s{S_TMP}, s2, 31")
                A.I(f"s_lshl_b32 s{S_TMP}, s{S_TMP}, 7")
                A.I(f"s_add_u32 s{S_TMP}, s{S_TMP}, {flag_base(F_ID)}")
                A.I("v_bfe_u32 v3, v1, 2, 3")
                A.I("v_lshlrev_b32 v3, 12, v3")
                A.I("v_and_b32 v19, 3, v1")
                A.I("v_lshl_add_u32 v3, v19, 2, v3")
                A.I(f"v_add_u32 v3, s{S_TMP}, v3")
                A.I(f"buffer_load_dword v19, v3, {WS}, 0 offen sc0 sc1"); vm.issue("pollid")
            if t == 5: pend += [(p, x, "KV0") for p, x in kvdma(0, 0, 0) + kvdma(1, 0, 16384)]
            if t == 6: pend += [(p, x, "KV0") for p, x in kvdma(0, 16384, 32768)]
            if t == 3:
                A.I(f"v_subrev_u32 v3, {flag_base(F_ID) - flag_base(F_KV)}, v3")
                A.I(f"buffer_load_dword v19, v3, {WS}, 0 offen sc0 sc1"); vm.issue("pollkv")
            if t == 4:
                A.I(vm.wait("pollkv"))
                poll_check(3, 19, 47)
        w = lg.wait(f"R{n}")
        if w: A.I(w)
        if cb == 0 and t in (2, 4, 6): ST.stamp()
        if cb == 6 and t < 7:
            tags = [f"W{t+1}"] + (["st"] if t == 1 else [])
            A.I(vm.wait(tags))
            A.I("s_barrier")
            if t == 1:
                assert vm.need("pollid") is None
                poll_check(3, 19, 47, vmask=31)
                A.I(f"v_cmp_ne_u32 vcc, s{S_ID}, v19")
                A.I(f"s_cbranch_vccz {L('samexcd')}")
                A.I("buffer_wbl2 sc1")
                A.I("s_waitcnt vmcnt(0)")
                A.label(L("samexcd"))
                for x in set_flag(F_KV, 31, 19, 47): A.I(x)
                vm.issue("fl")
            if 1 <= t <= 4: pend = pend + [(p, x, f"W{t+3}") for p, x in qwdma(t+3)]
        nx = n+5
        rds = breads(nx) if nx < 88 else []
        if nx < 88:
            for x in bump(nx): A.I(x)
        i = 0
        for qb in range(4):
            for kk in range(2):
                if cb < 8: d = v(accQ(cb, qb), 4); c0 = "0"
                else: d = v(accF(cb-8, qb), 4); c0 = v(20+(cb-8)*4, 4)
                A.I(mf(d, v(WR + (n % 6)*8 + kk*4, 4), a((qb*16+2*t+kk)*4, 4), c0 if (t == 0 and kk == 0) else d))
                if i % 2 == 0:
                    if pend and pend[0][0] and i in (0, 4):
                        for y in pend[0][0]: A.I(y)
                        pend[0] = (None,) + pend[0][1:]
                        if not rds: A.I("s_nop 0")
                    if rds: A.I(rds[i//2]); lg.issue(f"R{nx}")
                elif pend and i in (1, 5) and not pend[0][0]:
                    p, x, tag = pend.pop(0)
                    A.I(x); vm.issue(tag)
                i += 1
    assert not pend
    ST.stamp()
    SP, SRT, SCT, SQH, SKH, SBB, SBS, SNV, SWB, SM0 = 64, 65, 66, 67, 68, 69, 70, 71, 4, 5
    T0, T1, T2 = 6, 7, 35
    WW, SX, SO, SB2 = 20, 24, 28, 12
    vm4 = Cnt("vmcnt", 63)
    def slot4(u):
        return [2, 0, 1, 3][(u-1) % 4]*16384
    def w4dma(u):
        r = []
        for i in range(8):
            pre = None
            if i % 4 == 0:
                m0 = f"s_add_u32 m0, s{SM0}, {slot4(u) + (i//4)*4096}" if u > 0 else f"s_add_u32 m0, s{T1}, {(i//4)*4096}"
                pre = [f"s_add_u32 s{T0}, s{SWB}, {u*65536 + (i//4)*16384}", m0]
            r.append((pre, f"buffer_load_dwordx4 v{4+i%4}, s[{WW}:{WW+3}], s{T0} offen offset:{(i%4)*1024} lds"))
        return r
    def issue4(lst, tag):
        for pre, x in lst:
            if pre:
                for y in pre: A.I(y)
                if "lds" in x: A.I("s_nop 0")
            A.I(x); vm4.issue(tag)
    done_setup = set()
    def oproj_setup(stage):
        if stage == 0:
            A.I(f"s_load_dwordx2 s[8:9], s[0:1], {KA['wo']}")
            A.I(f"s_load_dwordx4 s[12:15], s[0:1], {KA['w2']}")
            A.I(f"s_load_dwordx2 s[24:25], s[0:1], {KA['x']}")
            A.I(f"s_load_dwordx2 s[28:29], s[0:1], {KA['out']}")
            A.I(f"s_and_b32 s{SP}, s2, 3")
            A.I(f"s_lshr_b32 s{T0}, s2, 3")
            A.I(f"s_and_b32 s{SCT}, s{T0}, 3")
            A.I(f"s_lshr_b32 s{SRT}, s{T0}, 2")
            A.I(f"s_and_b32 s{T1}, s2, 4")
            A.I(f"s_lshl_b32 s{T1}, s{T1}, 1")
            A.I(f"s_add_u32 s{SRT}, s{SRT}, s{T1}")
            A.I(f"s_and_b32 s{SQH}, s{S_WAVE}, 1")
            A.I(f"s_lshr_b32 s{SKH}, s{S_WAVE}, 1")
            A.I(f"s_lshl_b32 s{T0}, s{SP}, 1")
            A.I(f"s_add_u32 s{T0}, s{T0}, s{SKH}")
            A.I(f"s_cmp_eq_u32 s{T0}, 5")
            A.I(f"s_cselect_b32 s{SNV}, 18, 22")
            A.I(f"s_sub_u32 s{T1}, 22, s{SKH}")
            A.I(f"s_cmp_eq_u32 s{SP}, 3")
            A.I(f"s_cselect_b32 s{SNV}, s{T1}, s{SNV}")
            A.I(f"s_cselect_b32 s{T0}, s{SKH}, s{T0}")
            A.I(f"s_mov_b32 s{T2}, 131072")
            A.I(f"s_cselect_b32 s{SBS}, 49152, s{T2}")
            A.I(f"s_mov_b32 s{T2}, {WS_CTX}")
            A.I(f"s_cselect_b32 s{SBB}, {WS_H}, s{T2}")
            A.I(f"s_mul_i32 s{T0}, s{T0}, 22")
            A.I(f"s_lshl_b32 s{T1}, s{SRT}, 3")
            A.I(f"s_lshl_b32 s{T2}, s{SQH}, 2")
            A.I(f"s_add_u32 s{T1}, s{T1}, s{T2}")
            A.I(f"s_mul_i32 s{T1}, s{T1}, s{SBS}")
            A.I(f"s_add_u32 s{SBB}, s{SBB}, s{T1}")
            A.I(f"s_lshl_b32 s{T1}, s{T0}, 10")
            A.I(f"s_add_u32 s{SBB}, s{SBB}, s{T1}")
            A.I(f"s_add_u32 s{T0}, s{T0}, s{SQH}")
            A.I(f"s_lshl_b32 s{SWB}, s{T0}, 15")
            A.I(f"s_lshl_b32 s{T1}, s{SCT}, 8")
            A.I(f"s_add_u32 s{SWB}, s{SWB}, s{T1}")
            A.I(f"s_lshl_b32 s{SM0}, s{SKH}, 16")
            A.I(f"s_lshl_b32 s{T1}, s{SQH}, 13")
            A.I(f"s_add_u32 s{SM0}, s{SM0}, s{T1}")
            A.I("v_and_b32 v16, 15, v1")
            A.I("v_lshrrev_b32 v17, 4, v1")
            A.I("v_lshrrev_b32 v18, 1, v16")
            A.I("v_xor_b32 v18, v18, v17")
            A.I("v_and_b32 v19, 1, v16")
            A.I("v_lshlrev_b32 v19, 4, v19")
            A.I("v_lshl_add_u32 v19, v17, 10, v19")
            A.I("v_lshl_add_u32 v4, v18, 5, v19")
            A.I("v_xor_b32 v18, 4, v18")
            A.I("v_lshl_add_u32 v5, v18, 5, v19")
            A.I(f"v_add_u32 v6, {2*3072}, v4")
            A.I(f"v_add_u32 v7, {3*3072}, v5")
            A.I(f"v_add_u32 v5, {3072}, v5")
            A.I("s_waitcnt vmcnt(0) lgkmcnt(0)")
            A.I(f"s_cmp_eq_u32 s{SP}, 3")
            A.I(f"s_cselect_b32 s{WW}, s12, s8")
            A.I(f"s_cselect_b32 s{WW+1}, s13, s9")
            A.I(f"s_mov_b32 s{T1}, {4*MB}")
            A.I(f"s_cselect_b32 s{WW+2}, {1376*1024}, s{T1}")
            A.I(f"s_mov_b32 s{WW+3}, 0x20000")
            A.I(f"s_mov_b32 s12, s14"); A.I(f"s_mov_b32 s13, s15"); A.I(f"s_mov_b32 s14, 1024"); A.I(f"s_mov_b32 s15, 0x20000")
            A.I(f"s_mov_b32 s26, {2*MB}"); A.I("s_mov_b32 s27, 0x20000"); A.I(f"s_mov_b32 s30, {2*MB}"); A.I("s_mov_b32 s31, 0x20000")
            A.I(f"s_lshl_b32 s{T1}, s{SKH}, 14")
            A.I(f"s_lshl_b32 s{T2}, s{SQH}, 13")
            A.I(f"s_add_u32 s{T1}, s{T1}, s{T2}")
            A.I(f"s_add_u32 s{T1}, s{T1}, 131072")
            issue4(w4dma(0), "W0")
            A.I("v_bfe_u32 v16, v1, 2, 2")
            A.I("v_lshl_add_u32 v18, v17, 2, v16")
            A.I("v_lshlrev_b32 v18, 8, v18")
            A.I("v_and_b32 v19, 3, v1")
            A.I("v_lshl_add_u32 v18, v19, 3, v18")
            A.I(f"s_lshl_b32 s{T1}, s{SKH}, 16")
            A.I(f"v_add_u32 v18, s{T1}, v18")
            A.I("v_and_b32 v19, 1, v17")
            A.I("v_lshl_add_u32 v16, v19, 2, v16")
            A.I(f"s_mul_i32 s{T1}, s{SKH}, {16384-65536}")
            A.I(f"s_add_u32 s{T1}, s{T1}, 131072")
            for nb in range(8):
                A.I(f"v_xor_b32 v19, {nb}, v16")
                A.I(f"v_lshl_add_u32 v{8+nb}, v19, 5, v18")
                A.I(f"v_add_u32 v{20+nb}, s{T1}, v{8+nb}")
            A.I(f"s_mul_i32 s{T0}, s{SP}, 11")
            A.I(f"s_add_u32 s{T1}, s{T0}, 10")
            A.I(f"s_min_u32 s{T1}, s{T1}, 31")
            A.I(f"s_cmp_eq_u32 s{SP}, 3")
            A.I(f"s_cselect_b32 s{T0}, 0, s{T0}")
            A.I(f"s_cselect_b32 s{T1}, 28, s{T1}")
            A.I("v_and_b32 v28, 31, v1")
            A.I(f"v_add_u32 v28, s{T0}, v28")
            A.I(f"v_min_u32 v28, s{T1}, v28")
            A.I("v_lshrrev_b32 v29, 2, v28")
            A.I("v_and_b32 v28, 3, v28")
            A.I("v_lshl_add_u32 v28, v28, 3, v29")
            A.I("v_lshlrev_b32 v28, 7, v28")
            A.I(f"s_sub_u32 s{T0}, 15, s{SRT}")
            A.I(f"s_min_u32 s{T0}, s{T0}, s{SRT}")
            A.I(f"s_lshl_b32 s{T0}, s{T0}, 12")
            A.I(f"s_lshl_b32 s{T1}, s{SQH}, 2")
            A.I(f"s_add_u32 s{T0}, s{T0}, s{T1}")
            A.I(f"s_cmp_lt_u32 s{SRT}, 8")
            A.I(f"s_cselect_b32 s{T1}, 8, 0")
            A.I(f"s_add_u32 s{T0}, s{T0}, s{T1}")
            A.I(f"s_cmp_lt_u32 s{SRT}, 8")
            A.I(f"s_mov_b32 s{T1}, {flag_base(F_A)}")
            A.I(f"s_cselect_b32 s{T1}, {flag_base(F_B)}, s{T1}")
            A.I(f"s_cselect_b32 s{T2}, 0, 8")
            A.I(f"s_cmp_eq_u32 s{SP}, 3")
            A.I(f"s_cselect_b32 s{T1}, {flag_base(F_H)}, s{T1}")
            A.I(f"s_cselect_b32 s{T2}, 0, s{T2}")
            A.I(f"s_add_u32 s{T0}, s{T0}, s{T1}")
            A.I(f"v_add_u32 v28, s{T0}, v28")
            A.I("v_lshrrev_b32 v29, 5, v1")
            A.I(f"v_mul_u32_u24 v29, s{T2}, v29")
            A.I("v_add_u32 v28, v28, v29")
        elif stage == 1:
            issue4(w4dma(1), "W1")
        else:
            for i in range(8): vm4.issue("cs")
            issue4(w4dma(2), "W2"); issue4(w4dma(3), "W3")
    def oproj():
        vm4.issue("fl")
        lg4 = Cnt("lgkmcnt", 15)
        Bf = lambda u, qb, kk: (u % 4)*32 + (qb*2+kk)*4
        def bload(u):
            r = []
            for qb in range(4):
                for kk in range(2):
                    ks = 2*u+kk
                    pre = []
                    if qb == 0 and kk == 0: pre.append(f"s_add_u32 s{T1}, s{SBB}, {(ks>>2)*4096}")
                    elif kk == 0: pre.append(f"s_add_u32 s{T1}, s{T1}, s{SBS}")
                    so = T1
                    if ks >= 18:
                        pre += [f"s_cmp_gt_u32 s{SNV}, {ks}", f"s_cselect_b32 s{T2}, s{T1}, {OOB}"]
                        so = T2
                    r.append((pre or None, f"buffer_load_dwordx4 {a(Bf(u,qb,kk),4)}, v{V_L16}, {WS}, s{so} offen offset:{(ks&3)*1024}{csc}"))
            return r
        A.I(f"buffer_load_dword v29, v28, {WS}, 0 offen sc0 sc1")
        WF4 = 192
        wf = lambda mb, kk: WF4 + (mb*2+kk)*4
        def reads(u, mb):
            r = []
            for kk in range(2):
                off = (slot4(u) if u > 0 else 0) + kk*8192
                areg = (8 if u > 0 else 20) + mb
                r += [tr(wf(mb,kk), areg, off), tr(wf(mb,kk)+2, areg, off+4096)]
            return r
        acc = lambda mb, qb: 64 + (mb*4+qb)*4
        for mb in range(7):
            for x in reads(0, mb): A.I(x); lg4.issue(f"R0_{mb}")
        A.I("s_waitcnt vmcnt(0)"); vm4.drain()
        poll_check(28, 29, T0)
        ST.stamp()
        for u in range(3): issue4(bload(u), f"B{u}")
        NU = 11
        for u in range(NU):
            w = vm4.wait(f"B{u}")
            if w: A.I(w)
            w = lg4.wait(f"R{u}_0")
            if w: A.I(w)
            if u == 0: ST.stamp()
            ops = []
            if u+3 < NU: ops += [(p, x, f"B{u+3}") for p, x in bload(u+3)]
            if u >= 1 and u+3 < NU: ops = [(p, x, f"W{u+3}") for p, x in w4dma(u+3)] + ops
            odd = [g for g in range(9, 64) if g % 2 == 1]
            vpos = {odd[(i*len(odd))//len(ops)]: op for i, op in enumerate(ops)} if ops else {}
            g = 0
            for mb in range(8):
                for qb in range(4):
                    for kk in range(2):
                        q = g % 8
                        c = v(acc(mb,qb),4)
                        A.I(mf(c, v(wf(mb,kk),4), a(Bf(u,qb,kk),4), "0" if (u == 0 and kk == 0) else c))
                        if g == 7 and u+1 < NU:
                            w = vm4.wait(f"W{u+1}")
                            if w: A.I(w)
                            A.I("s_barrier")
                        if g+1 in vpos and vpos[g+1][0]:
                            for x in vpos[g+1][0]: A.I(x)
                        if q == 7 and mb < 7:
                            w = lg4.wait(f"R{u}_{mb+1}")
                            if w: A.I(w)
                        if q % 2 == 0:
                            rd = None
                            if mb == 0: rd = (reads(u, 7)[q//2], f"R{u}_7")
                            elif u+1 < NU: rd = (reads(u+1, mb-1)[q//2], f"R{u+1}_{mb-1}")
                            if rd: A.I(rd[0]); lg4.issue(rd[1])
                        if g in vpos:
                            A.I(vpos[g][1]); vm4.issue(vpos[g][2])
                        g += 1
        ST.stamp()
        A.I(f"s_lshl_b32 s{T0}, s{SRT}, 7")
        A.I(f"s_lshl_b32 s{T1}, s{SQH}, 6")
        A.I(f"s_add_u32 s{T0}, s{T0}, s{T1}")
        A.I(f"s_lshl_b32 s{T1}, s{SKH}, 5")
        A.I(f"s_add_u32 s{T0}, s{T0}, s{T1}")
        A.I(f"s_lshl_b32 s{T0}, s{T0}, 10")
        A.I(f"s_lshl_b32 s{T1}, s{SCT}, 8")
        A.I(f"s_lshl_b32 s{T2}, s{SP}, 6")
        A.I(f"s_add_u32 s{T1}, s{T1}, s{T2}")
        A.I(f"s_add_u32 s54, s{T0}, s{T1}")
        A.I("v_and_b32 v16, 15, v1")
        A.I("v_lshrrev_b32 v17, 4, v1")
        A.I("v_lshlrev_b32 v18, 3, v17")
        A.I("v_lshl_add_u32 v19, v16, 10, v18")
        A.I("v_add_u32 v20, 16384, v19")
        for i in range(2):
            for j in range(2):
                A.I(f"buffer_load_dwordx2 v[{24+(i*2+j)*2}:{25+(i*2+j)*2}], v{19+i}, s[{SX}:{SX+3}], s54 offen offset:{j*32}")
        for j in range(2):
            A.I(f"buffer_load_dwordx2 v[{32+j*2}:{33+j*2}], v18, s[{SB2}:{SB2+3}], s{T1} offen offset:{j*32}")
        A.I("s_barrier")
        A.I(f"s_lshl_b32 s{T0}, s{S_WAVE}, 14")
        A.I(f"s_xor_b32 s{T1}, s{S_WAVE}, 2")
        A.I(f"s_lshl_b32 s{T1}, s{T1}, 14")
        A.I(f"v_add_u32 v21, s{T0}, v{V_L16}")
        A.I(f"v_add_u32 v22, s{T1}, v{V_L16}")
        A.I(f"s_and_b32 s55, s2, 0xfc")
        A.I(f"s_lshl_b32 s55, s55, 16")
        A.I(f"s_add_u32 s55, s55, s{T0}")
        A.I(f"s_add_u32 s55, s55, {WS_PART}")
        A.I(f"s_lshl_b32 s{T0}, s{SP}, 16")
        A.I(f"s_add_u32 s56, s55, s{T0}")
        A.I(f"s_and_b32 s{T0}, s2, 0xfc")
        A.I(f"s_lshl_b32 s{T0}, s{T0}, 7")
        A.I(f"s_lshl_b32 s{T1}, s{S_WAVE}, 2")
        A.I(f"s_add_u32 s{T0}, s{T0}, s{T1}")
        A.I(f"s_add_u32 s{T0}, s{T0}, {flag_base(F_P)}")
        A.I("v_and_b32 v23, 3, v1")
        A.I("v_lshlrev_b32 v23, 7, v23")
        A.I(f"v_add_u32 v23, s{T0}, v23")
        A.I(f"s_cmp_eq_u32 s{SKH}, 1")
        A.I(f"s_cbranch_scc1 {L('kh1')}")
        def red(keep):
            send = [q for q in range(4) if q not in keep]
            for mb in range(8):
                for i, qb in enumerate(send):
                    A.I(f"ds_write_b128 v21, {v(acc(mb,qb),4)} offset:{(mb*2+i)*1024}")
            A.I("s_waitcnt lgkmcnt(0)")
            A.I("s_barrier")
            for b in range(16):
                A.I(f"ds_read_b128 {v(WF4+4*b,4)}, v22 offset:{b*1024}")
            for b in range(16):
                mb, i = b//2, b % 2
                r = acc(mb, keep[i])
                A.I(f"s_waitcnt lgkmcnt({15-b})")
                for k in range(4): A.I(f"v_add_f32 v{r+k}, v{r+k}, v{WF4+4*b+k}")
                if b % 4 == 3:
                    pq = b//4
                    u = f"own{keep[0]}_{pq}"
                    regs = [acc((4*pq+x)//2, keep[x % 2]) for x in range(4)]
                    A.I(f"s_cmp_eq_u32 s{SP}, {pq}")
                    A.I(f"s_cbranch_scc1 {L(u)}")
                    for x in range(4):
                        A.I(f"v_cvt_pk_bf16_f32 v{40+2*x}, v{regs[x]}, v{regs[x]+1}")
                        A.I(f"v_cvt_pk_bf16_f32 v{41+2*x}, v{regs[x]+2}, v{regs[x]+3}")
                    A.I(f"s_add_u32 s{T0}, s56, {pq*2048}")
                    A.I(f"buffer_store_dwordx4 v[40:43], v{V_L16}, {WS}, s{T0} offen sc1")
                    A.I(f"buffer_store_dwordx4 v[44:47], v{V_L16}, {WS}, s{T0} offen offset:1024 sc1")
                    A.I(f"s_branch {L(u+'e')}")
                    A.label(L(u))
                    for x in range(4):
                        for k in range(4): A.I(f"v_mov_b32 v{48+4*x+k}, v{regs[x]+k}")
                    A.label(L(u+"e"))
        red([0, 1])
        A.I(f"s_branch {L('pub')}")
        A.label(L("kh1"))
        red([2, 3])
        A.label(L("pub"))
        ST.stamp()
        A.I("s_waitcnt vmcnt(0)")
        for x in set_flag(F_P, 36, 37, T0): A.I(x)
        A.I(f"buffer_load_dword v38, v23, {WS}, 0 offen sc0 sc1")
        for n in range(4):
            for k in range(2):
                A.I(f"v_lshlrev_b32 v{128+n*4+2*k}, 16, v{24+n*2+k}")
                A.I(f"v_and_b32 v{128+n*4+2*k+1}, 0xffff0000, v{24+n*2+k}")
        for j in range(2):
            for k in range(2):
                A.I(f"v_lshlrev_b32 v{144+j*4+2*k}, 16, v{32+j*2+k}")
                A.I(f"v_and_b32 v{144+j*4+2*k+1}, 0xffff0000, v{32+j*2+k}")
        A.I("s_waitcnt vmcnt(0)")
        poll_check(23, 38, T0)
        ST.stamp()
        A.I(f"s_lshl_b32 s{T0}, s{SP}, 11")
        A.I(f"s_add_u32 s55, s55, s{T0}")
        for src in range(4):
            A.I(f"s_add_u32 s{T0}, s55, {src*65536}")
            A.I(f"s_cmp_eq_u32 s{SP}, {src}")
            A.I(f"s_cselect_b32 s{T0}, {OOB}, s{T0}")
            for hb in range(2):
                A.I(f"buffer_load_dwordx4 {v(160+(src*2+hb)*4,4)}, v{V_L16}, {WS}, s{T0} offen offset:{hb*1024} sc1")
        A.I(f"s_mov_b32 s{T2}, {NLOG2E}")
        A.I(f"s_cmp_eq_u32 s{SP}, 3")
        A.I(f"s_cselect_b32 s{T0}, 0, 1.0")
        A.I(f"s_cselect_b32 s{T1}, 1.0, 0")
        for x in range(16):
            A.I(f"v_mul_f32 v{64+x}, s{T0}, v{48+x}")
            A.I(f"v_mul_f32 v{112+x}, s{T1}, v{48+x}")
        for src in range(4):
            A.I(f"s_waitcnt vmcnt({6-2*src})")
            dst = 64 if src < 3 else 112
            for x in range(8):
                A.I(f"v_lshlrev_b32 v{80+2*x}, 16, v{160+src*8+x}")
                A.I(f"v_and_b32 v{81+2*x}, 0xffff0000, v{160+src*8+x}")
            for x in range(16): A.I(f"v_add_f32 v{dst+x}, v{dst+x}, v{80+x}")
        for b in range(4):
            j, i = b//2, b % 2
            n = i*2+j
            S0, S1, S2, Y = 64+b*4, 80+b*4, 96+b*4, 112+b*4
            for k in range(4): A.I(f"v_add_f32 v{Y+k}, v{Y+k}, v{144+j*4+k}")
            for k in range(4): A.I(f"v_mul_f32 v{152+k}, s{T2}, v{Y+k}")
            for k in range(4): A.I(f"v_exp_f32 v{152+k}, v{152+k}")
            for k in range(4): A.I(f"v_add_f32 v{152+k}, 1.0, v{152+k}")
            for k in range(4): A.I(f"v_rcp_f32 v{152+k}, v{152+k}")
            A.I("s_nop 0")
            for k in range(4): A.I(f"v_mul_f32 v{Y+k}, v{Y+k}, v{152+k}")
            for k in range(4): A.I(f"v_fma_f32 v{S0+k}, v{S0+k}, v{Y+k}, v{128+n*4+k}")
            A.I(f"v_cvt_pk_bf16_f32 v{S0}, v{S0}, v{S0+1}")
            A.I(f"v_cvt_pk_bf16_f32 v{S0+1}, v{S0+2}, v{S0+3}")
            A.I(f"buffer_store_dwordx2 {v(S0,2)}, v{19+i}, s[{SO}:{SO+3}], s54 offen offset:{j*32}")
        ST.flush(SRD_WS, S_WAVE)
    k2.attention(A, L, ST, vm, lg, set_flag, F_H, F_B, F_A, code_pf, oproj_setup, oproj)
    return A
```

```python
from common import *
import build as B
def gen(name, kidx, kind, gap, nw):
    A = Asm(); ST = Stamps(A, True, kidx)
    header(A, name)
    ST.stamp()
    A.I(f"s_load_dwordx2 s[12:13], s[0:1], {KA['ws']}")
    A.I("v_and_b32 v1, 63, v0")
    A.I("v_lshrrev_b32 v248, 6, v0")
    A.I("s_nop 0")
    A.I("v_readfirstlane_b32 s36, v248")
    A.I("v_lshlrev_b32 v3, 4, v1")
    A.I("s_waitcnt lgkmcnt(0)")
    srd(A, 20, 12, 128*MB)
    A.I("s_lshl_b32 s40, s2, 2"); A.I("s_add_u32 s40, s40, s36"); A.I("s_lshl_b32 s40, s40, 16")
    A.I("s_lshl_b32 s42, s36, 15")
    A.I("s_barrier")
    A.I(f"s_cmp_ge_u32 s36, {nw}")
    A.I(f"s_cbranch_scc1 L_{name}_skip")
    for i in range(40):
        if i % 4 == 0:
            A.I(f"s_add_u32 s41, s40, {(i//4)*4096}")
            A.I(f"s_add_u32 m0, s42, {((i//4)%8)*4096}")
            A.I("s_nop 0")
        if kind == "dma": A.I(f"buffer_load_dwordx4 v3, s[20:23], s41 offen offset:{(i%4)*1024} lds")
        elif kind == "ld": A.I(f"buffer_load_dwordx4 {a(i*4,4)}, v3, s[20:23], s41 offen offset:{(i%4)*1024}")
        else: A.I(f"buffer_store_dwordx4 v[4:7], v3, s[20:23], s41 offen offset:{(i%4)*1024}")
        for k in range(gap): A.I("s_nop 15")
        A.I("s_waitcnt lgkmcnt(0)")
        ST.stamp()
    A.label(f"L_{name}_skip")
    ST.flush(12, 36)
    A.I("s_endpgm")
    return A
ks = []
for i, (kind, gap, nw) in enumerate([("dma", 1, 4), ("ld", 1, 4), ("dma", 1, 1), ("ld", 1, 1), ("st", 1, 4), ("st", 1, 1)]):
    nm = f"c{kind}_{gap}_{nw}_kernel"
    ks.append((nm, gen(nm, i, kind, gap, nw), 256, 256, 163840, kd(nm, sgpr=102)))
B.build(ks, "tm.s")
```

```python
from common import *
import math, struct
def f2u(x): return struct.unpack("<I", struct.pack("<f", x))[0]

QSCALE = f2u(math.log2(math.e) / math.sqrt(128.0))
G1 = f2u(-2.0 * math.log2(math.e) * math.sqrt(2.0 / math.pi))
G2 = f2u(-2.0 * math.log2(math.e) * math.sqrt(2.0 / math.pi) * 0.044715)
LTHR = f2u(2.0 ** 62)
OOB = 0x40000000

V_LANE, V_L16, V_K, V_V = 1, 2, 3, 19
accQ = lambda db, qb: 32 + (db*4+qb)*4
accF = lambda fb, qb: 160 + (fb*4+qb)*4
Qf = lambda qb, s_: accQ(2*s_, qb)
def Sreg(buf, kbl, qb):
    i = buf*8 + kbl*4 + qb
    return accQ(2*(i//4)+1, i % 4)
Preg = lambda buf, qb: 208 + buf*16 + qb*4
NEGM = lambda qb: 240 + qb*4
TMP = 160
Oreg = lambda db, qb: (db*4+qb)*4
VA, KA_, VB, KB = 128, 144, 160, 176
Lreg = lambda qb: 192 + qb*4
ONES = 208
S_WAVE, S_H, S_T, S_I = 36, 37, 38, 39
S_KVB = 40
S_W4K = 41
S_K0, S_V0, S_K1, S_V1 = 42, 43, 44, 45
S_AK, S_AV = 46, 47
S_STRM = 48
S_T2 = 49
S_TMP, S_TMP2 = 50, 51
S_RET = 52
S_CNT = 54
S_FAIL = 55
S_Q0 = 56
S_QA = 57
S_MASK = 8
S_MK, S_MV = 58, 59
S_SAFE = 60
SRD_WS, SRD_WQ, SRD_W1, SRD_B1 = 16, 20, 24, 28
WRING = 61440; WSLOT = 25600

def dma4(soff, m0expr):
    return [f"buffer_load_dwordx4 v{V_L16}, s[{SRD_WS}:{SRD_WS+3}], s{soff} offen offset:{j*1024} sc1 lds" for j in range(4)]

S_E, S_C, S_DG = 4, 5, 6
def tile_calc(dst, nadd, strm, voff):
    r = [f"s_add_u32 s{S_TMP}, s{S_I}, {nadd}",
         f"s_lshl_b32 s{S_TMP2}, s{S_TMP}, 1",
         f"s_sub_u32 s{S_TMP2}, s{S_TMP2}, s{S_C}",
         f"s_cmp_eq_u32 s{S_TMP}, s{S_E}",
         f"s_cselect_b32 s{S_TMP2}, s{S_DG}, s{S_TMP2}"]
    if strm: r += [f"s_add_u32 s{S_TMP2}, s{S_TMP2}, 1"]
    r += [f"s_cmp_lt_u32 s{S_TMP}, s{S_E}",
          f"s_cselect_b32 s{S_TMP2}, s{S_TMP}, s{S_TMP2}" if strm == 0 else f"s_cselect_b32 s{S_TMP2}, 0x8000, s{S_TMP2}",
          f"s_cmp_gt_u32 s{S_TMP}, 16",
          f"s_cselect_b32 s{S_TMP2}, 0x8000, s{S_TMP2}",
          f"s_lshl_b32 s{S_TMP2}, s{S_TMP2}, 15",
          f"s_add_u32 s{dst}, s{S_TMP2}, s{S_KVB}"]
    if voff: r += [f"s_add_u32 s{dst}, s{dst}, {voff}"]
    return r

def lds_calc():
    return [f"s_and_b32 s{S_TMP}, s{S_I}, 1",
            f"s_lshl_b32 s{S_TMP}, s{S_TMP}, 14",
            f"s_add_u32 s{S_TMP2}, s{S_I}, 2",
            f"s_sub_u32 s{S_TMP2}, s{S_TMP2}, s{S_T2}",
            f"s_cmp_ge_i32 s{S_TMP2}, 2",
            f"s_cselect_b32 s{S_AK}, s{S_STRM}, 0",
            f"s_add_u32 s{S_AK}, s{S_AK}, s{S_TMP}",
            f"s_cmp_ge_i32 s{S_TMP2}, 3",
            f"s_cselect_b32 s{S_AV}, s{S_STRM}, 0",
            f"s_xor_b32 s{S_TMP2}, s{S_TMP}, 0x4000",
            f"s_add_u32 s{S_AV}, s{S_AV}, s{S_TMP2}",
            f"s_add_u32 s{S_AV}, s{S_AV}, 0x8000",
            f"s_add_u32 s{S_MK}, s{S_TMP2}, s{S_W4K}",
            f"s_add_u32 s{S_MV}, s{S_TMP}, s{S_W4K}",
            f"s_add_u32 s{S_MV}, s{S_MV}, 0x8000"]

def rdfrag(dst, areg, f): return f"ds_read_b128 {a(dst,4)}, v{areg} offset:{f*1024}"

PROF = [0]
def body(A, qk, pv, first, adma, lg, mid=None, last=None, vmn=0, xst=None):
    if PROF[0]:
        A.I(f"s_add_u32 m0, s{S_I}, 40")
        A.I("s_nop 0")
        A.I("v_writelane_b32 v0, s76, m0")
        A.I("s_memtime s[76:77]" if PROF[0] == 2 else "s_memrealtime s[76:77]")
    for per in range(2):
        spine = [None]*68; gaps = [[] for _ in range(68)]
        pre = [[] for _ in range(68)]
        eb = 1 - per
        etype = pv if per == 0 else qk
        if pv:
            qbs = [2, 3] if (pv == "diag" and per == 1) else [0, 1, 2, 3]
            cz = first and per == 0
            for qb in qbs:
                d = a(Lreg(qb), 4)
                spine[qb] = mf(d, a(ONES, 4), v(Preg(per, qb), 4), "0" if cz else d)
                for db in range(8):
                    d = a(Oreg(db, qb), 4)
                    fr = (VA if db < 4 else VB) + (db % 4)*4
                    pos = (4 if db < 4 else 36) + ((db % 4)*4 + qb)*(1 if qk else 2)
                    spine[pos] = mf(d, a(fr, 4), v(Preg(per, qb), 4), "0" if cz else d)
        if qk:
            for kbl in range(2):
                kb = per*2 + kbl
                for qb in range(4):
                    if qk == "diag" and kb > qb: continue
                    for s_ in range(4):
                        d = v(Sreg(per, kbl, qb), 4)
                        pos = ((20 if kbl == 0 else 52) + qb*4 + s_) if pv else ((4 if kbl == 0 else 36) + (qb*4 + s_)*2)
                        spine[pos] = mf(d, a((KA_ if kbl == 0 else KB) + s_*4, 4), v(Qf(qb, s_), 4), v(NEGM(qb), 4) if s_ == 0 else d)
        if etype:
            ehalf = 1 if per == 0 else 0
            for e in range(32):
                qb, kbl, r = e//8, (e//4) % 2, e % 4
                kb = ehalf*2 + kbl
                reg = Sreg(eb, kbl, qb) + r
                if etype == "diag" and ehalf == 1 and qb < 2: continue
                if etype == "diag" and kb > qb:
                    gaps[2*e].append(f"v_mov_b32 v{reg}, 0")
                else:
                    gaps[2*e].append(f"v_exp_f32 v{reg}, v{reg}")
                    if etype == "diag" and kb == qb:
                        gaps[2*e+1].append(f"v_cndmask_b32 v{reg}, 0, v{reg}, s[{S_MASK+2*r}:{S_MASK+2*r+1}]")
            for c in range(16):
                qb, k = c//4, c % 4
                if etype == "diag" and ehalf == 1 and qb < 2: continue
                src = Sreg(eb, k//2, qb) + (k % 2)*2
                gaps[4*c+3].append(f"v_cvt_pk_bf16_f32 v{Preg(eb,qb)+k}, v{src}, v{src+1}")
        kbpos = [3, 7, 11, 15] if per == 0 else [1, 3, 5, 7]
        rd = {}
        for i in range(4):
            rd[kbpos[i]] = (rdfrag(KB + 4*i, V_K, (per*2+1)*4 + i), "KB")
            rd[23+4*i] = (rdfrag(VA + 4*i, V_V, (1-per)*8 + i), "VA")
            rd[39+4*i] = (rdfrag(KA_ + 4*i, V_K, ((1-per)*2)*4 + i), "KA")
            rd[55+4*i] = (rdfrag(VB + 4*i, V_V, (1-per)*8 + 4 + i), "VB")
        waits = {2: "VA", 18: "KA", 34: "VB", 50: "KB"}
        if pv is None: waits = {2: "KA", 34: "KB"}
        if qk is None: rd = {g: x for g, x in rd.items() if not (x[1] == "KB" or (per == 0 and x[1] == "KA"))}
        if pv is None and per == 0: rd = {g: x for g, x in rd.items() if x[1] not in ("VA", "VB")}
        if last is not None:
            rd = {g: x for g, x in rd.items() if per == 0 and x[1] in ("VA", "VB")}
            waits = {2: "VA", 34: "VB"}
        dm = {}
        salu = []
        if per == 0:
            if adma:
                for i, x in enumerate(dma4(S_K1, None)): dm[5+4*i] = x
                for i, x in enumerate(dma4(S_V1, None)): dm[21+4*i] = x
                pre[4].append(f"s_add_u32 m0, s{S_MK}, 0x10000")
                pre[20].append(f"s_add_u32 m0, s{S_MV}, 0x10000")
            salu = tile_calc(S_K0, 3, 0, 0) + tile_calc(S_V0, 2, 0, 16384)
            spos = [g for g in range(22, 64, 2) if g not in (34, 50)] + [64, 65, 65, 66, 66]
        else:
            for i, x in enumerate(dma4(S_K0, None)): dm[25+4*i] = x
            for i, x in enumerate(dma4(S_V0, None)): dm[41+4*i] = x
            pre[24].append(f"s_mov_b32 m0, s{S_MK}")
            pre[40].append(f"s_mov_b32 m0, s{S_MV}")
            lc = lds_calc()
            for i, x in enumerate(lc): pre[[0,4,6,8,9,9,10,11,12,13,13,14,16,17,17][i]].append(x)
            salu = tile_calc(S_K1, 3, 1, 0) + tile_calc(S_V1, 2, 1, 16384) + [f"s_add_u32 s{S_I}, s{S_I}, 1"]
            spos = [g for g in range(26, 64, 2) if g not in (34, 40, 50)] + [57, 57, 61, 61, 64, 64, 65, 65, 66, 66]
            spos.sort()
        if last is not None:
            dm = {}; salu = []; pre = [[] for _ in range(68)]
        if per == 1 and mid: mid()
        if per == 1 and last is not None: A.I("s_waitcnt vmcnt(0)")
        assert len(salu) <= len(spos), (len(salu), len(spos))
        for i, x in enumerate(salu): pre[spos[i]].append(x)
        for g in range(68):
            if spine[g]: A.I(spine[g])
            for x in pre[g]: A.I(x)
            if g in waits:
                w = lg.wait(waits[g])
                if w: A.I(w)
            if per == 1 and last is not None and spine[g]:
                for _ in range(2):
                    if last: A.I(last.pop(0))
            if per == 1 and g == 19 and last is None:
                dbg = PROF[0] == 2 and ((vmn != 0 and first) or mid is not None)
                base = 58 if vmn else 61
                if dbg: A.I("s_memtime s[78:79]")
                A.I(f"s_waitcnt vmcnt({vmn}) lgkmcnt(0)"); lg.drain()
                if dbg:
                    A.I(f"v_writelane_b32 v0, s78, {base}"); A.I("s_memtime s[78:79]"); A.I("s_waitcnt lgkmcnt(0)"); A.I(f"v_writelane_b32 v0, s78, {base+1}")
                A.I("s_barrier")
                if dbg:
                    A.I("s_memtime s[78:79]"); A.I("s_waitcnt lgkmcnt(0)"); A.I(f"v_writelane_b32 v0, s78, {base+2}")
            if per == 1 and g == 21 and last is None:
                A.I(f"v_add_u32 v{V_K}, s{S_AK}, v{V_L16}")
                A.I(f"v_add_u32 v{V_V}, s{S_AV}, v{V_L16}")
            if g in rd:
                A.I(rd[g][0]); lg.issue(rd[g][1])
            if g in dm: A.I(dm[g])
            if xst and (per, g) in xst:
                for x in xst[(per, g)]: A.I(x)
            for x in gaps[g]: A.I(x)
    if last is not None:
        for x in last: A.I(x)

def entry_lg():
    lg = Cnt("lgkmcnt", 15)
    for t in ["VA"]*4 + ["KA"]*4 + ["VB"]*4: lg.issue(t)
    return lg

def attention(A, L, ST, vm, lg, set_flag, F_H, F_B, F_A, qrest, gel, oproj_setup, oproj, saferestart):
    WSS = f"s[{SRD_WS}:{SRD_WS+3}]"
    PROF[0] = int(ST.on)
    A.I("s_waitcnt vmcnt(0)"); vm.drain()
    A.I("s_barrier")
    A.I(f"v_mov_b32 v{V_K}, v{V_L16}")
    for kb, base in enumerate((KA_, KB, VA, VB)):
        for s_ in range(4):
            A.I(rdfrag(base+4*s_, V_K, kb*4+s_)); lg.issue(f"k{kb}")
    for x in qrest: A.I(x)
    A.I(f"v_and_b32 v208, 15, v{V_LANE}")
    A.I(f"v_lshrrev_b32 v209, 4, v{V_LANE}")
    A.I("v_lshlrev_b32 v210, 2, v209")
    for r in range(4):
        A.I(f"v_add_u32 v211, {r}, v210")
        A.I(f"v_cmp_le_u32 s[{S_MASK+2*r}:{S_MASK+2*r+1}], v211, v208")
    A.I(f"v_and_b32 v208, 3, v{V_LANE}")
    A.I("v_cmp_eq_u32 vcc, 0, v208")
    A.I("v_mov_b32 v209, 0x3f803f80")
    A.I(f"s_mov_b32 s{S_FAIL}, 0")
    A.I("v_cndmask_b32 v208, 0, v209, vcc")
    for i in range(4): A.I(f"v_accvgpr_write_b32 a{ONES+i}, v208")
    A.I(f"s_cmp_lg_u32 s{S_SAFE}, 0")
    A.I(f"s_cbranch_scc1 {L('nomaxpass')}")
    A.I(f"s_call_b64 s[{S_RET}:{S_RET+1}], {L('maxpass')}")
    A.label(L("nomaxpass"))
    gi = 0
    for kb, base in enumerate((KA_, KB, VA, VB)):
        A.I(lg.wait(f"k{kb}") or "s_nop 0")
        for qb in range(4):
            for s_ in range(4):
                d = v(Sreg(kb//2, kb % 2, qb), 4)
                A.I(mf(d, a(base+4*s_, 4), v(Qf(qb, s_), 4), "0" if s_ == 0 else d))
                budget = 2
                while budget > 0 and gi < len(gel):
                    x = gel[gi]
                    cost = 2 if ("v_exp" in x or "v_rcp" in x or "buffer" in x) else (0 if x.startswith("s_") else 1)
                    if cost > budget: break
                    A.I(x); gi += 1; budget -= cost
    A.I("s_barrier")
    A.I(f"s_mov_b32 s{S_I}, -1")
    A.I(f"s_add_u32 s{S_E}, s{S_T2}, 2")
    A.I(f"s_add_u32 s{S_C}, s{S_T2}, 4")
    A.I(f"s_sub_u32 s{S_DG}, 30, s{S_T2}")
    for x in tile_calc(S_K0, 3, 0, 0) + tile_calc(S_V0, 2, 0, 16384) + lds_calc(): A.I(x)
    A.I(f"s_mov_b32 m0, s{S_MK}")
    A.I(f"v_add_u32 v{V_K}, s{S_AK}, v{V_L16}")
    for x in dma4(S_K0, None): A.I(x)
    A.I(f"s_mov_b32 m0, s{S_MV}")
    A.I(f"v_add_u32 v{V_V}, s{S_AV}, v{V_L16}")
    for x in dma4(S_V0, None): A.I(x)
    for x in tile_calc(S_K1, 3, 1, 0) + tile_calc(S_V1, 2, 1, 16384): A.I(x)
    A.I(f"s_mov_b32 s{S_I}, 0")
    for i in range(4): A.I(rdfrag(VA+4*i, V_V, i))
    for i in range(4): A.I(rdfrag(KA_+4*i, V_K, i))
    for i in range(4): A.I(rdfrag(VB+4*i, V_V, 4+i))
    nyoung = sum(1 for x in gel[gi:] if "buffer" in x)
    while gi < len(gel):
        A.I(gel[gi]); gi += 1
    ST.stamp()
    A.I(f"s_cmp_lg_u32 s{S_Q0}, 0")
    A.I(f"s_cbranch_scc1 {L('nodiag0')}")
    A.I("v_mov_b32 v8, 0xff7fffff")
    for kb in range(4):
        for qb in range(4):
            for r in range(4):
                reg = Sreg(kb//2, kb % 2, qb) + r
                if kb > qb: A.I(f"v_mov_b32 v{reg}, v8")
                elif kb == qb: A.I(f"v_cndmask_b32 v{reg}, v8, v{reg}, s[{S_MASK+2*r}:{S_MASK+2*r+1}]")
    A.label(L("nodiag0"))
    for qb in range(4):
        regs = [Sreg(kb//2, kb % 2, qb) + r for kb in range(4) for r in range(4)]
        m = NEGM(qb)
        A.I(f"v_max3_f32 v{m}, v{regs[0]}, v{regs[1]}, v{regs[2]}")
        for i in range(3, 15, 2): A.I(f"v_max3_f32 v{m}, v{m}, v{regs[i]}, v{regs[i+1]}")
        A.I(f"v_max_f32 v{m}, v{m}, v{regs[15]}")
    A.I(f"s_cmp_lg_u32 s{S_SAFE}, 0")
    A.I(f"s_cbranch_scc1 {L('fastmax')}")
    for qb in range(4): A.I(f"v_mov_b32 v{NEGM(qb)}, v{12+qb}")
    A.label(L("fastmax"))
    for swp in ("v_permlane16_swap_b32", "v_permlane32_swap_b32"):
        for qb in range(4): A.I(f"v_mov_b32 v{NEGM(qb)+1}, v{NEGM(qb)}")
        A.I("s_nop 0")
        for qb in range(4): A.I(f"{swp} v{NEGM(qb)}, v{NEGM(qb)+1}")
        A.I("s_nop 0")
        for qb in range(4): A.I(f"v_max_f32 v{NEGM(qb)}, v{NEGM(qb)}, v{NEGM(qb)+1}")
    for qb in range(4):
        A.I(f"v_sub_f32 v{NEGM(qb)}, 0, v{NEGM(qb)}")
        for r in range(1, 4): A.I(f"v_mov_b32 v{NEGM(qb)+r}, v{NEGM(qb)}")
    A.I(f"s_cmp_ge_u32 s{S_WAVE}, 2")
    A.I(f"s_cbranch_scc1 {L('nostash2')}")
    for qb in range(4): A.I(f"v_mov_b32 v{8+qb}, v{NEGM(qb)}")
    A.I(f"s_add_u32 s{S_TMP}, s61, 16384")
    A.I(f"buffer_store_dwordx4 v[8:11], v{V_L16}, s[{SRD_WS}:{SRD_WS+3}], s{S_TMP} offen")
    A.label(L("nostash2"))
    for buf in range(2):
        for kbl in range(2):
            for qb in range(4):
                for r in range(4):
                    reg = Sreg(buf, kbl, qb) + r
                    A.I(f"v_add_f32 v{reg}, v{reg}, v{NEGM(qb)}")
    for qb in range(4):
        for kbl in range(2):
            for r in range(4):
                reg = Sreg(0, kbl, qb) + r
                A.I(f"v_exp_f32 v{reg}, v{reg}")
        A.I("s_nop 0")
        for k in range(4):
            src = Sreg(0, k//2, qb) + (k % 2)*2
            A.I(f"v_cvt_pk_bf16_f32 v{Preg(0,qb)+k}, v{src}, v{src+1}")
    ST.stamp()
    used = {}
    def flag(kind, cond=False):
        if cond:
            u = f"nf{len(A.items)}"
            A.I(f"s_and_b32 s34, s{S_FAIL}, s{S_SAFE}")
            A.I(f"s_cbranch_scc1 {L(u)}")
        for x in set_flag(kind, 204, 205, 34): A.I(x)
        if cond: A.label(L(u))
    def call(qk, pv, first=False, kind=""):
        key = f"b_{qk}_{pv}_{int(first)}{kind}"
        used[key] = (qk, pv, first, kind)
        if kind.startswith("last"): flag(F_H)
        A.I(f"s_call_b64 s[{S_RET}:{S_RET+1}], {L(key)}")
    def loop(kind, last_expr_sgpr_or_imm, uniq):
        A.I(f"s_mov_b32 s{S_CNT}, {last_expr_sgpr_or_imm}")
        A.I(f"s_cmp_gt_i32 s{S_I}, s{S_CNT}")
        A.I(f"s_cbranch_scc1 {L('skip_'+uniq)}")
        A.I(f"s_call_b64 s[{S_RET}:{S_RET+1}], {L('main_'+kind)}")
        A.label(L("skip_"+uniq))
    FREE = [Sreg(b_, k_, q_) for b_ in range(2) for k_ in range(2) for q_ in range(4)]
    def packed(n): return FREE[8+n] if n < 8 else TMP + (n-8)*4
    def epi_half(B, qbs):
        B.I("s_nop 7")
        for qb in qbs: B.I(f"v_accvgpr_read_b32 v{192+qb}, a{Lreg(qb)}")
        B.I(f"v_mov_b32 v196, {LTHR}")
        for qb in qbs:
            B.I(f"v_cmp_nle_f32 vcc, v{192+qb}, v196")
            B.I(f"s_or_b32 s{S_FAIL}, s{S_FAIL}, vcc_lo")
            B.I(f"s_or_b32 s{S_FAIL}, s{S_FAIL}, vcc_hi")
        for qb in qbs: B.I(f"v_rcp_f32 v{192+qb}, v{192+qb}")
        if qbs[0] == 0:
            B.I(f"s_lshl_b32 s32, s{S_Q0}, 5")
            B.I(f"s_add_u32 s32, s32, s{S_H}")
            B.I(f"s_lshl_b32 s32, s32, 12")
            B.I(f"s_add_u32 s32, s32, {WS_CTX}")
        for qb in qbs:
            for s_ in range(4):
                n = qb*4 + s_
                T = [FREE[(2*n) % 8], FREE[(2*n+1) % 8]]
                for i in range(8): B.I(f"v_accvgpr_read_b32 v{T[i//4] + i % 4}, a{Oreg(2*s_ + i//4, qb) + i % 4}")
                for i in range(4):
                    r = T[i//2] + 2*(i % 2)
                    B.I(f"v_pk_mul_f32 {v(r,2)}, {v(r,2)}, {v(192+2*(qb//2),2)} op_sel:[0,{qb%2}] op_sel_hi:[1,{qb%2}]")
                for i in range(4):
                    r = T[i//2] + 2*(i % 2)
                    B.I(f"v_cvt_pk_bf16_f32 v{packed(n)+i}, v{r}, v{r+1}")
    def epi_st(n):
        qb, s_ = n//4, n % 4
        return ([f"s_add_u32 s33, s32, {qb*32*4096}"] if s_ == 0 else []) + \
               [f"buffer_store_dwordx4 {v(packed(n),4)}, v{V_L16}, s[{SRD_WS}:{SRD_WS+3}], s33 offen offset:{s_*1024} sc1"]
    def load_QA():
        A.I(f"s_add_u32 s{S_TMP}, s61, 16384")
        A.I(f"buffer_load_dwordx4 v[200:203], v{V_L16}, s[{SRD_WS}:{SRD_WS+3}], s{S_TMP} offen")
        A.I("s_waitcnt lgkmcnt(0)")
        for qb in range(4):
            for s_ in range(4):
                A.I(f"ds_read_b128 {v(Qf(qb,s_),4)}, v31 offset:{(qb*4+s_)*1024}")
        A.I("s_waitcnt lgkmcnt(0)")
    def fin_QA(n):
        A.I(f"s_waitcnt vmcnt({n})")
        for qb in range(4):
            for r in range(4): A.I(f"v_mov_b32 v{NEGM(qb)+r}, v{200+qb}")
        A.I("s_nop 1")
    A.I(f"s_sub_u32 s32, s{S_T2}, 1")
    A.I(f"s_sub_u32 s33, s{S_T2}, 2")
    A.I(f"s_cmp_eq_u32 s{S_WAVE}, 2")
    A.I(f"s_cbranch_scc1 {L('role2')}")
    A.I(f"s_cmp_eq_u32 s{S_WAVE}, 3")
    A.I(f"s_cbranch_scc1 {L('role3')}")
    A.I(f"s_cmp_eq_u32 s{S_T}, 0")
    A.I(f"s_cbranch_scc1 {L('r01_t0')}")
    call("full", "full", True, "fd")
    A.I(f"s_branch {L('r01_c')}")
    A.label(L("r01_t0"))
    call("full", "full", True)
    A.label(L("r01_c"))
    loop("d", "s32", "r01d")
    A.I(f"s_cmp_eq_u32 s{S_WAVE}, 0")
    A.I(f"s_cbranch_scc1 {L('role0')}")
    loop("s", 15, "r1s")
    call(None, "full", False, "last")
    A.I(f"s_branch {L('merge')}")
    A.label(L("w_role0")); A.I(f"s_setpc_b64 s[{S_RET}:{S_RET+1}]")
    A.label(L("role0"))
    loop("s", f"s{S_T2}", "r0s")
    call("diag", "full")
    A.I(f"s_cmp_eq_u32 s{S_T}, 7")
    A.I(f"s_cbranch_scc1 {L('role0_t7')}")
    call("full", "diag")
    loop("s", 15, "r0s2")
    call(None, "full", False, "last")
    A.I(f"s_branch {L('merge')}")
    A.label(L("role0_t7"))
    call(None, "diag", False, "last")
    A.I(f"s_branch {L('merge')}")
    A.label(L("w_role2")); A.I(f"s_setpc_b64 s[{S_RET}:{S_RET+1}]")
    A.label(L("role2"))
    A.I(f"s_cmp_eq_u32 s{S_T}, 0")
    A.I(f"s_cbranch_scc1 {L('role2_t0')}")
    call("full", "full", True, "fd")
    loop("d", "s33", "r2d")
    call("diag", "full")
    load_QA()
    call(None, "diag", False, "epi")
    A.I(f"s_branch {L('role2_b')}")
    A.label(L("role2_t0"))
    call(None, "diag", True, "epi")
    load_QA()
    A.I("s_waitcnt vmcnt(0)")
    A.label(L("role2_b"))
    fin_QA(63)
    call("diag", None, False, "st")
    A.I(f"s_cmp_eq_u32 s{S_T}, 7")
    A.I(f"s_cbranch_scc1 {L('role2_t7')}")
    call("full", "diag", True)
    flag(F_B, True)
    loop("s", 15, "r2s")
    call(None, "full", False, "last")
    A.I(f"s_branch {L('merge')}")
    A.label(L("role2_t7"))
    call(None, "diag", True, "last")
    flag(F_B, True)
    A.I(f"s_branch {L('merge')}")
    A.label(L("w_role3")); A.I(f"s_setpc_b64 s[{S_RET}:{S_RET+1}]")
    A.label(L("role3"))
    A.I(f"s_cmp_eq_u32 s{S_T}, 0")
    A.I(f"s_cbranch_scc1 {L('role3_t0')}")
    call("full", "full", True, "fd")
    loop("d", "s32", "r3d")
    call("diag", "full")
    A.I(f"s_branch {L('role3_b')}")
    A.label(L("role3_t0"))
    call("diag", "full", True)
    A.label(L("role3_b"))
    load_QA()
    call(None, "diag", False, "epi")
    fin_QA(63)
    A.I(f"s_cmp_eq_u32 s{S_T}, 7")
    A.I(f"s_cbranch_scc1 {L('role3_t7')}")
    call("full", None, False, "st")
    call("full", "full", True)
    flag(F_B, True)
    loop("s", 15, "r3s")
    call(None, "full", False, "last")
    A.I(f"s_branch {L('merge')}")
    A.label(L("role3_t7"))
    for i in range(128): A.I(f"v_accvgpr_write_b32 a{i}, 0")
    for i in range(16): A.I(f"v_accvgpr_write_b32 a{Lreg(0)+i}, 0")
    call(None, None, False, "lastst")
    flag(F_B, True)
    A.I(f"s_branch {L('merge')}")
    A.label(L("w_merge")); A.I(f"s_setpc_b64 s[{S_RET}:{S_RET+1}]")
    A.label(L("merge"))
    if ST.on: A.I("v_writelane_b32 v0, s76, 57")
    ST.stamp()
    for qb in range(4): A.I(f"v_accvgpr_read_b32 v{192+qb}, a{Lreg(qb)}")
    A.I(f"v_mov_b32 v196, {LTHR}")
    for qb in range(4):
        A.I(f"v_cmp_nle_f32 vcc, v{192+qb}, v196")
        A.I(f"s_or_b32 s{S_FAIL}, s{S_FAIL}, vcc_lo")
        A.I(f"s_or_b32 s{S_FAIL}, s{S_FAIL}, vcc_hi")
    A.I(f"s_lshr_b32 s32, s{S_WAVE}, 1")
    A.I(f"s_lshl_b32 s32, s32, 16")
    A.I(f"s_and_b32 s33, s{S_WAVE}, 1")
    A.I(f"s_lshl_b32 s33, s33, 14")
    A.I(f"s_add_u32 s32, s32, s33")
    A.I(f"s_xor_b32 s33, s32, 0x14000")
    A.I(f"v_add_u32 v197, s32, v{V_L16}")
    A.I(f"v_add_u32 v198, s33, v{V_L16}")
    A.I(f"s_lshl_b32 s32, s{S_WAVE}, 10")
    A.I(f"s_add_u32 s32, s32, 49152")
    A.I(f"s_xor_b32 s33, s32, 3072")
    A.I(f"v_add_u32 v199, s32, v{V_L16}")
    A.I(f"v_add_u32 v200, s33, v{V_L16}")
    A.I(f"s_lshl_b32 s34, s{S_WAVE}, 2")
    A.I(f"s_add_u32 s34, s34, {49152+4096}")
    A.I(f"v_mov_b32 v201, s34")
    A.I(f"v_mov_b32 v202, s{S_FAIL}")
    A.I("s_barrier")
    A.I(f"ds_write_b128 v199, v[192:195]")
    A.I(f"ds_write_b32 v201, v202")
    A.I(f"s_cmp_ge_u32 s{S_WAVE}, 2")
    A.I(f"s_cbranch_scc1 {L('mhi')}")
    OWN = 128
    def merge_half(keep, u):
        send = [q for q in range(4) if q not in keep]
        for i, qb in enumerate(send):
            for db in range(8):
                A.I(f"ds_write_b128 v197, {a(Oreg(db,qb),4)} offset:{(i*8+db)*1024}")
        for i, qb in enumerate(keep):
            for k in range(32): A.I(f"v_accvgpr_read_b32 v{OWN + i*32 + k}, a{Oreg(k//4, qb) + k % 4}")
        oproj_setup("early" + u)
        oproj_setup(1)
        A.I("s_waitcnt lgkmcnt(0)")
        A.I("s_barrier")
        A.I(f"v_mov_b32 v201, {49152+4096}")
        A.I(f"ds_read_b128 v[204:207], v201")
        A.I(f"ds_read_b128 v[208:211], v200")
        R = 64
        for i in range(16):
            A.I(f"ds_read_b128 {v(R+4*i,4)}, v198 offset:{i*1024}")
        A.I(f"s_lshl_b32 s32, s{S_QA}, 5")
        A.I(f"s_add_u32 s32, s32, s{S_H}")
        A.I(f"s_lshl_b32 s32, s32, 12")
        A.I(f"s_add_u32 s32, s32, {WS_CTX}")
        A.I("s_waitcnt lgkmcnt(15)")
        A.I("v_or_b32 v204, v204, v205")
        A.I("v_or3_b32 v204, v204, v206, v207")
        for qb in keep:
            A.I(f"v_add_f32 v{192+qb}, v{192+qb}, v{208+qb}")
        A.I(f"v_readfirstlane_b32 s{S_FAIL}, v204")
        for qb in keep:
            A.I(f"v_rcp_f32 v{192+qb}, v{192+qb}")
        n = 0
        for i, qb in enumerate(keep):
            A.I(f"s_add_u32 s33, s32, {qb*32*4096}")
            for s_ in range(4):
                T = OWN + i*32 + s_*8
                A.I(f"s_waitcnt lgkmcnt({14 - (i*8+2*s_)})")
                for k in range(4): A.I(f"v_pk_add_f32 {v(T+2*k,2)}, {v(T+2*k,2)}, {v(R + (i*8+2*s_)*4 + 2*k,2)}")
                for k in range(4): A.I(f"v_pk_mul_f32 {v(T+2*k,2)}, {v(T+2*k,2)}, {v(192+2*(qb//2),2)} op_sel:[0,{qb%2}] op_sel_hi:[1,{qb%2}]")
                for k in range(4): A.I(f"v_cvt_pk_bf16_f32 v{T+k}, v{T+2*k}, v{T+2*k+1}")
                A.I(f"buffer_store_dwordx4 {v(T,4)}, v{V_L16}, s[{SRD_WS}:{SRD_WS+3}], s33 offen offset:{s_*1024} sc1")
    merge_half([0, 1], "lo")
    A.I(f"s_branch {L('done')}")
    A.label(L("w_mhi")); A.I(f"s_setpc_b64 s[{S_RET}:{S_RET+1}]")
    A.label(L("mhi"))
    merge_half([2, 3], "hi")
    A.label(L("done"))
    ST.stamp()
    A.I("s_waitcnt vmcnt(16)")
    A.I("s_barrier")
    A.I(f"s_and_b32 s34, s{S_FAIL}, s{S_SAFE}")
    A.I(f"s_cbranch_scc1 {L('saferestart')}")
    oproj_setup(2)
    A.I("s_waitcnt vmcnt(16)")
    ST.stamp()
    for x in set_flag(F_A, 204, 205, 34): A.I(x)
    oproj()
    A.label(L("end"))
    A.I("s_endpgm")
    A.label(L("maxpass"))
    M = Asm()
    for qb in range(4): M.I(f"v_mov_b32 v{12+qb}, 0xff7fffff")
    M.I("v_mov_b32 v8, 0xff7fffff")
    M.I(f"v_add_u32 v9, 0x10000, v{V_L16}")
    M.I(f"s_mov_b32 s{S_I}, 0")
    M.I(f"s_lshr_b32 s{S_CNT}, s{S_Q0}, 2")
    M.I(f"s_sub_u32 s{S_AK}, 31, s{S_T2}")
    M.I("s_waitcnt lgkmcnt(0)")
    M.label(L("mp_loop"))
    M.I(f"s_lshl_b32 s{S_TMP}, s{S_I}, 15")
    M.I(f"s_add_u32 s{S_TMP}, s{S_TMP}, s{S_KVB}")
    M.I(f"s_add_u32 m0, s{S_W4K}, 0x10000")
    M.I("s_nop 0")
    for x in dma4(S_TMP, None): M.I(x)
    M.I("s_waitcnt vmcnt(0)")
    M.I("s_barrier")
    M.I(f"s_cmp_gt_u32 s{S_I}, s{S_CNT}")
    M.I(f"s_cbranch_scc1 {L('mp_next')}")
    for kb, base in enumerate((KA_, KB, VA, VB)):
        for s_ in range(4): M.I(rdfrag(base+4*s_, 9, kb*4+s_))
    M.I("s_waitcnt lgkmcnt(0)")
    for kb, base in enumerate((KA_, KB, VA, VB)):
        for qb in range(4):
            for s_ in range(4):
                d = v(Sreg(kb//2, kb % 2, qb), 4)
                M.I(mf(d, a(base+4*s_, 4), v(Qf(qb, s_), 4), "0" if s_ == 0 else d))
    M.I("s_nop 7")
    M.I(f"s_cmp_lg_u32 s{S_I}, s{S_CNT}")
    M.I(f"s_cbranch_scc1 {L('mp_nomask')}")
    for kb in range(4):
        for qb in range(4):
            for r in range(4):
                reg = Sreg(kb//2, kb % 2, qb) + r
                if kb > qb: M.I(f"v_mov_b32 v{reg}, v8")
                elif kb == qb: M.I(f"v_cndmask_b32 v{reg}, v8, v{reg}, s[{S_MASK+2*r}:{S_MASK+2*r+1}]")
    M.label(L("mp_nomask"))
    for qb in range(4):
        regs = [Sreg(kb//2, kb % 2, qb) + r for kb in range(4) for r in range(4)]
        for i in range(0, 16, 2): M.I(f"v_max3_f32 v{12+qb}, v{12+qb}, v{regs[i]}, v{regs[i+1]}")
    M.label(L("mp_next"))
    M.I("s_barrier")
    M.I(f"s_add_u32 s{S_I}, s{S_I}, 1")
    M.I(f"s_cmp_le_u32 s{S_I}, s{S_AK}")
    M.I(f"s_cbranch_scc1 {L('mp_loop')}")
    for kb, base in enumerate((KA_, KB, VA, VB)):
        for s_ in range(4): M.I(rdfrag(base+4*s_, V_K, kb*4+s_))
    M.I("s_waitcnt lgkmcnt(0)")
    M.I(f"s_setpc_b64 s[{S_RET}:{S_RET+1}]")
    A.items += M.check(fix=True, seq=M.items)
    saferestart()
    bodies = {}
    for kind, adma in (("d", False), ("s", True)):
        A.I(".p2align 6")
        A.label(L("w_main_"+kind)); A.I(f"s_setpc_b64 s[{S_RET}:{S_RET+1}]"); A.I("s_nop 0")
        A.label(L("main_"+kind))
        B = Asm(); l2 = entry_lg(); body(B, "full", "full", False, adma, l2)
        assert l2.q == entry_lg().q, l2.q
        probs = B.check(seq=B.items + B.items, name="main_"+kind)
        for p in probs: print("HAZARD(main)", p)
        A.items += B.items
        A.I(f"s_cmp_le_i32 s{S_I}, s{S_CNT}")
        A.I(f"s_cbranch_scc1 {L('main_'+kind)}")
        A.I(f"s_setpc_b64 s[{S_RET}:{S_RET+1}]")
    for bi, (key, (qk, pv, first, kind)) in enumerate(used.items()):
        A.I(".p2align 6")
        A.label(L("w_" + key)); A.I(f"s_setpc_b64 s[{S_RET}:{S_RET+1}]")
        A.label(L(key))
        B = Asm(); B.I("s_nop 7"); l2 = entry_lg()
        body(B, qk, pv, first, kind != "fd", l2, vmn={"fd": nyoung, "st": 8}.get(kind, 0),
             xst={"epi": {(1, 40+(i//2)*8+(i%2)*2): epi_st(i) for i in range(8)}, "st": {(0, 36+4*i): epi_st(8+i) for i in range(8)},
                  "lastst": {(0, 2*i): epi_st(8+i) for i in range(8)}}.get(kind), mid=(lambda: epi_half(B, [0, 1])) if kind == "epi" else None, last=oproj_setup(0) if kind.startswith("last") else None)
        if kind == "epi": epi_half(B, [2, 3])
        B.I("s_nop 7")
        A.items += B.check(fix=True, seq=B.items)
        A.I(f"s_setpc_b64 s[{S_RET}:{S_RET+1}]")
    return A
```

```python
from common import *
import k2
from k2 import *
import math, struct

F_XN, F_KV, F_H, F_B, F_A, F_P, F_ID = range(7)
S_ID = 45
def flag_base(kind): return WS_FLAG + kind*65536
NLOG2E = f2u(-math.log2(math.e))
S_NONCE = 3
S_ROT = 39

def gen(name, prof=False, rot=False, xsc=' sc1', csc=' sc1', xdiag=0, tlb=False, itlb=True, dense=False, upfront=1):
    A = Asm(); ST = Stamps(A, prof, 0)
    vm = Cnt("vmcnt", 63); lg = Cnt("lgkmcnt", 15)
    L = lambda x: f"L_{x}"
    WS = f"s[{SRD_WS}:{SRD_WS+3}]"
    uniq = [0]
    def set_flag(kind, vz, vd, st, val=S_NONCE):
        return [f"s_lshl_b32 s{st}, s2, 5", f"s_add_u32 s{st}, s{st}, s{S_WAVE}", f"s_lshl_b32 s{st}, s{st}, 2",
                f"s_add_u32 s{st}, s{st}, {flag_base(kind)}",
                f"v_mov_b32 v{vz}, 0", f"v_mov_b32 v{vd}, s{val}",
                "s_mov_b64 exec, 1", f"buffer_store_dword v{vd}, v{vz}, {WS}, s{st} offen sc1", "s_mov_b64 exec, -1"]
    def poll_check(vaddr, vdat, st, vmask=None):
        u = uniq[0]; uniq[0] += 1
        A.I(f"s_mov_b32 s{st}, 0")
        A.label(L(f"poll{u}"))
        if vmask is not None:
            A.I(f"v_and_b32 v{vmask}, 0xffffff00, v{vdat}")
            A.I(f"v_cmp_ne_u32 vcc, s{S_NONCE}, v{vmask}")
        else:
            A.I(f"v_cmp_ne_u32 vcc, s{S_NONCE}, v{vdat}")
        A.I(f"s_cbranch_vccz {L(f'pollok{u}')}")
        A.I(f"s_add_u32 s{st}, s{st}, 1")
        A.I(f"s_cmp_gt_u32 s{st}, 0x80000")
        A.I(f"s_cbranch_scc1 {L(f'pollok{u}')}")
        A.I(f"buffer_load_dword v{vdat}, v{vaddr}, {WS}, 0 offen sc1")
        A.I("s_waitcnt vmcnt(0)")
        A.I(f"s_branch {L(f'poll{u}')}")
        A.label(L(f"pollok{u}"))
    def code_pf(off, nbytes, vt, vd):
        return [f"s_lshr_b32 s{S_TMP}, s2, 3", f"s_lshl_b32 s{S_TMP}, s{S_TMP}, 2", f"s_add_u32 s{S_TMP}, s{S_TMP}, s{S_WAVE}",
                f"s_lshl_b32 s{S_TMP}, s{S_TMP}, 10", f"s_and_b32 s{S_TMP}, s{S_TMP}, {nbytes-1}", f"s_add_u32 s{S_TMP}, s{S_TMP}, {off}",
                f"v_add_u32 v{vt}, s{S_TMP}, v{V_L16}", f"global_load_dwordx4 {v(vd,4)}, v{vt}, s[62:63]"]

    header(A, name)
    A.I("s_cmp_ge_u32 s2, 256")
    A.I(f"s_cbranch_scc1 {L('end')}")
    ST.stamp()
    A.I(f"s_load_dwordx4 s[4:7], s[0:1], {KA['x']}")
    A.I(f"s_load_dwordx4 s[8:11], s[0:1], {KA['wuk']}")
    A.I(f"s_load_dwordx4 s[12:15], s[0:1], {KA['dbg']}")
    A.I("s_memrealtime s[52:53]")
    A.I("s_getpc_b64 s[62:63]")
    A.I(f"s_mov_b32 s{S_SAFE}, -1")
    A.I("v_and_b32 v1, 63, v0")
    A.I("v_lshrrev_b32 v248, 6, v0")
    A.I(f"s_and_b32 s{S_H}, s2, 7")
    A.I(f"v_readfirstlane_b32 s{S_WAVE}, v248")
    A.I(f"s_lshr_b32 s47, s2, 3")
    A.I(f"s_lshl_b32 s{S_H}, s{S_H}, 2")
    A.I(f"s_and_b32 s48, s47, 3")
    A.I(f"s_add_u32 s{S_H}, s{S_H}, s48")
    A.I(f"s_lshr_b32 s{S_T}, s47, 2")
    A.I(f"s_lshl_b32 s{S_ROT}, s48, 1")
    A.I(f"s_and_b32 s48, s{S_T}, 1")
    A.I(f"s_add_u32 s{S_ROT}, s{S_ROT}, s48")
    if not rot: A.I(f"s_mov_b32 s{S_ROT}, 0")
    A.I(f"v_lshlrev_b32 v{V_L16}, 4, v1")
    for x in code_pf(0, 131072, 249, 252): A.I(x)
    vm.issue("pf")
    A.I("v_and_b32 v248, 15, v1")
    A.I("v_lshrrev_b32 v249, 4, v1")
    A.I("v_and_b32 v250, 7, v1")
    A.I("v_xor_b32 v250, v250, v249")
    A.I("v_lshrrev_b32 v251, 3, v1")
    A.I("v_lshlrev_b32 v251, 10, v251")
    A.I("v_lshl_add_u32 v208, v250, 4, v251")
    A.I("v_xor_b32 v250, 4, v250")
    A.I("v_lshl_add_u32 v209, v250, 4, v251")
    A.I(f"v_add_u32 v210, {2*(8192-1024)}, v208")
    A.I(f"v_add_u32 v211, {3*(8192-1024)}, v209")
    A.I(f"v_add_u32 v209, {8192-1024}, v209")
    A.I("v_lshrrev_b32 v250, 1, v248")
    A.I("v_xor_b32 v250, v250, v249")
    A.I("v_and_b32 v251, 1, v248")
    A.I("v_lshlrev_b32 v251, 4, v251")
    A.I("v_lshl_add_u32 v251, v249, 13, v251")
    A.I("v_lshl_add_u32 v4, v250, 5, v251")
    A.I(f"v_add_u32 v5, {32768-1024}, v4")
    A.I("v_xor_b32 v250, 4, v250")
    A.I("v_lshl_add_u32 v6, v250, 5, v251")
    A.I(f"v_add_u32 v6, {2*(32768-1024)}, v6")
    A.I(f"v_add_u32 v7, {32768-1024}, v6")
    A.I("s_lshl_b32 s47, s2, 3")
    A.I(f"s_lshl_b32 s48, s{S_WAVE}, 1")
    A.I("s_add_u32 s47, s47, s48")
    A.I("v_lshrrev_b32 v241, 5, v1")
    A.I("v_add_u32 v241, s47, v241")
    A.I("v_and_b32 v242, 31, v1")
    A.I("v_lshlrev_b32 v243, 10, v241")
    A.I("v_lshl_add_u32 v243, v242, 4, v243")
    A.I(f"s_lshl_b32 s40, s{S_T}, 8")
    A.I(f"s_lshl_b32 s47, s{S_WAVE}, 6")
    A.I("s_add_u32 s40, s40, s47")
    A.I("s_lshl_b32 s40, s40, 10")
    A.I(f"s_lshl_b32 s42, s{S_WAVE}, 13")
    A.I(f"s_lshl_b32 s44, s{S_WAVE}, 17")
    A.I(f"s_lshl_b32 s47, s{S_H}, 8")
    A.I("s_add_u32 s44, s44, s47")
    A.I(f"s_lshl_b32 s{S_W4K}, s{S_WAVE}, 12")
    A.I("s_waitcnt lgkmcnt(0)")
    srd(A, 32, 4, 2*MB); srd(A, 20, 6, 2*MB); srd(A, 24, 8, 4*MB); srd(A, SRD_WS, 14, WS_END); srd(A, 28, 10, 4*MB)
    A.I("buffer_load_dwordx4 v[216:219], v243, s[32:35], 0 offen"); vm.issue("x")
    A.I("buffer_load_dwordx4 v[220:223], v243, s[32:35], 0 offen offset:512"); vm.issue("x")

    def rotk(t, shift, base, dst):
        if not rot: return [f"s_add_u32 s{dst}, s{base}, {t << shift}"]
        return [f"s_add_u32 s{dst}, s{S_ROT}, {t}", f"s_and_b32 s{dst}, s{dst}, 7", f"s_lshl_b32 s{dst}, s{dst}, {shift}", f"s_add_u32 s{dst}, s{dst}, s{base}"]
    def wdma(which, t, slot):
        sr = 24 if which == "k" else 28
        pre = rotk(t, 19, 44, 49) + [f"s_add_u32 m0, s{S_W4K}, {slot*16384}"]
        return [(pre if j == 0 else None, f"buffer_load_dwordx4 v{4+j}, s[{sr}:{sr+3}], s49 offen offset:{j*1024} lds") for j in range(4)]
    def cdma(t):
        r = []
        for i in range(8):
            pre = None
            if i == 0: pre = rotk(t, 7, 40, 43) + [f"s_add_u32 m0, s42, {(t%3)*32768}"]
            if i == 4: pre = [f"s_add_u32 s43, s43, 32768", f"s_add_u32 m0, s42, {(t%3)*32768 + 4096}"]
            r.append((pre, f"buffer_load_dwordx4 v{208+i%4}, s[20:23], s43 offen offset:{(i%4)*1024} lds"))
        return r
    def ccopy(t):
        r = []
        for kk in range(2):
            for kb in range(4):
                st_ = t % 3
                r.append(f"ds_read_b128 {a((kb*16+2*t+kk)*4,4)}, v{(212 if st_ < 2 else 214) + kk} offset:{(st_ % 2)*32768 + kb*2048}")
        return r
    def issue(lst, tag):
        for pre, x in lst:
            if pre:
                for y in pre: A.I(y)
                if "lds" in x: A.I("s_nop 0")
            A.I(x); vm.issue(tag)
    A.I("s_lshl_b32 s54, s2, 2")
    A.I(f"s_add_u32 s54, s54, s{S_WAVE}")
    A.I("s_lshl_b32 s55, s54, 12")
    A.I("s_lshl_b32 s54, s54, 11")
    prer = [(None, f"buffer_load_dwordx4 v[252:255], v{V_L16}, s[20:23], s53 offen offset:{j*1024}") for j in range(2)] + \
           [(None, f"buffer_load_dwordx4 v[252:255], v{V_L16}, s[24:27], s55 offen offset:{j*1024}") for j in range(4)]
    A.I("s_mov_b32 s53, s54")
    ST.stamp()
    if upfront in (4, 5, 6): issue(prer, "pr")
    if upfront == 6:
        A.I("v_and_b32 v3, 31, v1"); A.I("v_lshlrev_b32 v3, 7, v3"); A.I("v_add_u32 v3, s55, v3")
        A.I(f"buffer_load_dword v252, v3, s[28:31], 0 offen"); vm.issue("pr")
    issue(wdma("k", 0, 6), "Wk0"); issue(cdma(0), "C0")
    if upfront == 5: issue(wdma("k", 1, 7), "Wk1"); issue(cdma(1), "C1")
    ST.stamp()
    A.I(f"s_load_dwordx2 s[56:57], s[0:1], {KA['wq']}")
    A.I(f"s_load_dwordx2 s[58:59], s[0:1], {KA['wo']}")
    A.I(f"s_load_dwordx2 s[64:65], s[0:1], {KA['w1']}")
    A.I(f"s_load_dwordx2 s[66:67], s[0:1], {KA['w2']}")
    if upfront == 0:
        issue(prer, "pr"); issue(wdma("k", 1, 7), "Wk1"); issue(cdma(1), "C1")
    elif upfront == 1:
        issue(prer, "pr")
    elif upfront == 2:
        issue(wdma("k", 1, 7), "Wk1"); issue(cdma(1), "C1")
    A.I(f"s_or_b32 s47, s2, s{S_WAVE}")
    A.I(f"s_cmp_lg_u32 s47, 0")
    A.I(f"s_cbranch_scc1 {L('nocas')}")
    A.I("s_and_b32 s52, s52, 0xffffff00")
    A.I("s_or_b32 s52, s52, 0x100")
    A.I("v_mov_b32 v184, s52")
    A.I("v_mov_b32 v185, 0")
    A.I("s_mov_b64 exec, 1")
    A.I("global_store_dword v185, v184, s[12:13] sc1")
    A.I("s_mov_b64 exec, -1")
    A.label(L("nocas"))
    ST.stamp()
    A.I("v_lshrrev_b32 v250, 1, v248")
    A.I("v_xor_b32 v250, v250, v249")
    A.I("v_lshlrev_b32 v251, 7, v248")
    A.I("v_add_u32 v251, s42, v251")
    A.I("v_lshl_add_u32 v212, v250, 4, v251")
    A.I("v_xor_b32 v250, 4, v250")
    A.I("v_lshl_add_u32 v213, v250, 4, v251")
    A.I("v_add_u32 v214, 0x10000, v212")
    A.I("v_add_u32 v215, 0x10000, v213")
    A.I("v_bfe_u32 v248, v1, 2, 2")
    A.I("v_lshlrev_b32 v250, 3, v249")
    A.I("v_add_u32 v250, v250, v248")
    A.I("v_lshlrev_b32 v250, 8, v250")
    A.I("v_and_b32 v251, 3, v1")
    A.I("v_lshl_add_u32 v250, v251, 3, v250")
    A.I("v_add_u32 v250, 98304, v250")
    A.I("v_and_b32 v251, 1, v249")
    A.I("v_lshl_add_u32 v248, v251, 2, v248")
    for nb in range(8):
        A.I(f"v_xor_b32 v251, {nb}, v248")
        A.I(f"v_lshl_add_u32 v{8+nb}, v251, 5, v250")
    A.I("v_lshrrev_b32 v250, 4, v241")
    A.I("v_lshlrev_b32 v250, 14, v250")
    A.I("v_lshrrev_b32 v251, 2, v242")
    A.I("v_lshl_add_u32 v250, v251, 10, v250")
    A.I("v_and_b32 v251, 3, v242")
    A.I("v_lshl_add_u32 v250, v251, 8, v250")
    A.I("v_and_b32 v251, 15, v241")
    A.I("v_lshl_add_u32 v240, v251, 4, v250")
    A.I(f"s_lshl_b32 s46, s{S_H}, 5")
    A.I(f"s_lshl_b32 s47, s{S_T}, 2")
    A.I("s_add_u32 s46, s46, s47")
    A.I(f"s_add_u32 s46, s46, s{S_WAVE}")
    A.I("s_lshl_b32 s46, s46, 15")
    A.I(f"s_add_u32 s46, s46, {WS_KV}")
    A.I("v_and_b32 v3, 31, v1")
    A.I("v_lshlrev_b32 v3, 7, v3")
    A.I("v_add_u32 v3, s55, v3")
    A.I("s_mul_i32 s54, s54, 11")
    A.I("s_lshr_b32 s54, s54, 4")
    A.I("v_min_u32 v250, 10, v1")
    A.I("v_lshlrev_b32 v250, 7, v250")
    A.I("v_add_u32 v250, s54, v250")
    A.I(f"v_min_u32 v250, {1376*1024-4}, v250")
    LN = Asm()
    X = 224
    for i in range(8):
        LN.I(f"v_lshlrev_b32 v{X+2*i}, 16, v{216+i}")
        LN.I(f"v_and_b32 v{X+2*i+1}, 0xffff0000, v{216+i}")
    LN.I(f"v_add_f32 v243, v{X}, v{X+1}")
    LN.I(f"v_add_f32 v244, v{X+2}, v{X+3}")
    for i in range(4, 16, 2):
        LN.I(f"v_add_f32 v243, v243, v{X+i}")
        LN.I(f"v_add_f32 v244, v244, v{X+i+1}")
    LN.I("v_add_f32 v243, v243, v244")
    row_allreduce32(LN, 243, 244)
    LN.I("v_mul_f32 v243, 0x3b000000, v243")
    LN.I("v_mov_b32 v245, 0")
    LN.I("v_mov_b32 v246, 0")
    for i in range(16):
        LN.I(f"v_sub_f32 v247, v{X+i}, v243")
        LN.I(f"v_fmac_f32 v{245+i%2}, v247, v247")
    LN.I("v_add_f32 v245, v245, v246")
    row_allreduce32(LN, 245, 244)
    LN.I("v_mul_f32 v245, 0x3b000000, v245")
    LN.I("v_cvt_pk_bf16_f32 v243, v243, v245")
    LN.I("v_and_b32 v245, 0xffff0000, v243")
    LN.I("v_lshlrev_b32 v243, 16, v243")
    LN.I("v_add_f32 v245, 0x3727c5ac, v245")
    LN.I("v_cvt_pk_bf16_f32 v245, v245, v245")
    LN.I("v_lshlrev_b32 v245, 16, v245")
    LN.I("v_sqrt_f32 v245, v245")
    LN.I("s_nop 0")
    LN.I("v_cvt_pk_bf16_f32 v245, v245, v245")
    LN.I("v_lshlrev_b32 v245, 16, v245")
    LN.I("v_rcp_f32 v245, v245")
    for i in range(16):
        LN.I(f"v_sub_f32 v{X+i}, v{X+i}, v243")
    for i in range(8):
        LN.I(f"v_cvt_pk_bf16_f32 v{216+i}, v{X+2*i}, v{X+2*i+1}")
    for i in range(8):
        LN.I(f"v_lshlrev_b32 v{X+2*i}, 16, v{216+i}")
        LN.I(f"v_and_b32 v{X+2*i+1}, 0xffff0000, v{216+i}")
        LN.I(f"v_mul_f32 v{X+2*i}, v{X+2*i}, v245")
        LN.I(f"v_mul_f32 v{X+2*i+1}, v{X+2*i+1}, v245")
    for i in range(8):
        LN.I(f"v_cvt_pk_bf16_f32 v{216+i}, v{X+2*i}, v{X+2*i+1}")
    lnq = [x.text for x in LN.items if not x.text.startswith("s_nop")]
    A.I("v_add_u32 v241, 8192, v240")
    A.I(f"s_getreg_b32 s{S_ID}, hwreg(HW_REG_XCC_ID)")
    A.I(f"s_lshr_b32 s47, s{S_ID}, 12")
    A.I(f"s_and_b32 s47, s47, 0xf0")
    A.I(f"s_and_b32 s{S_ID}, s{S_ID}, 15")
    A.I(f"s_or_b32 s{S_ID}, s{S_ID}, s47")

    WF = 144
    wfrag = lambda db, kk: WF + (db*2+kk)*4
    tr = lambda dst, areg, off: f"ds_read_b64_tr_b16 {v(dst,2)}, v{areg} offset:{off}"
    def reads1(t, db):
        r = []
        for kk in range(2):
            off = (t % 4)*16384 + kk*8192
            r += [tr(wfrag(db,kk), 8+db, off), tr(wfrag(db,kk)+2, 8+db, off+1024)]
        return r
    accK = lambda db, kb: 16 + (db*4+kb)*4
    ST.stamp()
    A.I("s_waitcnt lgkmcnt(0)")
    A.I(vm.wait("C0"))
    A.I("s_barrier")
    for x in ccopy(0): A.I(x); lg.issue("c0")
    for db in range(7):
        for x in reads1(0, db): A.I(x); lg.issue(f"R0_{db}")
    if upfront == 3:
        issue(wdma("k", 1, 7), "Wk1"); issue(cdma(1), "C1"); issue(prer, "pr")
    if upfront in (1, 4, 6):
        issue(wdma("k", 1, 7), "Wk1"); issue(cdma(1), "C1")
    elif upfront == 2:
        issue(prer, "pr")
    vslot = lambda tt: [4,5,6,0,1,7,2,3][tt]
    p2addr = lambda G: (G//8, (G//2) % 4, G % 2)
    p2areg = lambda p, dbl, win: 240 + (p % 2)*4 + dbl*2 + win
    def reads2(G):
        p, ksg, dbl = p2addr(G)
        r = []
        for k4 in range(4):
            ks = ksg*4 + k4
            byte = vslot(ks//2)*16384 + (ks % 2)*8192
            dst = WF + (G % 4)*16 + k4*4
            r += [tr(dst, p2areg(p, dbl, byte//65536), byte % 65536), tr(dst+2, p2areg(p, dbl, byte//65536), byte % 65536 + 1024)]
        return r
    def p2setup(p):
        return [f"v_subrev_u32 v{p2areg(p,dbl,win)}, {98304 - win*65536}, v{8+2*p+dbl}" for dbl in range(2) for win in (0, 1)]
    plan = {0: [("k",2),("c",2),("c",3)], 1: [("k",3),("c",4),("k",4)], 2: [("k",5),("c",5)], 3: [("k",6),("c",6)],
            4: [("k",7),("c",7)], 5: [("v",0),("v",1),("v",2)], 6: [("v",3),("v",4),("v",5)], 7: [("v",6),("v",7)]}
    lastln = [None]
    for t in range(8):
        M = []
        for db in range(8):
            for kb in range(4):
                for kk in range(2):
                    c = v(accK(db,kb),4)
                    M.append(mf(c, v(wfrag(db,kk),4), a((kb*16+2*t+kk)*4,4), "0" if (t==0 and kk==0) else c))
        w = lg.wait([f"R{t}_0", f"c{t}"])
        if w: A.I(w)
        if t in (0, 4): ST.stamp()
        ops = []
        for it in plan[t]:
            if it[0] == "c": ops += [("vm", d, f"C{it[1]}", pre) for pre, d in cdma(it[1])]
            else: ops += [("vm", d, f"W{it[0]}{it[1]}", pre) for pre, d in wdma(it[0], it[1], 6 + it[1] % 4 if it[0] == "k" else vslot(it[1]))]
        cp = [("ds", x, f"c{t+1}", None) for x in ccopy(t+1)] if t < 7 else []
        if t == 0:
            odd = [1, 3, 5] + [g for g in range(9, 64) if g % 2 == 1]
            seq = ops[:12] + cp + ops[12:]
            seq = ops[:3] + [x for pair in zip(ops[3:11], cp) for x in pair] + ops[11:]
        else:
            odd = [g for g in range(9, 64) if g % 2 == 1]
            seq = ops + cp if t < 5 else cp + ops
            seq = ops[:4] + cp + ops[4:]
            if dense: seq = ops + cp
        assert len(seq) <= len(odd), (t, len(seq))
        vpos = {(odd[i] if (t < 2 or dense) else odd[(i*len(odd))//len(seq)]): op for i, op in enumerate(seq)}
        for g in range(64):
            db = g // 8; q = g % 8
            A.I(M[g])
            if g == 7:
                tags = [f"Wk{t+1}", f"C{t+1}"] if t < 7 else ["Wv0", "Wv1", "Wv2", "Wv3"]
                w = vm.wait(tags)
                if w: A.I(w)
                A.I("s_barrier")
            if t == 1 and g == 61 and upfront != 6:
                A.I(f"buffer_load_dword v252, v3, s[28:31], 0 offen"); vm.issue("pr")
            if t == 2 and g == 63:
                assert not lnq
                A.I(f"buffer_store_dwordx4 v[216:219], v240, {WS}, 0 offen sc1"); vm.issue("xs")
                A.I(f"buffer_store_dwordx4 v[220:223], v241, {WS}, 0 offen sc1"); vm.issue("xs")
                A.I("v_mov_b32 v248, 0")
                A.I("global_load_dword v249, v248, s[12:13] sc1"); vm.issue("nonce")
            if itlb and g == 6 and t in (0, 1, 2, 3):
                WARM = [["main_d", "main_s", "b_full_full_1fd", "b_full_full_1"], ["b_diag_full_0", "b_full_diag_0", "b_None_diag_0epi", "b_diag_None_0st"],
                        ["b_full_diag_1", "b_full_None_0st", "b_None_full_0last", "merge"], ["role0", "role2", "role3", "mhi"]][t]
                for w in range(4):
                    A.I(f"s_cmp_lg_u32 s{S_WAVE}, {w}")
                    A.I(f"s_cbranch_scc1 {L(f'nst{t}_{w}')}")
                    A.I(f"s_call_b64 s[{S_RET}:{S_RET+1}], {L('w_' + WARM[w])}")
                    A.label(L(f"nst{t}_{w}"))
            if t == 5 and g == 8:
                assert vm.need("nonce") is None
                A.I(f"s_mov_b32 s47, 0")
                A.label(L("npoll"))
                A.I(f"v_readfirstlane_b32 s{S_NONCE}, v249")
                A.I("s_nop 0")
                A.I(f"s_cmp_lg_u32 s{S_NONCE}, 0")
                A.I(f"s_cbranch_scc1 {L('npollok')}")
                A.I("s_add_u32 s47, s47, 1")
                A.I("s_cmp_gt_u32 s47, 0x80000")
                A.I(f"s_cbranch_scc1 {L('npollok')}")
                A.I("s_sleep 2")
                A.I("global_load_dword v249, v248, s[12:13] sc1")
                A.I("s_waitcnt vmcnt(0)")
                A.I(f"s_branch {L('npoll')}")
                A.label(L("npollok"))
                A.I(f"s_add_u32 s{S_ID}, s{S_ID}, s{S_NONCE}")
                for x in set_flag(F_XN, 248, 249, 47): A.I(x)
                vm.issue("fl")
                for x in set_flag(F_ID, 248, 251, 47, S_ID): A.I(x)
                vm.issue("fl")
            if g+1 in vpos and vpos[g+1][3]:
                for x in vpos[g+1][3]: A.I(x)
            if g == 0 and 1 in vpos: A.I("s_nop 0")
            if q == 7 and db < 7:
                w = lg.wait(f"R{t}_{db+1}")
                if w: A.I(w)
            if q % 2 == 0:
                rd = None
                if db == 0: rd = (reads1(t, 7)[q//2], f"R{t}_7")
                elif t < 7: rd = (reads1(t+1, db-1)[q//2], f"R{t+1}_{db-1}")
                elif db >= 2:
                    G = (db-2)//2
                    rd = (reads2(G)[((db-2) % 2)*4 + q//2], f"S{G}")
                if rd:
                    A.I(rd[0]); lg.issue(rd[1])
                if t == 7 and db == 1 and q == 0:
                    for x in p2setup(0): A.I(x)
            if g in vpos:
                A.I(vpos[g][1])
                (lg if vpos[g][0] == "ds" else vm).issue(vpos[g][2])
            nln = 0 if (g in vpos and vpos[g][0] == "vm") else (1 if (q % 2 == 0 or g in vpos) else 2)
            while nln and lnq:
                x = lnq[0]
                sp = ("row_ror" in x or "permlane" in x or "sqrt" in x or "rcp" in x)
                if sp and nln == 2 and lastln[0] == (t, g): break
                A.I(lnq.pop(0)); nln -= 1
                dep = sp or (lnq and ("row_ror" in lnq[0] or "permlane" in lnq[0]))
                lastln[0] = (t, g)
                if dep:
                    if lnq and ("row_ror" in lnq[0] or "permlane" in lnq[0]): A.I("s_nop 0")
                    break
        if t == 2: assert not lnq, len(lnq)
    ST.stamp()
    def cvt_frag(r0, r1):
        return [f"v_cvt_pk_bf16_f32 v{r0}, v{r0}, v{r0+1}", f"v_cvt_pk_bf16_f32 v{r0+1}, v{r0+2}, v{r0+3}",
                f"v_cvt_pk_bf16_f32 v{r0+2}, v{r1}, v{r1+1}", f"v_cvt_pk_bf16_f32 v{r0+3}, v{r1+2}, v{r1+3}"]
    def store_frag(r0, f):
        return [f"s_add_u32 s47, s46, {(f>>2)*4096}", f"buffer_store_dwordx4 {v(r0,4)}, v{V_L16}, {WS}, s47 offen offset:{(f&3)*1024}"]
    accV = lambda p, dbl, kb: (208 if p % 2 == 0 else 112) + (dbl*4+kb)*4
    epi = {}
    kj = [(accK(2*s_,kb), accK(2*s_+1,kb), kb*4+s_) for s_ in range(4) for kb in range(4)]
    for i, job in enumerate(kj): epi.setdefault(i//2, []).append(job)
    for p in range(3):
        vj = [(accV(p,dbl,2*j), accV(p,dbl,2*j+1), 16 + j*8 + 2*p+dbl) for dbl in range(2) for j in range(2)]
        for i, job in enumerate(vj): epi.setdefault((p+1)*8 + (1 if p < 2 else 0) + i, []).append(job)
    RB = [138240, 87040, 61440, 112640]
    QBASE = 87040
    def qwdma(t):
        slot = RB[t % 4]
        return [(rotk(t, 19, 44, S_TMP) + [f"s_add_u32 m0, s{S_W4K}, {slot}"], f"buffer_load_dwordx4 v4, s[{SRD_WQ}:{SRD_WQ+3}], s{S_TMP} offen lds")] + \
               [(None, f"buffer_load_dwordx4 v{4+j}, s[{SRD_WQ}:{SRD_WQ+3}], s{S_TMP} offen offset:{j*1024} lds") for j in range(1, 4)] + \
               [([f"s_add_u32 s{S_TMP}, s33, {t*64*2752}",
                  f"s_add_u32 m0, s35, {slot+16384}"], f"buffer_load_dwordx4 v16, s[{SRD_W1}:{SRD_W1+3}], s{S_TMP} offen lds"),
                (None, f"buffer_load_dwordx4 v17, s[{SRD_W1}:{SRD_W1+3}], s{S_TMP} offen offset:1152 lds")]
    def xload(t):
        r = []
        for qb in range(4):
            for kk in range(2):
                pre = None
                if qb == 0 and kk == 0: pre = rotk(t, 11, 34, S_TMP2)
                elif kk == 0: pre = [f"s_add_u32 s{S_TMP2}, s{S_TMP2}, 16384"]
                r.append((pre, f"buffer_load_dwordx4 {a((qb*16+2*t+kk)*4,4)}, v{V_L16}, {WS}, s{S_TMP2} offen offset:{kk*1024}{xsc}"))
        return r
    WR = 208
    def blk(n):
        t, c = n//11, n % 11
        return t, (c if t < 7 else (c+8) % 11)
    def breads(n):
        t, cb = blk(n)
        r = []
        so = RB[t % 4] - QBASE
        if so < 0: so = 0
        for kk in range(2):
            dst = WR + (n % 6)*8 + kk*4
            if cb < 8: off = so + kk*8192; areg = 8+cb; h2 = 1024
            else: off = so + kk*4608 + (cb-8)*32; areg = 18; h2 = 384
            r += [tr(dst, areg, off), tr(dst+2, areg, off+h2)]
        return r
    def bump(n):
        t, cb = blk(n)
        if cb <= 8 and t % 4 in (2, 3):
            areg = 8+cb if cb < 8 else 18
            return [f"v_subrev_u32 v{areg}, {WSLOT}, v{areg}" if t % 4 == 2 else f"v_add_u32 v{areg}, {WSLOT}, v{areg}"]
        return []
    q_setup_s = [
        f"s_load_dwordx2 s[4:5], s[0:1], {KA['wq']}", f"s_load_dwordx4 s[8:11], s[0:1], {KA['w1']}",
        f"s_lshl_b32 s{S_T2}, s{S_T}, 1",
        f"s_lshr_b32 s{S_STRM}, s{S_WAVE}, 1", f"s_lshl_b32 s{S_STRM}, s{S_STRM}, 16",
        f"s_and_b32 s{S_TMP}, s{S_WAVE}, 1", f"s_lshl_b32 s{S_TMP}, s{S_TMP}, 2",
        f"s_lshr_b32 s{S_TMP2}, s{S_WAVE}, 1", f"s_xor_b32 s{S_TMP2}, s{S_TMP2}, s{S_WAVE}", f"s_and_b32 s{S_TMP2}, s{S_TMP2}, 1", f"s_lshl_b32 s{S_TMP2}, s{S_TMP2}, 2",
        f"s_sub_u32 s{S_QA}, 15, s{S_T}", f"s_lshl_b32 s{S_QA}, s{S_QA}, 3", f"s_add_u32 s{S_QA}, s{S_QA}, s{S_TMP2}",
        f"s_lshl_b32 s{S_Q0}, s{S_T}, 3", f"s_add_u32 s{S_Q0}, s{S_Q0}, s{S_TMP}",
        f"s_cmp_lt_u32 s{S_WAVE}, 2", f"s_cselect_b32 s{S_Q0}, s{S_QA}, s{S_Q0}",
        f"s_lshl_b32 s{S_KVB}, s{S_H}, 20", f"s_add_u32 s{S_KVB}, s{S_KVB}, s{S_W4K}", f"s_add_u32 s{S_KVB}, s{S_KVB}, {WS_KV}",
        f"s_and_b32 s7, s{S_H}, 1", "s_lshl_b32 s6, s7, 5", "s_lshl_b32 s7, s7, 1",
        f"s_mul_i32 s32, s{S_H}, 96", f"s_mul_i32 s33, s{S_WAVE}, {16*2752}", f"s_add_u32 s33, s33, s32",
        f"s_lshl_b32 s34, s{S_Q0}, 14", f"s_add_u32 s34, s34, {xdiag}", f"s_mul_i32 s35, s{S_WAVE}, 2304",
        "s_add_u32 s53, s32, s6", "s_lshl_b32 s6, s6, 1", "s_sub_u32 s54, s32, s6"]
    q_setup_v = [
        f"v_mul_u32_u24 v20, 43, v1", "v_lshrrev_b32 v20, 8, v20", "v_mul_u32_u24 v21, 6, v20", "v_sub_u32 v21, v1, v21",
        "v_add_u32 v21, s7, v21", "v_subrev_u32 v22, 6, v21", "v_min_u32 v21, v21, v22",
        "v_mul_u32_u24 v16, 2752, v20", "v_lshl_add_u32 v16, v21, 4, v16", "v_cmp_gt_u32 vcc, 48, v1", f"v_mov_b32 v20, {OOB}",
        "v_lshrrev_b32 v21, 4, v1", "v_cndmask_b32 v16, v20, v16, vcc", f"v_add_u32 v17, {8*2752-1152}, v16",
        "v_mul_u32_u24 v18, 1152, v21", "v_bfe_u32 v22, v1, 2, 2", "v_mul_u32_u24 v22, 96, v22", "v_add_u32 v18, v18, v22",
        "v_and_b32 v22, 3, v1", "v_lshl_add_u32 v18, v22, 3, v18", f"v_add_u32 v18, {QBASE+16384}, v18",
        "v_lshlrev_b32 v19, 3, v21",
        "v_bfe_u32 v24, v1, 2, 3", "v_lshlrev_b32 v24, 7, v24", "v_lshl_add_u32 v24, v22, 2, v24"]
    def srd_list(dst, ptr, nbytes):
        return [f"s_mov_b32 s{dst}, s{ptr}", f"s_mov_b32 s{dst+1}, s{ptr+1}", f"s_mov_b32 s{dst+2}, {nbytes}", f"s_mov_b32 s{dst+3}, 0x20000"]
    extra = {}
    def put(G, g, items): extra.setdefault((G, g), []).extend(items)
    for i, x in enumerate(q_setup_s): put(2 + i//12, (4, 5, 6, 8, 9, 10, 11, 12, 13, 14, 14, 14)[i % 12] if i < 12 else (0, 1, 2, 3, 4, 5, 8, 9, 10, 11, 12, 13)[i % 12], [x])
    for i, x in enumerate(q_setup_v): put(5 + i//10, (1, 3, 5, 5, 9, 9, 11, 11, 13, 13)[i % 10], [x])
    put(5, 15, ["s_waitcnt lgkmcnt(0)"])
    put(1, 1, [("global_load_dword v252, v3, s[56:57]", "pr")]); put(1, 3, [("global_load_dword v253, v250, s[64:65]", "pr")])
    put(2, 1, [("global_load_dword v252, v3, s[58:59]", "pr")]); put(2, 3, [("global_load_dword v253, v250, s[66:67]", "pr")])
    for i, x in enumerate(srd_list(SRD_WQ, 4, 4*MB) + srd_list(SRD_W1, 8, 512*2752) + srd_list(SRD_B1, 10, 2752)): put(6, i, [x])
    put(8, 1, [f"s_lshl_b32 s{S_TMP}, s{S_Q0}, 8", f"s_add_u32 s{S_TMP}, s{S_TMP}, {flag_base(F_XN)}"])
    put(8, 3, [f"v_add_u32 v24, s{S_TMP}, v24"])
    put(8, 5, [(f"buffer_load_dword v25, v24, {WS}, 0 offen sc1", "pollx")])
    for fb in range(3):
        put(8, 7+2*fb, [(f"buffer_load_dwordx2 v[{26+2*fb}:{27+2*fb}], v19, s[{SRD_B1}:{SRD_B1+3}], s{53 if fb < 2 else 54} offen offset:{fb*32}", "b")])
    def put_ops(G0, g0, lst, tag, step=2):
        G, g = G0, g0
        for pre, x in lst:
            if pre: put(G, g-1, [("P", y) for y in pre])
            put(G, g, [(x, tag)])
            g += step
            while g > 15: G += 1; g -= 16
        return G, g
    if tlb:
        tl = [f"s_mul_i32 s52, s{S_Q0}, 49152", f"s_add_u32 s52, s52, {WS_H}", ("H",),
              f"s_lshl_b32 s52, s{S_Q0}, 17", f"s_add_u32 s52, s52, {WS_CTX}", ("C",),
              f"s_lshl_b32 s52, s{S_QA}, 17", f"s_add_u32 s52, s52, {WS_CTX}", ("C",),
              "s_lshl_b32 s52, s2, 16", f"s_add_u32 s52, s52, {WS_QST}", ("Q",),
              "s_lshl_b32 s52, s2, 16", f"s_add_u32 s52, s52, {WS_PART}", ("P",)]
        for i in range(5):
            put(7, 3*i, [tl[3*i], tl[3*i+1]])
            put(7, 3*i+1, [(f"buffer_load_dword v252, v{V_L16}, {WS}, s52 offen", "pr")])
    cp2 = code_pf(32768, 32768, 32, 44)
    put(9, 1, cp2[:3]); put(9, 3, cp2[3:6]); put(9, 5, [cp2[6]]); put(9, 7, [(cp2[7], "pf2")])
    put(9, 11, ["v_add_u32 v33, 0x8000, v32"]); put(9, 13, [("global_load_dwordx4 v[44:47], v33, s[62:63]", "pf2")])
    put_ops(21, 3, qwdma(0), "W0", 6)
    XS = 48
    xs01 = [(pre, x.replace(x.split()[1], v(XS + i*4, 4) + ",")) for i, (pre, x) in enumerate(xload(0) + xload(1))]
    put_ops(12, 7, xs01, "X01", 8)
    for nb in range(8): put(23, 1+2*nb, [f"v_subrev_u32 v{8+nb}, {98304-QBASE}, v{8+nb}"])
    put(27, 0, ["WAITX"])
    mv = []
    for i in range(16):
        t_, qb, kk = i//8, (i//2) % 4, i % 2
        mv += [f"v_accvgpr_write_b32 a{(qb*16+2*t_+kk)*4+r}, v{XS+i*4+r}" for r in range(4)]
    for i, x in enumerate(mv): put(27 + i//16, 1 + 2*((i % 16)//2), [x])
    put_ops(28, 3, qwdma(1), "W1", 4)
    put_ops(30, 1, xload(2), "X2", 4)
    for G in range(32):
        p, ksg, dbl = p2addr(G)
        M = []
        for kb in range(4):
            for k4 in range(4):
                ks = ksg*4+k4
                c = v(accV(p,dbl,kb),4)
                M.append(mf(c, a((kb*16+ks)*4,4), v(WF + (G%4)*16 + k4*4,4), "0" if ks == 0 else c))
        w = lg.wait(f"S{G}")
        if w: A.I(w)
        if G in (4, 12, 20, 27): ST.stamp()
        if G == 12:
            A.I(vm.wait(["pollx", "b"]))
            poll_check(24, 25, S_TMP)
            for fb in range(3):
                for k in range(2):
                    A.I(f"v_lshlrev_b32 v{32+fb*4+2*k}, 16, v{26+2*fb+k}")
                    A.I(f"v_and_b32 v{33+fb*4+2*k}, 0xffff0000, v{26+2*fb+k}")
            for i in range(12): A.I(f"v_mov_b32 v{20+i}, v{32+i}")
        if G == 28:
            A.I(vm.wait("W0"))
            A.I("s_barrier")
        jobs = epi.get(G, [])
        cv = []; st = {}
        for i, (r0, r1, f) in enumerate(jobs):
            cv += cvt_frag(r0, r1)
            st[7 + 8*i if len(jobs) > 1 else 8] = store_frag(r0, f)
        for g in range(16):
            A.I(M[g])
            if (G == 0 and g == 15) or (G == 2 and g == 15):
                w = vm.wait("Wv5" if G == 0 else "Wv7")
                if w: A.I(w)
                A.I("s_barrier")
            ex = extra.get((G, g), [])
            for x in ex:
                if x == "WAITX": A.I(vm.wait("X01"))
                elif isinstance(x, tuple) and x[0] == "P": A.I(x[1])
                elif isinstance(x, str) and x.startswith("s_"):
                    A.I(x)
                    if x == "s_waitcnt lgkmcnt(0)": lg.drain()
            if g in st: A.I(st[g][0])
            if g % 2 == 0 and G+3 < 32 and not (len(jobs) == 1 and g == 8):
                k = g//2
                A.I(reads2(G+3)[k]); lg.issue(f"S{G+3}")
            if len(jobs) == 1 and g == 9 and G+3 < 32:
                A.I(reads2(G+3)[4]); lg.issue(f"S{G+3}")
            if G >= 29 and g % 2 == 0:
                n = (G-29)*2 + g//8
                if n < 5: A.I(breads(n)[(g//2) % 4]); lg.issue(f"R{n}")
            if g in st:
                A.I(st[g][1]); vm.issue("st")
            for x in ex:
                if isinstance(x, tuple) and x[0] != "P": A.I(x[0]); vm.issue(x[1])
                elif isinstance(x, str) and not x.startswith("s_") and x != "WAITX": A.I(x)
            if len(jobs) > 1:
                if g % 2 == 0: A.I(cv[g//2])
            elif len(jobs) == 1 and g % 2 == 0 and g < 8:
                A.I(cv[g//2])
            if (G+4) % 8 == 0 and G+4 < 32 and g in (1, 3, 5, 11):
                A.I(p2setup((G+4)//8)[(1,3,5,11).index(g)])
    A.I("s_barrier")
    for dbl in range(2):
        for j in range(2):
            r0, r1 = accV(3,dbl,2*j), accV(3,dbl,2*j+1)
            for x in cvt_frag(r0, r1): A.I(x)
            for x in store_frag(r0, 16 + j*8 + 6+dbl): A.I(x)
            vm.issue("st")
    ST.stamp()
    A.label(L("qgemm"))
    def kvdma(tile, voff, ldsoff):
        return [([f"s_add_u32 s{S_TMP}, s{S_KVB}, {tile*32768+voff}", f"s_add_u32 m0, s{S_W4K}, {ldsoff}"] if j == 0 else None,
                 f"buffer_load_dwordx4 v{V_L16}, {WS}, s{S_TMP} offen offset:{j*1024} sc1 lds") for j in range(4)]
    xt = {t: f"X{t}" for t in range(8)}
    pend = [(p, x, "W2") for p, x in qwdma(2)] + [(p, x, "W3") for p, x in qwdma(3)]
    gel = []
    for qb in range(4):
        for fb in range(3):
            x0 = accF(fb, qb); T = [20+r for r in range(4)]
            for r in range(4): gel.append(f"v_mul_f32 v{T[r]}, v{x0+r}, v{x0+r}")
            for r in range(4): gel.append(f"v_fma_f32 v{T[r]}, v{T[r]}, s32, v28")
            for r in range(4): gel.append(f"v_mul_f32 v{T[r]}, v{T[r]}, v{x0+r}")
            for r in range(4): gel.append(f"v_exp_f32 v{T[r]}, v{T[r]}")
            for r in range(4): gel.append(f"v_add_f32 v{T[r]}, 1.0, v{T[r]}")
            for r in range(4): gel.append(f"v_rcp_f32 v{T[r]}, v{T[r]}")
            for r in range(4): gel.append(f"v_mul_f32 v{x0+r}, v{x0+r}, v{T[r]}")
            d0 = accF(0, qb) + 2*fb if fb < 2 else x0
            gel.append(f"v_cvt_pk_bf16_f32 v{d0}, v{x0}, v{x0+1}")
            gel.append(f"v_cvt_pk_bf16_f32 v{d0+1}, v{x0+2}, v{x0+3}")
            if fb == 1:
                gel.append(f"s_add_u32 s35, s34, {qb*49152}")
                gel.append(f"buffer_store_dwordx4 {v(accF(0,qb),4)}, v29, {WS}, s35 offen sc1")
            if fb == 2:
                gel.append(f"buffer_store_dwordx2 {v(x0,2)}, v30, {WS}, s35 offen sc1")
    qfin = []
    for s_ in range(4):
        grp = []
        for qb in range(4):
            r0, r1 = accQ(2*s_, qb), accQ(2*s_+1, qb)
            for r in range(4): grp.append(f"v_mul_f32 v{r0+r}, s46, v{r0+r}")
            for r in range(4): grp.append(f"v_mul_f32 v{r1+r}, s46, v{r1+r}")
            grp += cvt_frag(r0, r1)
            grp.append(f"ds_write_b128 v27, {v(r0,4)} offset:{(qb*4+s_)*1024}")
        qfin.append(grp)
    vq = []
    def take(budget):
        while budget > 0 and (vq or (gel and gel_ok[0])):
            src = vq if vq else gel
            x = src[0]
            cost = 2 if ("v_exp" in x or "v_rcp" in x or "buffer" in x or "ds_write" in x) else (0 if x.startswith("s_") else 1)
            if cost > budget: break
            A.I(src.pop(0)); budget -= cost
            if "buffer" in x: vm.issue("hs")
            if "ds_write" in x: lg.issue("qs")
    gel_ok = [False]
    for n in range(88):
        t, cb = blk(n)
        c_ = n % 11
        if n == 66:
            for x in [f"s_mov_b32 s32, {G2}", f"s_mov_b32 s33, {G1}", "v_mov_b32 v28, s33", f"s_mov_b32 s46, {QSCALE}",
                      f"s_mul_i32 s34, s{S_Q0}, 49152", f"s_add_u32 s34, s34, {WS_H}",
                      f"s_mul_i32 s47, s{S_H}, 3", "s_add_u32 s35, s47, 1", "s_lshr_b32 s35, s35, 1", "s_lshl_b32 s35, s35, 10",
                      f"v_add_u32 v29, s35, v{V_L16}",
                      f"s_and_b32 s47, s{S_H}, 1", f"s_mul_i32 s47, s47, {8-2048}", "s_add_u32 s47, s47, 1024", "v_add_u32 v30, s47, v29",
                      "s_lshl_b32 s61, s2, 1", f"s_lshr_b32 s47, s{S_WAVE}, 1", f"s_xor_b32 s47, s47, s{S_WAVE}", "s_and_b32 s47, s47, 1",
                      "s_add_u32 s61, s61, s47", "s_lshl_b32 s61, s61, 15", f"s_add_u32 s61, s61, {WS_QST}",
                      "s_lshl_b32 s47, s47, 14", "s_add_u32 s47, s47, 131072", f"v_add_u32 v31, s47, v{V_L16}",
                      f"s_cmp_lt_u32 s{S_WAVE}, 2", f"s_cselect_b32 s47, s47, 0x10000", f"v_add_u32 v27, s47, v{V_L16}"]: A.I(x)
        if t == 7:
            if c_ == 4:
                gel_ok[0] = True
                A.I("s_barrier")
            if c_ >= 6 and c_ % 2 == 0: vq += qfin[(c_-6)//2]
        if c_ == 0:
            w = vm.wait(xt[t])
            if w: A.I(w)
            if t <= 4: pend += [(p, x, f"X{t+3}") for p, x in xload(t+3)]
            if t == 0:
                A.I(f"s_and_b32 s{S_TMP}, s2, 31")
                A.I(f"s_lshl_b32 s{S_TMP}, s{S_TMP}, 7")
                A.I(f"s_add_u32 s{S_TMP}, s{S_TMP}, {flag_base(F_ID)}")
                A.I("v_bfe_u32 v3, v1, 2, 3")
                A.I("v_lshlrev_b32 v3, 12, v3")
                A.I("v_and_b32 v19, 3, v1")
                A.I("v_lshl_add_u32 v3, v19, 2, v3")
                A.I(f"v_add_u32 v3, s{S_TMP}, v3")
                A.I(f"buffer_load_dword v19, v3, {WS}, 0 offen sc1"); vm.issue("pollid")
            if t == 5:
                cp3 = code_pf(34816, 65536, 3, 20)
                for x in cp3: A.I(x)
                vm.issue("pf3")
            if t == 5: pend += [(p, x, "KV0") for p, x in kvdma(0, 0, 0) + kvdma(1, 0, 16384)]
            if t == 6: pend += [(p, x, "KV0") for p, x in kvdma(0, 16384, 32768)]
            if t == 3:
                A.I(f"v_subrev_u32 v3, {flag_base(F_ID) - flag_base(F_KV)}, v3")
                A.I(f"buffer_load_dword v19, v3, {WS}, 0 offen sc1"); vm.issue("pollkv")
            if t == 4:
                A.I(vm.wait("pollkv"))
                poll_check(3, 19, 47)
        w = lg.wait(f"R{n}")
        if w: A.I(w)
        if c_ == 0 and t in (2, 4, 6): ST.stamp()
        if c_ == 6 and t < 7:
            tags = [f"W{t+1}"] + (["st"] if t == 1 else [])
            A.I(vm.wait(tags))
            A.I("s_barrier")
            if t == 1:
                assert vm.need("pollid") is None
                poll_check(3, 19, 47, vmask=31)
                A.I(f"v_cmp_ne_u32 vcc, s{S_ID}, v19")
                A.I(f"s_cbranch_vccz {L('samexcd')}")
                A.I("buffer_wbl2 sc1")
                A.I("s_waitcnt vmcnt(0)")
                A.label(L("samexcd"))
                for x in set_flag(F_KV, 31, 19, 47): A.I(x)
                vm.issue("fl")
            if 1 <= t <= 4: pend = pend + [(p, x, f"W{t+3}") for p, x in qwdma(t+3)]
        nx = n+5
        rds = breads(nx) if nx < 88 else []
        if nx < 88:
            for x in bump(nx): A.I(x)
        i = 0
        for qb in range(4):
            for kk in range(2):
                if cb < 8: d = v(accQ(cb, qb), 4); c0 = "0"
                else: d = v(accF(cb-8, qb), 4); c0 = v(20+(cb-8)*4, 4)
                A.I(mf(d, v(WR + (n % 6)*8 + kk*4, 4), a((qb*16+2*t+kk)*4, 4), c0 if (t == 0 and kk == 0) else d))
                if i % 2 == 0:
                    if pend and pend[0][0] and i in (0, 4):
                        for y in pend[0][0]: A.I(y)
                        pend[0] = (None,) + pend[0][1:]
                        if not rds: A.I("s_nop 0")
                    if rds: A.I(rds[i//2]); lg.issue(f"R{nx}")
                elif pend and i in (1, 5) and not pend[0][0]:
                    p, x, tag = pend.pop(0)
                    A.I(x); vm.issue(tag)
                if t == 7: take(1 if (i % 2 == 0 and rds) else 2)
                i += 1
    assert not pend
    qrest = vq + qfin[3]
    ST.stamp()
    SP, SRT, SCT, SQH, SKH, SBB, SBS, SNV, SWB, SM0 = 64, 65, 66, 67, 68, 69, 70, 71, 4, 5
    T0, T1, T2 = 6, 7, 35
    SEARLY = 46
    WW, SX, SO, SB2 = 20, 24, 28, 12
    vm4 = Cnt("vmcnt", 63)
    def slot4(u):
        return [2, 0, 1, 3][(u-1) % 4]*16384
    def w4dma(u):
        r = []
        for i in range(8):
            pre = None
            if i % 4 == 0:
                m0 = f"s_add_u32 m0, s{SM0}, {slot4(u) + (i//4)*4096}" if u > 0 else f"s_add_u32 m0, s{T1}, {(i//4)*4096}"
                pre = [f"s_add_u32 s{T0}, s{SWB}, {u*65536 + (i//4)*16384}", m0]
            r.append((pre, f"buffer_load_dwordx4 v{4+i%4}, s[{WW}:{WW+3}], s{T0} offen offset:{(i%4)*1024} lds"))
        return r
    def issue4(lst, tag):
        for pre, x in lst:
            if pre:
                for y in pre: A.I(y)
                if "lds" in x: A.I("s_nop 0")
            A.I(x); vm4.issue(tag)
    Bf = lambda u, qb, kk: 128 + (u % 4)*32 + (qb*2+kk)*4
    def bload(u):
        r = []
        for qb in range(4):
            for kk in range(2):
                ks = 2*u+kk
                pre = []
                if qb == 0 and kk == 0: pre.append(f"s_add_u32 s{T1}, s{SBB}, {(ks>>2)*4096}")
                elif kk == 0: pre.append(f"s_add_u32 s{T1}, s{T1}, s{SBS}")
                so = T1
                if ks >= 18:
                    pre += [f"s_cmp_gt_u32 s{SNV}, {ks}", f"s_cselect_b32 s{T2}, s{T1}, {OOB}"]
                    so = T2
                r.append((pre or None, f"buffer_load_dwordx4 {a(Bf(u,qb,kk),4)}, v{V_L16}, {WS}, s{so} offen offset:{(ks&3)*1024}{csc}"))
        return r
    def oproj_setup(stage):
        if stage == 0:
            Z = Asm()
            Z.I(f"s_load_dwordx2 s[8:9], s[0:1], {KA['wo']}")
            Z.I(f"s_load_dwordx4 s[12:15], s[0:1], {KA['w2']}")
            Z.I(f"s_load_dwordx2 s[24:25], s[0:1], {KA['x']}")
            Z.I(f"s_load_dwordx2 s[28:29], s[0:1], {KA['out']}")
            Z.I(f"s_and_b32 s{SP}, s2, 3")
            Z.I(f"s_lshr_b32 s{T0}, s2, 3")
            Z.I(f"s_and_b32 s{SCT}, s{T0}, 3")
            Z.I(f"s_lshr_b32 s{SRT}, s{T0}, 2")
            Z.I(f"s_and_b32 s{T1}, s2, 4")
            Z.I(f"s_lshl_b32 s{T1}, s{T1}, 1")
            Z.I(f"s_add_u32 s{SRT}, s{SRT}, s{T1}")
            Z.I(f"s_and_b32 s{SQH}, s{S_WAVE}, 1")
            Z.I(f"s_lshr_b32 s{SKH}, s{S_WAVE}, 1")
            Z.I(f"s_lshl_b32 s{T0}, s{SP}, 1")
            Z.I(f"s_add_u32 s{T0}, s{T0}, s{SKH}")
            Z.I(f"s_cmp_eq_u32 s{T0}, 5")
            Z.I(f"s_cselect_b32 s{SNV}, 18, 22")
            Z.I(f"s_sub_u32 s{T1}, 22, s{SKH}")
            Z.I(f"s_cmp_eq_u32 s{SP}, 3")
            Z.I(f"s_cselect_b32 s{SNV}, s{T1}, s{SNV}")
            Z.I(f"s_cselect_b32 s{T0}, s{SKH}, s{T0}")
            Z.I(f"s_mov_b32 s{T2}, 131072")
            Z.I(f"s_cselect_b32 s{SBS}, 49152, s{T2}")
            Z.I(f"s_mov_b32 s{T2}, {WS_CTX}")
            Z.I(f"s_cselect_b32 s{SBB}, {WS_H}, s{T2}")
            Z.I(f"s_mul_i32 s{T0}, s{T0}, 22")
            Z.I(f"s_lshl_b32 s{T1}, s{SRT}, 3")
            Z.I(f"s_lshl_b32 s{T2}, s{SQH}, 2")
            Z.I(f"s_add_u32 s{T1}, s{T1}, s{T2}")
            Z.I(f"s_mul_i32 s{T1}, s{T1}, s{SBS}")
            Z.I(f"s_add_u32 s{SBB}, s{SBB}, s{T1}")
            Z.I(f"s_lshl_b32 s{T1}, s{T0}, 10")
            Z.I(f"s_add_u32 s{SBB}, s{SBB}, s{T1}")
            Z.I(f"s_add_u32 s{T0}, s{T0}, s{SQH}")
            Z.I(f"s_lshl_b32 s{SWB}, s{T0}, 15")
            Z.I(f"s_lshl_b32 s{T1}, s{SCT}, 8")
            Z.I(f"s_add_u32 s{SWB}, s{SWB}, s{T1}")
            Z.I(f"s_lshl_b32 s{SM0}, s{SKH}, 16")
            Z.I(f"s_lshl_b32 s{T1}, s{SQH}, 13")
            Z.I(f"s_add_u32 s{SM0}, s{SM0}, s{T1}")
            Z.I("v_and_b32 v16, 15, v1")
            Z.I("v_lshrrev_b32 v17, 4, v1")
            Z.I("v_lshrrev_b32 v18, 1, v16")
            Z.I("v_xor_b32 v18, v18, v17")
            Z.I("v_and_b32 v19, 1, v16")
            Z.I("v_lshlrev_b32 v19, 4, v19")
            Z.I("v_lshl_add_u32 v19, v17, 10, v19")
            Z.I("v_lshl_add_u32 v4, v18, 5, v19")
            Z.I("v_xor_b32 v18, 4, v18")
            Z.I("v_lshl_add_u32 v5, v18, 5, v19")
            Z.I(f"v_add_u32 v6, {2*3072}, v4")
            Z.I(f"v_add_u32 v7, {3*3072}, v5")
            Z.I(f"v_add_u32 v5, {3072}, v5")
            Z.I("s_waitcnt lgkmcnt(0)")
            Z.I(f"s_cmp_eq_u32 s{SP}, 3")
            Z.I(f"s_cselect_b32 s{WW}, s12, s8")
            Z.I(f"s_cselect_b32 s{WW+1}, s13, s9")
            Z.I(f"s_mov_b32 s{T1}, {4*MB}")
            Z.I(f"s_cselect_b32 s{WW+2}, {1376*1024}, s{T1}")
            Z.I(f"s_mov_b32 s{WW+3}, 0x20000")
            Z.I(f"s_mov_b32 s12, s14"); Z.I(f"s_mov_b32 s13, s15"); Z.I(f"s_mov_b32 s14, 1024"); Z.I(f"s_mov_b32 s15, 0x20000")
            Z.I(f"s_mov_b32 s26, {2*MB}"); Z.I("s_mov_b32 s27, 0x20000"); Z.I(f"s_mov_b32 s30, {2*MB}"); Z.I("s_mov_b32 s31, 0x20000")
            Z.I(f"s_lshl_b32 s{T1}, s{SKH}, 14")
            Z.I(f"s_lshl_b32 s{T2}, s{SQH}, 13")
            Z.I(f"s_add_u32 s{T1}, s{T1}, s{T2}")
            Z.I(f"s_add_u32 s{T1}, s{T1}, 131072")
            for pre, x in w4dma(0):
                for y in (pre or []): Z.I(y)
                if pre: Z.I("s_nop 0")
                Z.I(x)
            Z.I("v_bfe_u32 v16, v1, 2, 2")
            Z.I("v_lshl_add_u32 v18, v17, 2, v16")
            Z.I("v_lshlrev_b32 v18, 8, v18")
            Z.I("v_and_b32 v19, 3, v1")
            Z.I("v_lshl_add_u32 v18, v19, 3, v18")
            Z.I(f"s_lshl_b32 s{T1}, s{SKH}, 16")
            Z.I(f"v_add_u32 v18, s{T1}, v18")
            Z.I("v_and_b32 v19, 1, v17")
            Z.I("v_lshl_add_u32 v16, v19, 2, v16")
            Z.I(f"s_mul_i32 s{T1}, s{SKH}, {16384-65536}")
            Z.I(f"s_add_u32 s{T1}, s{T1}, 131072")
            for nb in range(8):
                Z.I(f"v_xor_b32 v19, {nb}, v16")
                Z.I(f"v_lshl_add_u32 v{8+nb}, v19, 5, v18")
                Z.I(f"v_add_u32 v{20+nb}, s{T1}, v{8+nb}")
            Z.I(f"s_mul_i32 s{T0}, s{SP}, 11")
            Z.I(f"s_add_u32 s{T1}, s{T0}, 10")
            Z.I(f"s_min_u32 s{T1}, s{T1}, 31")
            Z.I(f"s_cmp_eq_u32 s{SP}, 3")
            Z.I(f"s_cselect_b32 s{T0}, 0, s{T0}")
            Z.I(f"s_cselect_b32 s{T1}, 28, s{T1}")
            Z.I("v_and_b32 v28, 31, v1")
            Z.I(f"v_add_u32 v28, s{T0}, v28")
            Z.I(f"v_min_u32 v28, s{T1}, v28")
            Z.I("v_lshrrev_b32 v29, 2, v28")
            Z.I("v_and_b32 v28, 3, v28")
            Z.I("v_lshl_add_u32 v28, v28, 3, v29")
            Z.I("v_lshlrev_b32 v28, 7, v28")
            Z.I(f"s_sub_u32 s{T0}, 15, s{SRT}")
            Z.I(f"s_min_u32 s{T0}, s{T0}, s{SRT}")
            Z.I(f"s_lshl_b32 s{T0}, s{T0}, 12")
            Z.I(f"s_lshl_b32 s{T1}, s{SQH}, 2")
            Z.I(f"s_add_u32 s{T0}, s{T0}, s{T1}")
            Z.I(f"s_cmp_lt_u32 s{SRT}, 8")
            Z.I(f"s_cselect_b32 s{T1}, 8, 0")
            Z.I(f"s_add_u32 s{T0}, s{T0}, s{T1}")
            Z.I(f"s_cmp_lt_u32 s{SRT}, 8")
            Z.I(f"s_mov_b32 s{T1}, {flag_base(F_A)}")
            Z.I(f"s_cselect_b32 s{T1}, {flag_base(F_B)}, s{T1}")
            Z.I(f"s_mul_i32 s{T2}, s{SQH}, -8")
            Z.I(f"s_addk_i32 s{T2}, 12")
            Z.I(f"s_cmp_lt_u32 s{SRT}, 8")
            Z.I(f"s_cselect_b32 s{T2}, 0, s{T2}")
            Z.I(f"s_cmp_eq_u32 s{SP}, 3")
            Z.I(f"s_cselect_b32 s{T1}, {flag_base(F_H)}, s{T1}")
            Z.I(f"s_cselect_b32 s{T2}, 0, s{T2}")
            Z.I(f"s_add_u32 s{T0}, s{T0}, s{T1}")
            Z.I(f"v_add_u32 v28, s{T0}, v28")
            Z.I("v_lshrrev_b32 v29, 5, v1")
            Z.I(f"v_mul_u32_u24 v29, s{T2}, v29")
            Z.I("v_add_u32 v28, v28, v29")
            Z.I(f"buffer_load_dword v29, v28, {WS}, 0 offen sc1")
            return [x.text for x in Z.check(fix=True, seq=Z.items)]
        elif str(stage).startswith("early"):
            A.I("s_waitcnt vmcnt(0)")
            A.I(f"v_cmp_ne_u32 vcc, s{S_NONCE}, v29")
            A.I(f"s_mov_b32 s{SEARLY}, 0")
            A.I(f"s_cbranch_vccnz {L('not' + stage)}")
            A.I(f"s_mov_b32 s{SEARLY}, 1")
            for u in range(3):
                for pre, x in bload(u):
                    for y in (pre or []): A.I(y)
                    A.I(x)
            A.label(L("not" + stage))
        elif stage == 1:
            issue4(w4dma(1), "W1")
        else:
            for i in range(8): vm4.issue("cs")
            issue4(w4dma(2), "W2"); issue4(w4dma(3), "W3")
    def oproj():
        lg4 = Cnt("lgkmcnt", 15)
        WF4 = 192
        wf = lambda mb, kk: WF4 + (mb*2+kk)*4
        def reads(u, mb):
            r = []
            for kk in range(2):
                off = (slot4(u) if u > 0 else 0) + kk*8192
                areg = (8 if u > 0 else 20) + mb
                r += [tr(wf(mb,kk), areg, off), tr(wf(mb,kk)+2, areg, off+4096)]
            return r
        acc = lambda mb, qb: 64 + (mb*4+qb)*4
        for mb in range(7):
            for x in reads(0, mb): A.I(x); lg4.issue(f"R0_{mb}")
        A.I(f"s_cmp_eq_u32 s{SEARLY}, 1")
        A.I(f"s_cbranch_scc1 {L('haveB')}")
        A.I(f"buffer_load_dword v29, v28, {WS}, 0 offen sc1")
        A.I("s_waitcnt vmcnt(0)")
        poll_check(28, 29, T0)
        for u in range(3):
            for pre, x in bload(u):
                for y in (pre or []): A.I(y)
                A.I(x)
        A.I("s_waitcnt vmcnt(16)")
        A.label(L("haveB"))
        ST.stamp()
        vE = Cnt("vmcnt", 63); vL = Cnt("vmcnt", 63)
        for tg in ["B0"]*8 + ["B1"]*8 + ["B2"]*8 + ["W1"]*8 + ["cs"]*8 + ["W2"]*8 + ["W3"]*8 + ["fl"]: vE.issue(tg)
        for tg in ["B1"]*8 + ["B2"]*8: vL.issue(tg)
        class Both:
            def issue(self, t): vE.issue(t); vL.issue(t)
            def wait(self, t):
                a_, b_ = vE.need(t), vL.need(t)
                n_ = [x for x in (a_, b_) if x is not None]
                return f"s_waitcnt vmcnt({min(n_)})" if n_ else None
        vm4 = Both()
        NU = 11
        for u in range(NU):
            w = vm4.wait(f"B{u}")
            if w: A.I(w)
            w = lg4.wait(f"R{u}_0")
            if w: A.I(w)
            if u == 0: ST.stamp()
            ops = []
            if u+3 < NU: ops += [(p, x, f"B{u+3}") for p, x in bload(u+3)]
            if u >= 1 and u+3 < NU: ops = [(p, x, f"W{u+3}") for p, x in w4dma(u+3)] + ops
            odd = [g for g in range(9, 64) if g % 2 == 1]
            vpos = {odd[(i*len(odd))//len(ops)]: op for i, op in enumerate(ops)} if ops else {}
            g = 0
            for mb in range(8):
                for qb in range(4):
                    for kk in range(2):
                        q = g % 8
                        c = v(acc(mb,qb),4)
                        A.I(mf(c, v(wf(mb,kk),4), a(Bf(u,qb,kk),4), "0" if (u == 0 and kk == 0) else c))
                        if g == 7 and u+1 < NU:
                            w = vm4.wait(f"W{u+1}")
                            if w: A.I(w)
                            A.I("s_barrier")
                        if g+1 in vpos and vpos[g+1][0]:
                            for x in vpos[g+1][0]: A.I(x)
                        if q == 7 and mb < 7:
                            w = lg4.wait(f"R{u}_{mb+1}")
                            if w: A.I(w)
                        if q % 2 == 0:
                            rd = None
                            if mb == 0: rd = (reads(u, 7)[q//2], f"R{u}_7")
                            elif u+1 < NU: rd = (reads(u+1, mb-1)[q//2], f"R{u+1}_{mb-1}")
                            if rd: A.I(rd[0]); lg4.issue(rd[1])
                        if g in vpos:
                            A.I(vpos[g][1]); vm4.issue(vpos[g][2])
                        g += 1
        ST.stamp()
        A.I(f"s_lshl_b32 s{T0}, s{SRT}, 7")
        A.I(f"s_lshl_b32 s{T1}, s{SQH}, 6")
        A.I(f"s_add_u32 s{T0}, s{T0}, s{T1}")
        A.I(f"s_lshl_b32 s{T1}, s{SKH}, 5")
        A.I(f"s_add_u32 s{T0}, s{T0}, s{T1}")
        A.I(f"s_lshl_b32 s{T0}, s{T0}, 10")
        A.I(f"s_lshl_b32 s{T1}, s{SCT}, 8")
        A.I(f"s_lshl_b32 s{T2}, s{SP}, 6")
        A.I(f"s_add_u32 s{T1}, s{T1}, s{T2}")
        A.I(f"s_add_u32 s54, s{T0}, s{T1}")
        A.I("v_and_b32 v16, 15, v1")
        A.I("v_lshrrev_b32 v17, 4, v1")
        A.I("v_lshlrev_b32 v18, 3, v17")
        A.I("v_lshl_add_u32 v19, v16, 10, v18")
        A.I("v_add_u32 v20, 16384, v19")
        for i in range(2):
            for j in range(2):
                A.I(f"buffer_load_dwordx2 v[{24+(i*2+j)*2}:{25+(i*2+j)*2}], v{19+i}, s[{SX}:{SX+3}], s54 offen offset:{j*32}")
        for j in range(2):
            A.I(f"buffer_load_dwordx2 v[{32+j*2}:{33+j*2}], v18, s[{SB2}:{SB2+3}], s{T1} offen offset:{j*32}")
        A.I("s_barrier")
        A.I(f"s_lshl_b32 s{T0}, s{S_WAVE}, 14")
        A.I(f"s_xor_b32 s{T1}, s{S_WAVE}, 2")
        A.I(f"s_lshl_b32 s{T1}, s{T1}, 14")
        A.I(f"v_add_u32 v21, s{T0}, v{V_L16}")
        A.I(f"v_add_u32 v22, s{T1}, v{V_L16}")
        A.I(f"s_and_b32 s55, s2, 0xfc")
        A.I(f"s_lshl_b32 s55, s55, 16")
        A.I(f"s_add_u32 s55, s55, s{T0}")
        A.I(f"s_add_u32 s55, s55, {WS_PART}")
        A.I(f"s_lshl_b32 s{T0}, s{SP}, 16")
        A.I(f"s_add_u32 s56, s55, s{T0}")
        A.I(f"s_and_b32 s{T0}, s2, 0xfc")
        A.I(f"s_lshl_b32 s{T0}, s{T0}, 7")
        A.I(f"s_lshl_b32 s{T1}, s{S_WAVE}, 2")
        A.I(f"s_add_u32 s{T0}, s{T0}, s{T1}")
        A.I(f"s_add_u32 s{T0}, s{T0}, {flag_base(F_P)}")
        A.I("v_and_b32 v23, 3, v1")
        A.I("v_lshlrev_b32 v23, 7, v23")
        A.I(f"v_add_u32 v23, s{T0}, v23")
        A.I(f"s_cmp_eq_u32 s{SKH}, 1")
        A.I(f"s_cbranch_scc1 {L('kh1')}")
        def red(keep):
            send = [q for q in range(4) if q not in keep]
            for mb in range(8):
                for i, qb in enumerate(send):
                    A.I(f"ds_write_b128 v21, {v(acc(mb,qb),4)} offset:{(mb*2+i)*1024}")
            A.I("s_waitcnt lgkmcnt(0)")
            A.I("s_barrier")
            for b in range(16):
                A.I(f"ds_read_b128 {v(WF4+4*b,4)}, v22 offset:{b*1024}")
            for b in range(16):
                mb, i = b//2, b % 2
                r = acc(mb, keep[i])
                A.I(f"s_waitcnt lgkmcnt({15-b})")
                for k in range(4): A.I(f"v_add_f32 v{r+k}, v{r+k}, v{WF4+4*b+k}")
                if b % 4 == 3:
                    pq = b//4
                    u = f"own{keep[0]}_{pq}"
                    regs = [acc((4*pq+x)//2, keep[x % 2]) for x in range(4)]
                    A.I(f"s_cmp_eq_u32 s{SP}, {pq}")
                    A.I(f"s_cbranch_scc1 {L(u)}")
                    for x in range(4):
                        A.I(f"v_cvt_pk_bf16_f32 v{40+2*x}, v{regs[x]}, v{regs[x]+1}")
                        A.I(f"v_cvt_pk_bf16_f32 v{41+2*x}, v{regs[x]+2}, v{regs[x]+3}")
                    A.I(f"s_add_u32 s{T0}, s56, {pq*2048}")
                    A.I(f"buffer_store_dwordx4 v[40:43], v{V_L16}, {WS}, s{T0} offen sc1")
                    A.I(f"buffer_store_dwordx4 v[44:47], v{V_L16}, {WS}, s{T0} offen offset:1024 sc1")
                    A.I(f"s_branch {L(u+'e')}")
                    A.label(L(u))
                    for x in range(4):
                        for k in range(4): A.I(f"v_mov_b32 v{48+4*x+k}, v{regs[x]+k}")
                    A.label(L(u+"e"))
        red([0, 1])
        A.I(f"s_branch {L('pub')}")
        A.label(L("w_kh1")); A.I(f"s_setpc_b64 s[{S_RET}:{S_RET+1}]")
        A.label(L("kh1"))
        red([2, 3])
        A.label(L("pub"))
        ST.stamp()
        A.I("s_waitcnt vmcnt(0)")
        ST.stamp()
        for x in set_flag(F_P, 36, 37, T0): A.I(x)
        A.I(f"buffer_load_dword v38, v23, {WS}, 0 offen sc1")
        for n in range(4):
            for k in range(2):
                A.I(f"v_lshlrev_b32 v{128+n*4+2*k}, 16, v{24+n*2+k}")
                A.I(f"v_and_b32 v{128+n*4+2*k+1}, 0xffff0000, v{24+n*2+k}")
        for j in range(2):
            for k in range(2):
                A.I(f"v_lshlrev_b32 v{144+j*4+2*k}, 16, v{32+j*2+k}")
                A.I(f"v_and_b32 v{144+j*4+2*k+1}, 0xffff0000, v{32+j*2+k}")
        A.I("s_waitcnt vmcnt(0)")
        ST.stamp()
        poll_check(23, 38, T0)
        ST.stamp()
        A.I(f"s_lshl_b32 s{T0}, s{SP}, 11")
        A.I(f"s_add_u32 s55, s55, s{T0}")
        for src in range(4):
            A.I(f"s_add_u32 s{T0}, s55, {src*65536}")
            A.I(f"s_cmp_eq_u32 s{SP}, {src}")
            A.I(f"s_cselect_b32 s{T0}, {OOB}, s{T0}")
            for hb in range(2):
                A.I(f"buffer_load_dwordx4 {v(160+(src*2+hb)*4,4)}, v{V_L16}, {WS}, s{T0} offen offset:{hb*1024} sc1")
        A.I(f"s_mov_b32 s{T2}, {NLOG2E}")
        A.I(f"s_cmp_eq_u32 s{SP}, 3")
        A.I(f"s_cselect_b32 s{T0}, 0, 1.0")
        A.I(f"s_cselect_b32 s{T1}, 1.0, 0")
        for x in range(16):
            A.I(f"v_mul_f32 v{64+x}, s{T0}, v{48+x}")
            A.I(f"v_mul_f32 v{112+x}, s{T1}, v{48+x}")
        for src in range(4):
            A.I(f"s_waitcnt vmcnt({6-2*src})")
            dst = 64 if src < 3 else 112
            for x in range(8):
                A.I(f"v_lshlrev_b32 v{80+2*x}, 16, v{160+src*8+x}")
                A.I(f"v_and_b32 v{81+2*x}, 0xffff0000, v{160+src*8+x}")
            for x in range(16): A.I(f"v_add_f32 v{dst+x}, v{dst+x}, v{80+x}")
        for b in range(4):
            j, i = b//2, b % 2
            n = i*2+j
            S0, S1, S2, Y = 64+b*4, 80+b*4, 96+b*4, 112+b*4
            for k in range(4): A.I(f"v_add_f32 v{Y+k}, v{Y+k}, v{144+j*4+k}")
            for k in range(4): A.I(f"v_mul_f32 v{152+k}, s{T2}, v{Y+k}")
            for k in range(4): A.I(f"v_exp_f32 v{152+k}, v{152+k}")
            for k in range(4): A.I(f"v_add_f32 v{152+k}, 1.0, v{152+k}")
            for k in range(4): A.I(f"v_rcp_f32 v{152+k}, v{152+k}")
            A.I("s_nop 0")
            for k in range(4): A.I(f"v_mul_f32 v{Y+k}, v{Y+k}, v{152+k}")
            for k in range(4): A.I(f"v_fma_f32 v{S0+k}, v{S0+k}, v{Y+k}, v{128+n*4+k}")
            A.I(f"v_cvt_pk_bf16_f32 v{S0}, v{S0}, v{S0+1}")
            A.I(f"v_cvt_pk_bf16_f32 v{S0+1}, v{S0+2}, v{S0+3}")
            A.I(f"buffer_store_dwordx2 {v(S0,2)}, v{19+i}, s[{SO}:{SO+3}], s54 offen offset:{j*32}")
        ST.flush(SRD_WS, S_WAVE)
    def saferestart():
        A.label(L("saferestart"))
        R = Asm()
        R.I(f"s_mov_b32 s{S_SAFE}, 0")
        R.I("s_waitcnt vmcnt(0) lgkmcnt(0)")
        R.I("s_barrier")
        for x in q_setup_s: R.I(x)
        R.I(f"s_lshl_b32 s44, s{S_WAVE}, 17")
        R.I(f"s_lshl_b32 s47, s{S_H}, 8")
        R.I("s_add_u32 s44, s44, s47")
        R.I(f"s_mov_b32 s{S_ID}, 0")
        for x in q_setup_v: R.I(x)
        R.I("s_waitcnt lgkmcnt(0)")
        for x in srd_list(SRD_WQ, 4, 4*MB) + srd_list(SRD_W1, 8, 512*2752) + srd_list(SRD_B1, 10, 2752): R.I(x)
        for fb in range(3):
            R.I(f"buffer_load_dwordx2 v[{26+2*fb}:{27+2*fb}], v19, s[{SRD_B1}:{SRD_B1+3}], s{53 if fb < 2 else 54} offen offset:{fb*32}")
        R.I("v_and_b32 v248, 15, v1")
        R.I("v_lshrrev_b32 v249, 4, v1")
        R.I("v_lshrrev_b32 v250, 1, v248")
        R.I("v_xor_b32 v250, v250, v249")
        R.I("v_and_b32 v251, 1, v248")
        R.I("v_lshlrev_b32 v251, 4, v251")
        R.I("v_lshl_add_u32 v251, v249, 13, v251")
        R.I("v_lshl_add_u32 v4, v250, 5, v251")
        R.I(f"v_add_u32 v5, {32768-1024}, v4")
        R.I("v_xor_b32 v250, 4, v250")
        R.I("v_lshl_add_u32 v6, v250, 5, v251")
        R.I(f"v_add_u32 v6, {2*(32768-1024)}, v6")
        R.I(f"v_add_u32 v7, {32768-1024}, v6")
        R.I("v_bfe_u32 v248, v1, 2, 2")
        R.I("v_lshlrev_b32 v250, 3, v249")
        R.I("v_add_u32 v250, v250, v248")
        R.I("v_lshlrev_b32 v250, 8, v250")
        R.I("v_and_b32 v251, 3, v1")
        R.I("v_lshl_add_u32 v250, v251, 3, v250")
        R.I(f"v_add_u32 v250, {QBASE}, v250")
        R.I("v_and_b32 v251, 1, v249")
        R.I("v_lshl_add_u32 v248, v251, 2, v248")
        for nb in range(8):
            R.I(f"v_xor_b32 v251, {nb}, v248")
            R.I(f"v_lshl_add_u32 v{8+nb}, v251, 5, v250")
        for pre, x in qwdma(0) + qwdma(1) + xload(0) + xload(1) + xload(2):
            for y in (pre or []): R.I(y)
            if pre: R.I("s_nop 0")
            R.I(x)
        R.I("s_waitcnt vmcnt(0)")
        for fb in range(3):
            for k in range(2):
                R.I(f"v_lshlrev_b32 v{32+fb*4+2*k}, 16, v{26+2*fb+k}")
                R.I(f"v_and_b32 v{33+fb*4+2*k}, 0xffff0000, v{26+2*fb+k}")
        for i in range(12): R.I(f"v_mov_b32 v{20+i}, v{32+i}")
        R.I("s_barrier")
        for n in range(5):
            for x in breads(n): R.I(x)
        R.I("s_waitcnt lgkmcnt(0)")
        R.I(f"s_branch {L('qgemm')}")
        A.items += R.check(fix=True, seq=R.items)
    k2.attention(A, L, ST, vm, lg, set_flag, F_H, F_B, F_A, qrest, gel, oproj_setup, oproj, saferestart)
    return A
```

```python
import sys
from common import *
import kf, align
HDR = open("recurrent_scan__compressed_kv_cla__dense_activation_gelu__prompt.s.ref").read().split("; Override launch")[0]
def build(kernels, path):
    out = HDR
    for n, A, grid, block, lds, k in kernels:
        out += f"; @launch kernel={n} grid=({grid},1,1) block=({block},1,1) lds={lds}\n"
    out += '.amdgcn_target "amdgcn-amd-amdhsa--gfx950"\n.text\n'
    for n, A, grid, block, lds, k in kernels:
        probs = A.check(name=n)
        for p in probs: print("HAZARD", p)
        out += A.text()
    out += "s_endpgm\n"
    out += '.section .rodata,"a"\n'
    for n, A, grid, block, lds, k in kernels: out += k
    open(path, "w").write(out)
DESC = """;
"""
NAME = "recurrent_scan__compressed_kv_cla__dense_activation_gelu__prompt_kernel"
def build1(A, path, sgpr, al=1):
    if al: print('align', align.align(A, al == 1))
    out = HDR + DESC + "; @launch grid=(256,1,1) block=(256,1,1) lds=163840\n"
    out += '.amdgcn_target "amdgcn-amd-amdhsa--gfx950"\n.text\n'
    for p in A.check(name="k"): print("HAZARD", p)
    out += A.text() + "s_endpgm\n" + '.section .rodata,"a"\n' + kd(NAME, sgpr=sgpr)
    open(path, "w").write(out)
if __name__ == "__main__":
    build1(kf.gen(NAME, prof=True), "t4.s", 102)
    build1(kf.gen(NAME, prof=2), "t4cyc.s", 102)
    build1(kf.gen(NAME, prof=2), "t4cyc2.s", 102, al=2)
    build1(kf.gen(NAME, prof=False), "recurrent_scan__compressed_kv_cla__dense_activation_gelu__prompt.s", 80)
```

```python
from asmlib import *
MB = 1 << 20
WS_XN   = 0
WS_KV   = 2 * MB
WS_H    = 34 * MB
WS_CTX  = 40 * MB
WS_PART = 56 * MB
WS_QST  = 72 * MB
WS_END  = 96 * MB
KA = dict(x=0, ckv=8, wq=16, wuk=24, wuv=32, wo=40, bx=48, w1=56, b1=64, w2=72, b2=80, out=88, dbg=96, ws=104)

def mf(d, A, B, C): return f"v_mfma_f32_16x16x32_bf16 {d}, {A}, {B}, {C}"

def order_gap(lst):
    def key(t):
        op = t.split()[0]
        if op.startswith("s_"): return 0
        if op.startswith("ds_") or op.startswith("buffer_") or op.startswith("global_"): return 1
        return 2
    return sorted(lst, key=key)

def emit_spine(A, mfmas, gaps, keep_order=False):
    for i, m in enumerate(mfmas):
        A.I(m)
        g = gaps[i] if keep_order else order_gap(gaps[i])
        for x in g: A.I(x)

def srd(A, dst, ptr, nbytes):
    A.I(f"s_mov_b32 s{dst}, s{ptr}")
    A.I(f"s_mov_b32 s{dst+1}, s{ptr+1}")
    A.I(f"s_mov_b32 s{dst+2}, {nbytes}")
    A.I(f"s_mov_b32 s{dst+3}, 0x20000")

def kd(name, vgpr=512, accum=256, sgpr=96):
    return f""".p2align 6
.amdhsa_kernel {name}
  .amdhsa_next_free_vgpr {vgpr}
  .amdhsa_next_free_sgpr {sgpr}
  .amdhsa_accum_offset {accum}
  .amdhsa_group_segment_fixed_size 0
  .amdhsa_kernarg_size 112
  .amdhsa_user_sgpr_count 2
  .amdhsa_user_sgpr_kernarg_segment_ptr 1
  .amdhsa_system_sgpr_workgroup_id_x 1
  .amdhsa_float_denorm_mode_32 3
  .amdhsa_float_denorm_mode_16_64 3
.end_amdhsa_kernel
"""

def header(A, name):
    A.I(f".globl {name}")
    A.I(".p2align 8")
    A.I(f".type {name},@function")
    A.label(name)

def row_allreduce32(A, x, t, op="v_add_f32"):
    for r in (8, 4, 2, 1):
        A.I("s_nop 1")
        A.I(f"{op} {v(x)}, {v(x)}, {v(x)} row_ror:{r}")
    A.I(f"v_mov_b32 {v(t)}, {v(x)}")
    A.I("s_nop 1")
    A.I(f"v_permlane16_swap_b32 {v(x)}, {v(t)}")
    A.I("s_nop 1")
    A.I(f"{op} {v(x)}, {v(x)}, {v(t)}")

WS_STAMP = 200 * MB
class Stamps:
    def __init__(self, A, on, kidx): self.A = A; self.on = on; self.n = 0; self.kidx = kidx
    def stamp(self):
        if not self.on: return
        n = self.n
        if n >= 1: self.A.I(f"v_writelane_b32 v0, s{72+2*((n-1)%2)}, {n-1}")
        self.A.I(f"{'s_memtime' if self.on == 2 else 's_memrealtime'} s[{72+2*(n%2)}:{73+2*(n%2)}]")
        self.n += 1
    def flush(self, ws_ptr, wave_sgpr):
        if not self.on: return
        A = self.A
        A.I("s_waitcnt vmcnt(0) lgkmcnt(0)")
        self.stamp()
        A.I("s_waitcnt lgkmcnt(0)")
        A.I(f"v_writelane_b32 v0, s{72+2*((self.n-1)%2)}, {self.n-1}")
        A.I(f"s_mov_b32 s96, s{ws_ptr}")
        A.I(f"s_mov_b32 s97, s{ws_ptr+1}")
        A.I(f"s_mov_b32 s98, {256*MB}")
        A.I("s_mov_b32 s99, 0x20000")
        A.I("s_lshl_b32 s94, s2, 2")
        A.I(f"s_add_u32 s94, s94, s{wave_sgpr}")
        A.I("s_lshl_b32 s94, s94, 8")
        A.I(f"s_add_u32 s94, s94, {WS_STAMP + self.kidx*MB}")
        A.I("v_lshlrev_b32 v1, 2, v1")
        A.I(f"buffer_store_dword v0, v1, s[96:99], s94 offen")
        if self.on == 3:
            sel = [0, 0, 5, 7, 12, 16, 18, 19, 20, 23, 24, 25, 26, 28, self.n-1]
            A.I(f"s_load_dwordx2 s[90:91], s[0:1], {KA['dbg']}")
            A.I("s_waitcnt lgkmcnt(0)")
            A.I("s_mov_b64 exec, 1")
            for i in range(1, 15):
                A.I(f"v_readlane_b32 s92, v0, {sel[i]}")
                A.I("s_nop 3")
                if i == 1: A.I("s_not_b32 s92, s92")
                A.I("v_mov_b32 v2, s92")
                A.I(f"v_mov_b32 v3, {4*i}")
                A.I("global_atomic_umax v3, v2, s[90:91] sc1")
WS_FLAG = 92 * MB
WS_NEGM = WS_FLAG + 6*262144
```

```python
from common import *
import math, struct
def f2u(x): return struct.unpack("<I", struct.pack("<f", x))[0]

QSCALE = f2u(math.log2(math.e) / math.sqrt(128.0))
G1 = f2u(-2.0 * math.log2(math.e) * math.sqrt(2.0 / math.pi))
G2 = f2u(-2.0 * math.log2(math.e) * math.sqrt(2.0 / math.pi) * 0.044715)
LTHR = f2u(2.0 ** 62)
OOB = 0x40000000

V_LANE, V_L16, V_K, V_V = 1, 2, 3, 19
accQ = lambda db, qb: 32 + (db*4+qb)*4
accF = lambda fb, qb: 160 + (fb*4+qb)*4
Qf = lambda qb, s_: accQ(2*s_, qb)
def Sreg(buf, kbl, qb):
    i = buf*8 + kbl*4 + qb
    return accQ(2*(i//4)+1, i % 4)
Preg = lambda buf, qb: 208 + buf*16 + qb*4
NEGM = lambda qb: 240 + qb*4
TMP = 160
Oreg = lambda db, qb: (db*4+qb)*4
VA, KA_, VB, KB = 128, 144, 160, 176
Lreg = lambda qb: 192 + qb*4
ONES = 208
S_WAVE, S_H, S_T, S_I = 36, 37, 38, 39
S_KVB = 40
S_W4K = 41
S_K0, S_V0, S_K1, S_V1 = 42, 43, 44, 45
S_AK, S_AV = 46, 47
S_STRM = 48
S_T2 = 49
S_TMP, S_TMP2 = 50, 51
S_RET = 52
S_CNT = 54
S_FAIL = 55
S_Q0 = 56
S_QA = 57
S_MASK = 8
S_MK, S_MV = 58, 59
S_SAFE = 60
SRD_WS, SRD_WQ, SRD_W1, SRD_B1 = 16, 20, 24, 28
WRING = 61440; WSLOT = 25600

def dma4(soff, m0expr):
    return [f"buffer_load_dwordx4 v{V_L16}, s[{SRD_WS}:{SRD_WS+3}], s{soff} offen offset:{j*1024} sc1 lds" for j in range(4)]

S_E, S_C, S_DG = 4, 5, 6
def tile_calc(dst, nadd, strm, voff):
    r = [f"s_add_u32 s{S_TMP}, s{S_I}, {nadd}",
         f"s_lshl_b32 s{S_TMP2}, s{S_TMP}, 1",
         f"s_sub_u32 s{S_TMP2}, s{S_TMP2}, s{S_C}",
         f"s_cmp_eq_u32 s{S_TMP}, s{S_E}",
         f"s_cselect_b32 s{S_TMP2}, s{S_DG}, s{S_TMP2}"]
    if strm: r += [f"s_add_u32 s{S_TMP2}, s{S_TMP2}, 1"]
    r += [f"s_cmp_lt_u32 s{S_TMP}, s{S_E}",
          f"s_cselect_b32 s{S_TMP2}, s{S_TMP}, s{S_TMP2}" if strm == 0 else f"s_cselect_b32 s{S_TMP2}, 0x8000, s{S_TMP2}",
          f"s_cmp_gt_u32 s{S_TMP}, 16",
          f"s_cselect_b32 s{S_TMP2}, 0x8000, s{S_TMP2}",
          f"s_lshl_b32 s{S_TMP2}, s{S_TMP2}, 15",
          f"s_add_u32 s{dst}, s{S_TMP2}, s{S_KVB}"]
    if voff: r += [f"s_add_u32 s{dst}, s{dst}, {voff}"]
    return r

def lds_calc():
    return [f"s_and_b32 s{S_TMP}, s{S_I}, 1",
            f"s_lshl_b32 s{S_TMP}, s{S_TMP}, 14",
            f"s_add_u32 s{S_TMP2}, s{S_I}, 2",
            f"s_sub_u32 s{S_TMP2}, s{S_TMP2}, s{S_T2}",
            f"s_cmp_ge_i32 s{S_TMP2}, 2",
            f"s_cselect_b32 s{S_AK}, s{S_STRM}, 0",
            f"s_add_u32 s{S_AK}, s{S_AK}, s{S_TMP}",
            f"s_cmp_ge_i32 s{S_TMP2}, 3",
            f"s_cselect_b32 s{S_AV}, s{S_STRM}, 0",
            f"s_xor_b32 s{S_TMP2}, s{S_TMP}, 0x4000",
            f"s_add_u32 s{S_AV}, s{S_AV}, s{S_TMP2}",
            f"s_add_u32 s{S_AV}, s{S_AV}, 0x8000",
            f"s_add_u32 s{S_MK}, s{S_TMP2}, s{S_W4K}",
            f"s_add_u32 s{S_MV}, s{S_TMP}, s{S_W4K}",
            f"s_add_u32 s{S_MV}, s{S_MV}, 0x8000"]

def rdfrag(dst, areg, f): return f"ds_read_b128 {a(dst,4)}, v{areg} offset:{f*1024}"

PROF = [0]
WTOUCH = []
def body(A, qk, pv, first, adma, lg, mid=None, last=None, vmn=0, xst=None):
    if PROF[0]:
        A.I(f"s_add_u32 m0, s{S_I}, 40")
        A.I("s_nop 0")
        A.I("v_writelane_b32 v0, s76, m0")
        A.I("s_memtime s[76:77]" if PROF[0] == 2 else "s_memrealtime s[76:77]")
    for per in range(2):
        spine = [None]*68; gaps = [[] for _ in range(68)]
        pre = [[] for _ in range(68)]
        eb = 1 - per
        etype = pv if per == 0 else qk
        if pv:
            qbs = [2, 3] if (pv == "diag" and per == 1) else [0, 1, 2, 3]
            cz = first and per == 0
            for qb in qbs:
                d = a(Lreg(qb), 4)
                spine[qb] = mf(d, a(ONES, 4), v(Preg(per, qb), 4), "0" if cz else d)
                for db in range(8):
                    d = a(Oreg(db, qb), 4)
                    fr = (VA if db < 4 else VB) + (db % 4)*4
                    pos = (4 if db < 4 else 36) + ((db % 4)*4 + qb)*(1 if qk else 2)
                    spine[pos] = mf(d, a(fr, 4), v(Preg(per, qb), 4), "0" if cz else d)
        if qk:
            for kbl in range(2):
                kb = per*2 + kbl
                for qb in range(4):
                    if qk == "diag" and kb > qb: continue
                    for s_ in range(4):
                        d = v(Sreg(per, kbl, qb), 4)
                        pos = ((20 if kbl == 0 else 52) + qb*4 + s_) if pv else ((4 if kbl == 0 else 36) + (qb*4 + s_)*2)
                        spine[pos] = mf(d, a((KA_ if kbl == 0 else KB) + s_*4, 4), v(Qf(qb, s_), 4), v(NEGM(qb), 4) if s_ == 0 else d)
        if etype:
            ehalf = 1 if per == 0 else 0
            for e in range(32):
                qb, kbl, r = e//8, (e//4) % 2, e % 4
                kb = ehalf*2 + kbl
                reg = Sreg(eb, kbl, qb) + r
                if etype == "diag" and ehalf == 1 and qb < 2: continue
                if etype == "diag" and kb > qb:
                    gaps[2*e].append(f"v_mov_b32 v{reg}, 0")
                else:
                    gaps[2*e].append(f"v_exp_f32 v{reg}, v{reg}")
                    if etype == "diag" and kb == qb:
                        gaps[2*e+1].append(f"v_cndmask_b32 v{reg}, 0, v{reg}, s[{S_MASK+2*r}:{S_MASK+2*r+1}]")
            for c in range(16):
                qb, k = c//4, c % 4
                if etype == "diag" and ehalf == 1 and qb < 2: continue
                src = Sreg(eb, k//2, qb) + (k % 2)*2
                gaps[4*c+3].append(f"v_cvt_pk_bf16_f32 v{Preg(eb,qb)+k}, v{src}, v{src+1}")
        kbpos = [3, 7, 11, 15] if per == 0 else [1, 3, 5, 7]
        rd = {}
        for i in range(4):
            rd[kbpos[i]] = (rdfrag(KB + 4*i, V_K, (per*2+1)*4 + i), "KB")
            rd[23+4*i] = (rdfrag(VA + 4*i, V_V, (1-per)*8 + i), "VA")
            rd[39+4*i] = (rdfrag(KA_ + 4*i, V_K, ((1-per)*2)*4 + i), "KA")
            rd[55+4*i] = (rdfrag(VB + 4*i, V_V, (1-per)*8 + 4 + i), "VB")
        waits = {2: "VA", 18: "KA", 34: "VB", 50: "KB"}
        if pv is None: waits = {2: "KA", 34: "KB"}
        if qk is None: rd = {g: x for g, x in rd.items() if not (x[1] == "KB" or (per == 0 and x[1] == "KA"))}
        if pv is None and per == 0: rd = {g: x for g, x in rd.items() if x[1] not in ("VA", "VB")}
        if last is not None:
            rd = {g: x for g, x in rd.items() if per == 0 and x[1] in ("VA", "VB")}
            waits = {2: "VA", 34: "VB"}
        dm = {}
        salu = []
        if per == 0:
            if adma:
                for i, x in enumerate(dma4(S_K1, None)): dm[5+4*i] = x
                for i, x in enumerate(dma4(S_V1, None)): dm[21+4*i] = x
                pre[4].append(f"s_add_u32 m0, s{S_MK}, 0x10000")
                pre[20].append(f"s_add_u32 m0, s{S_MV}, 0x10000")
            salu = tile_calc(S_K0, 3, 0, 0) + tile_calc(S_V0, 2, 0, 16384)
            spos = [g for g in range(22, 64, 2) if g not in (34, 50)] + [64, 65, 65, 66, 66]
        else:
            for i, x in enumerate(dma4(S_K0, None)): dm[25+4*i] = x
            for i, x in enumerate(dma4(S_V0, None)): dm[41+4*i] = x
            pre[24].append(f"s_mov_b32 m0, s{S_MK}")
            pre[40].append(f"s_mov_b32 m0, s{S_MV}")
            lc = lds_calc()
            for i, x in enumerate(lc): pre[[0,4,6,8,9,9,10,11,12,13,13,14,16,17,17][i]].append(x)
            salu = tile_calc(S_K1, 3, 1, 0) + tile_calc(S_V1, 2, 1, 16384) + [f"s_add_u32 s{S_I}, s{S_I}, 1"]
            spos = [g for g in range(26, 64, 2) if g not in (34, 40, 50)] + [57, 57, 61, 61, 64, 64, 65, 65, 66, 66]
            spos.sort()
        if last is not None:
            dm = {}; salu = []; pre = [[] for _ in range(68)]
        if per == 1 and mid: mid()
        if per == 1 and last is not None: A.I("s_waitcnt vmcnt(0)")
        assert len(salu) <= len(spos), (len(salu), len(spos))
        for i, x in enumerate(salu): pre[spos[i]].append(x)
        for g in range(68):
            if spine[g]: A.I(spine[g])
            for x in pre[g]: A.I(x)
            if g in waits:
                w = lg.wait(waits[g])
                if w: A.I(w)
            if per == 1 and last is not None and spine[g]:
                for _ in range(2):
                    if last: A.I(last.pop(0))
            if per == 1 and g == 19 and last is None:
                dbg = PROF[0] == 2 and ((vmn != 0 and first) or mid is not None)
                base = 58 if vmn else 61
                if dbg: A.I("s_memtime s[78:79]")
                A.I(f"s_waitcnt vmcnt({vmn}) lgkmcnt(0)"); lg.drain()
                if dbg:
                    A.I(f"v_writelane_b32 v0, s78, {base}"); A.I("s_memtime s[78:79]"); A.I("s_waitcnt lgkmcnt(0)"); A.I(f"v_writelane_b32 v0, s78, {base+1}")
                A.I("s_barrier")
                if dbg:
                    A.I("s_memtime s[78:79]"); A.I("s_waitcnt lgkmcnt(0)"); A.I(f"v_writelane_b32 v0, s78, {base+2}")
            if per == 1 and g == 21 and last is None:
                A.I(f"v_add_u32 v{V_K}, s{S_AK}, v{V_L16}")
                A.I(f"v_add_u32 v{V_V}, s{S_AV}, v{V_L16}")
            if g in rd:
                A.I(rd[g][0]); lg.issue(rd[g][1])
            if g in dm: A.I(dm[g])
            if xst and (per, g) in xst:
                for x in xst[(per, g)]: A.I(x)
            for x in gaps[g]: A.I(x)
    if last is not None:
        for x in last: A.I(x)

def entry_lg():
    lg = Cnt("lgkmcnt", 15)
    for t in ["VA"]*4 + ["KA"]*4 + ["VB"]*4: lg.issue(t)
    return lg

def attention(A, L, ST, vm, lg, set_flag, F_H, F_B, F_A, qrest, gel, oproj_setup, oproj, saferestart):
    WSS = f"s[{SRD_WS}:{SRD_WS+3}]"
    PROF[0] = int(ST.on)
    A.I("s_waitcnt vmcnt(0)"); vm.drain()
    A.I("s_barrier")
    if ST.on == 2: ST.stamp()
    A.I(f"v_mov_b32 v{V_K}, v{V_L16}")
    for kb, base in enumerate((KA_, KB, VA, VB)):
        for s_ in range(4):
            A.I(rdfrag(base+4*s_, V_K, kb*4+s_)); lg.issue(f"k{kb}")
    for x in qrest: A.I(x)
    A.I(f"s_cmp_lg_u32 s{S_SAFE}, 0")
    A.I(f"s_cbranch_scc1 {L('nomaxpass')}")
    A.I(f"s_call_b64 s[{S_RET}:{S_RET+1}], {L('maxpass')}")
    A.label(L("nomaxpass"))
    vq = []
    def fill(budget, usegel=True):
        while budget > 0 and (vq or (gel and usegel)):
            src = vq if vq else gel
            x = src[0]
            cost = 2 if ("v_exp" in x or "v_rcp" in x or "buffer" in x) else (0 if x.startswith("s_") else 1)
            if cost > budget: break
            A.I(src.pop(0)); budget -= cost
    def qk0(kb, base):
        A.I(lg.wait(f"k{kb}"))
        for qb in range(4):
            for s_ in range(4):
                d = v(Sreg(kb//2, kb % 2, qb), 4)
                c0 = "0" if kb == 0 else v(NEGM(qb), 4)
                A.I(mf(d, a(base+4*s_, 4), v(Qf(qb, s_), 4), c0 if s_ == 0 else d))
                fill(2)
    if ST.on == 2: ST.stamp()
    qk0(0, KA_)
    fill(8)
    A.I(f"s_cmp_lg_u32 s{S_Q0}, 0")
    A.I(f"s_cbranch_scc1 {L('nodiag0')}")
    A.I("v_mov_b32 v8, 0xff7fffff")
    for r in range(4):
        reg = Sreg(0, 0, 0) + r
        A.I(f"v_cndmask_b32 v{reg}, v8, v{reg}, s[{S_MASK+2*r}:{S_MASK+2*r+1}]")
    A.label(L("nodiag0"))
    for qb in range(4):
        r0 = Sreg(0, 0, qb)
        A.I(f"v_max3_f32 v{NEGM(qb)}, v{r0}, v{r0+1}, v{r0+2}")
    for qb in range(4):
        A.I(f"v_max_f32 v{NEGM(qb)}, v{NEGM(qb)}, v{Sreg(0, 0, qb)+3}")
    A.I(f"s_cmp_lg_u32 s{S_SAFE}, 0")
    A.I(f"s_cbranch_scc1 {L('fastmax')}")
    for qb in range(4): A.I(f"v_mov_b32 v{NEGM(qb)}, v{12+qb}")
    A.label(L("fastmax"))
    for swp in ("v_permlane16_swap_b32", "v_permlane32_swap_b32"):
        for qb in range(4): A.I(f"v_mov_b32 v{NEGM(qb)+1}, v{NEGM(qb)}")
        A.I("s_nop 0")
        for qb in range(4): A.I(f"{swp} v{NEGM(qb)}, v{NEGM(qb)+1}")
        A.I("s_nop 0")
        for qb in range(4): A.I(f"v_max_f32 v{NEGM(qb)}, v{NEGM(qb)}, v{NEGM(qb)+1}")
    for qb in range(4):
        A.I(f"v_sub_f32 v{NEGM(qb)}, 0, v{NEGM(qb)}")
    for qb in range(4):
        for r in range(1, 4): A.I(f"v_mov_b32 v{NEGM(qb)+r}, v{NEGM(qb)}")
    for qb in range(4):
        for r in range(4): vq.append(f"v_add_f32 v{Sreg(0,0,qb)+r}, v{Sreg(0,0,qb)+r}, v{NEGM(qb)}")
    for qb in range(4):
        for r in range(4): vq.append(f"v_exp_f32 v{Sreg(0,0,qb)+r}, v{Sreg(0,0,qb)+r}")
    A.I("s_nop 0")
    if ST.on == 2: ST.stamp()
    qk0(1, KB)
    qk0(2, VA)
    for qb in range(4):
        for r in range(4): vq.append(f"v_exp_f32 v{Sreg(0,1,qb)+r}, v{Sreg(0,1,qb)+r}")
    qk0(3, VB)
    if ST.on == 2: ST.stamp()
    A.I("s_barrier")
    A.I(f"s_mov_b32 m0, s{S_MK}")
    A.I(f"v_add_u32 v{V_K}, s{S_AK}, v{V_L16}")
    for x in dma4(S_K0, None): A.I(x)
    A.I(f"s_mov_b32 m0, s{S_MV}")
    A.I(f"v_add_u32 v{V_V}, s{S_AV}, v{V_L16}")
    for x in dma4(S_V0, None): A.I(x)
    for i in range(4): A.I(rdfrag(VA+4*i, V_V, i))
    for i in range(4): A.I(rdfrag(KA_+4*i, V_K, i))
    for i in range(4): A.I(rdfrag(VB+4*i, V_V, 4+i))
    if ST.on == 2: ST.stamp()
    print("gel left", len(gel), "vq", len(vq), "qrest", len(qrest))
    for x in WTOUCH: A.I(x)
    nyoung = (2 if WTOUCH else 0) + sum(1 for x in gel if "buffer" in x)
    import re as _re
    isstart = lambda x: _re.match(r"v_mul_f32 v20, v(\d+), v\1$", x)
    while vq or (gel and not isstart(gel[0])): fill(2)
    A.I("v_mov_b32 v8, 1.0"); A.I("v_mov_b32 v9, 1.0"); A.I("v_mov_b32 v10, v28"); A.I("v_mov_b32 v11, v28"); A.I("s_mov_b32 s33, s32")
    k_ = 0
    while gel:
        x0 = int(isstart(gel[0]).group(1)); T = 20 if k_ % 2 == 0 else 12; k_ += 1
        gel[:] = gel[28:]
        for h_ in range(2): A.I(f"v_pk_mul_f32 {v(T+2*h_,2)}, {v(x0+2*h_,2)}, {v(x0+2*h_,2)}")
        for h_ in range(2): A.I(f"v_pk_fma_f32 {v(T+2*h_,2)}, {v(T+2*h_,2)}, s[32:33], v[10:11]")
        for h_ in range(2): A.I(f"v_pk_mul_f32 {v(T+2*h_,2)}, {v(T+2*h_,2)}, {v(x0+2*h_,2)}")
        for r in range(4): A.I(f"v_exp_f32 v{T+r}, v{T+r}")
        for h_ in range(2): A.I(f"v_pk_add_f32 {v(T+2*h_,2)}, {v(T+2*h_,2)}, v[8:9]")
        for r in range(4): A.I(f"v_rcp_f32 v{T+r}, v{T+r}")
        for h_ in range(2): A.I(f"v_pk_mul_f32 {v(x0+2*h_,2)}, {v(x0+2*h_,2)}, {v(T+2*h_,2)}")
        while gel and not isstart(gel[0]): A.I(gel.pop(0))
    ST.stamp()
    A.I(f"s_cmp_ge_u32 s{S_WAVE}, 2")
    A.I(f"s_cbranch_scc1 {L('nostash2')}")
    for qb in range(4): A.I(f"v_mov_b32 v{8+qb}, v{NEGM(qb)}")
    A.I(f"s_add_u32 s{S_TMP}, s61, 16384")
    A.I(f"buffer_store_dwordx4 v[8:11], v{V_L16}, s[{SRD_WS}:{SRD_WS+3}], s{S_TMP} offen")
    A.label(L("nostash2"))
    A.I(f"s_cmp_lg_u32 s{S_Q0}, 0")
    A.I(f"s_cbranch_scc1 {L('nodiag1')}")
    for r in range(4):
        A.I(f"v_mov_b32 v{Sreg(0,1,0)+r}, 0")
        A.I(f"v_cndmask_b32 v{Sreg(0,1,1)+r}, 0, v{Sreg(0,1,1)+r}, s[{S_MASK+2*r}:{S_MASK+2*r+1}]")
    A.label(L("nodiag1"))
    for qb in range(4):
        for k in range(4):
            src = Sreg(0, k//2, qb) + (k % 2)*2
            A.I(f"v_cvt_pk_bf16_f32 v{Preg(0,qb)+k}, v{src}, v{src+1}")
    ST.stamp()
    if ST.on == 2: ST.stamp()
    used = {}
    def flag(kind, cond=False):
        if cond:
            u = f"nf{len(A.items)}"
            A.I(f"s_and_b32 s34, s{S_FAIL}, s{S_SAFE}")
            A.I(f"s_cbranch_scc1 {L(u)}")
        for x in set_flag(kind, 204, 205, 34): A.I(x)
        if cond: A.label(L(u))
    def call(qk, pv, first=False, kind=""):
        key = f"b_{qk}_{pv}_{int(first)}{kind}"
        used[key] = (qk, pv, first, kind)
        if kind.startswith("last"): flag(F_H)
        A.I(f"s_call_b64 s[{S_RET}:{S_RET+1}], {L(key)}")
    def loop(kind, last_expr_sgpr_or_imm, uniq):
        A.I(f"s_mov_b32 s{S_CNT}, {last_expr_sgpr_or_imm}")
        A.I(f"s_cmp_gt_i32 s{S_I}, s{S_CNT}")
        A.I(f"s_cbranch_scc1 {L('skip_'+uniq)}")
        A.I(f"s_call_b64 s[{S_RET}:{S_RET+1}], {L('main_'+kind)}")
        A.label(L("skip_"+uniq))
    FREE = [Sreg(b_, k_, q_) for b_ in range(2) for k_ in range(2) for q_ in range(4)]
    def packed(n): return FREE[8+n] if n < 8 else TMP + (n-8)*4
    def epi_half(B, qbs):
        B.I("s_nop 7")
        for qb in qbs: B.I(f"v_accvgpr_read_b32 v{192+qb}, a{Lreg(qb)}")
        B.I(f"v_mov_b32 v196, {LTHR}")
        for qb in qbs:
            B.I(f"v_cmp_nle_f32 vcc, v{192+qb}, v196")
            B.I(f"s_or_b32 s{S_FAIL}, s{S_FAIL}, vcc_lo")
            B.I(f"s_or_b32 s{S_FAIL}, s{S_FAIL}, vcc_hi")
        for qb in qbs: B.I(f"v_rcp_f32 v{192+qb}, v{192+qb}")
        if qbs[0] == 0:
            B.I(f"s_lshl_b32 s32, s{S_Q0}, 5")
            B.I(f"s_add_u32 s32, s32, s{S_H}")
            B.I(f"s_lshl_b32 s32, s32, 12")
            B.I(f"s_add_u32 s32, s32, {WS_CTX}")
        for qb in qbs:
            for s_ in range(4):
                n = qb*4 + s_
                T = [FREE[(2*n) % 8], FREE[(2*n+1) % 8]]
                for i in range(8): B.I(f"v_accvgpr_read_b32 v{T[i//4] + i % 4}, a{Oreg(2*s_ + i//4, qb) + i % 4}")
                for i in range(4):
                    r = T[i//2] + 2*(i % 2)
                    B.I(f"v_pk_mul_f32 {v(r,2)}, {v(r,2)}, {v(192+2*(qb//2),2)} op_sel:[0,{qb%2}] op_sel_hi:[1,{qb%2}]")
                for i in range(4):
                    r = T[i//2] + 2*(i % 2)
                    B.I(f"v_cvt_pk_bf16_f32 v{packed(n)+i}, v{r}, v{r+1}")
    def epi_st(n):
        qb, s_ = n//4, n % 4
        return ([f"s_add_u32 s33, s32, {qb*32*4096}"] if s_ == 0 else []) + \
               [f"buffer_store_dwordx4 {v(packed(n),4)}, v{V_L16}, s[{SRD_WS}:{SRD_WS+3}], s33 offen offset:{s_*1024} sc1"]
    def load_QA():
        A.I(f"s_add_u32 s{S_TMP}, s61, 16384")
        A.I(f"buffer_load_dwordx4 v[200:203], v{V_L16}, s[{SRD_WS}:{SRD_WS+3}], s{S_TMP} offen")
        A.I("s_waitcnt lgkmcnt(0)")
        for qb in range(4):
            for s_ in range(4):
                A.I(f"ds_read_b128 {v(Qf(qb,s_),4)}, v31 offset:{(qb*4+s_)*1024}")
        A.I("s_waitcnt lgkmcnt(0)")
    def fin_QA(n):
        A.I(f"s_waitcnt vmcnt({n})")
        for qb in range(4):
            for r in range(4): A.I(f"v_mov_b32 v{NEGM(qb)+r}, v{200+qb}")
        A.I("s_nop 1")
    A.I(f"s_sub_u32 s32, s{S_T2}, 1")
    A.I(f"s_sub_u32 s33, s{S_T2}, 2")
    A.I(f"s_cmp_eq_u32 s{S_WAVE}, 2")
    A.I(f"s_cbranch_scc1 {L('role2')}")
    A.I(f"s_cmp_eq_u32 s{S_WAVE}, 3")
    A.I(f"s_cbranch_scc1 {L('role3')}")
    A.I(f"s_cmp_eq_u32 s{S_T}, 0")
    A.I(f"s_cbranch_scc1 {L('r01_t0')}")
    call("full", "full", True, "fd")
    A.I(f"s_branch {L('r01_c')}")
    A.label(L("r01_t0"))
    call("full", "full", True)
    A.label(L("r01_c"))
    loop("d", "s32", "r01d")
    A.I(f"s_cmp_eq_u32 s{S_WAVE}, 0")
    A.I(f"s_cbranch_scc1 {L('role0')}")
    loop("s", 15, "r1s")
    call(None, "full", False, "last")
    A.I(f"s_branch {L('merge')}")
    A.label(L("w_role0")); A.I(f"s_setpc_b64 s[{S_RET}:{S_RET+1}]")
    A.label(L("role0"))
    loop("s", f"s{S_T2}", "r0s")
    call("diag", "full")
    A.I(f"s_cmp_eq_u32 s{S_T}, 7")
    A.I(f"s_cbranch_scc1 {L('role0_t7')}")
    call("full", "diag")
    loop("s", 15, "r0s2")
    call(None, "full", False, "last")
    A.I(f"s_branch {L('merge')}")
    A.label(L("role0_t7"))
    call(None, "diag", False, "last")
    A.I(f"s_branch {L('merge')}")
    A.label(L("w_role2")); A.I(f"s_setpc_b64 s[{S_RET}:{S_RET+1}]")
    A.label(L("role2"))
    A.I(f"s_cmp_eq_u32 s{S_T}, 0")
    A.I(f"s_cbranch_scc1 {L('role2_t0')}")
    call("full", "full", True, "fd")
    loop("d", "s33", "r2d")
    call("diag", "full")
    load_QA()
    call(None, "diag", False, "epi")
    A.I(f"s_branch {L('role2_b')}")
    A.label(L("role2_t0"))
    call(None, "diag", True, "epi")
    load_QA()
    A.I("s_waitcnt vmcnt(0)")
    A.label(L("role2_b"))
    fin_QA(63)
    call("diag", None, False, "st")
    A.I(f"s_cmp_eq_u32 s{S_T}, 7")
    A.I(f"s_cbranch_scc1 {L('role2_t7')}")
    call("full", "diag", True)
    flag(F_B, True)
    loop("s", 15, "r2s")
    call(None, "full", False, "last")
    A.I(f"s_branch {L('merge')}")
    A.label(L("role2_t7"))
    call(None, "diag", True, "last")
    flag(F_B, True)
    A.I(f"s_branch {L('merge')}")
    A.label(L("w_role3")); A.I(f"s_setpc_b64 s[{S_RET}:{S_RET+1}]")
    A.label(L("role3"))
    A.I(f"s_cmp_eq_u32 s{S_T}, 0")
    A.I(f"s_cbranch_scc1 {L('role3_t0')}")
    call("full", "full", True, "fd")
    loop("d", "s32", "r3d")
    call("diag", "full")
    A.I(f"s_branch {L('role3_b')}")
    A.label(L("role3_t0"))
    call("diag", "full", True)
    A.label(L("role3_b"))
    load_QA()
    call(None, "diag", False, "epi")
    fin_QA(63)
    A.I(f"s_cmp_eq_u32 s{S_T}, 7")
    A.I(f"s_cbranch_scc1 {L('role3_t7')}")
    call("full", None, False, "st")
    call("full", "full", True)
    flag(F_B, True)
    loop("s", 15, "r3s")
    call(None, "full", False, "last")
    A.I(f"s_branch {L('merge')}")
    A.label(L("role3_t7"))
    for i in range(128): A.I(f"v_accvgpr_write_b32 a{i}, 0")
    for i in range(16): A.I(f"v_accvgpr_write_b32 a{Lreg(0)+i}, 0")
    call(None, None, False, "lastst")
    flag(F_B, True)
    A.I(f"s_branch {L('merge')}")
    A.label(L("w_merge")); A.I(f"s_setpc_b64 s[{S_RET}:{S_RET+1}]")
    A.label(L("merge"))
    if ST.on: A.I("v_writelane_b32 v0, s76, 57")
    ST.stamp()
    for qb in range(4): A.I(f"v_accvgpr_read_b32 v{192+qb}, a{Lreg(qb)}")
    A.I(f"v_mov_b32 v196, {LTHR}")
    for qb in range(4):
        A.I(f"v_cmp_nle_f32 vcc, v{192+qb}, v196")
        A.I(f"s_or_b32 s{S_FAIL}, s{S_FAIL}, vcc_lo")
        A.I(f"s_or_b32 s{S_FAIL}, s{S_FAIL}, vcc_hi")
    A.I(f"s_lshr_b32 s32, s{S_WAVE}, 1")
    A.I(f"s_lshl_b32 s32, s32, 16")
    A.I(f"s_and_b32 s33, s{S_WAVE}, 1")
    A.I(f"s_lshl_b32 s33, s33, 14")
    A.I(f"s_add_u32 s32, s32, s33")
    A.I(f"s_xor_b32 s33, s32, 0x14000")
    A.I(f"v_add_u32 v197, s32, v{V_L16}")
    A.I(f"v_add_u32 v198, s33, v{V_L16}")
    A.I(f"s_lshl_b32 s32, s{S_WAVE}, 10")
    A.I(f"s_add_u32 s32, s32, 49152")
    A.I(f"s_xor_b32 s33, s32, 3072")
    A.I(f"v_add_u32 v199, s32, v{V_L16}")
    A.I(f"v_add_u32 v200, s33, v{V_L16}")
    A.I(f"s_lshl_b32 s34, s{S_WAVE}, 2")
    A.I(f"s_add_u32 s34, s34, {49152+4096}")
    A.I(f"v_mov_b32 v201, s34")
    A.I(f"v_mov_b32 v202, s{S_FAIL}")
    A.I("s_barrier")
    A.I(f"ds_write_b128 v199, v[192:195]")
    A.I(f"ds_write_b32 v201, v202")
    A.I(f"s_cmp_ge_u32 s{S_WAVE}, 2")
    A.I(f"s_cbranch_scc1 {L('mhi')}")
    OWN = 128
    def merge_half(keep, u):
        send = [q for q in range(4) if q not in keep]
        for i, qb in enumerate(send):
            for db in range(8):
                A.I(f"ds_write_b128 v197, {a(Oreg(db,qb),4)} offset:{(i*8+db)*1024}")
        for i, qb in enumerate(keep):
            for k in range(32): A.I(f"v_accvgpr_read_b32 v{OWN + i*32 + k}, a{Oreg(k//4, qb) + k % 4}")
        A.I("s_waitcnt lgkmcnt(0)")
        A.I("s_barrier")
        A.I(f"v_mov_b32 v201, {49152+4096}")
        A.I(f"ds_read_b128 v[204:207], v201")
        A.I(f"ds_read_b128 v[208:211], v200")
        R = 64
        for i in range(16):
            A.I(f"ds_read_b128 {v(R+4*i,4)}, v198 offset:{i*1024}")
        A.I(f"s_lshl_b32 s32, s{S_QA}, 5")
        A.I(f"s_add_u32 s32, s32, s{S_H}")
        A.I(f"s_lshl_b32 s32, s32, 12")
        A.I(f"s_add_u32 s32, s32, {WS_CTX}")
        A.I("s_waitcnt lgkmcnt(15)")
        A.I("v_or_b32 v204, v204, v205")
        A.I("v_or3_b32 v204, v204, v206, v207")
        for qb in keep:
            A.I(f"v_add_f32 v{192+qb}, v{192+qb}, v{208+qb}")
        A.I(f"v_readfirstlane_b32 s{S_FAIL}, v204")
        for qb in keep:
            A.I(f"v_rcp_f32 v{192+qb}, v{192+qb}")
        n = 0
        for i, qb in enumerate(keep):
            A.I(f"s_add_u32 s33, s32, {qb*32*4096}")
            for s_ in range(4):
                T = OWN + i*32 + s_*8
                A.I(f"s_waitcnt lgkmcnt({14 - (i*8+2*s_)})")
                for k in range(4): A.I(f"v_pk_add_f32 {v(T+2*k,2)}, {v(T+2*k,2)}, {v(R + (i*8+2*s_)*4 + 2*k,2)}")
                for k in range(4): A.I(f"v_pk_mul_f32 {v(T+2*k,2)}, {v(T+2*k,2)}, {v(192+2*(qb//2),2)} op_sel:[0,{qb%2}] op_sel_hi:[1,{qb%2}]")
                for k in range(4): A.I(f"v_cvt_pk_bf16_f32 v{T+k}, v{T+2*k}, v{T+2*k+1}")
                A.I(f"buffer_store_dwordx4 {v(T,4)}, v{V_L16}, s[{SRD_WS}:{SRD_WS+3}], s33 offen offset:{s_*1024} sc1")
    merge_half([0, 1], "lo")
    A.I(f"s_branch {L('done')}")
    A.label(L("w_mhi")); A.I(f"s_setpc_b64 s[{S_RET}:{S_RET+1}]")
    A.label(L("mhi"))
    merge_half([2, 3], "hi")
    A.label(L("done"))
    ST.stamp()
    A.I("s_waitcnt vmcnt(8)")
    A.I("s_barrier")
    A.I(f"s_and_b32 s34, s{S_FAIL}, s{S_SAFE}")
    A.I(f"s_cbranch_scc1 {L('saferestart')}")
    oproj()
    A.label(L("end"))
    A.I("s_endpgm")
    A.label(L("maxpass"))
    M = Asm()
    for qb in range(4): M.I(f"v_mov_b32 v{12+qb}, 0xff7fffff")
    M.I("v_mov_b32 v8, 0xff7fffff")
    M.I(f"v_add_u32 v9, 0x10000, v{V_L16}")
    MI_, ML_ = 64, 65
    M.I(f"s_mov_b32 s{MI_}, 0")
    M.I(f"s_lshr_b32 s{S_CNT}, s{S_Q0}, 2")
    M.I(f"s_sub_u32 s{ML_}, 31, s{S_T2}")
    M.I("s_waitcnt lgkmcnt(0)")
    M.label(L("mp_loop"))
    M.I(f"s_lshl_b32 s{S_TMP}, s{MI_}, 15")
    M.I(f"s_add_u32 s{S_TMP}, s{S_TMP}, s{S_KVB}")
    M.I(f"s_add_u32 m0, s{S_W4K}, 0x10000")
    M.I("s_nop 0")
    for x in dma4(S_TMP, None): M.I(x)
    M.I("s_waitcnt vmcnt(0)")
    M.I("s_barrier")
    M.I(f"s_cmp_gt_u32 s{MI_}, s{S_CNT}")
    M.I(f"s_cbranch_scc1 {L('mp_next')}")
    for kb, base in enumerate((KA_, KB, VA, VB)):
        for s_ in range(4): M.I(rdfrag(base+4*s_, 9, kb*4+s_))
    M.I("s_waitcnt lgkmcnt(0)")
    for kb, base in enumerate((KA_, KB, VA, VB)):
        for qb in range(4):
            for s_ in range(4):
                d = v(Sreg(kb//2, kb % 2, qb), 4)
                M.I(mf(d, a(base+4*s_, 4), v(Qf(qb, s_), 4), "0" if s_ == 0 else d))
    M.I("s_nop 7")
    M.I(f"s_cmp_lg_u32 s{MI_}, s{S_CNT}")
    M.I(f"s_cbranch_scc1 {L('mp_nomask')}")
    for kb in range(4):
        for qb in range(4):
            for r in range(4):
                reg = Sreg(kb//2, kb % 2, qb) + r
                if kb > qb: M.I(f"v_mov_b32 v{reg}, v8")
                elif kb == qb: M.I(f"v_cndmask_b32 v{reg}, v8, v{reg}, s[{S_MASK+2*r}:{S_MASK+2*r+1}]")
    M.label(L("mp_nomask"))
    for qb in range(4):
        regs = [Sreg(kb//2, kb % 2, qb) + r for kb in range(4) for r in range(4)]
        for i in range(0, 16, 2): M.I(f"v_max3_f32 v{12+qb}, v{12+qb}, v{regs[i]}, v{regs[i+1]}")
    M.label(L("mp_next"))
    M.I("s_barrier")
    M.I(f"s_add_u32 s{MI_}, s{MI_}, 1")
    M.I(f"s_cmp_le_u32 s{MI_}, s{ML_}")
    M.I(f"s_cbranch_scc1 {L('mp_loop')}")
    for kb, base in enumerate((KA_, KB, VA, VB)):
        for s_ in range(4): M.I(rdfrag(base+4*s_, V_K, kb*4+s_))
    M.I("s_waitcnt lgkmcnt(0)")
    M.I(f"s_setpc_b64 s[{S_RET}:{S_RET+1}]")
    A.items += M.check(fix=True, seq=M.items)
    saferestart()
    bodies = {}
    for kind, adma in (("d", False), ("s", True)):
        A.I(".p2align 6")
        A.label(L("w_main_"+kind)); A.I(f"s_setpc_b64 s[{S_RET}:{S_RET+1}]"); A.I("s_nop 0")
        A.label(L("main_"+kind))
        B = Asm(); l2 = entry_lg(); body(B, "full", "full", False, adma, l2)
        assert l2.q == entry_lg().q, l2.q
        probs = B.check(seq=B.items + B.items, name="main_"+kind)
        for p in probs: print("HAZARD(main)", p)
        A.items += B.items
        A.I(f"s_cmp_le_i32 s{S_I}, s{S_CNT}")
        A.I(f"s_cbranch_scc1 {L('main_'+kind)}")
        A.I(f"s_setpc_b64 s[{S_RET}:{S_RET+1}]")
    for bi, (key, (qk, pv, first, kind)) in enumerate(used.items()):
        A.I(".p2align 6")
        A.label(L("w_" + key)); A.I(f"s_setpc_b64 s[{S_RET}:{S_RET+1}]")
        A.label(L(key))
        B = Asm(); B.I("s_nop 7"); l2 = entry_lg()
        body(B, qk, pv, first, kind != "fd", l2, vmn={"fd": nyoung, "st": 8}.get(kind, 0),
             xst={"epi": {(1, 40+(i//2)*8+(i%2)*2): epi_st(i) for i in range(8)}, "st": {(0, 36+4*i): epi_st(8+i) for i in range(8)},
                  "lastst": {(0, 2*i): epi_st(8+i) for i in range(8)}}.get(kind), mid=(lambda: epi_half(B, [0, 1])) if kind == "epi" else None, last=oproj_setup(0) if kind.startswith("last") else None)
        if kind == "epi": epi_half(B, [2, 3])
        B.I("s_nop 7")
        A.items += B.check(fix=True, seq=B.items)
        A.I(f"s_setpc_b64 s[{S_RET}:{S_RET+1}]")
    return A
```

```python
from common import *
import k2
from k2 import *
import math, struct

F_XN, F_KV, F_H, F_B, F_A, F_P, F_ID = range(7)
S_ID = 45
def flag_base(kind): return WS_FLAG + kind*262144
NLOG2E = f2u(-math.log2(math.e))
S_NONCE = 3
S_ROT = 39

def gen(name, prof=False, rot=False, xsc=' sc1', csc=' sc1', xdiag=0, tlb=False, itlb=True, dense=False, slp=0, fstride=7, apoll=0, fullline=True, xtouch=0, fine=0, wotouch=0, wot=2, wqt=7, wqtouch=1, barpos=9, noln=0, kspread=0, apollA=0, upfront=2):
    A = Asm(); ST = Stamps(A, prof, 0)
    vm = Cnt("vmcnt", 63); lg = Cnt("lgkmcnt", 15)
    L = lambda x: f"L_{x}"
    WS = f"s[{SRD_WS}:{SRD_WS+3}]"
    uniq = [0]
    def set_flag(kind, vz, vd, st, val=S_NONCE):
        wide = True
        return [f"s_lshl_b32 s{st}, s2, {2 if wide else 5}", f"s_add_u32 s{st}, s{st}, s{S_WAVE}", f"s_lshl_b32 s{st}, s{st}, {7 if wide else 2}",
                f"s_add_u32 s{st}, s{st}, {flag_base(kind)}",
                f"v_mov_b32 v{vd}, s{val}", f"v_lshlrev_b32 v{vz}, 2, v1",
                "s_mov_b32 exec_hi, 0" if fullline else "s_mov_b64 exec, 1", f"buffer_store_dword v{vd}, v{vz}, {WS}, s{st} offen sc1", "s_mov_b64 exec, -1"]
    def pload(vdat, vaddr, atomic=False):
        if atomic:
            return [f"v_mov_b32 v{vdat}, 0", f"buffer_atomic_or v{vdat}, v{vaddr}, {WS}, 0 offen sc0 sc1"]
        return [f"buffer_load_dword v{vdat}, v{vaddr}, {WS}, 0 offen {'sc1' if apoll != 2 else 'sc0 sc1 nt'}"]
    def poll_check(vaddr, vdat, st, vmask=None, atomic=False):
        u = uniq[0]; uniq[0] += 1
        A.I(f"s_mov_b32 s{st}, 0")
        A.label(L(f"poll{u}"))
        if vmask is not None:
            A.I(f"v_and_b32 v{vmask}, 0xffffff00, v{vdat}")
            A.I(f"v_cmp_ne_u32 vcc, s{S_NONCE}, v{vmask}")
        else:
            A.I(f"v_cmp_ne_u32 vcc, s{S_NONCE}, v{vdat}")
        A.I(f"s_cbranch_vccz {L(f'pollok{u}')}")
        A.I(f"s_add_u32 s{st}, s{st}, 1")
        A.I(f"s_cmp_gt_u32 s{st}, 0x80000")
        A.I(f"s_cbranch_scc1 {L(f'pollok{u}')}")
        if slp: A.I(f"s_sleep {slp}")
        for x in pload(vdat, vaddr, atomic): A.I(x)
        A.I("s_waitcnt vmcnt(0)")
        A.I(f"s_branch {L(f'poll{u}')}")
        A.label(L(f"pollok{u}"))
    def code_pf(off, nbytes, vt, vd):
        return [f"s_lshr_b32 s{S_TMP}, s2, 3", f"s_lshl_b32 s{S_TMP}, s{S_TMP}, 2", f"s_add_u32 s{S_TMP}, s{S_TMP}, s{S_WAVE}",
                f"s_lshl_b32 s{S_TMP}, s{S_TMP}, 10", f"s_and_b32 s{S_TMP}, s{S_TMP}, {nbytes-1}", f"s_add_u32 s{S_TMP}, s{S_TMP}, {off}",
                f"v_add_u32 v{vt}, s{S_TMP}, v{V_L16}", f"global_load_dwordx4 {v(vd,4)}, v{vt}, s[62:63]"]

    header(A, name)
    A.I("s_cmp_ge_u32 s2, 256")
    A.I(f"s_cbranch_scc1 {L('end')}")
    ST.stamp()
    A.I(f"s_load_dwordx4 s[4:7], s[0:1], {KA['x']}")
    A.I(f"s_load_dwordx4 s[8:11], s[0:1], {KA['wuk']}")
    A.I(f"s_load_dwordx4 s[12:15], s[0:1], {KA['dbg']}")
    A.I("s_memrealtime s[52:53]")
    A.I("s_getpc_b64 s[62:63]")
    A.I(f"s_mov_b32 s{S_SAFE}, -1")
    A.I("v_and_b32 v1, 63, v0")
    A.I("v_lshrrev_b32 v248, 6, v0")
    A.I(f"s_and_b32 s{S_H}, s2, 7")
    A.I(f"v_readfirstlane_b32 s{S_WAVE}, v248")
    A.I(f"s_lshr_b32 s47, s2, 3")
    A.I(f"s_lshl_b32 s{S_H}, s{S_H}, 2")
    A.I(f"s_and_b32 s48, s47, 3")
    A.I(f"s_add_u32 s{S_H}, s{S_H}, s48")
    A.I(f"s_lshr_b32 s{S_T}, s47, 2")
    A.I(f"s_lshl_b32 s{S_ROT}, s48, 1")
    A.I(f"s_and_b32 s48, s{S_T}, 1")
    A.I(f"s_add_u32 s{S_ROT}, s{S_ROT}, s48")
    if not rot: A.I(f"s_mov_b32 s{S_ROT}, 0")
    A.I(f"v_lshlrev_b32 v{V_L16}, 4, v1")
    for x in code_pf(0, 131072, 249, 252): A.I(x)
    vm.issue("pf")
    A.I("v_and_b32 v248, 15, v1")
    A.I("v_lshrrev_b32 v249, 4, v1")
    A.I("v_and_b32 v250, 7, v1")
    A.I("v_xor_b32 v250, v250, v249")
    A.I("v_lshrrev_b32 v251, 3, v1")
    A.I("v_lshlrev_b32 v251, 10, v251")
    A.I("v_lshl_add_u32 v208, v250, 4, v251")
    A.I("v_xor_b32 v250, 4, v250")
    A.I("v_lshl_add_u32 v209, v250, 4, v251")
    A.I(f"v_add_u32 v210, {2*(8192-1024)}, v208")
    A.I(f"v_add_u32 v211, {3*(8192-1024)}, v209")
    A.I(f"v_add_u32 v209, {8192-1024}, v209")
    A.I("v_lshrrev_b32 v250, 1, v248")
    A.I("v_xor_b32 v250, v250, v249")
    A.I("v_and_b32 v251, 1, v248")
    A.I("v_lshlrev_b32 v251, 4, v251")
    A.I("v_lshl_add_u32 v251, v249, 13, v251")
    A.I("v_lshl_add_u32 v4, v250, 5, v251")
    A.I(f"v_add_u32 v5, {32768-1024}, v4")
    A.I("v_xor_b32 v250, 4, v250")
    A.I("v_lshl_add_u32 v6, v250, 5, v251")
    A.I(f"v_add_u32 v6, {2*(32768-1024)}, v6")
    A.I(f"v_add_u32 v7, {32768-1024}, v6")
    A.I("s_lshl_b32 s47, s2, 3")
    A.I(f"s_lshl_b32 s48, s{S_WAVE}, 1")
    A.I("s_add_u32 s47, s47, s48")
    A.I("v_lshrrev_b32 v241, 5, v1")
    A.I("v_add_u32 v241, s47, v241")
    A.I("v_and_b32 v242, 31, v1")
    A.I("v_lshlrev_b32 v243, 10, v241")
    A.I("v_lshl_add_u32 v243, v242, 4, v243")
    A.I(f"s_lshl_b32 s40, s{S_T}, 8")
    A.I(f"s_lshl_b32 s47, s{S_WAVE}, 6")
    A.I("s_add_u32 s40, s40, s47")
    A.I("s_lshl_b32 s40, s40, 10")
    A.I(f"s_lshl_b32 s42, s{S_WAVE}, 13")
    A.I(f"s_lshl_b32 s44, s{S_WAVE}, 17")
    A.I(f"s_lshl_b32 s47, s{S_H}, 8")
    A.I("s_add_u32 s44, s44, s47")
    A.I(f"s_lshl_b32 s{S_W4K}, s{S_WAVE}, 12")
    A.I("s_waitcnt lgkmcnt(0)")
    srd(A, 32, 4, 2*MB); srd(A, 20, 6, 2*MB); srd(A, 24, 8, 4*MB); srd(A, SRD_WS, 14, WS_END); srd(A, 28, 10, 4*MB)
    A.I("buffer_load_dwordx4 v[216:219], v243, s[32:35], 0 offen"); vm.issue("x")
    A.I("buffer_load_dwordx4 v[220:223], v243, s[32:35], 0 offen offset:512"); vm.issue("x")

    def rotk(t, shift, base, dst):
        if not rot: return [f"s_add_u32 s{dst}, s{base}, {t << shift}"]
        return [f"s_add_u32 s{dst}, s{S_ROT}, {t}", f"s_and_b32 s{dst}, s{dst}, 7", f"s_lshl_b32 s{dst}, s{dst}, {shift}", f"s_add_u32 s{dst}, s{dst}, s{base}"]
    def wdma(which, t, slot):
        sr = 24 if which == "k" else 28
        pre = rotk(t, 19, 44, 49) + [f"s_add_u32 m0, s{S_W4K}, {slot*16384}"]
        return [(pre if j == 0 else None, f"buffer_load_dwordx4 v{4+j}, s[{sr}:{sr+3}], s49 offen offset:{j*1024} lds") for j in range(4)]
    def cdma(t):
        r = []
        for i in range(8):
            pre = None
            if i == 0: pre = rotk(t, 7, 40, 43) + [f"s_add_u32 m0, s42, {(t%2)*32768}"]
            if i == 4: pre = [f"s_add_u32 s43, s43, 32768", f"s_add_u32 m0, s42, {(t%2)*32768 + 4096}"]
            r.append((pre, f"buffer_load_dwordx4 v{208+i%4}, s[20:23], s43 offen offset:{(i%4)*1024} lds"))
        return r
    def ccopy(t):
        r = []
        for kk in range(2):
            for kb in range(4):
                r.append(f"ds_read_b128 {a((kb*16+2*t+kk)*4,4)}, v{212 + kk} offset:{(t % 2)*32768 + kb*2048}")
        return r
    def issue(lst, tag):
        for pre, x in lst:
            if pre:
                for y in pre: A.I(y)
                if "lds" in x: A.I("s_nop 0")
            A.I(x); vm.issue(tag)
    A.I("s_lshl_b32 s54, s2, 2")
    A.I(f"s_add_u32 s54, s54, s{S_WAVE}")
    A.I("s_lshl_b32 s55, s54, 12")
    A.I("s_lshl_b32 s54, s54, 11")
    prer = [(None, f"buffer_load_dwordx4 v[252:255], v{V_L16}, s[20:23], s53 offen offset:{j*1024}") for j in range(2)] + \
           [(None, f"buffer_load_dwordx4 v[252:255], v{V_L16}, s[24:27], s55 offen offset:{j*1024}") for j in range(4)]
    A.I("s_mov_b32 s53, s54")
    ST.stamp()
    if upfront in (4, 5, 6): issue(prer, "pr")
    if upfront == 6:
        A.I("v_and_b32 v3, 31, v1"); A.I("v_lshlrev_b32 v3, 7, v3"); A.I("v_add_u32 v3, s55, v3")
        A.I(f"buffer_load_dword v252, v3, s[28:31], 0 offen"); vm.issue("pr")
    issue(wdma("k", 0, 7), "Wk0"); issue(cdma(0), "C0")
    if upfront == 5: issue(wdma("k", 1, 8), "Wk1"); issue(cdma(1), "C1")
    ST.stamp()
    A.I(f"s_load_dwordx2 s[68:69], s[0:1], {KA['wq']}")
    A.I(f"s_load_dwordx2 s[70:71], s[0:1], {KA['wo']}")
    A.I(f"s_load_dwordx2 s[64:65], s[0:1], {KA['w1']}")
    A.I(f"s_load_dwordx2 s[66:67], s[0:1], {KA['w2']}")
    if upfront == 0:
        issue(prer, "pr"); issue(wdma("k", 1, 8), "Wk1"); issue(cdma(1), "C1")
    elif upfront == 1:
        issue(prer, "pr")
    elif upfront == 2:
        issue(wdma("k", 1, 8), "Wk1"); issue(cdma(1), "C1")
    A.I(f"s_or_b32 s47, s2, s{S_WAVE}")
    A.I(f"s_cmp_lg_u32 s47, 0")
    A.I(f"s_cbranch_scc1 {L('nocas')}")
    A.I("s_and_b32 s52, s52, 0xffffff00")
    A.I("s_or_b32 s52, s52, 0x100")
    A.I("v_mov_b32 v184, s52")
    A.I("v_mov_b32 v185, 0")
    A.I("s_mov_b64 exec, 1")
    A.I("global_store_dword v185, v184, s[12:13] sc1")
    A.I("s_mov_b64 exec, -1")
    A.label(L("nocas"))
    ST.stamp()
    A.I("v_lshrrev_b32 v250, 1, v248")
    A.I("v_xor_b32 v250, v250, v249")
    A.I("v_lshlrev_b32 v251, 7, v248")
    A.I("v_add_u32 v251, s42, v251")
    A.I("v_lshl_add_u32 v212, v250, 4, v251")
    A.I("v_xor_b32 v250, 4, v250")
    A.I("v_lshl_add_u32 v213, v250, 4, v251")
    A.I("v_bfe_u32 v248, v1, 2, 2")
    A.I("v_lshlrev_b32 v250, 3, v249")
    A.I("v_add_u32 v250, v250, v248")
    A.I("v_lshlrev_b32 v250, 8, v250")
    A.I("v_and_b32 v251, 3, v1")
    A.I("v_lshl_add_u32 v250, v251, 3, v250")
    A.I("v_add_u32 v250, 114688, v250")
    A.I("v_and_b32 v251, 1, v249")
    A.I("v_lshl_add_u32 v248, v251, 2, v248")
    for nb in range(8):
        A.I(f"v_xor_b32 v251, {nb}, v248")
        A.I(f"v_lshl_add_u32 v{8+nb}, v251, 5, v250")
    A.I("v_lshrrev_b32 v250, 4, v241")
    A.I("v_lshlrev_b32 v250, 14, v250")
    A.I("v_lshrrev_b32 v251, 2, v242")
    A.I("v_lshl_add_u32 v250, v251, 10, v250")
    A.I("v_and_b32 v251, 3, v242")
    A.I("v_lshl_add_u32 v250, v251, 8, v250")
    A.I("v_and_b32 v251, 15, v241")
    A.I("v_lshl_add_u32 v240, v251, 4, v250")
    A.I(f"s_lshl_b32 s46, s{S_H}, 5")
    A.I(f"s_lshl_b32 s47, s{S_T}, 2")
    A.I("s_add_u32 s46, s46, s47")
    A.I(f"s_add_u32 s46, s46, s{S_WAVE}")
    A.I("s_lshl_b32 s46, s46, 15")
    A.I(f"s_add_u32 s46, s46, {WS_KV}")
    if xtouch:
        A.I("s_lshr_b32 s47, s2, 3"); A.I("s_lshl_b32 s47, s47, 2"); A.I(f"s_add_u32 s47, s47, s{S_WAVE}"); A.I("s_lshl_b32 s47, s47, 15")
        A.I("s_and_b32 s48, s2, 7"); A.I("s_lshl_b32 s48, s48, 10"); A.I("s_add_u32 s47, s47, s48")
        A.I("v_bfe_u32 v3, v1, 3, 2"); A.I("v_lshlrev_b32 v3, 13, v3"); A.I("v_and_b32 v250, 7, v1"); A.I("v_lshl_add_u32 v3, v250, 7, v3")
        A.I("v_add_u32 v3, s47, v3")
    else:
        A.I("v_and_b32 v3, 31, v1")
        A.I("v_lshlrev_b32 v3, 7, v3")
        A.I("v_add_u32 v3, s55, v3")
    A.I("s_mul_i32 s54, s54, 11")
    A.I("s_lshr_b32 s54, s54, 4")
    A.I("v_min_u32 v250, 10, v1")
    A.I("v_lshlrev_b32 v250, 7, v250")
    A.I("v_add_u32 v250, s54, v250")
    A.I(f"v_min_u32 v250, {1376*1024-4}, v250")
    LN = Asm()
    X = 224
    for i in range(8):
        LN.I(f"v_lshlrev_b32 v{X+2*i}, 16, v{216+i}")
        LN.I(f"v_and_b32 v{X+2*i+1}, 0xffff0000, v{216+i}")
    LN.I(f"v_add_f32 v243, v{X}, v{X+1}")
    LN.I(f"v_add_f32 v244, v{X+2}, v{X+3}")
    for i in range(4, 16, 2):
        LN.I(f"v_add_f32 v243, v243, v{X+i}")
        LN.I(f"v_add_f32 v244, v244, v{X+i+1}")
    LN.I("v_add_f32 v243, v243, v244")
    row_allreduce32(LN, 243, 244)
    LN.I("v_mul_f32 v243, 0x3b000000, v243")
    LN.I("v_mov_b32 v245, 0")
    LN.I("v_mov_b32 v246, 0")
    for i in range(16):
        LN.I(f"v_sub_f32 v247, v{X+i}, v243")
        LN.I(f"v_fmac_f32 v{245+i%2}, v247, v247")
    LN.I("v_add_f32 v245, v245, v246")
    row_allreduce32(LN, 245, 244)
    LN.I("v_mul_f32 v245, 0x3b000000, v245")
    LN.I("v_cvt_pk_bf16_f32 v243, v243, v245")
    LN.I("v_and_b32 v245, 0xffff0000, v243")
    LN.I("v_lshlrev_b32 v243, 16, v243")
    LN.I("v_add_f32 v245, 0x3727c5ac, v245")
    LN.I("v_cvt_pk_bf16_f32 v245, v245, v245")
    LN.I("v_lshlrev_b32 v245, 16, v245")
    LN.I("v_sqrt_f32 v245, v245")
    LN.I("s_nop 0")
    LN.I("v_cvt_pk_bf16_f32 v245, v245, v245")
    LN.I("v_lshlrev_b32 v245, 16, v245")
    LN.I("v_rcp_f32 v245, v245")
    for i in range(16):
        LN.I(f"v_sub_f32 v{X+i}, v{X+i}, v243")
    for i in range(8):
        LN.I(f"v_cvt_pk_bf16_f32 v{216+i}, v{X+2*i}, v{X+2*i+1}")
    for i in range(8):
        LN.I(f"v_lshlrev_b32 v{X+2*i}, 16, v{216+i}")
        LN.I(f"v_and_b32 v{X+2*i+1}, 0xffff0000, v{216+i}")
        LN.I(f"v_mul_f32 v{X+2*i}, v{X+2*i}, v245")
        LN.I(f"v_mul_f32 v{X+2*i+1}, v{X+2*i+1}, v245")
    for i in range(8):
        LN.I(f"v_cvt_pk_bf16_f32 v{216+i}, v{X+2*i}, v{X+2*i+1}")
    lnq = [x.text for x in LN.items if not x.text.startswith("s_nop")]
    if noln: lnq = []
    A.I("v_add_u32 v241, 8192, v240")
    A.I(f"s_getreg_b32 s{S_ID}, hwreg(HW_REG_XCC_ID)")
    A.I(f"s_lshr_b32 s47, s{S_ID}, 12")
    A.I(f"s_and_b32 s47, s47, 0xf0")
    A.I(f"s_and_b32 s{S_ID}, s{S_ID}, 15")
    A.I(f"s_or_b32 s{S_ID}, s{S_ID}, s47")

    WF = 144
    wfrag = lambda db, kk: WF + (db*2+kk)*4
    tr = lambda dst, areg, off: f"ds_read_b64_tr_b16 {v(dst,2)}, v{areg} offset:{off}"
    def reads1(t, db):
        r = []
        for kk in range(2):
            off = (t % 3)*16384 + kk*8192
            r += [tr(wfrag(db,kk), 8+db, off), tr(wfrag(db,kk)+2, 8+db, off+1024)]
        return r
    accK = lambda db, kb: 16 + (db*4+kb)*4
    ST.stamp()
    A.I("s_waitcnt lgkmcnt(0)")
    A.I(vm.wait("C0"))
    A.I("s_barrier")
    for x in ccopy(0): A.I(x); lg.issue("c0")
    for db in range(7):
        for x in reads1(0, db): A.I(x); lg.issue(f"R0_{db}")
    if upfront == 3:
        issue(wdma("k", 1, 8), "Wk1"); issue(cdma(1), "C1"); issue(prer, "pr")
    if upfront in (1, 4, 6):
        issue(wdma("k", 1, 8), "Wk1"); issue(cdma(1), "C1")
    elif upfront == 2:
        issue(prer, "pr")
    vslot = lambda tt: [4,5,6,0,1,7,2,3][tt]
    p2addr = lambda G: (G//8, (G//2) % 4, G % 2)
    p2areg = lambda p, dbl, win: 240 + (p % 2)*4 + dbl*2 + win
    def reads2(G):
        p, ksg, dbl = p2addr(G)
        r = []
        for k4 in range(4):
            ks = ksg*4 + k4
            byte = vslot(ks//2)*16384 + (ks % 2)*8192
            dst = WF + (G % 4)*16 + k4*4
            r += [tr(dst, p2areg(p, dbl, byte//65536), byte % 65536), tr(dst+2, p2areg(p, dbl, byte//65536), byte % 65536 + 1024)]
        return r
    def p2setup(p):
        return [f"v_subrev_u32 v{p2areg(p,dbl,win)}, {114688 - win*65536}, v{8+2*p+dbl}" for dbl in range(2) for win in (0, 1)]
    lastln = [None]
    kj0 = [(accK(0,kb), accK(1,kb), kb*4) for kb in range(2)]
    BAR = barpos
    for t in range(8):
        M = []
        for db in range(8):
            for kb in range(4):
                for kk in range(2):
                    c = v(accK(db,kb),4)
                    M.append(mf(c, v(wfrag(db,kk),4), a((kb*16+2*t+kk)*4,4), "0" if (t==0 and kk==0) else c))
        A.I(lg.wait([f"R{t}_0", f"c{t}", f"c{t}_0"]))
        if t in (0, 4) or fine: ST.stamp()
        if t < 6: ops = [(d, f"Wk{t+2}", pre) for pre, d in wdma("k", t+2, 7 + (t+2) % 3)] + [(d, f"C{t+2}_{i//2}", pre) for i, (pre, d) in enumerate(cdma(t+2))]
        else: ops = [(d, f"Wv{tt}", pre) for tt in range(3*(t-6), 3*(t-6)+3) for pre, d in wdma("v", tt, vslot(tt))]
        vg = [1, 5, 11, 15, 21, 25, 29, 33, 37, 41, 45, 51] if t < 7 else [1, 5, 9, 13, 17, 21, 25, 29, 33, 37, 41, 45]
        if t == 6: vg = [BAR+2 + 4*i for i in range(12)] if False else vg
        vpos = {vg[i]: op for i, op in enumerate(ops)}
        rq = []
        if t < 7:
            for db in range(7): rq += [(8*db+8, x, f"R{t+1}_{db}") for x in reads1(t+1, db)]
        else:
            for G in range(2): rq += [(16*G+16, x, f"S{G}") for x in reads2(G)]
        cpos = {}
        if t < 7:
            cc = ccopy(t+1)
            for kb in range(4):
                for kk in range(2): cpos[[47, 49, 53, 55, 57, 59, 61, 63][kb*2+kk]] = (cc[kk*4+kb], kb, kk)
        for g in range(64):
            db = g // 8; q = g % 8
            A.I(M[g])
            if g == BAR:
                if fine: ST.stamp()
                A.I((vm.wait(f"Wk{t+1}" if t < 7 else "Wv1") or "s_waitcnt") + " lgkmcnt(0)"); lg.drain()
                A.I("s_barrier")
                if fine: ST.stamp()
            if t == 1 and g == 52:
                A.I(f"buffer_load_dword v252, v3, s[28:31], 0 offen"); vm.issue("pr")
            if (t, g) in ((wot, 52), (wot, 54)):
                A.I("global_load_dword v252, v3, s[70:71]" if g == 52 else "global_load_dword v253, v250, s[66:67]"); vm.issue("pr")
            if t == wqt and g in (53, 57) and wqtouch:
                A.I("global_load_dword v252, v3, s[68:69]" if g == 53 else "global_load_dword v253, v250, s[64:65]"); vm.issue("pr")
            if t == 6 and g == 63:
                assert not lnq
                A.I(f"buffer_store_dwordx4 v[216:219], v240, {WS}, 0 offen sc1"); vm.issue("xs")
                A.I(f"buffer_store_dwordx4 v[220:223], v241, {WS}, 0 offen sc1"); vm.issue("xs")
                A.I("v_mov_b32 v248, 0")
                A.I("global_load_dword v249, v248, s[12:13] sc1"); vm.issue("nonce")
            if itlb and g == BAR-1 and t in (0, 1, 2, 3):
                WARM = [["main_d", "main_s", "b_full_full_1fd", "b_full_full_1"], ["b_diag_full_0", "b_full_diag_0", "b_None_diag_0epi", "b_diag_None_0st"],
                        ["b_full_diag_1", "b_full_None_0st", "b_None_full_0last", "merge"], ["role0", "role2", "role3", "mhi"]][t]
                for w in range(4):
                    A.I(f"s_cmp_lg_u32 s{S_WAVE}, {w}")
                    A.I(f"s_cbranch_scc1 {L(f'nst{t}_{w}')}")
                    A.I(f"s_call_b64 s[{S_RET}:{S_RET+1}], {L('w_' + WARM[w])}")
                    A.label(L(f"nst{t}_{w}"))
            if g+1 in vpos and vpos[g+1][2]:
                for x in vpos[g+1][2]: A.I(x)
                if not (db == 0 and q % 2 == 0): A.I("s_nop 0") if False else None
            if q == 7 and db < 7: A.I(lg.wait(f"R{t}_{db+1}"))
            if g in (1, 3, 5): A.I(lg.wait(f"c{t}_{(g+1)//2}"))
            nds = 0
            if db == 0 and q % 2 == 0:
                A.I(reads1(t, 7)[q//2]); lg.issue(f"R{t}_7"); nds = 1
            if g > BAR and g % 2 == 0 or (g > BAR and g not in vpos and g not in cpos and rq and rq[0][0] <= g - 6):
                if rq and rq[0][0] <= g:
                    x = rq.pop(0); A.I(x[1]); lg.issue(x[2]); nds += 1
            if g in cpos:
                if cpos[g][2] == 0: A.I(vm.wait([f"C{t+1}_{cpos[g][1]}", f"C{t+1}"]))
                A.I(cpos[g][0]); lg.issue(f"c{t+1}_{cpos[g][1]}"); nds += 1
            if t == 7 and g == 8:
                for x in p2setup(0): A.I(x)
                A.I(f"s_mov_b32 s52, {QSCALE}")
            if t == 7 and db >= 4 and q in (0, 2):
                (r0, r1, f) = kj0[(db-4)//2]
                r = (r0, r1)[db % 2]
                for k in range(2): A.I(f"v_mul_f32 v{r+(q//2)*2+k}, s52, v{r+(q//2)*2+k}")
            if g in vpos:
                A.I(vpos[g][0]); vm.issue(vpos[g][1])
            nln = 0 if (g in vpos or nds > 1) else (1 if nds else 2)
            while nln and lnq:
                x = lnq[0]
                sp = ("row_ror" in x or "permlane" in x or "sqrt" in x or "rcp" in x)
                if sp and nln == 2 and lastln[0] == (t, g): break
                A.I(lnq.pop(0)); nln -= 1
                dep = sp or (lnq and ("row_ror" in lnq[0] or "permlane" in lnq[0]))
                lastln[0] = (t, g)
                if dep:
                    if lnq and ("row_ror" in lnq[0] or "permlane" in lnq[0]): A.I("s_nop 0")
                    break
        assert not rq, (t, len(rq))
    ST.stamp()
    def cvt_frag(r0, r1):
        return [f"v_cvt_pk_bf16_f32 v{r0}, v{r0}, v{r0+1}", f"v_cvt_pk_bf16_f32 v{r0+1}, v{r0+2}, v{r0+3}",
                f"v_cvt_pk_bf16_f32 v{r0+2}, v{r1}, v{r1+1}", f"v_cvt_pk_bf16_f32 v{r0+3}, v{r1+2}, v{r1+3}"]
    def store_frag(r0, f):
        return [f"s_add_u32 s47, s46, {(f>>2)*4096}", f"buffer_store_dwordx4 {v(r0,4)}, v{V_L16}, {WS}, s47 offen offset:{(f&3)*1024}"]
    accV = lambda p, dbl, kb: (208 + dbl*16 if p % 2 == 0 else (128, 96)[dbl]) + kb*4
    epi = {}
    kj = [(accK(2*s_,kb), accK(2*s_+1,kb), kb*4+s_) for s_ in range(4) for kb in range(4)]
    for i, job in enumerate(kj): epi.setdefault(i//2, []).append(job)
    sts = {}
    for i, job in enumerate(kj): sts[[0,1,2,3, 4,5,6,7, 8,10,12,14, 16,18,20,22][i]] = job
    for p in range(3):
        vj = [(accV(p,dbl,2*j), accV(p,dbl,2*j+1), 16 + j*8 + 2*p+dbl) for dbl in range(2) for j in range(2)]
        for i, job in enumerate(vj):
            G_ = (p+1)*8 + (1 + 2*i if p < 2 else i)
            epi.setdefault(G_, []).append(job); sts[G_] = job
    RB = [138240, 87040, 61440, 112640]
    QBASE = 87040
    def qwdma(t):
        slot = RB[t % 4]
        return [(rotk(t, 19, 44, S_TMP) + [f"s_add_u32 m0, s{S_W4K}, {slot}"], f"buffer_load_dwordx4 v4, s[{SRD_WQ}:{SRD_WQ+3}], s{S_TMP} offen lds")] + \
               [(None, f"buffer_load_dwordx4 v{4+j}, s[{SRD_WQ}:{SRD_WQ+3}], s{S_TMP} offen offset:{j*1024} lds") for j in range(1, 4)] + \
               [([f"s_add_u32 s{S_TMP}, s33, {t*64*2752}",
                  f"s_add_u32 m0, s35, {slot+16384}"], f"buffer_load_dwordx4 v16, s[{SRD_W1}:{SRD_W1+3}], s{S_TMP} offen lds"),
                (None, f"buffer_load_dwordx4 v17, s[{SRD_W1}:{SRD_W1+3}], s{S_TMP} offen offset:1152 lds")]
    def xload(t):
        r = []
        for qb in range(4):
            for kk in range(2):
                pre = None
                if qb == 0 and kk == 0: pre = rotk(t, 11, 34, S_TMP2)
                elif kk == 0: pre = [f"s_add_u32 s{S_TMP2}, s{S_TMP2}, 16384"]
                r.append((pre, f"buffer_load_dwordx4 {a((qb*16+2*t+kk)*4,4)}, v{V_L16}, {WS}, s{S_TMP2} offen offset:{kk*1024}{xsc}"))
        return r
    WR = 208
    def blk(n):
        t, c = n//11, n % 11
        return t, (c if t < 7 else (c+8) % 11)
    def breads(n):
        t, cb = blk(n)
        r = []
        so = RB[t % 4] - QBASE
        if so < 0: so = 0
        for kk in range(2):
            dst = WR + (n % 6)*8 + kk*4
            if cb < 8: off = so + kk*8192; areg = 8+cb; h2 = 1024
            else: off = so + kk*4608 + (cb-8)*32; areg = 18; h2 = 384
            r += [tr(dst, areg, off), tr(dst+2, areg, off+h2)]
        return r
    def bump(n):
        t, cb = blk(n)
        if cb <= 8 and t % 4 in (2, 3):
            areg = 8+cb if cb < 8 else 18
            return [f"v_subrev_u32 v{areg}, {WSLOT}, v{areg}" if t % 4 == 2 else f"v_add_u32 v{areg}, {WSLOT}, v{areg}"]
        return []
    q_setup_s = [
        f"s_load_dwordx2 s[4:5], s[0:1], {KA['wq']}", f"s_load_dwordx4 s[8:11], s[0:1], {KA['w1']}",
        f"s_lshl_b32 s{S_T2}, s{S_T}, 1",
        f"s_lshr_b32 s{S_STRM}, s{S_WAVE}, 1", f"s_lshl_b32 s{S_STRM}, s{S_STRM}, 16",
        f"s_and_b32 s{S_TMP}, s{S_WAVE}, 1", f"s_lshl_b32 s{S_TMP}, s{S_TMP}, 2",
        f"s_lshr_b32 s{S_TMP2}, s{S_WAVE}, 1", f"s_xor_b32 s{S_TMP2}, s{S_TMP2}, s{S_WAVE}", f"s_and_b32 s{S_TMP2}, s{S_TMP2}, 1", f"s_lshl_b32 s{S_TMP2}, s{S_TMP2}, 2",
        f"s_sub_u32 s{S_QA}, 15, s{S_T}", f"s_lshl_b32 s{S_QA}, s{S_QA}, 3", f"s_add_u32 s{S_QA}, s{S_QA}, s{S_TMP2}",
        f"s_lshl_b32 s{S_Q0}, s{S_T}, 3", f"s_add_u32 s{S_Q0}, s{S_Q0}, s{S_TMP}",
        f"s_cmp_lt_u32 s{S_WAVE}, 2", f"s_cselect_b32 s{S_Q0}, s{S_QA}, s{S_Q0}",
        f"s_lshl_b32 s{S_KVB}, s{S_H}, 20", f"s_add_u32 s{S_KVB}, s{S_KVB}, s{S_W4K}", f"s_add_u32 s{S_KVB}, s{S_KVB}, {WS_KV}",
        f"s_and_b32 s7, s{S_H}, 1", "s_lshl_b32 s6, s7, 5", "s_lshl_b32 s7, s7, 1",
        f"s_mul_i32 s32, s{S_H}, 96", f"s_mul_i32 s33, s{S_WAVE}, {16*2752}", f"s_add_u32 s33, s33, s32",
        f"s_lshl_b32 s34, s{S_Q0}, 14", f"s_add_u32 s34, s34, {xdiag}", f"s_mul_i32 s35, s{S_WAVE}, 2304",
        "s_add_u32 s53, s32, s6", "s_lshl_b32 s6, s6, 1", "s_sub_u32 s54, s32, s6"]
    q_setup_v = [
        f"v_mul_u32_u24 v20, 43, v1", "v_lshrrev_b32 v20, 8, v20", "v_mul_u32_u24 v21, 6, v20", "v_sub_u32 v21, v1, v21",
        "v_add_u32 v21, s7, v21", "v_subrev_u32 v22, 6, v21", "v_min_u32 v21, v21, v22",
        "v_mul_u32_u24 v16, 2752, v20", "v_lshl_add_u32 v16, v21, 4, v16", "v_cmp_gt_u32 vcc, 48, v1", f"v_mov_b32 v20, {OOB}",
        "v_lshrrev_b32 v21, 4, v1", "v_cndmask_b32 v16, v20, v16, vcc", f"v_add_u32 v17, {8*2752-1152}, v16",
        "v_mul_u32_u24 v18, 1152, v21", "v_bfe_u32 v22, v1, 2, 2", "v_mul_u32_u24 v22, 96, v22", "v_add_u32 v18, v18, v22",
        "v_and_b32 v22, 3, v1", "v_lshl_add_u32 v18, v22, 3, v18", f"v_add_u32 v18, {QBASE+16384}, v18",
        "v_lshlrev_b32 v19, 3, v21",
        "v_and_b32 v24, 31, v1", "v_lshlrev_b32 v24, 7, v24"]
    def srd_list(dst, ptr, nbytes):
        return [f"s_mov_b32 s{dst}, s{ptr}", f"s_mov_b32 s{dst+1}, s{ptr+1}", f"s_mov_b32 s{dst+2}, {nbytes}", f"s_mov_b32 s{dst+3}, 0x20000"]
    extra = {}
    def put(G, g, items): extra.setdefault((G, g), []).extend(items)
    for i, x in enumerate(q_setup_s): put(2 + i//12, (4, 5, 6, 8, 9, 10, 11, 12, 13, 14, 14, 14)[i % 12] if i < 12 else (0, 1, 2, 3, 4, 5, 8, 9, 10, 11, 12, 13)[i % 12], [x])
    for i, x in enumerate(q_setup_v): put(5 + i//10, (1, 3, 5, 5, 9, 9, 11, 11, 13, 13)[i % 10], [x])
    put(5, 15, ["s_waitcnt lgkmcnt(0)"])


    for i, x in enumerate(srd_list(SRD_WQ, 4, 4*MB) + srd_list(SRD_W1, 8, 512*2752) + srd_list(SRD_B1, 10, 2752)): put(6, i, [x])
    put(8, 1, [f"s_lshl_b32 s{S_TMP}, s{S_Q0}, 10", f"s_add_u32 s{S_TMP}, s{S_TMP}, {flag_base(F_XN)}"])
    put(8, 3, [f"v_add_u32 v24, s{S_TMP}, v24"])
    put(8, 5, [(f"buffer_load_dword v25, v24, {WS}, 0 offen sc1", "pollx")])
    for fb in range(3):
        put(8, 7+2*fb, [(f"buffer_load_dwordx2 v[{26+2*fb}:{27+2*fb}], v19, s[{SRD_B1}:{SRD_B1+3}], s{53 if fb < 2 else 54} offen offset:{fb*32}", "b")])
    def put_ops(G0, g0, lst, tag, step=2):
        G, g = G0, g0
        for pre, x in lst:
            if pre: put(G, g-1, [("P", y) for y in pre])
            put(G, g, [(x, tag)])
            g += step
            while g > 15: G += 1; g -= 16
        return G, g
    if tlb:
        tl = [f"s_mul_i32 s52, s{S_Q0}, 49152", f"s_add_u32 s52, s52, {WS_H}", ("H",),
              f"s_lshl_b32 s52, s{S_Q0}, 17", f"s_add_u32 s52, s52, {WS_CTX}", ("C",),
              f"s_lshl_b32 s52, s{S_QA}, 17", f"s_add_u32 s52, s52, {WS_CTX}", ("C",),
              "s_lshl_b32 s52, s2, 16", f"s_add_u32 s52, s52, {WS_QST}", ("Q",),
              "s_lshl_b32 s52, s2, 16", f"s_add_u32 s52, s52, {WS_PART}", ("P",)]
        for i in range(5):
            put(7, 3*i, [tl[3*i], tl[3*i+1]])
            put(7, 3*i+1, [(f"buffer_load_dword v252, v{V_L16}, {WS}, s52 offen", "pr")])
    put_ops(0, 1, wdma("v", 6, vslot(6)), "Wv6", 4)
    put_ops(1, 1, wdma("v", 7, vslot(7)), "Wv7", 4)
    cp2 = code_pf(32768, 32768, 32, 44)
    put(9, 1, cp2[:3]); put(9, 3, cp2[3:6]); put(9, 5, [cp2[6]]); put(9, 7, [(cp2[7], "pf2")])
    put(9, 11, ["v_add_u32 v33, 0x8000, v32"]); put(9, 13, [("global_load_dwordx4 v[44:47], v33, s[62:63]", "pf2")])
    put_ops(21, 3, qwdma(0), "W0", 6)
    XS = lambda i: (64, 48, 32, 80)[i//4] + (i % 4)*4
    xs01 = [(pre, x.replace(x.split()[1], v(XS(i), 4) + ",")) for i, (pre, x) in enumerate(xload(0) + xload(1))]
    put_ops(12, 7, xs01, "X01", 8)
    for nb in range(8): put(23, 1+2*nb, [f"v_subrev_u32 v{8+nb}, {114688-QBASE}, v{8+nb}"])
    put(27, 0, ["WAITX"])
    mv = []
    for i in range(16):
        t_, qb, kk = i//8, (i//2) % 4, i % 2
        mv += [f"v_accvgpr_write_b32 a{(qb*16+2*t_+kk)*4+r}, v{XS(i)+r}" for r in range(4)]
    for i, x in enumerate(mv): put(27 + i//16, 1 + 2*((i % 16)//2), [x])
    put_ops(28, 3, qwdma(1), "W1", 4)
    put_ops(30, 1, xload(2), "X2", 4)
    for G in range(32):
        p, ksg, dbl = p2addr(G)
        M = []
        for kb in range(4):
            for k4 in range(4):
                ks = ksg*4+k4
                c = v(accV(p,dbl,kb),4)
                M.append(mf(c, a((kb*16+ks)*4,4), v(WF + (G%4)*16 + k4*4,4), "0" if ks == 0 else c))
        w = lg.wait(f"S{G}")
        if w: A.I(w)
        if G in (4, 12, 20, 27): ST.stamp()
        if G == 12:
            A.I(vm.wait(["pollx", "b"]))
            poll_check(24, 25, S_TMP)
            for fb in range(3):
                for k in range(2):
                    A.I(f"v_lshlrev_b32 v{32+fb*4+2*k}, 16, v{26+2*fb+k}")
                    A.I(f"v_and_b32 v{33+fb*4+2*k}, 0xffff0000, v{26+2*fb+k}")
            for i in range(12): A.I(f"v_mov_b32 v{20+i}, v{32+i}")
        if G in (0, 2, 5):
            A.I(vm.wait({0: "Wv3", 2: "Wv5", 5: "Wv7"}[G]))
            A.I("s_barrier")
        if G == 0:
            assert vm.need("nonce") is None
            A.I(f"s_mov_b32 s47, 0")
            A.label(L("npoll"))
            A.I(f"v_readfirstlane_b32 s{S_NONCE}, v249")
            A.I("s_nop 0")
            A.I(f"s_cmp_lg_u32 s{S_NONCE}, 0")
            A.I(f"s_cbranch_scc1 {L('npollok')}")
            A.I("s_add_u32 s47, s47, 1")
            A.I("s_cmp_gt_u32 s47, 0x80000")
            A.I(f"s_cbranch_scc1 {L('npollok')}")
            A.I("s_sleep 2")
            A.I("global_load_dword v249, v248, s[12:13] sc1")
            A.I("s_waitcnt vmcnt(0)")
            A.I(f"s_branch {L('npoll')}")
            A.label(L("npollok"))
            A.I(f"s_add_u32 s{S_ID}, s{S_ID}, s{S_NONCE}")
            for x in set_flag(F_XN, 248, 249, 47): A.I(x)
            vm.issue("fl")
            for x in set_flag(F_ID, 248, 254, 47, S_ID): A.I(x)
            vm.issue("fl")
        rsched = {0: [2], 1: [3], 2: [4], 3: [5], 4: [], 5: [6, 7], 6: [8, 9]}.get(G, [G+3] if G+3 < 32 else [])
        rl = [(x, f"S{G2}") for G2 in rsched for x in reads2(G2)]
        if G == 28:
            A.I(vm.wait("W0"))
            A.I("s_barrier")
        jobs = epi.get(G, [])
        ml = []
        if G < 8:
            nj = epi[G+1] if G < 7 else []
            ml = [f"v_mul_f32 v{r+k}, s52, v{r+k}" for (r0, r1, f) in nj for r in (r0, r1) for k in range(4)]
        cv = []; st = {}
        for i, (r0, r1, f) in enumerate(jobs): cv += cvt_frag(r0, r1)
        if G in sts: st[15 if G < 8 else 11] = store_frag(sts[G][0], sts[G][2])
        for g in range(16):
            A.I(M[g])
            ex = extra.get((G, g), [])
            for x in ex:
                if x == "WAITX": A.I(vm.wait("X01"))
                elif isinstance(x, tuple) and x[0] == "P": A.I(x[1])
                elif isinstance(x, str) and x.startswith("s_"):
                    A.I(x)
                    if x == "s_waitcnt lgkmcnt(0)": lg.drain()
            if g in st: A.I(st[g][0])
            if rl and g not in st and (g % 2 == 0 or len(rsched) > 1):
                for _ in range(2 if len(rl) > 15 - g and len(rsched) > 1 else 1):
                    if rl:
                        x = rl.pop(0); A.I(x[0]); lg.issue(x[1])
            if G >= 29 and g % 2 == 0:
                n = (G-29)*2 + g//8
                if n < 5: A.I(breads(n)[(g//2) % 4]); lg.issue(f"R{n}")
            if g in st:
                A.I(st[g][1]); vm.issue("st")
            for x in ex:
                if isinstance(x, tuple) and x[0] != "P": A.I(x[0]); vm.issue(x[1])
                elif isinstance(x, str) and not x.startswith("s_") and x != "WAITX": A.I(x)
            if g % 2 == 1 and g not in st:
                for _ in range(3 if g in (1, 9) else 2):
                    if ml: A.I(ml.pop(0))
            if len(jobs) > 1:
                if g % 2 == 0: A.I(cv[g//2])
            elif len(jobs) == 1 and g % 2 == 0 and g < 8:
                A.I(cv[g//2])
            if (G+4) % 8 == 0 and G+4 < 32 and g in (1, 3, 5, 9):
                A.I(p2setup((G+4)//8)[(1,3,5,9).index(g)])
        assert not rl, G
    A.I("s_barrier")
    ST.stamp()
    A.label(L("qgemm"))
    def kvdma(tile, voff, ldsoff):
        return [([f"s_add_u32 s{S_TMP}, s{S_KVB}, {tile*32768+voff}", f"s_add_u32 m0, s{S_W4K}, {ldsoff}"] if j == 0 else None,
                 f"buffer_load_dwordx4 v{V_L16}, {WS}, s{S_TMP} offen offset:{j*1024} sc1 lds") for j in range(4)]
    xt = {t: f"X{t}" for t in range(8)}
    pend = []
    gel = []
    for qb in range(4):
        for fb in range(3):
            x0 = accF(fb, qb); T = [20+r for r in range(4)]
            for r in range(4): gel.append(f"v_mul_f32 v{T[r]}, v{x0+r}, v{x0+r}")
            for r in range(4): gel.append(f"v_fma_f32 v{T[r]}, v{T[r]}, s32, v28")
            for r in range(4): gel.append(f"v_mul_f32 v{T[r]}, v{T[r]}, v{x0+r}")
            for r in range(4): gel.append(f"v_exp_f32 v{T[r]}, v{T[r]}")
            for r in range(4): gel.append(f"v_add_f32 v{T[r]}, 1.0, v{T[r]}")
            for r in range(4): gel.append(f"v_rcp_f32 v{T[r]}, v{T[r]}")
            for r in range(4): gel.append(f"v_mul_f32 v{x0+r}, v{x0+r}, v{T[r]}")
            d0 = accF(0, qb) + 2*fb if fb < 2 else x0
            gel.append(f"v_cvt_pk_bf16_f32 v{d0}, v{x0}, v{x0+1}")
            gel.append(f"v_cvt_pk_bf16_f32 v{d0+1}, v{x0+2}, v{x0+3}")
            if fb == 1:
                gel.append(f"s_add_u32 s35, s34, {qb*49152}")
                gel.append(f"buffer_store_dwordx4 {v(accF(0,qb),4)}, v29, {WS}, s35 offen sc1")
            if fb == 2:
                gel.append(f"buffer_store_dwordx2 {v(x0,2)}, v30, {WS}, s35 offen sc1")
    qfin = []
    for s_ in range(4):
        grp = []
        for qb in range(4):
            r0, r1 = accQ(2*s_, qb), accQ(2*s_+1, qb)
            grp += cvt_frag(r0, r1)
            grp.append(f"ds_write_b128 v27, {v(r0,4)} offset:{(qb*4+s_)*1024}")
        qfin.append(grp)
    vq = []; sq = []
    def take(budget):
        while budget > 0 and (vq or (gel and gel_ok[0])):
            src = vq if vq else gel
            x = src[0]
            cost = 2 if ("v_exp" in x or "v_rcp" in x or "buffer" in x or "ds_write" in x) else (0 if x.startswith("s_") else 1)
            if cost > budget: break
            A.I(src.pop(0)); budget -= cost
            if "buffer" in x: vm.issue("hs")
            if "ds_write" in x: lg.issue("qs")
    gel_ok = [False]
    tail = []
    for dbl in (1, 0):
        for j in range(2):
            r0, r1 = accV(3,dbl,2*j), accV(3,dbl,2*j+1)
            tail.append((cvt_frag(r0, r1), store_frag(r0, 16 + j*8 + 6+dbl)))
    for n in range(88):
        t, cb = blk(n)
        c_ = n % 11
        if n == 66:
            for x in [f"s_mov_b32 s32, {G2}", f"s_mov_b32 s33, {G1}", "v_mov_b32 v28, s33",
                      f"s_mul_i32 s34, s{S_Q0}, 49152", f"s_add_u32 s34, s34, {WS_H}",
                      f"s_mul_i32 s47, s{S_H}, 3", "s_add_u32 s35, s47, 1", "s_lshr_b32 s35, s35, 1", "s_lshl_b32 s35, s35, 10",
                      f"v_add_u32 v29, s35, v{V_L16}",
                      f"s_and_b32 s47, s{S_H}, 1", f"s_mul_i32 s47, s47, {8-2048}", "s_add_u32 s47, s47, 1024", "v_add_u32 v30, s47, v29",
                      "s_lshl_b32 s61, s2, 1", f"s_lshr_b32 s47, s{S_WAVE}, 1", f"s_xor_b32 s47, s47, s{S_WAVE}", "s_and_b32 s47, s47, 1",
                      "s_add_u32 s61, s61, s47", "s_lshl_b32 s61, s61, 15", f"s_add_u32 s61, s61, {WS_QST}",
                      "s_lshl_b32 s47, s47, 14", "s_add_u32 s47, s47, 131072", f"v_add_u32 v31, s47, v{V_L16}",
                      f"s_cmp_lt_u32 s{S_WAVE}, 2", f"s_cselect_b32 s47, s47, 0x10000", f"v_add_u32 v27, s47, v{V_L16}"]: A.I(x)
        if n == 68:
            sq += [f"s_mov_b32 s{S_I}, -1", f"s_add_u32 s{S_E}, s{S_T2}, 2", f"s_add_u32 s{S_C}, s{S_T2}, 4", f"s_sub_u32 s{S_DG}, 30, s{S_T2}", f"s_mov_b32 s{S_FAIL}, 0"] + \
                  tile_calc(S_K0, 3, 0, 0) + tile_calc(S_V0, 2, 0, 16384) + lds_calc() + tile_calc(S_K1, 3, 1, 0) + tile_calc(S_V1, 2, 1, 16384) + [f"s_mov_b32 s{S_I}, 0"]
            vq += ["v_and_b32 v24, 15, v1", "v_lshrrev_b32 v25, 4, v1", "v_lshlrev_b32 v25, 2, v25"]
            for r in range(4):
                vq += [f"v_add_u32 v26, {r}, v25", f"v_cmp_le_u32 s[{S_MASK+2*r}:{S_MASK+2*r+1}], v26, v24"]
            vq += ["v_and_b32 v24, 3, v1", "v_cmp_eq_u32 vcc, 0, v24", "v_mov_b32 v25, 0x3f803f80", "v_nop", "v_cndmask_b32 v24, 0, v25, vcc"]
            vq += [f"v_accvgpr_write_b32 a{ONES+i}, v24" for i in range(4)]
        if t == 7:
            if c_ == 4:
                gel_ok[0] = True
                A.I("s_barrier")
            if c_ >= 6 and c_ % 2 == 0: vq += qfin[(c_-6)//2]
        if c_ == 0:
            w = vm.wait(xt[t])
            if w: A.I(w)
            if t <= 5: pend += [(p, x, f"W{t+2}") for p, x in qwdma(t+2)]
            if t <= 4: pend += [(p, x, f"X{t+3}") for p, x in xload(t+3)]
            if t == 0:
                A.I(f"s_and_b32 s{S_TMP}, s2, 31")
                A.I(f"s_lshl_b32 s{S_TMP}, s{S_TMP}, 9")
                A.I(f"s_add_u32 s{S_TMP}, s{S_TMP}, {flag_base(F_ID)}")
                A.I("v_bfe_u32 v3, v1, 2, 3")
                A.I("v_lshlrev_b32 v3, 14, v3")
                A.I("v_and_b32 v19, 3, v1")
                A.I("v_lshl_add_u32 v3, v19, 7, v3")
                A.I(f"v_add_u32 v3, s{S_TMP}, v3")
                A.I(f"buffer_load_dword v19, v3, {WS}, 0 offen sc1"); vm.issue("pollid")
            if t == 5:
                cp3 = code_pf(34816, 65536, 3, 20)
                for x in cp3: A.I(x)
                vm.issue("pf3")
            if t == 5: pend += [(p, x, "KV0") for p, x in kvdma(0, 0, 0) + kvdma(1, 0, 16384)]
            if t == 5:
                for i in range(4): A.I(f"v_mov_b32 v{24+i}, -1")
                for x in [f"s_lshl_b32 s6, s2, 2", f"s_add_u32 s6, s6, s{S_WAVE}", f"s_lshl_b32 s6, s6, 13", f"s_add_u32 s6, s6, {WS_PART}", f"s_add_u32 s7, s6, 4096"]: A.I(x)
                pend += [(None, f"buffer_store_dwordx4 v[24:27], v{V_L16}, {WS}, s{6+i//4} offen offset:{(i%4)*1024} sc1", "pfl") for i in range(8)]
            if t == 6: pend += [(p, x, "KV0") for p, x in kvdma(0, 16384, 32768)]
            if t == 3:
                A.I(f"v_subrev_u32 v3, {flag_base(F_ID) - flag_base(F_KV)}, v3")
                A.I(f"buffer_load_dword v19, v3, {WS}, 0 offen sc1"); vm.issue("pollkv")
            if t == 4:
                A.I(vm.wait("pollkv"))
                poll_check(3, 19, 47)
        w = lg.wait(f"R{n}")
        if w: A.I(w)
        if c_ == 0 and t in (2, 4, 6): ST.stamp()
        if c_ == 6 and t < 7:
            tags = [f"W{t+1}"] + (["st"] if t == 1 else [])
            A.I(vm.wait(tags))
            A.I("s_barrier")
            if t == 1:
                assert vm.need("pollid") is None
                poll_check(3, 19, 47, vmask=31)
                A.I(f"v_cmp_ne_u32 vcc, s{S_ID}, v19")
                A.I(f"s_cbranch_vccz {L('samexcd')}")
                A.I("buffer_wbl2 sc1")
                A.I("s_waitcnt vmcnt(0)")
                A.label(L("samexcd"))
                for x in set_flag(F_KV, 31, 19, 47): A.I(x)
                vm.issue("fl")
        nx = n+5
        rds = breads(nx) if nx < 88 else []
        if nx < 88:
            for x in bump(nx): A.I(x)
        i = 0
        for qb in range(4):
            for kk in range(2):
                if cb < 8: d = v(accQ(cb, qb), 4); c0 = "0"
                else: d = v(accF(cb-8, qb), 4); c0 = v(20+(cb-8)*4, 4)
                A.I(mf(d, v(WR + (n % 6)*8 + kk*4, 4), a((qb*16+2*t+kk)*4, 4), c0 if (t == 0 and kk == 0) else d))
                if i % 2 == 0:
                    if pend and pend[0][0] and i in (0, 4):
                        for y in pend[0][0]: A.I(y)
                        pend[0] = (None,) + pend[0][1:]
                        if not rds: A.I("s_nop 0")
                    if rds: A.I(rds[i//2]); lg.issue(f"R{nx}")
                elif pend and i in (1, 5) and not pend[0][0]:
                    p, x, tag = pend.pop(0)
                    A.I(x); vm.issue(tag)
                tn = {1: 0, 2: 1, 4: 2, 5: 3}.get(n)
                if tn is not None:
                    if i % 2 == 0: A.I(tail[tn][0][i//2])
                    if i == 7:
                        for x in tail[tn][1]: A.I(x)
                        vm.issue("st")
                if n >= 68:
                    if sq: A.I(sq.pop(0))
                    take(1 if (i % 2 == 0 and rds) else 2)
                i += 1
    assert not pend
    assert not sq
    qrest = vq + qfin[3]
    k2.WTOUCH[:] = ["s_lshl_b32 s7, s2, 2", f"s_add_u32 s7, s7, s{S_WAVE}", "v_and_b32 v16, 31, v1", "v_lshlrev_b32 v16, 7, v16", "v_min_u32 v17, 0x500, v16",
              "s_lshl_b32 s33, s7, 12", "v_add_u32 v16, s33, v16", "s_mul_i32 s7, s7, 1408", "v_add_u32 v17, s7, v17", f"v_min_u32 v17, {1376*1024-4}, v17",
              "global_load_dword v18, v16, s[70:71]", "global_load_dword v18, v17, s[66:67]"]
    if not wotouch: k2.WTOUCH[:] = []
    ST.stamp()
    SP, SRT, SCT, SQH, SKH, SBB, SBS, SNV, SWB, SM0 = 64, 65, 66, 67, 68, 69, 70, 71, 4, 5
    T0, T1, T2 = 6, 7, 35
    SEARLY = 46
    WW, SX, SO, SB2 = 20, 24, 28, 12
    vm4 = Cnt("vmcnt", 63)
    def slot4(u):
        return [2, 0, 1, 3][(u-1) % 4]*16384
    def w4dma(u):
        r = []
        for i in range(8):
            pre = None
            if i % 4 == 0:
                m0 = f"s_add_u32 m0, s{SM0}, {slot4(u) + (i//4)*4096}" if u > 0 else f"s_add_u32 m0, s{T1}, {(i//4)*4096}"
                pre = [f"s_add_u32 s{T0}, s{SWB}, {u*65536 + (i//4)*16384}", m0]
            r.append((pre, f"buffer_load_dwordx4 v{4+i%4}, s[{WW}:{WW+3}], s{T0} offen offset:{(i%4)*1024} lds"))
        return r
    def issue4(lst, tag):
        for pre, x in lst:
            if pre:
                for y in pre: A.I(y)
                if "lds" in x: A.I("s_nop 0")
            A.I(x); vm4.issue(tag)
    Bf = lambda u, qb, kk: 128 + (u % 4)*32 + (qb*2+kk)*4
    def bload(u):
        r = []
        for qb in range(4):
            for kk in range(2):
                ks = 2*u+kk
                pre = []
                if qb == 0 and kk == 0: pre.append(f"s_add_u32 s{T1}, s{SBB}, {(ks>>2)*4096}")
                elif kk == 0: pre.append(f"s_add_u32 s{T1}, s{T1}, s{SBS}")
                so = T1
                if ks >= 18:
                    pre += [f"s_cmp_gt_u32 s{SNV}, {ks}", f"s_cselect_b32 s{T2}, s{T1}, {OOB}"]
                    so = T2
                r.append((pre or None, f"buffer_load_dwordx4 {a(Bf(u,qb,kk),4)}, v{V_L16}, {WS}, s{so} offen offset:{(ks&3)*1024}{csc}"))
        return r
    def oproj_setup(stage):
        if stage == 0:
            Z = Asm()
            Z.I(f"s_load_dwordx2 s[8:9], s[0:1], {KA['wo']}")
            Z.I(f"s_load_dwordx4 s[12:15], s[0:1], {KA['w2']}")
            Z.I(f"s_load_dwordx2 s[24:25], s[0:1], {KA['x']}")
            Z.I(f"s_load_dwordx2 s[28:29], s[0:1], {KA['out']}")
            Z.I(f"s_and_b32 s{SP}, s2, 3")
            Z.I(f"s_lshr_b32 s{T0}, s2, 3")
            Z.I(f"s_and_b32 s{SCT}, s{T0}, 3")
            Z.I(f"s_lshr_b32 s{SRT}, s{T0}, 2")
            Z.I(f"s_and_b32 s{T1}, s2, 4")
            Z.I(f"s_lshl_b32 s{T1}, s{T1}, 1")
            Z.I(f"s_add_u32 s{SRT}, s{SRT}, s{T1}")
            Z.I(f"s_and_b32 s{SQH}, s{S_WAVE}, 1")
            Z.I(f"s_lshr_b32 s{SKH}, s{S_WAVE}, 1")
            Z.I(f"s_lshl_b32 s{T0}, s{SP}, 1")
            Z.I(f"s_add_u32 s{T0}, s{T0}, s{SKH}")
            Z.I(f"s_cmp_eq_u32 s{T0}, 5")
            Z.I(f"s_cselect_b32 s{SNV}, 18, 22")
            Z.I(f"s_sub_u32 s{T1}, 22, s{SKH}")
            Z.I(f"s_cmp_eq_u32 s{SP}, 3")
            Z.I(f"s_cselect_b32 s{SNV}, s{T1}, s{SNV}")
            Z.I(f"s_cselect_b32 s{T0}, s{SKH}, s{T0}")
            Z.I(f"s_mov_b32 s{T2}, 131072")
            Z.I(f"s_cselect_b32 s{SBS}, 49152, s{T2}")
            Z.I(f"s_mov_b32 s{T2}, {WS_CTX}")
            Z.I(f"s_cselect_b32 s{SBB}, {WS_H}, s{T2}")
            Z.I(f"s_mul_i32 s{T0}, s{T0}, 22")
            Z.I(f"s_lshl_b32 s{T1}, s{SRT}, 3")
            Z.I(f"s_lshl_b32 s{T2}, s{SQH}, 2")
            Z.I(f"s_add_u32 s{T1}, s{T1}, s{T2}")
            Z.I(f"s_mul_i32 s{T1}, s{T1}, s{SBS}")
            Z.I(f"s_add_u32 s{SBB}, s{SBB}, s{T1}")
            Z.I(f"s_lshl_b32 s{T1}, s{T0}, 10")
            Z.I(f"s_add_u32 s{SBB}, s{SBB}, s{T1}")
            Z.I(f"s_add_u32 s{T0}, s{T0}, s{SQH}")
            Z.I(f"s_lshl_b32 s{SWB}, s{T0}, 15")
            Z.I(f"s_lshl_b32 s{T1}, s{SCT}, 8")
            Z.I(f"s_add_u32 s{SWB}, s{SWB}, s{T1}")
            Z.I(f"s_lshl_b32 s{SM0}, s{SKH}, 16")
            Z.I(f"s_lshl_b32 s{T1}, s{SQH}, 13")
            Z.I(f"s_add_u32 s{SM0}, s{SM0}, s{T1}")
            Z.I("v_and_b32 v16, 15, v1")
            Z.I("v_lshrrev_b32 v17, 4, v1")
            Z.I("v_lshrrev_b32 v18, 1, v16")
            Z.I("v_xor_b32 v18, v18, v17")
            Z.I("v_and_b32 v19, 1, v16")
            Z.I("v_lshlrev_b32 v19, 4, v19")
            Z.I("v_lshl_add_u32 v19, v17, 10, v19")
            Z.I("v_lshl_add_u32 v4, v18, 5, v19")
            Z.I("v_xor_b32 v18, 4, v18")
            Z.I("v_lshl_add_u32 v5, v18, 5, v19")
            Z.I(f"v_add_u32 v6, {2*3072}, v4")
            Z.I(f"v_add_u32 v7, {3*3072}, v5")
            Z.I(f"v_add_u32 v5, {3072}, v5")
            Z.I("s_waitcnt lgkmcnt(0)")
            Z.I(f"s_cmp_eq_u32 s{SP}, 3")
            Z.I(f"s_cselect_b32 s{WW}, s12, s8")
            Z.I(f"s_cselect_b32 s{WW+1}, s13, s9")
            Z.I(f"s_mov_b32 s{T1}, {4*MB}")
            Z.I(f"s_cselect_b32 s{WW+2}, {1376*1024}, s{T1}")
            Z.I(f"s_mov_b32 s{WW+3}, 0x20000")
            Z.I(f"s_mov_b32 s12, s14"); Z.I(f"s_mov_b32 s13, s15"); Z.I(f"s_mov_b32 s14, 1024"); Z.I(f"s_mov_b32 s15, 0x20000")
            Z.I(f"s_mov_b32 s26, {2*MB}"); Z.I("s_mov_b32 s27, 0x20000"); Z.I(f"s_mov_b32 s30, {2*MB}"); Z.I("s_mov_b32 s31, 0x20000")
            Z.I(f"s_lshl_b32 s{T1}, s{SKH}, 14")
            Z.I(f"s_lshl_b32 s{T2}, s{SQH}, 13")
            Z.I(f"s_add_u32 s{T1}, s{T1}, s{T2}")
            Z.I(f"s_add_u32 s{T1}, s{T1}, 131072")
            for pre, x in w4dma(0):
                for y in (pre or []): Z.I(y)
                if pre: Z.I("s_nop 0")
                Z.I(x)
            Z.I("v_bfe_u32 v16, v1, 2, 2")
            Z.I("v_lshl_add_u32 v18, v17, 2, v16")
            Z.I("v_lshlrev_b32 v18, 8, v18")
            Z.I("v_and_b32 v19, 3, v1")
            Z.I("v_lshl_add_u32 v18, v19, 3, v18")
            Z.I(f"s_lshl_b32 s{T1}, s{SKH}, 16")
            Z.I(f"v_add_u32 v18, s{T1}, v18")
            Z.I("v_and_b32 v19, 1, v17")
            Z.I("v_lshl_add_u32 v16, v19, 2, v16")
            Z.I(f"s_mul_i32 s{T1}, s{SKH}, {16384-65536}")
            Z.I(f"s_add_u32 s{T1}, s{T1}, 131072")
            for nb in range(8):
                Z.I(f"v_xor_b32 v19, {nb}, v16")
                Z.I(f"v_lshl_add_u32 v{8+nb}, v19, 5, v18")
                Z.I(f"v_add_u32 v{20+nb}, s{T1}, v{8+nb}")
            Z.I(f"s_mul_i32 s{T0}, s{SP}, 11")
            Z.I(f"s_add_u32 s{T1}, s{T0}, 10")
            Z.I(f"s_min_u32 s{T1}, s{T1}, 31")
            Z.I(f"s_cmp_eq_u32 s{SP}, 3")
            Z.I(f"s_cselect_b32 s{T0}, 0, s{T0}")
            Z.I(f"s_cselect_b32 s{T1}, 28, s{T1}")
            Z.I("v_and_b32 v28, 31, v1")
            Z.I(f"v_add_u32 v28, s{T0}, v28")
            Z.I(f"v_cmp_ge_u32 s[{SEARLY}:{SEARLY+1}], s{T1}, v28")
            Z.I(f"v_min_u32 v28, s{T1}, v28")
            Z.I("v_lshrrev_b32 v29, 2, v28")
            Z.I("v_and_b32 v28, 3, v28")
            Z.I("v_lshl_add_u32 v28, v28, 3, v29")
            Z.I("v_lshlrev_b32 v28, 9, v28")
            Z.I(f"s_sub_u32 s{T0}, 15, s{SRT}")
            Z.I(f"s_min_u32 s{T0}, s{T0}, s{SRT}")
            Z.I(f"s_lshl_b32 s{T0}, s{T0}, 14")
            Z.I(f"s_lshl_b32 s{T1}, s{SQH}, 7")
            Z.I(f"s_add_u32 s{T0}, s{T0}, s{T1}")
            Z.I(f"s_cmp_lt_u32 s{SRT}, 8")
            Z.I(f"s_cselect_b32 s{T1}, 256, 0")
            Z.I(f"s_add_u32 s{T0}, s{T0}, s{T1}")
            Z.I(f"s_cmp_lt_u32 s{SRT}, 8")
            Z.I(f"s_mov_b32 s{T1}, {flag_base(F_A)}")
            Z.I(f"s_cselect_b32 s{T1}, {flag_base(F_B)}, s{T1}")
            Z.I(f"s_mul_i32 s{T2}, s{SQH}, -256")
            Z.I(f"s_addk_i32 s{T2}, 384")
            Z.I(f"s_cmp_lt_u32 s{SRT}, 8")
            Z.I(f"s_cselect_b32 s{T2}, 0, s{T2}")
            Z.I(f"s_cmp_eq_u32 s{SP}, 3")
            Z.I(f"s_cselect_b32 s{T1}, {flag_base(F_H)}, s{T1}")
            Z.I(f"s_cselect_b32 s{T2}, 0, s{T2}")
            Z.I(f"s_add_u32 s{T0}, s{T0}, s{T1}")
            Z.I(f"v_add_u32 v28, s{T0}, v28")
            Z.I("v_lshrrev_b32 v29, 5, v1")
            Z.I(f"v_mul_u32_u24 v29, s{T2}, v29")
            Z.I("v_add_u32 v28, v28, v29")
            if apollA:
                Z.I(f"v_mov_b32 v29, s{S_NONCE}")
                Z.I(f"s_mov_b64 exec, s[{SEARLY}:{SEARLY+1}]")
                for x in pload(29, 28, True): Z.I(x)
                Z.I("s_mov_b64 exec, -1")
            else: Z.I(f"buffer_load_dword v29, v28, {WS}, 0 offen sc1")
            return [x.text for x in Z.check(fix=True, seq=Z.items)]
    def oproj():
        lg4 = Cnt("lgkmcnt", 15)
        WF4 = 192
        wf = lambda mb, kk: WF4 + (mb*2+kk)*4
        def reads(u, mb):
            r = []
            for kk in range(2):
                off = (slot4(u) if u > 0 else 0) + kk*8192
                areg = (8 if u > 0 else 20) + mb
                r += [tr(wf(mb,kk), areg, off), tr(wf(mb,kk)+2, areg, off+4096)]
            return r
        acc = lambda mb, qb: 64 + (mb*4+qb)*4
        for mb in range(7):
            for x in reads(0, mb): A.I(x); lg4.issue(f"R0_{mb}")
        def emit(lst):
            for pre, x in lst:
                for y in (pre or []): A.I(y)
                if pre and "lds" in x: A.I("s_nop 0")
                A.I(x)
        A.I(f"v_cmp_ne_u32 vcc, s{S_NONCE}, v29")
        A.I(f"s_cbranch_vccnz {L('late')}")
        emit(bload(0) + w4dma(1))
        A.I("s_waitcnt vmcnt(16)")
        for x in set_flag(F_A, 30, 31, 34): A.I(x)
        emit(bload(1) + w4dma(2) + bload(2) + w4dma(3))
        A.I(f"s_branch {L('haveB')}")
        A.label(L("late"))
        emit(w4dma(1))
        A.I("s_waitcnt vmcnt(8)")
        for x in set_flag(F_A, 30, 31, 34): A.I(x)
        if apollA: A.I(f"s_mov_b64 exec, s[{SEARLY}:{SEARLY+1}]")
        for x in pload(29, 28, apollA): A.I(x)
        A.I("s_mov_b64 exec, -1")
        emit(w4dma(2) + w4dma(3))
        A.I("s_waitcnt vmcnt(16)")
        if apollA: A.I(f"s_mov_b64 exec, s[{SEARLY}:{SEARLY+1}]")
        poll_check(28, 29, T0, atomic=apollA)
        A.I("s_mov_b64 exec, -1")
        emit(bload(0) + bload(1) + bload(2))
        A.I("s_waitcnt vmcnt(16)")
        A.label(L("haveB"))
        vE = Cnt("vmcnt", 63); vL = Cnt("vmcnt", 63)
        for tg in ["B0"]*8 + ["W1"]*8 + ["fl"] + ["B1"]*8 + ["W2"]*8 + ["B2"]*8 + ["W3"]*8: vE.issue(tg)
        for tg in ["B1"]*8 + ["B2"]*8: vL.issue(tg)
        class Both:
            def issue(self, t): vE.issue(t); vL.issue(t)
            def wait(self, t):
                a_, b_ = vE.need(t), vL.need(t)
                n_ = [x for x in (a_, b_) if x is not None]
                return f"s_waitcnt vmcnt({min(n_)})" if n_ else None
        vm4 = Both()
        NU = 11
        for u in range(NU):
            w = vm4.wait(f"B{u}")
            if w: A.I(w)
            w = lg4.wait(f"R{u}_0")
            if w: A.I(w)
            if u == 0: ST.stamp()
            ops = []
            if u+3 < NU: ops += [(p, x, f"B{u+3}") for p, x in bload(u+3)]
            if u >= 1 and u+3 < NU: ops = [(p, x, f"W{u+3}") for p, x in w4dma(u+3)] + ops
            odd = [g for g in range(9, 64) if g % 2 == 1]
            vpos = {odd[(i*len(odd))//len(ops)]: op for i, op in enumerate(ops)} if ops else {}
            g = 0
            for mb in range(8):
                for qb in range(4):
                    for kk in range(2):
                        q = g % 8
                        c = v(acc(mb,qb),4)
                        A.I(mf(c, v(wf(mb,kk),4), a(Bf(u,qb,kk),4), "0" if (u == 0 and kk == 0) else c))
                        if g == 7 and u+1 < NU:
                            w = vm4.wait(f"W{u+1}")
                            if w: A.I(w)
                            A.I("s_barrier")
                        if g+1 in vpos and vpos[g+1][0]:
                            for x in vpos[g+1][0]: A.I(x)
                        if q == 7 and mb < 7:
                            w = lg4.wait(f"R{u}_{mb+1}")
                            if w: A.I(w)
                        if q % 2 == 0:
                            rd = None
                            if mb == 0: rd = (reads(u, 7)[q//2], f"R{u}_7")
                            elif u+1 < NU: rd = (reads(u+1, mb-1)[q//2], f"R{u+1}_{mb-1}")
                            if rd: A.I(rd[0]); lg4.issue(rd[1])
                        if g in vpos:
                            A.I(vpos[g][1]); vm4.issue(vpos[g][2])
                        g += 1
        ST.stamp()
        A.I(f"s_lshl_b32 s{T0}, s{SRT}, 7")
        A.I(f"s_lshl_b32 s{T1}, s{SQH}, 6")
        A.I(f"s_add_u32 s{T0}, s{T0}, s{T1}")
        A.I(f"s_lshl_b32 s{T1}, s{SKH}, 5")
        A.I(f"s_add_u32 s{T0}, s{T0}, s{T1}")
        A.I(f"s_lshl_b32 s{T0}, s{T0}, 10")
        A.I(f"s_lshl_b32 s{T1}, s{SCT}, 8")
        A.I(f"s_lshl_b32 s{T2}, s{SP}, 6")
        A.I(f"s_add_u32 s{T1}, s{T1}, s{T2}")
        A.I(f"s_add_u32 s54, s{T0}, s{T1}")
        A.I("v_and_b32 v16, 15, v1")
        A.I("v_lshrrev_b32 v17, 4, v1")
        A.I("v_lshlrev_b32 v18, 3, v17")
        A.I("v_lshl_add_u32 v19, v16, 10, v18")
        A.I("v_add_u32 v20, 16384, v19")
        for i in range(2):
            for j in range(2):
                A.I(f"buffer_load_dwordx2 v[{24+(i*2+j)*2}:{25+(i*2+j)*2}], v{19+i}, s[{SX}:{SX+3}], s54 offen offset:{j*32}")
        for j in range(2):
            A.I(f"buffer_load_dwordx2 v[{32+j*2}:{33+j*2}], v18, s[{SB2}:{SB2+3}], s{T1} offen offset:{j*32}")
        A.I("s_barrier")
        A.I(f"s_lshl_b32 s{T0}, s{S_WAVE}, 14")
        A.I(f"s_xor_b32 s{T1}, s{S_WAVE}, 2")
        A.I(f"s_lshl_b32 s{T1}, s{T1}, 14")
        A.I(f"v_add_u32 v21, s{T0}, v{V_L16}")
        A.I(f"v_add_u32 v22, s{T1}, v{V_L16}")
        A.I(f"s_and_b32 s55, s2, 0xfc")
        A.I(f"s_lshl_b32 s55, s55, 15")
        A.I(f"s_lshr_b32 s{T0}, s{T0}, 1")
        A.I(f"s_add_u32 s55, s55, s{T0}")
        A.I(f"s_add_u32 s55, s55, {WS_PART}")
        A.I(f"s_lshl_b32 s{T0}, s{SP}, 15")
        A.I(f"s_add_u32 s56, s55, s{T0}")
        A.I(f"s_and_b32 s{T0}, s2, 0xfc")
        A.I(f"s_lshl_b32 s{T0}, s{T0}, {9 if fstride == 7 else 7}")
        A.I(f"s_lshl_b32 s{T1}, s{S_WAVE}, {fstride}")
        A.I(f"s_add_u32 s{T0}, s{T0}, s{T1}")
        A.I(f"s_add_u32 s{T0}, s{T0}, {flag_base(F_H)}")
        A.I("v_and_b32 v23, 3, v1")
        A.I(f"v_lshlrev_b32 v23, {9 if fstride == 7 else 7}, v23")
        A.I(f"v_add_u32 v23, s{T0}, v23")
        A.I(f"buffer_load_dword v38, v23, {WS}, 0 offen sc1")
        A.I(f"s_cmp_eq_u32 s{SKH}, 1")
        A.I(f"s_cbranch_scc1 {L('kh1')}")
        def red(keep):
            send = [q for q in range(4) if q not in keep]
            for mb in range(8):
                for i, qb in enumerate(send):
                    A.I(f"ds_write_b128 v21, {v(acc(mb,qb),4)} offset:{(mb*2+i)*1024}")
            A.I("s_waitcnt lgkmcnt(0)")
            A.I("s_barrier")
            for b in range(16):
                A.I(f"ds_read_b128 {v(WF4+4*b,4)}, v22 offset:{b*1024}")
            for b in range(16):
                mb, i = b//2, b % 2
                r = acc(mb, keep[i])
                A.I(f"s_waitcnt lgkmcnt({15-b})")
                for k in range(4): A.I(f"v_add_f32 v{r+k}, v{r+k}, v{WF4+4*b+k}")
                if b % 4 == 3:
                    pq = b//4
                    u = f"own{keep[0]}_{pq}"
                    regs = [acc((4*pq+x)//2, keep[x % 2]) for x in range(4)]
                    A.I(f"s_cmp_eq_u32 s{SP}, {pq}")
                    A.I(f"s_cbranch_scc1 {L(u)}")
                    for x in range(4):
                        A.I(f"v_cvt_pk_bf16_f32 v{40+2*x}, v{regs[x]}, v{regs[x]+1}")
                        A.I(f"v_cvt_pk_bf16_f32 v{41+2*x}, v{regs[x]+2}, v{regs[x]+3}")
                    A.I(f"s_add_u32 s{T0}, s56, {pq*2048}")
                    A.I(f"buffer_store_dwordx4 v[40:43], v{V_L16}, {WS}, s{T0} offen sc1")
                    A.I(f"buffer_store_dwordx4 v[44:47], v{V_L16}, {WS}, s{T0} offen offset:1024 sc1")
                    A.I(f"s_branch {L(u+'e')}")
                    A.label(L(u))
                    for x in range(4):
                        for k in range(4): A.I(f"v_mov_b32 v{48+4*x+k}, v{regs[x]+k}")
                    A.label(L(u+"e"))
        red([0, 1])
        A.I(f"s_branch {L('pub')}")
        A.label(L("w_kh1")); A.I(f"s_setpc_b64 s[{S_RET}:{S_RET+1}]")
        A.label(L("kh1"))
        red([2, 3])
        A.label(L("pub"))
        ST.stamp()
        A.I("s_waitcnt vmcnt(6)")
        poll_check(23, 38, T0)
        A.I(f"s_lshl_b32 s{T0}, s{SP}, 11")
        A.I(f"s_add_u32 s55, s55, s{T0}")
        for src in range(4):
            A.I(f"s_add_u32 s{40+src}, s55, {src*32768}")
            A.I(f"s_cmp_eq_u32 s{SP}, {src}")
            A.I(f"s_cselect_b32 s{40+src}, {OOB}, s{40+src}")
        def dload():
            for src in range(4):
                for hb in range(2):
                    A.I(f"buffer_load_dwordx4 {v(160+(src*2+hb)*4,4)}, v{V_L16}, {WS}, s{40+src} offen offset:{hb*1024} sc1")
        dload()
        for n in range(4):
            for k in range(2):
                A.I(f"v_lshlrev_b32 v{128+n*4+2*k}, 16, v{24+n*2+k}")
                A.I(f"v_and_b32 v{128+n*4+2*k+1}, 0xffff0000, v{24+n*2+k}")
        for j in range(2):
            for k in range(2):
                A.I(f"v_lshlrev_b32 v{144+j*4+2*k}, 16, v{32+j*2+k}")
                A.I(f"v_and_b32 v{144+j*4+2*k+1}, 0xffff0000, v{32+j*2+k}")
        A.I(f"s_mov_b32 s{T2}, {NLOG2E}")
        A.I(f"s_cmp_eq_u32 s{SP}, 3")
        A.I(f"s_cselect_b32 s{T0}, 0, 1.0")
        A.I(f"s_cselect_b32 s{T1}, 1.0, 0")
        for x in range(16):
            A.I(f"v_mul_f32 v{64+x}, s{T0}, v{48+x}")
            A.I(f"v_mul_f32 v{112+x}, s{T1}, v{48+x}")
        A.I(f"s_mov_b32 s{T0}, 0")
        A.label(L("dpoll"))
        A.I("s_waitcnt vmcnt(0)")
        A.I("v_max3_u32 v36, v160, v161, v162")
        A.I("v_max3_u32 v37, v163, v164, v165")
        for x in range(166, 190, 4):
            A.I(f"v_max3_u32 v36, v36, v{x}, v{x+1}")
            A.I(f"v_max3_u32 v37, v37, v{x+2}, v{x+3}")
        A.I("v_max3_u32 v36, v36, v190, v191")
        A.I("v_max_u32 v36, v36, v37")
        A.I("v_cmp_eq_u32 vcc, -1, v36")
        A.I(f"s_cbranch_vccz {L('dok')}")
        A.I(f"s_add_u32 s{T0}, s{T0}, 1")
        A.I(f"s_cmp_gt_u32 s{T0}, 0x40000")
        A.I(f"s_cbranch_scc1 {L('dok')}")
        if slp: A.I(f"s_sleep {slp}")
        dload()
        A.I(f"s_branch {L('dpoll')}")
        A.label(L("dok"))
        ST.stamp()
        for src in range(4):
            dst = 64 if src < 3 else 112
            for x in range(8):
                A.I(f"v_lshlrev_b32 v{80+2*x}, 16, v{160+src*8+x}")
                A.I(f"v_and_b32 v{81+2*x}, 0xffff0000, v{160+src*8+x}")
            for x in range(16): A.I(f"v_add_f32 v{dst+x}, v{dst+x}, v{80+x}")
        for b in range(4):
            j, i = b//2, b % 2
            n = i*2+j
            S0, S1, S2, Y = 64+b*4, 80+b*4, 96+b*4, 112+b*4
            for k in range(4): A.I(f"v_add_f32 v{Y+k}, v{Y+k}, v{144+j*4+k}")
            for k in range(4): A.I(f"v_mul_f32 v{152+k}, s{T2}, v{Y+k}")
            for k in range(4): A.I(f"v_exp_f32 v{152+k}, v{152+k}")
            for k in range(4): A.I(f"v_add_f32 v{152+k}, 1.0, v{152+k}")
            for k in range(4): A.I(f"v_rcp_f32 v{152+k}, v{152+k}")
            A.I("s_nop 0")
            for k in range(4): A.I(f"v_mul_f32 v{Y+k}, v{Y+k}, v{152+k}")
            for k in range(4): A.I(f"v_fma_f32 v{S0+k}, v{S0+k}, v{Y+k}, v{128+n*4+k}")
            A.I(f"v_cvt_pk_bf16_f32 v{S0}, v{S0}, v{S0+1}")
            A.I(f"v_cvt_pk_bf16_f32 v{S0+1}, v{S0+2}, v{S0+3}")
            A.I(f"buffer_store_dwordx2 {v(S0,2)}, v{19+i}, s[{SO}:{SO+3}], s54 offen offset:{j*32}")
        ST.flush(SRD_WS, S_WAVE)
    def saferestart():
        A.label(L("saferestart"))
        R = Asm()
        R.I(f"s_mov_b32 s{S_SAFE}, 0")
        R.I("s_waitcnt vmcnt(0) lgkmcnt(0)")
        R.I("s_barrier")
        for x in q_setup_s: R.I(x)
        R.I(f"s_lshl_b32 s44, s{S_WAVE}, 17")
        R.I(f"s_lshl_b32 s47, s{S_H}, 8")
        R.I("s_add_u32 s44, s44, s47")
        R.I(f"s_mov_b32 s{S_ID}, 0")
        R.I(f"s_mov_b32 s46, {OOB}")
        for x in q_setup_v: R.I(x)
        R.I("s_waitcnt lgkmcnt(0)")
        for x in srd_list(SRD_WQ, 4, 4*MB) + srd_list(SRD_W1, 8, 512*2752) + srd_list(SRD_B1, 10, 2752): R.I(x)
        for fb in range(3):
            R.I(f"buffer_load_dwordx2 v[{26+2*fb}:{27+2*fb}], v19, s[{SRD_B1}:{SRD_B1+3}], s{53 if fb < 2 else 54} offen offset:{fb*32}")
        R.I("v_and_b32 v248, 15, v1")
        R.I("v_lshrrev_b32 v249, 4, v1")
        R.I("v_lshrrev_b32 v250, 1, v248")
        R.I("v_xor_b32 v250, v250, v249")
        R.I("v_and_b32 v251, 1, v248")
        R.I("v_lshlrev_b32 v251, 4, v251")
        R.I("v_lshl_add_u32 v251, v249, 13, v251")
        R.I("v_lshl_add_u32 v4, v250, 5, v251")
        R.I(f"v_add_u32 v5, {32768-1024}, v4")
        R.I("v_xor_b32 v250, 4, v250")
        R.I("v_lshl_add_u32 v6, v250, 5, v251")
        R.I(f"v_add_u32 v6, {2*(32768-1024)}, v6")
        R.I(f"v_add_u32 v7, {32768-1024}, v6")
        R.I("v_bfe_u32 v248, v1, 2, 2")
        R.I("v_lshlrev_b32 v250, 3, v249")
        R.I("v_add_u32 v250, v250, v248")
        R.I("v_lshlrev_b32 v250, 8, v250")
        R.I("v_and_b32 v251, 3, v1")
        R.I("v_lshl_add_u32 v250, v251, 3, v250")
        R.I(f"v_add_u32 v250, {QBASE}, v250")
        R.I("v_and_b32 v251, 1, v249")
        R.I("v_lshl_add_u32 v248, v251, 2, v248")
        for nb in range(8):
            R.I(f"v_xor_b32 v251, {nb}, v248")
            R.I(f"v_lshl_add_u32 v{8+nb}, v251, 5, v250")
        for pre, x in qwdma(0) + qwdma(1) + xload(0) + xload(1) + xload(2):
            for y in (pre or []): R.I(y)
            if pre: R.I("s_nop 0")
            R.I(x)
        R.I("s_waitcnt vmcnt(0)")
        for fb in range(3):
            for k in range(2):
                R.I(f"v_lshlrev_b32 v{32+fb*4+2*k}, 16, v{26+2*fb+k}")
                R.I(f"v_and_b32 v{33+fb*4+2*k}, 0xffff0000, v{26+2*fb+k}")
        for i in range(12): R.I(f"v_mov_b32 v{20+i}, v{32+i}")
        R.I("s_barrier")
        for n in range(5):
            for x in breads(n): R.I(x)
        R.I("s_waitcnt lgkmcnt(0)")
        R.I(f"s_branch {L('qgemm')}")
        A.items += R.check(fix=True, seq=R.items)
    k2.attention(A, L, ST, vm, lg, set_flag, F_H, F_B, F_A, qrest, gel, oproj_setup, oproj, saferestart)
    return A
```

```python
from common import *
import math, struct
def f2u(x): return struct.unpack("<I", struct.pack("<f", x))[0]

QSCALE = f2u(math.log2(math.e) / math.sqrt(128.0))
G1 = f2u(-2.0 * math.log2(math.e) * math.sqrt(2.0 / math.pi))
G2 = f2u(-2.0 * math.log2(math.e) * math.sqrt(2.0 / math.pi) * 0.044715)
LTHR = f2u(2.0 ** 62)
OOB = 0x40000000

V_LANE, V_L16, V_K, V_V = 1, 2, 3, 19
accQ = lambda db, qb: 32 + (db*4+qb)*4
accF = lambda fb, qb: 160 + (fb*4+qb)*4
Qf = lambda qb, s_: accQ(2*s_, qb)
def Sreg(buf, kbl, qb):
    i = buf*8 + kbl*4 + qb
    return accQ(2*(i//4)+1, i % 4)
Preg = lambda buf, qb: 208 + buf*16 + qb*4
NEGM = lambda qb: 240 + qb*4
TMP = 160
Oreg = lambda db, qb: (db*4+qb)*4
VA, KA_, VB, KB = 128, 144, 160, 176
Lreg = lambda qb: 192 + qb*4
ONES = 208
S_WAVE, S_H, S_T, S_I = 36, 37, 38, 39
S_KVB = 40
S_W4K = 41
S_K0, S_V0, S_K1, S_V1 = 42, 43, 44, 45
S_AK, S_AV = 46, 47
S_STRM = 48
S_T2 = 49
S_TMP, S_TMP2 = 50, 51
S_RET = 52
S_CNT = 54
S_FAIL = 55
S_Q0 = 56
S_QA = 57
S_MASK = 8
S_MK, S_MV = 58, 59
S_SAFE = 60
SRD_WS, SRD_WQ, SRD_W1, SRD_B1 = 16, 20, 24, 28
WRING = 61440; WSLOT = 25600

def dma4(soff, m0expr):
    return [f"buffer_load_dwordx4 v{V_L16}, s[{SRD_WS}:{SRD_WS+3}], s{soff} offen offset:{j*1024} sc1 lds" for j in range(4)]

S_E, S_C, S_DG = 4, 5, 6
def tile_calc(dst, nadd, strm, voff):
    r = [f"s_add_u32 s{S_TMP}, s{S_I}, {nadd}",
         f"s_lshl_b32 s{S_TMP2}, s{S_TMP}, 1",
         f"s_sub_u32 s{S_TMP2}, s{S_TMP2}, s{S_C}",
         f"s_cmp_eq_u32 s{S_TMP}, s{S_E}",
         f"s_cselect_b32 s{S_TMP2}, s{S_DG}, s{S_TMP2}"]
    if strm: r += [f"s_add_u32 s{S_TMP2}, s{S_TMP2}, 1"]
    r += [f"s_cmp_lt_u32 s{S_TMP}, s{S_E}",
          f"s_cselect_b32 s{S_TMP2}, s{S_TMP}, s{S_TMP2}" if strm == 0 else f"s_cselect_b32 s{S_TMP2}, 0x8000, s{S_TMP2}",
          f"s_cmp_gt_u32 s{S_TMP}, 16",
          f"s_cselect_b32 s{S_TMP2}, 0x8000, s{S_TMP2}",
          f"s_lshl_b32 s{S_TMP2}, s{S_TMP2}, 15",
          f"s_add_u32 s{dst}, s{S_TMP2}, s{S_KVB}"]
    if voff: r += [f"s_add_u32 s{dst}, s{dst}, {voff}"]
    return r

def lds_calc():
    return [f"s_and_b32 s{S_TMP}, s{S_I}, 1",
            f"s_lshl_b32 s{S_TMP}, s{S_TMP}, 14",
            f"s_add_u32 s{S_TMP2}, s{S_I}, 2",
            f"s_sub_u32 s{S_TMP2}, s{S_TMP2}, s{S_T2}",
            f"s_cmp_ge_i32 s{S_TMP2}, 2",
            f"s_cselect_b32 s{S_AK}, s{S_STRM}, 0",
            f"s_add_u32 s{S_AK}, s{S_AK}, s{S_TMP}",
            f"s_cmp_ge_i32 s{S_TMP2}, 3",
            f"s_cselect_b32 s{S_AV}, s{S_STRM}, 0",
            f"s_xor_b32 s{S_TMP2}, s{S_TMP}, 0x4000",
            f"s_add_u32 s{S_AV}, s{S_AV}, s{S_TMP2}",
            f"s_add_u32 s{S_AV}, s{S_AV}, 0x8000",
            f"s_add_u32 s{S_MK}, s{S_TMP2}, s{S_W4K}",
            f"s_add_u32 s{S_MV}, s{S_TMP}, s{S_W4K}",
            f"s_add_u32 s{S_MV}, s{S_MV}, 0x8000"]

def rdfrag(dst, areg, f): return f"ds_read_b128 {a(dst,4)}, v{areg} offset:{f*1024}"

PROF = [0]
CPF = [1]
WOFB = [0]
WTOUCH = []
def body(A, qk, pv, first, adma, lg, mid=None, last=None, vmn=0, xst=None, vfill=None, wo=False):
    if PROF[0]:
        A.I(f"s_add_u32 m0, s{S_I}, 40")
        A.I("s_nop 0")
        A.I("v_writelane_b32 v0, s76, m0")
        A.I("s_memtime s[76:77]" if PROF[0] == 2 else "s_memrealtime s[76:77]")
    for per in range(2):
        spine = [None]*68; gaps = [[] for _ in range(68)]
        pre = [[] for _ in range(68)]
        eb = 1 - per
        etype = pv if per == 0 else qk
        if pv:
            qbs = [2, 3] if (pv == "diag" and per == 1) else [0, 1, 2, 3]
            cz = first and per == 0
            for qb in qbs:
                d = a(Lreg(qb), 4)
                spine[qb] = mf(d, a(ONES, 4), v(Preg(per, qb), 4), "0" if cz else d)
                for db in range(8):
                    d = a(Oreg(db, qb), 4)
                    fr = (VA if db < 4 else VB) + (db % 4)*4
                    pos = (4 if db < 4 else 36) + ((db % 4)*4 + qb)*(1 if qk else 2)
                    spine[pos] = mf(d, a(fr, 4), v(Preg(per, qb), 4), "0" if cz else d)
        if qk:
            for kbl in range(2):
                kb = per*2 + kbl
                for qb in range(4):
                    if qk == "diag" and kb > qb: continue
                    for s_ in range(4):
                        d = v(Sreg(per, kbl, qb), 4)
                        pos = ((20 if kbl == 0 else 52) + qb*4 + s_) if pv else ((4 if kbl == 0 else 36) + (qb*4 + s_)*2)
                        spine[pos] = mf(d, a((KA_ if kbl == 0 else KB) + s_*4, 4), v(Qf(qb, s_), 4), v(NEGM(qb), 4) if s_ == 0 else d)
        if etype:
            ehalf = 1 if per == 0 else 0
            for e in range(32):
                qb, kbl, r = e//8, (e//4) % 2, e % 4
                kb = ehalf*2 + kbl
                reg = Sreg(eb, kbl, qb) + r
                if etype == "diag" and ehalf == 1 and qb < 2: continue
                if etype == "diag" and kb > qb:
                    gaps[2*e].append(f"v_mov_b32 v{reg}, 0")
                else:
                    gaps[2*e].append(f"v_exp_f32 v{reg}, v{reg}")
                    if etype == "diag" and kb == qb:
                        gaps[2*e+1].append(f"v_cndmask_b32 v{reg}, 0, v{reg}, s[{S_MASK+2*r}:{S_MASK+2*r+1}]")
            for c in range(16):
                qb, k = c//4, c % 4
                if etype == "diag" and ehalf == 1 and qb < 2: continue
                src = Sreg(eb, k//2, qb) + (k % 2)*2
                gaps[4*c+3].append(f"v_cvt_pk_bf16_f32 v{Preg(eb,qb)+k}, v{src}, v{src+1}")
        kbpos = [3, 7, 11, 15] if per == 0 else [1, 3, 5, 7]
        rd = {}
        for i in range(4):
            rd[kbpos[i]] = (rdfrag(KB + 4*i, V_K, (per*2+1)*4 + i), "KB")
            rd[23+4*i] = (rdfrag(VA + 4*i, V_V, (1-per)*8 + i), "VA")
            rd[39+4*i] = (rdfrag(KA_ + 4*i, V_K, ((1-per)*2)*4 + i), "KA")
            rd[55+4*i] = (rdfrag(VB + 4*i, V_V, (1-per)*8 + 4 + i), "VB")
        waits = {2: "VA", 18: "KA", 34: "VB", 50: "KB"}
        if pv is None: waits = {2: "KA", 34: "KB"}
        if qk is None: rd = {g: x for g, x in rd.items() if not (x[1] == "KB" or (per == 0 and x[1] == "KA"))}
        if pv is None and per == 0: rd = {g: x for g, x in rd.items() if x[1] not in ("VA", "VB")}
        if last is not None:
            rd = {g: x for g, x in rd.items() if per == 0 and x[1] in ("VA", "VB")}
            waits = {2: "VA", 34: "VB"}
        dm = {}
        salu = []
        if per == 0:
            if adma:
                for i, x in enumerate(dma4(S_K1, None)): dm[5+4*i] = x
                for i, x in enumerate(dma4(S_V1, None)): dm[21+4*i] = x
                pre[4].append(f"s_add_u32 m0, s{S_MK}, 0x10000")
                pre[20].append(f"s_add_u32 m0, s{S_MV}, 0x10000")
            salu = tile_calc(S_K0, 3, 0, 0) + tile_calc(S_V0, 2, 0, 16384)
            spos = [g for g in range(22, 64, 2) if g not in (34, 50)] + [64, 65, 65, 66, 66]
        else:
            for i, x in enumerate(dma4(S_K0, None)): dm[25+4*i] = x
            for i, x in enumerate(dma4(S_V0, None)): dm[41+4*i] = x
            pre[24].append(f"s_mov_b32 m0, s{S_MK}")
            pre[40].append(f"s_mov_b32 m0, s{S_MV}")
            lc = lds_calc()
            for i, x in enumerate(lc): pre[[0,4,6,8,9,9,10,11,12,13,13,14,16,17,17][i]].append(x)
            salu = tile_calc(S_K1, 3, 1, 0) + tile_calc(S_V1, 2, 1, 16384) + [f"s_add_u32 s{S_I}, s{S_I}, 1"]
            spos = [g for g in range(26, 64, 2) if g not in (34, 40, 50)] + [57, 57, 61, 61, 64, 64, 65, 65, 66, 66]
            spos.sort()
        if last is not None:
            dm = {}; salu = []; pre = [[] for _ in range(68)]
        if per == 1 and mid: mid()
        if per == 1 and last is not None: A.I("s_waitcnt vmcnt(0)")
        assert len(salu) <= len(spos), (len(salu), len(spos))
        for i, x in enumerate(salu): pre[spos[i]].append(x)
        for g in range(68):
            if spine[g]: A.I(spine[g])
            for x in pre[g]: A.I(x)
            if g in waits:
                w = lg.wait(waits[g])
                if w: A.I(w)
            if per == 1 and last is not None and spine[g]:
                for _ in range(2):
                    if last: A.I(last.pop(0))
            if per == 1 and g == 19 and last is None:
                if vmn == "auto":
                    tl = [x.text for x in A.items if isinstance(x, Ins) and x.kind in ("dma", "store")]
                    vmn = len(tl) - 1 - max(i for i, x in enumerate(tl) if " lds" in x)
                dbg = PROF[0] == 2 and ((vmn != 0 and first) or mid is not None)
                base = 58 if vmn else 61
                if dbg: A.I("s_memtime s[78:79]")
                A.I(f"s_waitcnt vmcnt({vmn}) lgkmcnt(0)"); lg.drain()
                if dbg:
                    A.I(f"v_writelane_b32 v0, s78, {base}"); A.I("s_memtime s[78:79]"); A.I("s_waitcnt lgkmcnt(0)"); A.I(f"v_writelane_b32 v0, s78, {base+1}")
                A.I("s_barrier")
                if dbg:
                    A.I("s_memtime s[78:79]"); A.I("s_waitcnt lgkmcnt(0)"); A.I(f"v_writelane_b32 v0, s78, {base+2}")
            if per == 1 and g == 21 and last is None:
                A.I(f"v_add_u32 v{V_K}, s{S_AK}, v{V_L16}")
                A.I(f"v_add_u32 v{V_V}, s{S_AV}, v{V_L16}")
            if g in rd:
                A.I(rd[g][0]); lg.issue(rd[g][1])
            if g in dm: A.I(dm[g])
            if WOFB[0] and wo and per == 1 and g in (57, 61):
                A.I("global_load_dword v4, v18, s[70:71]" if g == 57 else "global_load_dword v4, v17, s[66:67]")
            if CPF[0] and per == 0 and g == 37 and qk == "full" and pv == "full" and not first:
                A.I("global_load_dwordx4 v[12:15], v16, s[62:63]")
            if xst and (per, g) in xst:
                for x in xst[(per, g)]: A.I(x)
            for x in gaps[g]: A.I(x)
            if vfill and per == 0 and spine[g]:
                k = 2
                while k and vfill:
                    x = vfill.pop(0); A.I(x)
                    if x.startswith("buffer"): break
                    if not x.startswith("s_"): k -= 1
        if vfill and per == 0:
            while vfill: A.I(vfill.pop(0))
    if last is not None:
        for x in last: A.I(x)

def entry_lg():
    lg = Cnt("lgkmcnt", 15)
    for t in ["VA"]*4 + ["KA"]*4 + ["VB"]*4: lg.issue(t)
    return lg

def attention(A, L, ST, vm, lg, set_flag, F_H, F_B, F_A, qrest, gel, oproj_setup, oproj, saferestart):
    WSS = f"s[{SRD_WS}:{SRD_WS+3}]"
    PROF[0] = int(ST.on)
    A.I("s_waitcnt vmcnt(0)"); vm.drain()
    A.I("s_barrier")
    if ST.on == 2: ST.stamp()
    A.I(f"v_mov_b32 v{V_K}, v{V_L16}")
    for kb, base in enumerate((KA_, KB, VA, VB)):
        for s_ in range(4):
            A.I(rdfrag(base+4*s_, V_K, kb*4+s_)); lg.issue(f"k{kb}")
    for x in qrest: A.I(x)
    A.I(f"s_cmp_lg_u32 s{S_SAFE}, 0")
    A.I(f"s_cbranch_scc1 {L('nomaxpass')}")
    A.I(f"s_call_b64 s[{S_RET}:{S_RET+1}], {L('maxpass')}")
    A.label(L("nomaxpass"))
    vq = []
    def fill(budget, usegel=True):
        while budget > 0 and (vq or (gel and usegel)):
            src = vq if vq else gel
            x = src[0]
            cost = 2 if ("v_exp" in x or "v_rcp" in x or "buffer" in x) else (0 if x.startswith("s_") else 1)
            if cost > budget: break
            A.I(src.pop(0)); budget -= cost
    def qk0(kb, base):
        A.I(lg.wait(f"k{kb}"))
        for qb in range(4):
            for s_ in range(4):
                d = v(Sreg(kb//2, kb % 2, qb), 4)
                c0 = "0" if kb == 0 else v(NEGM(qb), 4)
                A.I(mf(d, a(base+4*s_, 4), v(Qf(qb, s_), 4), c0 if s_ == 0 else d))
                fill(2)
    if ST.on == 2: ST.stamp()
    qk0(0, KA_)
    fill(8)
    A.I(f"s_cmp_lg_u32 s{S_Q0}, 0")
    A.I(f"s_cbranch_scc1 {L('nodiag0')}")
    A.I("v_mov_b32 v8, 0xff7fffff")
    for r in range(4):
        reg = Sreg(0, 0, 0) + r
        A.I(f"v_cndmask_b32 v{reg}, v8, v{reg}, s[{S_MASK+2*r}:{S_MASK+2*r+1}]")
    A.label(L("nodiag0"))
    for qb in range(4):
        r0 = Sreg(0, 0, qb)
        A.I(f"v_max3_f32 v{NEGM(qb)}, v{r0}, v{r0+1}, v{r0+2}")
    for qb in range(4):
        A.I(f"v_max_f32 v{NEGM(qb)}, v{NEGM(qb)}, v{Sreg(0, 0, qb)+3}")
    A.I(f"s_cmp_lg_u32 s{S_SAFE}, 0")
    A.I(f"s_cbranch_scc1 {L('fastmax')}")
    for qb in range(4): A.I(f"v_mov_b32 v{NEGM(qb)}, v{12+qb}")
    A.label(L("fastmax"))
    for swp in ("v_permlane16_swap_b32", "v_permlane32_swap_b32"):
        for qb in range(4): A.I(f"v_mov_b32 v{NEGM(qb)+1}, v{NEGM(qb)}")
        A.I("s_nop 0")
        for qb in range(4): A.I(f"{swp} v{NEGM(qb)}, v{NEGM(qb)+1}")
        A.I("s_nop 0")
        for qb in range(4): A.I(f"v_max_f32 v{NEGM(qb)}, v{NEGM(qb)}, v{NEGM(qb)+1}")
    for qb in range(4):
        A.I(f"v_sub_f32 v{NEGM(qb)}, 0, v{NEGM(qb)}")
    for qb in range(4):
        for r in range(1, 4): A.I(f"v_mov_b32 v{NEGM(qb)+r}, v{NEGM(qb)}")
    for qb in range(4):
        for r in range(4): vq.append(f"v_add_f32 v{Sreg(0,0,qb)+r}, v{Sreg(0,0,qb)+r}, v{NEGM(qb)}")
    for qb in range(4):
        for r in range(4): vq.append(f"v_exp_f32 v{Sreg(0,0,qb)+r}, v{Sreg(0,0,qb)+r}")
    A.I("s_nop 0")
    if ST.on == 2: ST.stamp()
    qk0(1, KB)
    qk0(2, VA)
    for qb in range(4):
        for r in range(4): vq.append(f"v_exp_f32 v{Sreg(0,1,qb)+r}, v{Sreg(0,1,qb)+r}")
    qk0(3, VB)
    if ST.on == 2: ST.stamp()
    A.I("s_barrier")
    A.I(f"s_mov_b32 m0, s{S_MK}")
    A.I(f"v_add_u32 v{V_K}, s{S_AK}, v{V_L16}")
    for x in dma4(S_K0, None): A.I(x)
    A.I(f"s_mov_b32 m0, s{S_MV}")
    A.I(f"v_add_u32 v{V_V}, s{S_AV}, v{V_L16}")
    for x in dma4(S_V0, None): A.I(x)
    for i in range(4): A.I(rdfrag(VA+4*i, V_V, i))
    for i in range(4): A.I(rdfrag(KA_+4*i, V_K, i))
    for i in range(4): A.I(rdfrag(VB+4*i, V_V, 4+i))
    if ST.on == 2: ST.stamp()
    print("gel left", len(gel), "vq", len(vq), "qrest", len(qrest))
    for x in WTOUCH: A.I(x)
    nyoung = (2 if (WTOUCH and not WOFB[0]) else 0) + sum(1 for x in gel if "buffer" in x)
    import re as _re
    isstart = lambda x: _re.match(r"v_mul_f32 v20, v(\d+), v\1$", x)
    while vq or (gel and not isstart(gel[0])): fill(2)
    A.I("v_mov_b32 v8, 1.0"); A.I("v_mov_b32 v9, 1.0"); A.I("v_mov_b32 v10, v28"); A.I("v_mov_b32 v11, v28"); A.I("s_mov_b32 s33, s32")
    k_ = 0
    while gel:
        x0 = int(isstart(gel[0]).group(1)); T = 20 if k_ % 2 == 0 else 12; k_ += 1
        gel[:] = gel[28:]
        for h_ in range(2): A.I(f"v_pk_mul_f32 {v(T+2*h_,2)}, {v(x0+2*h_,2)}, {v(x0+2*h_,2)}")
        for h_ in range(2): A.I(f"v_pk_fma_f32 {v(T+2*h_,2)}, {v(T+2*h_,2)}, s[32:33], v[10:11]")
        for h_ in range(2): A.I(f"v_pk_mul_f32 {v(T+2*h_,2)}, {v(T+2*h_,2)}, {v(x0+2*h_,2)}")
        for r in range(4): A.I(f"v_exp_f32 v{T+r}, v{T+r}")
        for h_ in range(2): A.I(f"v_pk_add_f32 {v(T+2*h_,2)}, {v(T+2*h_,2)}, v[8:9]")
        for r in range(4): A.I(f"v_rcp_f32 v{T+r}, v{T+r}")
        for h_ in range(2): A.I(f"v_pk_mul_f32 {v(x0+2*h_,2)}, {v(x0+2*h_,2)}, {v(T+2*h_,2)}")
        while gel and not isstart(gel[0]): A.I(gel.pop(0))
    ST.stamp()
    A.I(f"s_cmp_ge_u32 s{S_WAVE}, 2")
    A.I(f"s_cbranch_scc1 {L('nostash2')}")
    for qb in range(4): A.I(f"v_mov_b32 v{8+qb}, v{NEGM(qb)}")
    A.I(f"s_add_u32 s{S_TMP}, s61, 16384")
    A.I(f"buffer_store_dwordx4 v[8:11], v{V_L16}, s[{SRD_WS}:{SRD_WS+3}], s{S_TMP} offen")
    A.label(L("nostash2"))
    A.I(f"s_cmp_lg_u32 s{S_Q0}, 0")
    A.I(f"s_cbranch_scc1 {L('nodiag1')}")
    for r in range(4):
        A.I(f"v_mov_b32 v{Sreg(0,1,0)+r}, 0")
        A.I(f"v_cndmask_b32 v{Sreg(0,1,1)+r}, 0, v{Sreg(0,1,1)+r}, s[{S_MASK+2*r}:{S_MASK+2*r+1}]")
    A.label(L("nodiag1"))
    for qb in range(4):
        for k in range(4):
            src = Sreg(0, k//2, qb) + (k % 2)*2
            A.I(f"v_cvt_pk_bf16_f32 v{Preg(0,qb)+k}, v{src}, v{src+1}")
    ST.stamp()
    if ST.on == 2: ST.stamp()
    A.I(f"s_lshr_b32 s32, s2, 3"); A.I("s_lshl_b32 s32, s32, 2"); A.I(f"s_add_u32 s32, s32, s{S_WAVE}"); A.I("s_and_b32 s32, s32, 63")
    A.I("s_lshl_b32 s32, s32, 10"); A.I("s_add_u32 s32, s32, 34816"); A.I(f"v_add_u32 v16, s32, v{V_L16}")
    A.I("s_nop 1")
    used = {}
    def flag(kind, cond=False):
        if cond:
            u = f"nf{len(A.items)}"
            A.I(f"s_and_b32 s34, s{S_FAIL}, s{S_SAFE}")
            A.I(f"s_cbranch_scc1 {L(u)}")
        for x in set_flag(kind, 204, 205, 34): A.I(x)
        if cond: A.label(L(u))
    def call(qk, pv, first=False, kind=""):
        key = f"b_{qk}_{pv}_{int(first)}{kind}"
        used[key] = (qk, pv, first, kind)
        if kind.startswith("last"): flag(F_H)
        A.I(f"s_call_b64 s[{S_RET}:{S_RET+1}], {L(key)}")
    def loop(kind, last_expr_sgpr_or_imm, uniq):
        A.I(f"s_mov_b32 s{S_CNT}, {last_expr_sgpr_or_imm}")
        A.I(f"s_cmp_gt_i32 s{S_I}, s{S_CNT}")
        A.I(f"s_cbranch_scc1 {L('skip_'+uniq)}")
        A.I(f"s_call_b64 s[{S_RET}:{S_RET+1}], {L('main_'+kind)}")
        A.label(L("skip_"+uniq))
    FREE = [Sreg(b_, k_, q_) for b_ in range(2) for k_ in range(2) for q_ in range(4)]
    def packed(n): return FREE[8+n] if n < 8 else TMP + (n-8)*4
    def epi_half(B, qbs):
        B.I("s_nop 7")
        for qb in qbs: B.I(f"v_accvgpr_read_b32 v{192+qb}, a{Lreg(qb)}")
        B.I(f"v_mov_b32 v196, {LTHR}")
        for qb in qbs:
            B.I(f"v_cmp_nle_f32 vcc, v{192+qb}, v196")
            B.I(f"s_or_b32 s{S_FAIL}, s{S_FAIL}, vcc_lo")
            B.I(f"s_or_b32 s{S_FAIL}, s{S_FAIL}, vcc_hi")
        for qb in qbs: B.I(f"v_rcp_f32 v{192+qb}, v{192+qb}")
        if qbs[0] == 0:
            B.I(f"s_lshl_b32 s32, s{S_Q0}, 5")
            B.I(f"s_add_u32 s32, s32, s{S_H}")
            B.I(f"s_lshl_b32 s32, s32, 12")
            B.I(f"s_add_u32 s32, s32, {WS_CTX}")
        for qb in qbs:
            for s_ in range(4):
                n = qb*4 + s_
                T = [FREE[(2*n) % 8], FREE[(2*n+1) % 8]]
                for i in range(8): B.I(f"v_accvgpr_read_b32 v{T[i//4] + i % 4}, a{Oreg(2*s_ + i//4, qb) + i % 4}")
                for i in range(4):
                    r = T[i//2] + 2*(i % 2)
                    B.I(f"v_pk_mul_f32 {v(r,2)}, {v(r,2)}, {v(192+2*(qb//2),2)} op_sel:[0,{qb%2}] op_sel_hi:[1,{qb%2}]")
                for i in range(4):
                    r = T[i//2] + 2*(i % 2)
                    B.I(f"v_cvt_pk_bf16_f32 v{packed(n)+i}, v{r}, v{r+1}")
    def epi_late(nplain):
        r = []
        for qb in (2, 3): r.append(f"v_accvgpr_read_b32 v{192+qb}, a{Lreg(qb)}")
        r.append(f"v_mov_b32 v196, {LTHR}")
        for qb in (2, 3):
            r += [f"v_cmp_nle_f32 vcc, v{192+qb}, v196", f"s_or_b32 s34, vcc_lo, vcc_hi", f"s_or_b32 s{S_FAIL}, s{S_FAIL}, s34"]
        for qb in (2, 3): r.append(f"v_rcp_f32 v{192+qb}, v{192+qb}")
        r += [f"s_add_u32 s33, s32, {2*32*4096}", f"s_add_u32 s35, s32, {3*32*4096}"]
        for qb in (2, 3):
            for s_ in range(4):
                n = qb*4 + s_
                T = Preg(1, 0) + (n % 2)*8
                for i in range(8): r.append(f"v_accvgpr_read_b32 v{T+i}, a{Oreg(2*s_ + i//4, qb) + i % 4}")
                if n < 8 + nplain:
                    for i in range(8): r.append(f"v_mul_f32 v{T+i}, v{T+i}, v{192+qb}")
                else:
                    for i in range(4): r.append(f"v_pk_mul_f32 {v(T+2*i,2)}, {v(T+2*i,2)}, v[194:195] op_sel:[0,{qb%2}] op_sel_hi:[1,{qb%2}]")
                for i in range(4): r.append(f"v_cvt_pk_bf16_f32 v{packed(n)+i}, v{T+2*i}, v{T+2*i+1}")
                r.append(f"buffer_store_dwordx4 {v(packed(n),4)}, v{V_L16}, s[{SRD_WS}:{SRD_WS+3}], s{33 if qb == 2 else 35} offen offset:{s_*1024} sc1")
        return r
    def epi_st(n):
        qb, s_ = n//4, n % 4
        return ([f"s_add_u32 s33, s32, {qb*32*4096}"] if s_ == 0 else []) + \
               [f"buffer_store_dwordx4 {v(packed(n),4)}, v{V_L16}, s[{SRD_WS}:{SRD_WS+3}], s33 offen offset:{s_*1024} sc1"]
    def load_QA():
        A.I(f"s_add_u32 s{S_TMP}, s61, 16384")
        A.I(f"buffer_load_dwordx4 v[200:203], v{V_L16}, s[{SRD_WS}:{SRD_WS+3}], s{S_TMP} offen")
        A.I("s_waitcnt lgkmcnt(0)")
        for qb in range(4):
            for s_ in range(4):
                A.I(f"ds_read_b128 {v(Qf(qb,s_),4)}, v31 offset:{(qb*4+s_)*1024}")
        A.I("s_waitcnt lgkmcnt(0)")
    def fin_QA(n):
        A.I(f"s_waitcnt vmcnt({n})")
        A.I("s_nop 3")
        for qb in range(4):
            for r in range(4): A.I(f"v_mov_b32 v{NEGM(qb)+r}, v{200+qb}")
        A.I("s_nop 1")
    A.I(f"s_sub_u32 s32, s{S_T2}, 1")
    A.I(f"s_sub_u32 s33, s{S_T2}, 2")
    A.I(f"s_cmp_eq_u32 s{S_WAVE}, 2")
    A.I(f"s_cbranch_scc1 {L('role2')}")
    A.I(f"s_cmp_eq_u32 s{S_WAVE}, 3")
    A.I(f"s_cbranch_scc1 {L('role3')}")
    A.I(f"s_cmp_eq_u32 s{S_T}, 0")
    A.I(f"s_cbranch_scc1 {L('r01_t0')}")
    call("full", "full", True, "fd")
    A.I(f"s_branch {L('r01_c')}")
    A.label(L("r01_t0"))
    call("full", "full", True, "t0")
    A.label(L("r01_c"))
    loop("d", "s32", "r01d")
    A.I(f"s_cmp_eq_u32 s{S_WAVE}, 0")
    A.I(f"s_cbranch_scc1 {L('role0')}")
    loop("s", 15, "r1s")
    call(None, "full", False, "last")
    A.I(f"s_branch {L('merge')}")
    A.label(L("w_role0")); A.I(f"s_setpc_b64 s[{S_RET}:{S_RET+1}]")
    A.label(L("role0"))
    loop("s", f"s{S_T2}", "r0s")
    call("diag", "full")
    A.I(f"s_cmp_eq_u32 s{S_T}, 7")
    A.I(f"s_cbranch_scc1 {L('role0_t7')}")
    call("full", "diag")
    loop("s", 15, "r0s2")
    call(None, "full", False, "last")
    A.I(f"s_branch {L('merge')}")
    A.label(L("role0_t7"))
    call(None, "diag", False, "last")
    A.I(f"s_branch {L('merge')}")
    A.label(L("w_role2")); A.I(f"s_setpc_b64 s[{S_RET}:{S_RET+1}]")
    A.label(L("role2"))
    A.I(f"s_cmp_eq_u32 s{S_T}, 0")
    A.I(f"s_cbranch_scc1 {L('role2_t0')}")
    call("full", "full", True, "fd")
    loop("d", "s33", "r2d")
    call("diag", "full")
    call(None, "diag", False, "epi")
    A.I(f"s_branch {L('role2_b')}")
    A.label(L("role2_t0"))
    call(None, "diag", True, "epi")
    A.label(L("role2_b"))
    fin_QA(16)
    call("diag", None, False, "st")
    A.I(f"s_cmp_eq_u32 s{S_T}, 7")
    A.I(f"s_cbranch_scc1 {L('role2_t7')}")
    call("full", "diag", True)
    flag(F_B, True)
    loop("s", 15, "r2s")
    call(None, "full", False, "last")
    A.I(f"s_branch {L('merge')}")
    A.label(L("role2_t7"))
    call(None, "diag", True, "last")
    flag(F_B, True)
    A.I(f"s_branch {L('merge')}")
    A.label(L("w_role3")); A.I(f"s_setpc_b64 s[{S_RET}:{S_RET+1}]")
    A.label(L("role3"))
    A.I(f"s_cmp_eq_u32 s{S_T}, 0")
    A.I(f"s_cbranch_scc1 {L('role3_t0')}")
    call("full", "full", True, "fd")
    loop("d", "s32", "r3d")
    call("diag", "full")
    A.I(f"s_branch {L('role3_b')}")
    A.label(L("role3_t0"))
    call("diag", "full", True)
    A.label(L("role3_b"))
    call(None, "diag", False, "epi")
    fin_QA(16)
    A.I(f"s_cmp_eq_u32 s{S_T}, 7")
    A.I(f"s_cbranch_scc1 {L('role3_t7')}")
    call("full", None, False, "st")
    call("full", "full", True)
    flag(F_B, True)
    loop("s", 15, "r3s")
    call(None, "full", False, "last")
    A.I(f"s_branch {L('merge')}")
    A.label(L("role3_t7"))
    call(None, None, False, "lastst")
    for i in range(128): A.I(f"v_accvgpr_write_b32 a{i}, 0")
    for i in range(16): A.I(f"v_accvgpr_write_b32 a{Lreg(0)+i}, 0")
    flag(F_B, True)
    A.I(f"s_branch {L('merge')}")
    A.label(L("w_merge")); A.I(f"s_setpc_b64 s[{S_RET}:{S_RET+1}]")
    A.label(L("merge"))
    if ST.on: A.I("v_writelane_b32 v0, s76, 57")
    ST.stamp()
    for qb in range(4): A.I(f"v_accvgpr_read_b32 v{192+qb}, a{Lreg(qb)}")
    A.I(f"v_mov_b32 v196, {LTHR}")
    for qb in range(4):
        A.I(f"v_cmp_nle_f32 vcc, v{192+qb}, v196")
        A.I(f"s_or_b32 s{S_FAIL}, s{S_FAIL}, vcc_lo")
        A.I(f"s_or_b32 s{S_FAIL}, s{S_FAIL}, vcc_hi")
    A.I(f"s_lshr_b32 s32, s{S_WAVE}, 1")
    A.I(f"s_lshl_b32 s32, s32, 16")
    A.I(f"s_and_b32 s33, s{S_WAVE}, 1")
    A.I(f"s_lshl_b32 s33, s33, 14")
    A.I(f"s_add_u32 s32, s32, s33")
    A.I(f"s_xor_b32 s33, s32, 0x14000")
    A.I(f"v_add_u32 v197, s32, v{V_L16}")
    A.I(f"v_add_u32 v198, s33, v{V_L16}")
    A.I(f"s_lshl_b32 s32, s{S_WAVE}, 10")
    A.I(f"s_add_u32 s32, s32, 49152")
    A.I(f"s_xor_b32 s33, s32, 3072")
    A.I(f"v_add_u32 v199, s32, v{V_L16}")
    A.I(f"v_add_u32 v200, s33, v{V_L16}")
    A.I(f"s_lshl_b32 s34, s{S_WAVE}, 2")
    A.I(f"s_add_u32 s34, s34, {49152+4096}")
    A.I(f"v_mov_b32 v201, s34")
    A.I(f"v_mov_b32 v202, s{S_FAIL}")
    A.I("s_barrier")
    A.I(f"ds_write_b128 v199, v[192:195]")
    A.I(f"ds_write_b32 v201, v202")
    A.I(f"s_cmp_ge_u32 s{S_WAVE}, 2")
    A.I(f"s_cbranch_scc1 {L('mhi')}")
    OWN = 128
    def merge_half(keep, u):
        send = [q for q in range(4) if q not in keep]
        for i, qb in enumerate(send):
            for db in range(8):
                A.I(f"ds_write_b128 v197, {a(Oreg(db,qb),4)} offset:{(i*8+db)*1024}")
        for i, qb in enumerate(keep):
            for k in range(32): A.I(f"v_accvgpr_read_b32 v{OWN + i*32 + k}, a{Oreg(k//4, qb) + k % 4}")
        A.I("s_waitcnt lgkmcnt(0)")
        A.I("s_barrier")
        A.I(f"v_mov_b32 v201, {49152+4096}")
        A.I(f"ds_read_b128 v[204:207], v201")
        A.I(f"ds_read_b128 v[208:211], v200")
        R = 64
        for i in range(16):
            A.I(f"ds_read_b128 {v(R+4*i,4)}, v198 offset:{i*1024}")
        A.I(f"s_lshl_b32 s32, s{S_QA}, 5")
        A.I(f"s_add_u32 s32, s32, s{S_H}")
        A.I(f"s_lshl_b32 s32, s32, 12")
        A.I(f"s_add_u32 s32, s32, {WS_CTX}")
        A.I("s_waitcnt lgkmcnt(15)")
        A.I("v_or_b32 v204, v204, v205")
        A.I("v_or3_b32 v204, v204, v206, v207")
        for qb in keep:
            A.I(f"v_add_f32 v{192+qb}, v{192+qb}, v{208+qb}")
        A.I(f"v_readfirstlane_b32 s{S_FAIL}, v204")
        for qb in keep:
            A.I(f"v_rcp_f32 v{192+qb}, v{192+qb}")
        n = 0
        for i, qb in enumerate(keep):
            A.I(f"s_add_u32 s33, s32, {qb*32*4096}")
            for s_ in range(4):
                T = OWN + i*32 + s_*8
                A.I(f"s_waitcnt lgkmcnt({14 - (i*8+2*s_)})")
                for k in range(4): A.I(f"v_pk_add_f32 {v(T+2*k,2)}, {v(T+2*k,2)}, {v(R + (i*8+2*s_)*4 + 2*k,2)}")
                for k in range(4): A.I(f"v_pk_mul_f32 {v(T+2*k,2)}, {v(T+2*k,2)}, {v(192+2*(qb//2),2)} op_sel:[0,{qb%2}] op_sel_hi:[1,{qb%2}]")
                for k in range(4): A.I(f"v_cvt_pk_bf16_f32 v{T+k}, v{T+2*k}, v{T+2*k+1}")
                A.I(f"buffer_store_dwordx4 {v(T,4)}, v{V_L16}, s[{SRD_WS}:{SRD_WS+3}], s33 offen offset:{s_*1024} sc1")
    merge_half([0, 1], "lo")
    A.I(f"s_branch {L('done')}")
    A.label(L("w_mhi")); A.I(f"s_setpc_b64 s[{S_RET}:{S_RET+1}]")
    A.label(L("mhi"))
    merge_half([2, 3], "hi")
    A.label(L("done"))
    ST.stamp()
    A.I(f"s_and_b32 s34, s{S_FAIL}, s{S_SAFE}")
    A.I(f"s_cbranch_scc1 {L('saferestart')}")
    oproj()
    A.label(L("end"))
    A.I("s_endpgm")
    A.label(L("maxpass"))
    M = Asm()
    for qb in range(4): M.I(f"v_mov_b32 v{12+qb}, 0xff7fffff")
    M.I("v_mov_b32 v8, 0xff7fffff")
    M.I(f"v_add_u32 v9, 0x10000, v{V_L16}")
    MI_, ML_ = 64, 65
    M.I(f"s_mov_b32 s{MI_}, 0")
    M.I(f"s_lshr_b32 s{S_CNT}, s{S_Q0}, 2")
    M.I(f"s_sub_u32 s{ML_}, 31, s{S_T2}")
    M.I("s_waitcnt lgkmcnt(0)")
    M.label(L("mp_loop"))
    M.I(f"s_lshl_b32 s{S_TMP}, s{MI_}, 15")
    M.I(f"s_add_u32 s{S_TMP}, s{S_TMP}, s{S_KVB}")
    M.I(f"s_add_u32 m0, s{S_W4K}, 0x10000")
    M.I("s_nop 0")
    for x in dma4(S_TMP, None): M.I(x)
    M.I("s_waitcnt vmcnt(0)")
    M.I("s_barrier")
    M.I(f"s_cmp_gt_u32 s{MI_}, s{S_CNT}")
    M.I(f"s_cbranch_scc1 {L('mp_next')}")
    for kb, base in enumerate((KA_, KB, VA, VB)):
        for s_ in range(4): M.I(rdfrag(base+4*s_, 9, kb*4+s_))
    M.I("s_waitcnt lgkmcnt(0)")
    for kb, base in enumerate((KA_, KB, VA, VB)):
        for qb in range(4):
            for s_ in range(4):
                d = v(Sreg(kb//2, kb % 2, qb), 4)
                M.I(mf(d, a(base+4*s_, 4), v(Qf(qb, s_), 4), "0" if s_ == 0 else d))
    M.I("s_nop 7")
    M.I(f"s_cmp_lg_u32 s{MI_}, s{S_CNT}")
    M.I(f"s_cbranch_scc1 {L('mp_nomask')}")
    for kb in range(4):
        for qb in range(4):
            for r in range(4):
                reg = Sreg(kb//2, kb % 2, qb) + r
                if kb > qb: M.I(f"v_mov_b32 v{reg}, v8")
                elif kb == qb: M.I(f"v_cndmask_b32 v{reg}, v8, v{reg}, s[{S_MASK+2*r}:{S_MASK+2*r+1}]")
    M.label(L("mp_nomask"))
    for qb in range(4):
        regs = [Sreg(kb//2, kb % 2, qb) + r for kb in range(4) for r in range(4)]
        for i in range(0, 16, 2): M.I(f"v_max3_f32 v{12+qb}, v{12+qb}, v{regs[i]}, v{regs[i+1]}")
    M.label(L("mp_next"))
    M.I("s_barrier")
    M.I(f"s_add_u32 s{MI_}, s{MI_}, 1")
    M.I(f"s_cmp_le_u32 s{MI_}, s{ML_}")
    M.I(f"s_cbranch_scc1 {L('mp_loop')}")
    for kb, base in enumerate((KA_, KB, VA, VB)):
        for s_ in range(4): M.I(rdfrag(base+4*s_, V_K, kb*4+s_))
    M.I("s_waitcnt lgkmcnt(0)")
    M.I(f"s_setpc_b64 s[{S_RET}:{S_RET+1}]")
    A.items += M.check(fix=True, seq=M.items)
    saferestart()
    allb = {}
    QA = [f"s_add_u32 s34, s61, 16384", f"buffer_load_dwordx4 v[200:203], v{V_L16}, s[{SRD_WS}:{SRD_WS+3}], s34 offen"] + \
         [f"ds_read_b128 {v(Qf(qb,s_),4)}, v31 offset:{(qb*4+s_)*1024}" for qb in range(4) for s_ in range(4)]
    for kind, adma in (("d", False), ("s", True)):
        B = Asm(); l2 = entry_lg(); body(B, "full", "full", False, adma, l2)
        assert l2.q == entry_lg().q, l2.q
        for p in B.check(seq=B.items + B.items, name="main_"+kind): print("HAZARD(main)", p)
        allb["main_"+kind] = B.items
    for key, (qk, pv, first, kind) in used.items():
        B = Asm(); l2 = entry_lg()
        body(B, qk, pv, first, kind != "fd", l2, wo=(kind == "fd" or key in ("b_None_diag_1epi", "b_diag_full_1", "b_full_full_1t0")), vmn={"fd": nyoung, "st": "auto"}.get(kind, 0),
             xst={"epi": {**{(1, 40+(i//2)*8+(i%2)*2): epi_st(i) for i in range(8)}, (1, 20): QA}, }.get(kind), vfill=epi_late({"full": 3, "diag": 2, None: 0}[qk]) if kind in ("st", "lastst") else None, mid=(lambda: epi_half(B, [0, 1])) if kind == "epi" else None, last=[] if kind.startswith("last") else None)
        allb[key] = B.check(fix=True, seq=B.items)
    link = [Ins("s_nop 0"), Ins("s_nop 0")]
    for key, items in allb.items():
        pad = 0
        while True:
            seq = items[-40:] + [Ins("s_nop 0")]*pad + link
            if not any(Asm().check(seq=seq + nxt[:40]) for nxt in allb.values()): break
            pad += 1
        A.I(".p2align 6")
        A.label(L("w_" + key)); A.I(f"s_setpc_b64 s[{S_RET}:{S_RET+1}]")
        A.label(L("w2_" + key)); A.I("s_setpc_b64 s[56:57]")
        A.label(L(key))
        A.items += items
        if key.startswith("main"):
            assert pad == 0
            A.I(f"s_cmp_le_i32 s{S_I}, s{S_CNT}")
            A.I(f"s_cbranch_scc1 {L(key)}")
        elif "last" in key: A.I("s_nop 7")
        elif pad: A.I(f"s_nop {pad-1}")
        A.I(f"s_setpc_b64 s[{S_RET}:{S_RET+1}]")
    return A
```

```python
from common import *
import k2
from k2 import *
import math, struct

F_XN, F_KV, F_H, F_B, F_A, F_P, F_ID = range(7)
S_ID = 45
def flag_base(kind): return WS_FLAG + kind*262144
NLOG2E = f2u(-math.log2(math.e))
S_NONCE = 3
S_ROT = 39

def gen(name, prof=False, rot=False, xsc=' sc1', csc=' sc1', xdiag=0, tlb=False, itlb=True, dense=False, slp=0, fstride=7, apoll=0, fullline=True, xtouch=0, fine=0, xst_t=5, pxg=10, pxc=13, tlbw=0, wqg=4, pft=5, pfs=3, wofb=1, t64=0, prer_mode=1, cpf=1, kvsc='', outsc='', padto=0, qeven=1, k3pace=1, wotouch=0, wot=2, wqt=7, wqtouch=1, barpos=9, noln=0, kspread=0, apollA=0, upfront=2):
    A = Asm(); ST = Stamps(A, prof, 0)
    vm = Cnt("vmcnt", 63); lg = Cnt("lgkmcnt", 15)
    L = lambda x: f"L_{x}"
    WS = f"s[{SRD_WS}:{SRD_WS+3}]"
    uniq = [0]
    def set_flag(kind, vz, vd, st, val=S_NONCE):
        wide = True
        return [f"s_lshl_b32 s{st}, s2, {2 if wide else 5}", f"s_add_u32 s{st}, s{st}, s{S_WAVE}", f"s_lshl_b32 s{st}, s{st}, {7 if wide else 2}",
                f"s_add_u32 s{st}, s{st}, {flag_base(kind)}",
                f"v_mov_b32 v{vd}, s{val}", f"v_lshlrev_b32 v{vz}, 2, v1",
                "s_mov_b32 exec_hi, 0" if fullline else "s_mov_b64 exec, 1", f"buffer_store_dword v{vd}, v{vz}, {WS}, s{st} offen sc1", "s_mov_b64 exec, -1"]
    def pload(vdat, vaddr, atomic=False):
        if atomic:
            return [f"v_mov_b32 v{vdat}, 0", f"buffer_atomic_or v{vdat}, v{vaddr}, {WS}, 0 offen sc0 sc1"]
        return [f"buffer_load_dword v{vdat}, v{vaddr}, {WS}, 0 offen {'sc1' if apoll != 2 else 'sc0 sc1 nt'}"]
    def poll_check(vaddr, vdat, st, vmask=None, atomic=False):
        u = uniq[0]; uniq[0] += 1
        A.I(f"s_mov_b32 s{st}, 0")
        A.label(L(f"poll{u}"))
        if vmask is not None:
            A.I(f"v_and_b32 v{vmask}, 0xffffff00, v{vdat}")
            A.I(f"v_cmp_ne_u32 vcc, s{S_NONCE}, v{vmask}")
        else:
            A.I(f"v_cmp_ne_u32 vcc, s{S_NONCE}, v{vdat}")
        A.I(f"s_cbranch_vccz {L(f'pollok{u}')}")
        A.I(f"s_add_u32 s{st}, s{st}, 1")
        A.I(f"s_cmp_gt_u32 s{st}, 0x80000")
        A.I(f"s_cbranch_scc1 {L(f'pollok{u}')}")
        if slp: A.I(f"s_sleep {slp}")
        for x in pload(vdat, vaddr, atomic): A.I(x)
        A.I("s_waitcnt vmcnt(0)")
        A.I(f"s_branch {L(f'poll{u}')}")
        A.label(L(f"pollok{u}"))
    def code_pf(off, nbytes, vt, vd):
        return [f"s_lshr_b32 s{S_TMP}, s2, 3", f"s_lshl_b32 s{S_TMP}, s{S_TMP}, 2", f"s_add_u32 s{S_TMP}, s{S_TMP}, s{S_WAVE}",
                f"s_lshl_b32 s{S_TMP}, s{S_TMP}, 10", f"s_and_b32 s{S_TMP}, s{S_TMP}, {nbytes-1}", f"s_add_u32 s{S_TMP}, s{S_TMP}, {off}",
                f"v_add_u32 v{vt}, s{S_TMP}, v{V_L16}", f"global_load_dwordx4 {v(vd,4)}, v{vt}, s[62:63]"]

    header(A, name)
    A.I("s_cmp_ge_u32 s2, 256")
    A.I(f"s_cbranch_scc1 {L('end')}")
    ST.stamp()
    A.I(f"s_load_dwordx4 s[4:7], s[0:1], {KA['x']}")
    A.I(f"s_load_dwordx4 s[8:11], s[0:1], {KA['wuk']}")
    A.I(f"s_load_dwordx4 s[12:15], s[0:1], {KA['dbg']}")
    A.I("s_memrealtime s[52:53]")
    A.I("s_getpc_b64 s[62:63]")
    A.I(f"s_mov_b32 s{S_SAFE}, -1")
    A.I("v_and_b32 v1, 63, v0")
    A.I("v_lshrrev_b32 v248, 6, v0")
    A.I(f"s_and_b32 s{S_H}, s2, 7")
    A.I(f"v_readfirstlane_b32 s{S_WAVE}, v248")
    A.I(f"s_lshr_b32 s47, s2, 3")
    A.I(f"s_lshl_b32 s{S_H}, s{S_H}, 2")
    A.I(f"s_and_b32 s48, s47, 3")
    A.I(f"s_add_u32 s{S_H}, s{S_H}, s48")
    A.I(f"s_lshr_b32 s{S_T}, s47, 2")
    A.I(f"v_lshlrev_b32 v{V_L16}, 4, v1")
    A.I("v_and_b32 v248, 15, v1")
    A.I("v_lshrrev_b32 v249, 4, v1")
    A.I("v_and_b32 v250, 7, v1")
    A.I("v_xor_b32 v250, v250, v249")
    A.I("v_lshrrev_b32 v251, 3, v1")
    A.I("v_lshlrev_b32 v251, 10, v251")
    A.I("v_lshl_add_u32 v208, v250, 4, v251")
    A.I("v_xor_b32 v250, 4, v250")
    A.I("v_lshl_add_u32 v209, v250, 4, v251")
    A.I(f"v_add_u32 v210, {2*(8192-1024)}, v208")
    A.I(f"v_add_u32 v211, {3*(8192-1024)}, v209")
    A.I(f"v_add_u32 v209, {8192-1024}, v209")
    A.I("v_lshrrev_b32 v250, 1, v248")
    A.I("v_xor_b32 v250, v250, v249")
    A.I("v_and_b32 v251, 1, v248")
    A.I("v_lshlrev_b32 v251, 4, v251")
    A.I("v_lshl_add_u32 v251, v249, 13, v251")
    A.I("v_lshl_add_u32 v4, v250, 5, v251")
    A.I(f"v_add_u32 v5, {32768-1024}, v4")
    A.I("v_xor_b32 v250, 4, v250")
    A.I("v_lshl_add_u32 v6, v250, 5, v251")
    A.I(f"v_add_u32 v6, {2*(32768-1024)}, v6")
    A.I(f"v_add_u32 v7, {32768-1024}, v6")
    A.I(f"s_lshl_b32 s40, s{S_T}, 8")
    A.I(f"s_lshl_b32 s47, s{S_WAVE}, 6")
    A.I("s_add_u32 s40, s40, s47")
    A.I("s_lshl_b32 s40, s40, 10")
    A.I(f"s_lshl_b32 s42, s{S_WAVE}, 13")
    A.I(f"s_lshl_b32 s44, s{S_WAVE}, 17")
    A.I(f"s_lshl_b32 s47, s{S_H}, 8")
    A.I("s_add_u32 s44, s44, s47")
    A.I(f"s_lshl_b32 s{S_W4K}, s{S_WAVE}, 12")
    A.I("s_waitcnt lgkmcnt(0)")
    srd(A, 24, 8, 4*MB); srd(A, 20, 6, 2*MB)

    def rotk(t, shift, base, dst):
        if not rot: return [f"s_add_u32 s{dst}, s{base}, {t << shift}"]
        return [f"s_add_u32 s{dst}, s{S_ROT}, {t}", f"s_and_b32 s{dst}, s{dst}, 7", f"s_lshl_b32 s{dst}, s{dst}, {shift}", f"s_add_u32 s{dst}, s{dst}, s{base}"]
    def wdma(which, t, slot):
        sr = 24 if which == "k" else 28
        pre = rotk(t, 19, 44, 49) + [f"s_add_u32 m0, s{S_W4K}, {slot*16384}"]
        return [(pre if j == 0 else None, f"buffer_load_dwordx4 v{4+j}, s[{sr}:{sr+3}], s49 offen offset:{j*1024} lds") for j in range(4)]
    def cdma(t):
        r = []
        for i in range(8):
            pre = None
            if i == 0: pre = rotk(t, 7, 40, 43) + [f"s_add_u32 m0, s42, {(t%2)*32768}"]
            if i == 4: pre = [f"s_add_u32 s43, s43, 32768", f"s_add_u32 m0, s42, {(t%2)*32768 + 4096}"]
            r.append((pre, f"buffer_load_dwordx4 v{208+i%4}, s[20:23], s43 offen offset:{(i%4)*1024} lds"))
        return r
    def ccopy(t):
        r = []
        for kk in range(2):
            for kb in range(4):
                r.append(f"ds_read_b128 {a((kb*16+2*t+kk)*4,4)}, v{212 + kk} offset:{(t % 2)*32768 + kb*2048}")
        return r
    def issue(lst, tag):
        for pre, x in lst:
            if pre:
                for y in pre: A.I(y)
                if "lds" in x: A.I("s_nop 0")
            A.I(x); vm.issue(tag)
    A.I("s_lshl_b32 s54, s2, 2")
    A.I(f"s_add_u32 s54, s54, s{S_WAVE}")
    A.I("s_lshl_b32 s55, s54, 12")
    A.I("s_lshl_b32 s54, s54, 11")
    prer = [(None, f"buffer_load_dwordx4 v[252:255], v{V_L16}, s[20:23], s53 offen offset:{j*1024}") for j in range(2)] + \
           [(None, f"buffer_load_dwordx4 v[252:255], v{V_L16}, s[24:27], s55 offen offset:{j*1024}") for j in range(4)]
    A.I("s_mov_b32 s53, s54")
    ST.stamp()
    if upfront in (4, 5, 6): issue(prer, "pr")
    if upfront == 6:
        A.I("v_and_b32 v3, 31, v1"); A.I("v_lshlrev_b32 v3, 7, v3"); A.I("v_add_u32 v3, s55, v3")
        A.I(f"buffer_load_dword v252, v3, s[28:31], 0 offen"); vm.issue("pr")
    issue(wdma("k", 0, 7), "Wk0"); issue(cdma(0), "C0")
    ST.stamp()
    srd(A, 32, 4, 2*MB); srd(A, SRD_WS, 14, WS_END); srd(A, 28, 10, 4*MB)
    A.I("s_lshl_b32 s47, s2, 3")
    A.I(f"s_lshl_b32 s48, s{S_WAVE}, 1")
    A.I("s_add_u32 s47, s47, s48")
    A.I("v_lshrrev_b32 v241, 5, v1")
    A.I("v_add_u32 v241, s47, v241")
    A.I("v_and_b32 v242, 31, v1")
    A.I("v_lshlrev_b32 v243, 10, v241")
    A.I("v_lshl_add_u32 v243, v242, 4, v243")
    A.I("buffer_load_dwordx4 v[216:219], v243, s[32:35], 0 offen"); vm.issue("x")
    A.I("buffer_load_dwordx4 v[220:223], v243, s[32:35], 0 offen offset:512"); vm.issue("x")
    A.I(f"s_load_dwordx2 s[68:69], s[0:1], {KA['wq']}")
    A.I(f"s_load_dwordx2 s[70:71], s[0:1], {KA['wo']}")
    A.I(f"s_load_dwordx2 s[64:65], s[0:1], {KA['w1']}")
    A.I(f"s_load_dwordx2 s[66:67], s[0:1], {KA['w2']}")
    if upfront == 0:
        issue(prer, "pr"); issue(wdma("k", 1, 8), "Wk1"); issue(cdma(1), "C1")
    elif upfront == 1:
        issue(prer, "pr")
    elif upfront == 2:
        issue(wdma("k", 1, 8), "Wk1"); issue(cdma(1), "C1")
    if upfront == 7:
        issue(wdma("k", 1, 8), "Wk1"); issue(cdma(1), "C1"); issue(prer, "pr")
    for x in code_pf(0, 131072, 244, 252): A.I(x)
    vm.issue("pf")
    A.I(f"s_or_b32 s47, s2, s{S_WAVE}")
    A.I(f"s_cmp_lg_u32 s47, 0")
    A.I(f"s_cbranch_scc1 {L('nocas')}")
    if padto:
        A.I("v_mov_b32 v184, s52"); A.I("v_mov_b32 v185, 4"); A.I("global_store_dword v185, v184, s[12:13] sc1"); A.I("s_nop 1")
    A.I("s_and_b32 s52, s52, 0xffffff00")
    A.I("s_or_b32 s52, s52, 0x100")
    A.I("v_mov_b32 v184, s52")
    A.I("v_mov_b32 v185, 0")
    A.I("s_mov_b64 exec, 1")
    A.I("global_store_dword v185, v184, s[12:13] sc1")
    A.I("s_mov_b64 exec, -1")
    A.label(L("nocas"))
    ST.stamp()
    A.I("v_lshrrev_b32 v250, 1, v248")
    A.I("v_xor_b32 v250, v250, v249")
    A.I("v_lshlrev_b32 v251, 7, v248")
    A.I("v_add_u32 v251, s42, v251")
    A.I("v_lshl_add_u32 v212, v250, 4, v251")
    A.I("v_xor_b32 v250, 4, v250")
    A.I("v_lshl_add_u32 v213, v250, 4, v251")
    A.I("v_bfe_u32 v248, v1, 2, 2")
    A.I("v_lshlrev_b32 v250, 3, v249")
    A.I("v_add_u32 v250, v250, v248")
    A.I("v_lshlrev_b32 v250, 8, v250")
    A.I("v_and_b32 v251, 3, v1")
    A.I("v_lshl_add_u32 v250, v251, 3, v250")
    A.I("v_add_u32 v250, 114688, v250")
    A.I("v_and_b32 v251, 1, v249")
    A.I("v_lshl_add_u32 v248, v251, 2, v248")
    for nb in range(8):
        A.I(f"v_xor_b32 v251, {nb}, v248")
        A.I(f"v_lshl_add_u32 v{8+nb}, v251, 5, v250")
    A.I("v_lshrrev_b32 v250, 4, v241")
    A.I("v_lshlrev_b32 v250, 14, v250")
    A.I("v_lshrrev_b32 v251, 2, v242")
    A.I("v_lshl_add_u32 v250, v251, 10, v250")
    A.I("v_and_b32 v251, 3, v242")
    A.I("v_lshl_add_u32 v250, v251, 8, v250")
    A.I("v_and_b32 v251, 15, v241")
    A.I("v_lshl_add_u32 v240, v251, 4, v250")
    A.I(f"s_lshl_b32 s46, s{S_H}, 5")
    A.I(f"s_lshl_b32 s47, s{S_T}, 2")
    A.I("s_add_u32 s46, s46, s47")
    A.I(f"s_add_u32 s46, s46, s{S_WAVE}")
    A.I("s_lshl_b32 s46, s46, 15")
    A.I(f"s_add_u32 s46, s46, {WS_KV}")
    if xtouch:
        A.I("s_lshr_b32 s47, s2, 3"); A.I("s_lshl_b32 s47, s47, 2"); A.I(f"s_add_u32 s47, s47, s{S_WAVE}"); A.I("s_lshl_b32 s47, s47, 15")
        A.I("s_and_b32 s48, s2, 7"); A.I("s_lshl_b32 s48, s48, 10"); A.I("s_add_u32 s47, s47, s48")
        A.I("v_bfe_u32 v3, v1, 3, 2"); A.I("v_lshlrev_b32 v3, 13, v3"); A.I("v_and_b32 v250, 7, v1"); A.I("v_lshl_add_u32 v3, v250, 7, v3")
        A.I("v_add_u32 v3, s47, v3")
    else:
        A.I("v_and_b32 v3, 31, v1" if not t64 else "v_mov_b32 v3, v1")
        A.I(f"v_lshlrev_b32 v3, {7 if not t64 else 6}, v3")
        A.I("v_add_u32 v3, s55, v3")
    A.I("s_mul_i32 s54, s54, 11")
    A.I("s_lshr_b32 s54, s54, 4")
    A.I(f"v_min_u32 v250, {10 if not t64 else 21}, v1")
    A.I(f"v_lshlrev_b32 v250, {7 if not t64 else 6}, v250")
    A.I("v_add_u32 v250, s54, v250")
    A.I(f"v_min_u32 v250, {1376*1024-4}, v250")
    LN = Asm()
    X = 224
    for i in range(8):
        LN.I(f"v_lshlrev_b32 v{X+2*i}, 16, v{216+i}")
        LN.I(f"v_and_b32 v{X+2*i+1}, 0xffff0000, v{216+i}")
    LN.I(f"v_add_f32 v243, v{X}, v{X+1}")
    LN.I(f"v_add_f32 v244, v{X+2}, v{X+3}")
    for i in range(4, 16, 2):
        LN.I(f"v_add_f32 v243, v243, v{X+i}")
        LN.I(f"v_add_f32 v244, v244, v{X+i+1}")
    LN.I("v_add_f32 v243, v243, v244")
    row_allreduce32(LN, 243, 244)
    LN.I("v_mul_f32 v243, 0x3b000000, v243")
    LN.I("v_mov_b32 v245, 0")
    LN.I("v_mov_b32 v246, 0")
    for i in range(16):
        LN.I(f"v_sub_f32 v247, v{X+i}, v243")
        LN.I(f"v_fmac_f32 v{245+i%2}, v247, v247")
    LN.I("v_add_f32 v245, v245, v246")
    row_allreduce32(LN, 245, 244)
    LN.I("v_mul_f32 v245, 0x3b000000, v245")
    LN.I("v_cvt_pk_bf16_f32 v243, v243, v245")
    LN.I("v_and_b32 v245, 0xffff0000, v243")
    LN.I("v_lshlrev_b32 v243, 16, v243")
    LN.I("v_add_f32 v245, 0x3727c5ac, v245")
    LN.I("v_cvt_pk_bf16_f32 v245, v245, v245")
    LN.I("v_lshlrev_b32 v245, 16, v245")
    LN.I("v_sqrt_f32 v245, v245")
    LN.I("s_nop 0")
    LN.I("v_cvt_pk_bf16_f32 v245, v245, v245")
    LN.I("v_lshlrev_b32 v245, 16, v245")
    LN.I("v_rcp_f32 v245, v245")
    for i in range(16):
        LN.I(f"v_sub_f32 v{X+i}, v{X+i}, v243")
    for i in range(8):
        LN.I(f"v_cvt_pk_bf16_f32 v{216+i}, v{X+2*i}, v{X+2*i+1}")
    for i in range(8):
        LN.I(f"v_lshlrev_b32 v{X+2*i}, 16, v{216+i}")
        LN.I(f"v_and_b32 v{X+2*i+1}, 0xffff0000, v{216+i}")
        LN.I(f"v_mul_f32 v{X+2*i}, v{X+2*i}, v245")
        LN.I(f"v_mul_f32 v{X+2*i+1}, v{X+2*i+1}, v245")
    for i in range(8):
        LN.I(f"v_cvt_pk_bf16_f32 v{216+i}, v{X+2*i}, v{X+2*i+1}")
    lnq = [x.text for x in LN.items if not x.text.startswith("s_nop")]
    if noln: lnq = []
    A.I("v_add_u32 v241, 8192, v240")
    A.I(f"s_getreg_b32 s{S_ID}, hwreg(HW_REG_XCC_ID)")
    A.I(f"s_lshr_b32 s47, s{S_ID}, 12")
    A.I(f"s_and_b32 s47, s47, 0xf0")
    A.I(f"s_and_b32 s{S_ID}, s{S_ID}, 15")
    A.I(f"s_or_b32 s{S_ID}, s{S_ID}, s47")

    WF = 144
    wfrag = lambda db, kk: WF + (db*2+kk)*4
    tr = lambda dst, areg, off: f"ds_read_b64_tr_b16 {v(dst,2)}, v{areg} offset:{off}"
    def reads1(t, db):
        r = []
        for kk in range(2):
            off = (t % 3)*16384 + kk*8192
            r += [tr(wfrag(db,kk), 8+db, off), tr(wfrag(db,kk)+2, 8+db, off+1024)]
        return r
    accK = lambda db, kb: 16 + (db*4+kb)*4
    ST.stamp()
    A.I("s_waitcnt lgkmcnt(0)")
    if upfront == 7:
        A.I("s_mov_b64 exec, 1")
        for (va, sp) in ((3, 68), (250, 64), (3, 70), (250, 66)):
            A.I(f"global_load_dword v252, v{va}, s[{sp}:{sp+1}]"); vm.issue("pr")
        A.I("s_mov_b64 exec, -1")
    if itlb == 2:
        for w, lab in enumerate(["main_d", "main_s", "b_full_full_1fd", "b_None_diag_0epi"]):
            A.I(f"s_cmp_lg_u32 s{S_WAVE}, {w}")
            A.I(f"s_cbranch_scc1 {L(f'nsu{w}')}")
            A.I(f"s_call_b64 s[56:57], {L('w2_' + lab)}")
            A.label(L(f"nsu{w}"))
    A.I(vm.wait("x"))
    A.I("s_barrier")
    for x in ccopy(0): A.I(x); lg.issue("c0")
    for db in range(7):
        for x in reads1(0, db): A.I(x); lg.issue(f"R0_{db}")
    if upfront == 3:
        issue(wdma("k", 1, 8), "Wk1"); issue(cdma(1), "C1"); issue(prer, "pr")
    if upfront in (1, 4, 6):
        issue(wdma("k", 1, 8), "Wk1"); issue(cdma(1), "C1")
    elif upfront == 2:
        if prer_mode == 1: issue(prer, "pr")
        if tlbw:
            A.I("s_mov_b64 exec, 1")
            for (va, sp) in ((3, 68), (250, 64), (3, 70), (250, 66)):
                A.I(f"global_load_dword v252, v{va}, s[{sp}:{sp+1}]"); vm.issue("pr")
            A.I("s_mov_b64 exec, -1")
        elif prer_mode == 2:
            A.I("v_lshrrev_b32 v244, 1, v3"); A.I("v_and_b32 v244, 0xffffffc0, v244")
            A.I("buffer_load_dword v252, v244, s[20:23], 0 offen"); vm.issue("pr")
            A.I("buffer_load_dword v252, v3, s[24:27], 0 offen"); vm.issue("pr")
    vslot = lambda tt: [4,5,6,0,1,7,2,3][tt]
    p2addr = lambda G: (G//8, (G//2) % 4, G % 2)
    p2areg = lambda p, dbl, win: 240 + (p % 2)*4 + dbl*2 + win
    def reads2(G):
        p, ksg, dbl = p2addr(G)
        r = []
        for k4 in range(4):
            ks = ksg*4 + k4
            byte = vslot(ks//2)*16384 + (ks % 2)*8192
            dst = WF + (G % 4)*16 + k4*4
            r += [tr(dst, p2areg(p, dbl, byte//65536), byte % 65536), tr(dst+2, p2areg(p, dbl, byte//65536), byte % 65536 + 1024)]
        return r
    def p2setup(p):
        return [f"v_subrev_u32 v{p2areg(p,dbl,win)}, {114688 - win*65536}, v{8+2*p+dbl}" for dbl in range(2) for win in (0, 1)]
    def pubxn():
        assert vm.need("nonce") is None
        A.I(f"s_mov_b32 s47, 0")
        A.label(L("npoll"))
        A.I(f"v_readfirstlane_b32 s{S_NONCE}, v249")
        A.I("s_nop 0")
        A.I(f"s_cmp_lg_u32 s{S_NONCE}, 0")
        A.I(f"s_cbranch_scc1 {L('npollok')}")
        A.I("s_add_u32 s47, s47, 1")
        A.I("s_cmp_gt_u32 s47, 0x80000")
        A.I(f"s_cbranch_scc1 {L('npollok')}")
        A.I("s_sleep 2")
        A.I("global_load_dword v249, v248, s[12:13] sc1")
        A.I("s_waitcnt vmcnt(0)")
        A.I(f"s_branch {L('npoll')}")
        A.label(L("npollok"))
        A.I(f"s_add_u32 s{S_ID}, s{S_ID}, s{S_NONCE}")
        for x in set_flag(F_XN, 248, 249, 47, S_ID): A.I(x)
        vm.issue("fl")
    lastln = [None]
    kj0 = [(accK(0,kb), accK(1,kb), kb*4) for kb in range(2)]
    BAR = barpos
    for t in range(8):
        M = []
        for db in range(8):
            for kb in range(4):
                for kk in range(2):
                    c = v(accK(db,kb),4)
                    M.append(mf(c, v(wfrag(db,kk),4), a((kb*16+2*t+kk)*4,4), "0" if (t==0 and kk==0) else c))
        A.I(lg.wait([f"R{t}_0", f"c{t}", f"c{t}_0"]))
        if t in (0, 4) or fine: ST.stamp()
        if t < 6: ops = [(d, f"Wk{t+2}", pre) for pre, d in wdma("k", t+2, 7 + (t+2) % 3)] + [(d, f"C{t+2}_{i//2}", pre) for i, (pre, d) in enumerate(cdma(t+2))]
        else: ops = [(d, f"Wv{tt}", pre) for tt in range(3*(t-6), 3*(t-6)+3) for pre, d in wdma("v", tt, vslot(tt))]
        vg = [1, 5, 11, 15, 21, 25, 29, 33, 37, 41, 45, 51] if t < 7 else [1, 5, 11, 15, 21, 27, 31, 37, 43, 49, 55, 61]
        if t == 6: vg = [BAR+2 + 4*i for i in range(12)] if False else vg
        vpos = {vg[i]: op for i, op in enumerate(ops)}
        rq = []
        if t < 7:
            for db in range(7): rq += [(8*db+8, x, f"R{t+1}_{db}") for x in reads1(t+1, db)]
        else:
            for G in range(2): rq += [(16*G+16, x, f"S{G}") for x in reads2(G)]
        cpos = {}
        if t < 7:
            cc = ccopy(t+1)
            for kb in range(4):
                for kk in range(2): cpos[[47, 49, 53, 55, 57, 59, 61, 63][kb*2+kk]] = (cc[kk*4+kb], kb, kk)
        for g in range(64):
            db = g // 8; q = g % 8
            A.I(M[g])
            if g == BAR:
                A.I((vm.wait(f"Wk{t+1}" if t < 7 else "Wv1") or "s_waitcnt") + " lgkmcnt(0)"); lg.drain()
                A.I("s_barrier")
            if t == 1 and g == 52:
                A.I(f"buffer_load_dword v252, v3, s[28:31], 0 offen"); vm.issue("pr")
            if (t, g) in ((wot, 52), (wot, 54)) and not wofb:
                A.I("global_load_dword v252, v3, s[70:71]" if g == 52 else "global_load_dword v253, v250, s[66:67]"); vm.issue("pr")
            if t == wqt and g in (53, 57) and wqtouch and not wqg:
                A.I("global_load_dword v252, v3, s[68:69]" if g == 53 else "global_load_dword v253, v250, s[64:65]"); vm.issue("pr")
            if t == xst_t and g == 63:
                assert not lnq
                A.I(f"buffer_store_dwordx4 v[216:219], v240, {WS}, 0 offen sc1"); vm.issue("xs")
                A.I(f"buffer_store_dwordx4 v[220:223], v241, {WS}, 0 offen sc1"); vm.issue("xs")
                A.I("v_mov_b32 v248, 0")
                A.I("global_load_dword v249, v248, s[12:13] sc1"); vm.issue("nonce")
            if itlb == 1 and g == BAR-1 and t in (0, 1, 2, 3):
                WARM = [["main_d", "main_s", "b_full_full_1fd", "b_full_full_1"], ["b_diag_full_0", "b_full_diag_0", "b_None_diag_0epi", "b_diag_None_0st"],
                        ["b_full_diag_1", "b_full_None_0st", "b_None_full_0last", "merge"], ["role0", "role2", "role3", "mhi"]][t]
                for w in range(4):
                    A.I(f"s_cmp_lg_u32 s{S_WAVE}, {w}")
                    A.I(f"s_cbranch_scc1 {L(f'nst{t}_{w}')}")
                    A.I(f"s_call_b64 s[{S_RET}:{S_RET+1}], {L('w_' + WARM[w])}")
                    A.label(L(f"nst{t}_{w}"))
            if g+1 in vpos and vpos[g+1][2]:
                for x in vpos[g+1][2]: A.I(x)
                if not (db == 0 and q % 2 == 0): A.I("s_nop 0") if False else None
            if q == 7 and db < 7: A.I(lg.wait(f"R{t}_{db+1}"))
            if g in (1, 3, 5): A.I(lg.wait(f"c{t}_{(g+1)//2}"))
            nds = 0
            if db == 0 and q % 2 == 0:
                A.I(reads1(t, 7)[q//2]); lg.issue(f"R{t}_7"); nds = 1
            if g > BAR and g % 2 == 0 or (g > BAR and g not in vpos and g not in cpos and rq and rq[0][0] <= g - 6):
                if rq and rq[0][0] <= g:
                    x = rq.pop(0); A.I(x[1]); lg.issue(x[2]); nds += 1
            if g in cpos:
                if cpos[g][2] == 0: A.I(vm.wait([f"C{t+1}_{cpos[g][1]}", f"C{t+1}"]))
                A.I(cpos[g][0]); lg.issue(f"c{t+1}_{cpos[g][1]}"); nds += 1
            if xst_t < 6 and t == xst_t + 2 and g == BAR + 1: pubxn()
            if t == 7 and g == 8:
                for x in p2setup(0): A.I(x)
                A.I(f"s_mov_b32 s52, {QSCALE}")
            if t == 7 and g in (18, 34, 50):
                s_ = (g-18)//16
                lnq += [f"v_mul_f32 v{r+k}, s52, v{r+k}" for kb in range(4) for r in (accK(2*s_,kb), accK(2*s_+1,kb)) for k in range(4)]
            if g in vpos:
                A.I(vpos[g][0]); vm.issue(vpos[g][1])
            nln = 0 if (g in vpos or nds > 1) else (1 if nds else 2)
            while nln and lnq:
                x = lnq[0]
                sp = ("row_ror" in x or "permlane" in x or "sqrt" in x or "rcp" in x)
                if sp and nln == 2 and lastln[0] == (t, g): break
                A.I(lnq.pop(0)); nln -= 1
                dep = sp or (lnq and ("row_ror" in lnq[0] or "permlane" in lnq[0]))
                lastln[0] = (t, g)
                if dep:
                    if lnq and ("row_ror" in lnq[0] or "permlane" in lnq[0]): A.I("s_nop 0")
                    break
        assert not rq, (t, len(rq))
    ST.stamp()
    def cvt_frag(r0, r1):
        return [f"v_cvt_pk_bf16_f32 v{r0}, v{r0}, v{r0+1}", f"v_cvt_pk_bf16_f32 v{r0+1}, v{r0+2}, v{r0+3}",
                f"v_cvt_pk_bf16_f32 v{r0+2}, v{r1}, v{r1+1}", f"v_cvt_pk_bf16_f32 v{r0+3}, v{r1+2}, v{r1+3}"]
    def store_frag(r0, f):
        return [f"s_add_u32 s47, s46, {(f>>2)*4096}", f"buffer_store_dwordx4 {v(r0,4)}, v{V_L16}, {WS}, s47 offen offset:{(f&3)*1024}{kvsc}"]
    accV = lambda p, dbl, kb: (208 + dbl*16 if p % 2 == 0 else (128, 96)[dbl]) + kb*4
    epi = {}
    kj = [(accK(2*s_,kb), accK(2*s_+1,kb), kb*4+s_) for s_ in range(4) for kb in range(4)]
    for i, job in enumerate(kj): epi.setdefault(i//2, []).append(job)
    sts = {}
    for i, job in enumerate(kj): sts[[0,1,2,3, 4,5,6,7, 8,10,12,14, 16,18,20,22][i]] = job
    for p in range(3):
        vj = [(accV(p,dbl,2*j), accV(p,dbl,2*j+1), 16 + j*8 + 2*p+dbl) for dbl in range(2) for j in range(2)]
        for i, job in enumerate(vj):
            G_ = (p+1)*8 + (1 + 2*i if p < 2 else i)
            epi.setdefault(G_, []).append(job); sts[G_] = job
    RB = [138240, 87040, 61440, 112640]
    QBASE = 87040
    def qwdma(t):
        slot = RB[t % 4]
        return [(rotk(t, 19, 44, S_TMP) + [f"s_add_u32 m0, s{S_W4K}, {slot}"], f"buffer_load_dwordx4 v4, s[{SRD_WQ}:{SRD_WQ+3}], s{S_TMP} offen lds")] + \
               [(None, f"buffer_load_dwordx4 v{4+j}, s[{SRD_WQ}:{SRD_WQ+3}], s{S_TMP} offen offset:{j*1024} lds") for j in range(1, 4)] + \
               [([f"s_add_u32 s{S_TMP}, s33, {t*64*2752}",
                  f"s_add_u32 m0, s35, {slot+16384}"], f"buffer_load_dwordx4 v16, s[{SRD_W1}:{SRD_W1+3}], s{S_TMP} offen lds"),
                (None, f"buffer_load_dwordx4 v17, s[{SRD_W1}:{SRD_W1+3}], s{S_TMP} offen offset:1152 lds")]
    def xload(t):
        r = []
        for qb in range(4):
            for kk in range(2):
                pre = None
                if qb == 0 and kk == 0: pre = rotk(t, 11, 34, S_TMP2)
                elif kk == 0: pre = [f"s_add_u32 s{S_TMP2}, s{S_TMP2}, 16384"]
                r.append((pre, f"buffer_load_dwordx4 {a((qb*16+2*t+kk)*4,4)}, v{V_L16}, {WS}, s{S_TMP2} offen offset:{kk*1024}{xsc}"))
        return r
    WR = 208
    def blk(n):
        t, c = n//11, n % 11
        return t, (c if t < 7 else (c+8) % 11)
    def breads(n):
        t, cb = blk(n)
        r = []
        so = RB[t % 4] - QBASE
        if so < 0: so = 0
        for kk in range(2):
            dst = WR + (n % 6)*8 + kk*4
            if cb < 8: off = so + kk*8192; areg = 8+cb; h2 = 1024
            else: off = so + kk*4608 + (cb-8)*32; areg = 18; h2 = 384
            r += [tr(dst, areg, off), tr(dst+2, areg, off+h2)]
        return r
    def bump(n):
        t, cb = blk(n)
        if cb <= 8 and t % 4 in (2, 3):
            areg = 8+cb if cb < 8 else 18
            return [f"v_subrev_u32 v{areg}, {WSLOT}, v{areg}" if t % 4 == 2 else f"v_add_u32 v{areg}, {WSLOT}, v{areg}"]
        return []
    q_setup_s = [
        f"s_load_dwordx2 s[4:5], s[0:1], {KA['wq']}", f"s_load_dwordx4 s[8:11], s[0:1], {KA['w1']}",
        f"s_lshl_b32 s{S_T2}, s{S_T}, 1",
        f"s_lshr_b32 s{S_STRM}, s{S_WAVE}, 1", f"s_lshl_b32 s{S_STRM}, s{S_STRM}, 16",
        f"s_and_b32 s{S_TMP}, s{S_WAVE}, 1", f"s_lshl_b32 s{S_TMP}, s{S_TMP}, 2",
        f"s_lshr_b32 s{S_TMP2}, s{S_WAVE}, 1", f"s_xor_b32 s{S_TMP2}, s{S_TMP2}, s{S_WAVE}", f"s_and_b32 s{S_TMP2}, s{S_TMP2}, 1", f"s_lshl_b32 s{S_TMP2}, s{S_TMP2}, 2",
        f"s_sub_u32 s{S_QA}, 15, s{S_T}", f"s_lshl_b32 s{S_QA}, s{S_QA}, 3", f"s_add_u32 s{S_QA}, s{S_QA}, s{S_TMP2}",
        f"s_lshl_b32 s{S_Q0}, s{S_T}, 3", f"s_add_u32 s{S_Q0}, s{S_Q0}, s{S_TMP}",
        f"s_cmp_lt_u32 s{S_WAVE}, 2", f"s_cselect_b32 s{S_Q0}, s{S_QA}, s{S_Q0}",
        f"s_lshl_b32 s{S_KVB}, s{S_H}, 20", f"s_add_u32 s{S_KVB}, s{S_KVB}, s{S_W4K}", f"s_add_u32 s{S_KVB}, s{S_KVB}, {WS_KV}",
        f"s_and_b32 s7, s{S_H}, 1", "s_lshl_b32 s6, s7, 5", "s_lshl_b32 s7, s7, 1",
        f"s_mul_i32 s32, s{S_H}, 96", f"s_mul_i32 s33, s{S_WAVE}, {16*2752}", f"s_add_u32 s33, s33, s32",
        f"s_lshl_b32 s34, s{S_Q0}, 14", f"s_add_u32 s34, s34, {xdiag}", f"s_mul_i32 s35, s{S_WAVE}, 2304",
        "s_add_u32 s53, s32, s6", "s_lshl_b32 s6, s6, 1", "s_sub_u32 s54, s32, s6"]
    q_setup_v = [
        f"v_mul_u32_u24 v20, 43, v1", "v_lshrrev_b32 v20, 8, v20", "v_mul_u32_u24 v21, 6, v20", "v_sub_u32 v21, v1, v21",
        "v_add_u32 v21, s7, v21", "v_subrev_u32 v22, 6, v21", "v_min_u32 v21, v21, v22",
        "v_mul_u32_u24 v16, 2752, v20", "v_lshl_add_u32 v16, v21, 4, v16", "v_cmp_gt_u32 vcc, 48, v1", f"v_mov_b32 v20, {OOB}",
        "v_lshrrev_b32 v21, 4, v1", "v_cndmask_b32 v16, v20, v16, vcc", f"v_add_u32 v17, {8*2752-1152}, v16",
        "v_mul_u32_u24 v18, 1152, v21", "v_bfe_u32 v22, v1, 2, 2", "v_mul_u32_u24 v22, 96, v22", "v_add_u32 v18, v18, v22",
        "v_and_b32 v22, 3, v1", "v_lshl_add_u32 v18, v22, 3, v18", f"v_add_u32 v18, {QBASE+16384}, v18",
        "v_lshlrev_b32 v19, 3, v21",
        "v_and_b32 v24, 31, v1", "v_lshlrev_b32 v24, 7, v24"]
    def srd_list(dst, ptr, nbytes):
        return [f"s_mov_b32 s{dst}, s{ptr}", f"s_mov_b32 s{dst+1}, s{ptr+1}", f"s_mov_b32 s{dst+2}, {nbytes}", f"s_mov_b32 s{dst+3}, 0x20000"]
    extra = {}
    def put(G, g, items): extra.setdefault((G, g), []).extend(items)
    for i, x in enumerate(q_setup_s): put(2 + i//12, (4, 5, 6, 8, 9, 10, 11, 12, 13, 14, 14, 14)[i % 12] if i < 12 else (0, 1, 2, 3, 4, 5, 8, 9, 10, 11, 12, 13)[i % 12], [x])
    for i, x in enumerate(q_setup_v): put(5 + i//10, (1, 3, 5, 5, 9, 9, 11, 11, 13, 13)[i % 10], [x])
    put(5, 15, ["s_waitcnt lgkmcnt(0)"])


    for i, x in enumerate(srd_list(SRD_WQ, 4, 4*MB) + srd_list(SRD_W1, 8, 512*2752) + srd_list(SRD_B1, 10, 2752)): put(6, i, [x])
    put(8, 1, [f"s_lshl_b32 s{S_TMP}, s{S_Q0}, 10", f"s_add_u32 s{S_TMP}, s{S_TMP}, {flag_base(F_XN)}"])
    put(8, 3, [f"v_add_u32 v24, s{S_TMP}, v24"])
    put(pxg, 13, [(f"buffer_load_dword v25, v24, {WS}, 0 offen sc1", "pollx")])
    for fb in range(3):
        put(8, 7+2*fb, [(f"buffer_load_dwordx2 v[{26+2*fb}:{27+2*fb}], v19, s[{SRD_B1}:{SRD_B1+3}], s{53 if fb < 2 else 54} offen offset:{fb*32}", "b")])
    def put_ops(G0, g0, lst, tag, step=2):
        G, g = G0, g0
        for pre, x in lst:
            if pre: put(G, g-1, [("P", y) for y in pre])
            put(G, g, [(x, tag)])
            g += step
            while g > 15: G += 1; g -= 16
        return G, g
    if tlb:
        tl = [f"s_mul_i32 s52, s{S_Q0}, 49152", f"s_add_u32 s52, s52, {WS_H}", ("H",),
              f"s_lshl_b32 s52, s{S_Q0}, 17", f"s_add_u32 s52, s52, {WS_CTX}", ("C",),
              f"s_lshl_b32 s52, s{S_QA}, 17", f"s_add_u32 s52, s52, {WS_CTX}", ("C",),
              "s_lshl_b32 s52, s2, 16", f"s_add_u32 s52, s52, {WS_QST}", ("Q",),
              "s_lshl_b32 s52, s2, 16", f"s_add_u32 s52, s52, {WS_PART}", ("P",)]
        for i in range(5):
            put(7, 3*i, [tl[3*i], tl[3*i+1]])
            put(7, 3*i+1, [(f"buffer_load_dword v252, v{V_L16}, {WS}, s52 offen", "pr")])
    put_ops(0, 1, wdma("v", 6, vslot(6)), "Wv6", 4)
    put_ops(1, 1, wdma("v", 7, vslot(7)), "Wv7", 4)
    cp2 = code_pf(32768, 32768, 32, 44)
    put(9, 1, cp2[:3]); put(9, 3, cp2[3:6]); put(9, 5, [cp2[6]]); put(9, 7, [(cp2[7], "pf2")])
    put(9, 11, ["v_add_u32 v33, 0x8000, v32"]); put(9, 13, [("global_load_dwordx4 v[44:47], v33, s[62:63]", "pf2")])
    if wqg:
        put(wqg+1, 1, [("global_load_dword v252, v3, s[68:69]", "pr")]); put(wqg+1, 5, [("global_load_dword v253, v250, s[64:65]", "pr")])
    put_ops(pxc+9, 3, qwdma(0), "W0", 6)
    XS = lambda i: (64, 48, 32, 80)[i//4] + (i % 4)*4
    xs01 = [(pre, x.replace(x.split()[1], v(XS(i), 4) + ",")) for i, (pre, x) in enumerate(xload(0) + xload(1))]
    put_ops(pxc, 7, xs01, "X01", 8)
    for nb in range(8): put(23, 1+2*nb, [f"v_subrev_u32 v{8+nb}, {114688-QBASE}, v{8+nb}"])
    put(27, 0, ["WAITX"])
    mv = []
    for i in range(16):
        t_, qb, kk = i//8, (i//2) % 4, i % 2
        mv += [f"v_accvgpr_write_b32 a{(qb*16+2*t_+kk)*4+r}, v{XS(i)+r}" for r in range(4)]
    for i, x in enumerate(mv): put(27 + i//16, 1 + 2*((i % 16)//2), [x])
    put_ops(28, 3, qwdma(1), "W1", 4)
    put_ops(30, 1, xload(2), "X2", 4)
    for G in range(32):
        p, ksg, dbl = p2addr(G)
        M = []
        for kb in range(4):
            for k4 in range(4):
                ks = ksg*4+k4
                c = v(accV(p,dbl,kb),4)
                M.append(mf(c, a((kb*16+ks)*4,4), v(WF + (G%4)*16 + k4*4,4), "0" if ks == 0 else c))
        w = lg.wait(f"S{G}")
        if w: A.I(w)
        if G in (4, 12, 20, 27) and not fine or (fine and G % 4 == 0 and G > 0): ST.stamp()
        if G == pxc:
            A.I(vm.wait(["pollx", "b"]))
            poll_check(24, 25, S_TMP, vmask=23)
            for fb in range(3):
                for k in range(2):
                    A.I(f"v_lshlrev_b32 v{32+fb*4+2*k}, 16, v{26+2*fb+k}")
                    A.I(f"v_and_b32 v{33+fb*4+2*k}, 0xffff0000, v{26+2*fb+k}")
            for i in range(12): A.I(f"v_mov_b32 v{20+i}, v{32+i}")
        if G in (0, 2, 5):
            A.I(vm.wait({0: "Wv3", 2: "Wv5", 5: "Wv7"}[G]))
            A.I("s_barrier")
        if G == 0 and xst_t == 6: pubxn()
        rsched = {0: [2], 1: [3], 2: [4], 3: [5], 4: [], 5: [6, 7], 6: [8, 9]}.get(G, [G+3] if G+3 < 32 else [])
        rl = [(x, f"S{G2}") for G2 in rsched for x in reads2(G2)]
        if G == 28:
            A.I(vm.wait("W0"))
            A.I("s_barrier")
        jobs = epi.get(G, [])
        ml = []
        if G < 8:
            if G == 0: lnq += [f"v_mul_f32 v{r+k}, s52, v{r+k}" for kb in range(4) for r in (accK(6,kb), accK(7,kb)) for k in range(4)]
            ml = lnq
            while len(lnq) > 128 - 16*(G+1): A.I(lnq.pop(0)); print("flush mul", G)
        cv = []; st = {}
        for i, (r0, r1, f) in enumerate(jobs): cv += cvt_frag(r0, r1)
        if G in sts: st[15 if G < 8 else 11] = store_frag(sts[G][0], sts[G][2])
        for g in range(16):
            A.I(M[g])
            ex = extra.get((G, g), [])
            for x in ex:
                if x == "WAITX": A.I(vm.wait("X01"))
                elif isinstance(x, tuple) and x[0] == "P": A.I(x[1])
                elif isinstance(x, str) and x.startswith("s_"):
                    A.I(x)
                    if x == "s_waitcnt lgkmcnt(0)": lg.drain()
            if g in st: A.I(st[g][0])
            if rl and g not in st and (g % 2 == 0 or len(rsched) > 1):
                for _ in range(2 if len(rl) > 15 - g and len(rsched) > 1 else 1):
                    if rl:
                        x = rl.pop(0); A.I(x[0]); lg.issue(x[1])
            if G >= 29 and g % 2 == 0:
                n = (G-29)*2 + g//8
                if n < 5: A.I(breads(n)[(g//2) % 4]); lg.issue(f"R{n}")
            if g in st:
                A.I(st[g][1]); vm.issue("st")
            for x in ex:
                if isinstance(x, tuple) and x[0] != "P": A.I(x[0]); vm.issue(x[1])
                elif isinstance(x, str) and not x.startswith("s_") and x != "WAITX": A.I(x)
            if g % 2 == 1 and g not in st:
                for _ in range(0 if any(isinstance(x, tuple) and x[0] != 'P' for x in ex) else 2):
                    if ml: A.I(ml.pop(0))
            if len(jobs) > 1:
                if g % 2 == 0: A.I(cv[g//2])
            elif len(jobs) == 1 and g % 2 == 0 and g < 8:
                A.I(cv[g//2])
            if (G+4) % 8 == 0 and G+4 < 32 and g in (1, 3, 5, 9):
                A.I(p2setup((G+4)//8)[(1,3,5,9).index(g)])
        assert not rl, G
    A.I("s_barrier")
    ST.stamp()
    A.label(L("qgemm"))
    def kvdma(tile, voff, ldsoff):
        return [([f"s_add_u32 s{S_TMP}, s{S_KVB}, {tile*32768+voff}", f"s_add_u32 m0, s{S_W4K}, {ldsoff}"] if j == 0 else None,
                 f"buffer_load_dwordx4 v{V_L16}, {WS}, s{S_TMP} offen offset:{j*1024} sc1 lds") for j in range(4)]
    xt = {t: f"X{t}" for t in range(8)}
    pend = []
    gel = []
    for qb in range(4):
        for fb in range(3):
            x0 = accF(fb, qb); T = [20+r for r in range(4)]
            for r in range(4): gel.append(f"v_mul_f32 v{T[r]}, v{x0+r}, v{x0+r}")
            for r in range(4): gel.append(f"v_fma_f32 v{T[r]}, v{T[r]}, s32, v28")
            for r in range(4): gel.append(f"v_mul_f32 v{T[r]}, v{T[r]}, v{x0+r}")
            for r in range(4): gel.append(f"v_exp_f32 v{T[r]}, v{T[r]}")
            for r in range(4): gel.append(f"v_add_f32 v{T[r]}, 1.0, v{T[r]}")
            for r in range(4): gel.append(f"v_rcp_f32 v{T[r]}, v{T[r]}")
            for r in range(4): gel.append(f"v_mul_f32 v{x0+r}, v{x0+r}, v{T[r]}")
            d0 = accF(0, qb) + 2*fb if fb < 2 else x0
            gel.append(f"v_cvt_pk_bf16_f32 v{d0}, v{x0}, v{x0+1}")
            gel.append(f"v_cvt_pk_bf16_f32 v{d0+1}, v{x0+2}, v{x0+3}")
            if fb == 1:
                gel.append(f"s_add_u32 s35, s34, {qb*49152}")
                gel.append(f"buffer_store_dwordx4 {v(accF(0,qb),4)}, v29, {WS}, s35 offen sc1")
            if fb == 2:
                gel.append(f"buffer_store_dwordx2 {v(x0,2)}, v30, {WS}, s35 offen sc1")
    qfin = []
    for s_ in range(4):
        grp = []
        for qb in range(4):
            r0, r1 = accQ(2*s_, qb), accQ(2*s_+1, qb)
            grp += cvt_frag(r0, r1)
            grp.append(f"ds_write_b128 v27, {v(r0,4)} offset:{(qb*4+s_)*1024}")
        qfin.append(grp)
    vq = []; sq = []
    def take(budget):
        while budget > 0 and (vq or (gel and gel_ok[0])):
            src = vq if vq else gel
            x = src[0]
            cost = 2 if ("v_exp" in x or "v_rcp" in x or "buffer" in x or "ds_write" in x) else (0 if x.startswith("s_") else 1)
            if cost > budget: break
            A.I(src.pop(0)); budget -= cost
            if "buffer" in x: vm.issue("hs")
            if "ds_write" in x: lg.issue("qs")
    gel_ok = [False]
    pfq = []
    slotok = lambda gg, t: (gg % 6 == 1) if qeven else (gg % 4 == 1)
    tail = []
    for dbl in (1, 0):
        for j in range(2):
            r0, r1 = accV(3,dbl,2*j), accV(3,dbl,2*j+1)
            tail.append((cvt_frag(r0, r1), store_frag(r0, 16 + j*8 + 6+dbl)))
    for n in range(88):
        t, cb = blk(n)
        c_ = n % 11
        if n == 66:
            for x in [f"s_mov_b32 s32, {G2}", f"s_mov_b32 s33, {G1}", "v_mov_b32 v28, s33",
                      f"s_mul_i32 s34, s{S_Q0}, 49152", f"s_add_u32 s34, s34, {WS_H}",
                      f"s_mul_i32 s47, s{S_H}, 3", "s_add_u32 s35, s47, 1", "s_lshr_b32 s35, s35, 1", "s_lshl_b32 s35, s35, 10",
                      f"v_add_u32 v29, s35, v{V_L16}",
                      f"s_and_b32 s47, s{S_H}, 1", f"s_mul_i32 s47, s47, {8-2048}", "s_add_u32 s47, s47, 1024", "v_add_u32 v30, s47, v29",
                      "s_lshl_b32 s61, s2, 1", f"s_lshr_b32 s47, s{S_WAVE}, 1", f"s_xor_b32 s47, s47, s{S_WAVE}", "s_and_b32 s47, s47, 1",
                      "s_add_u32 s61, s61, s47", "s_lshl_b32 s61, s61, 15", f"s_add_u32 s61, s61, {WS_QST}",
                      "s_lshl_b32 s47, s47, 14", "s_add_u32 s47, s47, 131072", f"v_add_u32 v31, s47, v{V_L16}",
                      f"s_cmp_lt_u32 s{S_WAVE}, 2", f"s_cselect_b32 s47, s47, 0x10000", f"v_add_u32 v27, s47, v{V_L16}"]: A.I(x)
        if n == 68:
            sq += [f"s_mov_b32 s{S_I}, -1", f"s_add_u32 s{S_E}, s{S_T2}, 2", f"s_add_u32 s{S_C}, s{S_T2}, 4", f"s_sub_u32 s{S_DG}, 30, s{S_T2}", f"s_mov_b32 s{S_FAIL}, 0"] + \
                  tile_calc(S_K0, 3, 0, 0) + tile_calc(S_V0, 2, 0, 16384) + lds_calc() + tile_calc(S_K1, 3, 1, 0) + tile_calc(S_V1, 2, 1, 16384) + [f"s_mov_b32 s{S_I}, 0"]
            vq += ["v_and_b32 v24, 15, v1", "v_lshrrev_b32 v25, 4, v1", "v_lshlrev_b32 v25, 2, v25"]
            for r in range(4):
                vq += [f"v_add_u32 v26, {r}, v25", f"v_cmp_le_u32 s[{S_MASK+2*r}:{S_MASK+2*r+1}], v26, v24"]
            vq += ["v_and_b32 v24, 3, v1", "v_cmp_eq_u32 vcc, 0, v24", "v_mov_b32 v25, 0x3f803f80", "v_nop", "v_cndmask_b32 v24, 0, v25, vcc"]
            vq += [f"v_accvgpr_write_b32 a{ONES+i}, v24" for i in range(4)]
        if t == 7:
            if c_ == 4:
                gel_ok[0] = True
                A.I("s_barrier")
            if c_ >= 6 and c_ % 2 == 0: vq += qfin[(c_-6)//2]
        if c_ == 0:
            w = vm.wait(xt[t])
            if w: A.I(w)
            if t <= 5: pend += [(p, x, f"W{t+2}") for p, x in qwdma(t+2)]
            if t <= 4: pend += [(p, x, f"X{t+3}") for p, x in xload(t+3)]
            if t == 0:
                A.I(f"s_and_b32 s{S_TMP}, s2, 31")
                A.I(f"s_lshl_b32 s{S_TMP}, s{S_TMP}, 9")
                A.I(f"s_add_u32 s{S_TMP}, s{S_TMP}, {flag_base(F_XN)}")
                A.I("v_bfe_u32 v3, v1, 2, 3")
                A.I("v_lshlrev_b32 v3, 14, v3")
                A.I("v_and_b32 v19, 3, v1")
                A.I("v_lshl_add_u32 v3, v19, 7, v3")
                A.I(f"v_add_u32 v3, s{S_TMP}, v3")
                A.I(f"buffer_load_dword v19, v3, {WS}, 0 offen sc1"); vm.issue("pollid")
            if t == 5:
                cp3 = code_pf(34816, 65536, 3, 20)
                for x in cp3: A.I(x)
                vm.issue("pf3")
            if t == 5: pend += [(p, x, "KV0") for p, x in kvdma(0, 0, 0) + kvdma(1, 0, 16384)]
            if t == pft:
                for i in range(4): A.I(f"v_accvgpr_write_b32 a{i}, -1")
                for x in [f"s_lshl_b32 s64, s2, 2", f"s_add_u32 s64, s64, s{S_WAVE}", f"s_lshl_b32 s64, s64, 13", f"s_add_u32 s64, s64, {WS_PART}", f"s_add_u32 s65, s64, 4096"]: A.I(x)
                pfq += [f"buffer_store_dwordx4 a[0:3], v{V_L16}, {WS}, s{64+i//4} offen offset:{(i%4)*1024} sc1" for i in range(8)]
            if t == 6: pend += [(p, x, "KV0") for p, x in kvdma(0, 16384, 32768)]
            if t == 3:
                A.I(f"v_add_u32 v3, {flag_base(F_KV) - flag_base(F_XN)}, v3")
                A.I(f"buffer_load_dword v19, v3, {WS}, 0 offen sc1"); vm.issue("pollkv")
            if t == 4:
                A.I(vm.wait("pollkv"))
                poll_check(3, 19, 47)
        w = lg.wait(f"R{n}")
        if w: A.I(w)
        if c_ == 0 and (t in (2, 4, 6) or (fine and t > 0)): ST.stamp()
        if c_ == 6 and t < 7:
            tags = [f"W{t+1}"] + (["st"] if t == 1 else [])
            A.I(vm.wait(tags))
            A.I("s_barrier")
            if t == 1:
                assert vm.need("pollid") is None
                poll_check(3, 19, 47, vmask=31)
                A.I(f"v_cmp_ne_u32 vcc, s{S_ID}, v19")
                A.I(f"s_cbranch_vccz {L('samexcd')}")
                A.I("buffer_wbl2 sc1")
                A.I("s_waitcnt vmcnt(0)")
                A.label(L("samexcd"))
                for x in set_flag(F_KV, 31, 19, 47): A.I(x)
                vm.issue("fl")
        nx = n+5
        rds = breads(nx) if nx < 88 else []
        if nx < 88:
            for x in bump(nx): A.I(x)
        i = 0
        for qb in range(4):
            for kk in range(2):
                if cb < 8: d = v(accQ(cb, qb), 4); c0 = "0"
                else: d = v(accF(cb-8, qb), 4); c0 = v(20+(cb-8)*4, 4)
                A.I(mf(d, v(WR + (n % 6)*8 + kk*4, 4), a((qb*16+2*t+kk)*4, 4), c0 if (t == 0 and kk == 0) else d))
                if i % 2 == 0:
                    if pend and pend[0][0] and slotok(c_*8 + i + 1, t):
                        for y in pend[0][0]: A.I(y)
                        pend[0] = (None,) + pend[0][1:]
                        if not rds: A.I("s_nop 0")
                    if rds: A.I(rds[i//2]); lg.issue(f"R{nx}")
                elif pend and slotok(c_*8 + i, t) and not pend[0][0]:
                    p, x, tag = pend.pop(0)
                    A.I(x); vm.issue(tag)
                if pfq and i == 3 and n % pfs == 0:
                    A.I(pfq.pop(0)); vm.issue("pfl")
                tn = {1: 0, 2: 1, 4: 2, 5: 3}.get(n)
                if tn is not None:
                    if i % 2 == 0: A.I(tail[tn][0][i//2])
                    if i == 7:
                        for x in tail[tn][1]: A.I(x)
                        vm.issue("st")
                if n >= 68:
                    if sq: A.I(sq.pop(0))
                    take(1 if (i % 2 == 0 and rds) else (0 if (i == 3 and n % pfs == 0 and n < 55 + 8*pfs) else 2))
                i += 1
    assert not pend and not pfq
    assert not sq
    qrest = vq + qfin[3]
    k2.WTOUCH[:] = ["s_lshl_b32 s7, s2, 2", f"s_add_u32 s7, s7, s{S_WAVE}", "v_and_b32 v18, 31, v1", "v_lshlrev_b32 v18, 7, v18", "v_min_u32 v17, 0x500, v18",
              "s_lshl_b32 s33, s7, 12", "v_add_u32 v18, s33, v18", "s_mul_i32 s7, s7, 1408", "v_add_u32 v17, s7, v17", f"v_min_u32 v17, {1376*1024-4}, v17",
              "global_load_dword v4, v18, s[70:71]", "global_load_dword v4, v17, s[66:67]"]
    k2.WOFB[0] = wofb
    if wofb: k2.WTOUCH[:] = k2.WTOUCH[:-2]
    elif not wotouch: k2.WTOUCH[:] = []
    ST.stamp()
    SP, SRT, SCT, SQH, SKH, SBB, SBS, SNV, SWB, SM0 = 64, 65, 66, 67, 68, 69, 70, 71, 4, 5
    T0, T1, T2 = 6, 7, 35
    SEARLY = 58
    WW, SX, SO, SB2 = 20, 24, 28, 12
    vm4 = Cnt("vmcnt", 63)
    def slot4(u):
        return [2, 0, 1, 3][(u-1) % 4]*16384
    def w4dma(u):
        r = []
        for i in range(8):
            pre = None
            if i % 4 == 0:
                m0 = f"s_add_u32 m0, s{SM0}, {slot4(u) + (i//4)*4096}" if u > 0 else f"s_add_u32 m0, s{T1}, {(i//4)*4096}"
                pre = [f"s_add_u32 s{T0}, s{SWB}, {u*65536 + (i//4)*16384}", m0]
            r.append((pre, f"buffer_load_dwordx4 v{4+i%4}, s[{WW}:{WW+3}], s{T0} offen offset:{(i%4)*1024} lds"))
        return r
    def issue4(lst, tag):
        for pre, x in lst:
            if pre:
                for y in pre: A.I(y)
                if "lds" in x: A.I("s_nop 0")
            A.I(x); vm4.issue(tag)
    Bf = lambda u, qb, kk: 128 + (u % 4)*32 + (qb*2+kk)*4
    def bload(u):
        r = []
        for qb in range(4):
            for kk in range(2):
                ks = 2*u+kk
                pre = []
                if qb == 0 and kk == 0: pre.append(f"s_add_u32 s{T1}, s{SBB}, {(ks>>2)*4096}")
                elif kk == 0: pre.append(f"s_add_u32 s{T1}, s{T1}, s{SBS if qb != 2 else 48}")
                so = T1
                if ks >= 18:
                    pre += [f"s_cmp_gt_u32 s{SNV}, {ks}", f"s_cselect_b32 s{T2}, s{T1}, {OOB}"]
                    so = T2
                r.append((pre or None, f"buffer_load_dwordx4 {a(Bf(u,qb,kk),4)}, v{V_L16}, {WS}, s{so} offen offset:{(ks&3)*1024}{csc}"))
        return r
    def oproj_setup(stage):
        if stage == 0:
            Z = Asm()
            Z.I(f"s_load_dwordx2 s[8:9], s[0:1], {KA['wo']}")
            Z.I(f"s_load_dwordx4 s[12:15], s[0:1], {KA['w2']}")
            Z.I(f"s_load_dwordx2 s[24:25], s[0:1], {KA['x']}")
            Z.I(f"s_load_dwordx2 s[28:29], s[0:1], {KA['out']}")
            Z.I(f"s_and_b32 s{SP}, s2, 3")
            Z.I(f"s_lshr_b32 s{T0}, s2, 3")
            Z.I(f"s_and_b32 s{SCT}, s{T0}, 3")
            Z.I(f"s_lshr_b32 s{SRT}, s{T0}, 2")
            Z.I(f"s_and_b32 s{T1}, s2, 4")
            Z.I(f"s_lshl_b32 s{T1}, s{T1}, 1")
            Z.I(f"s_add_u32 s{SRT}, s{SRT}, s{T1}")
            Z.I(f"s_and_b32 s{SQH}, s{S_WAVE}, 1")
            Z.I(f"s_lshr_b32 s{SKH}, s{S_WAVE}, 1")
            Z.I(f"s_lshl_b32 s{T0}, s{SP}, 1")
            Z.I(f"s_add_u32 s{T0}, s{T0}, s{SKH}")
            Z.I(f"s_cmp_eq_u32 s{T0}, 5")
            Z.I(f"s_cselect_b32 s{SNV}, 18, 22")
            Z.I(f"s_sub_u32 s{T1}, 22, s{SKH}")
            Z.I(f"s_cmp_eq_u32 s{SP}, 3")
            Z.I(f"s_cselect_b32 s{SNV}, s{T1}, s{SNV}")
            Z.I(f"s_cselect_b32 s{T0}, s{SKH}, s{T0}")
            Z.I(f"s_mov_b32 s{T2}, 131072")
            Z.I(f"s_cselect_b32 s{SBS}, 49152, s{T2}")
            Z.I(f"s_mov_b32 s{T2}, {WS_CTX}")
            Z.I(f"s_cselect_b32 s{SBB}, {WS_H}, s{T2}")
            Z.I(f"s_mul_i32 s{T0}, s{T0}, 22")
            Z.I(f"s_lshl_b32 s{T1}, s{SRT}, 3")
            Z.I(f"s_lshl_b32 s{T2}, s{SQH}, 2")
            Z.I(f"s_add_u32 s{T1}, s{T1}, s{T2}")
            Z.I(f"s_lshl_b32 s{T2}, s{SKH}, 1")
            Z.I(f"s_add_u32 s{T1}, s{T1}, s{T2}")
            Z.I(f"s_lshl_b32 s49, s{T1}, 14")
            Z.I(f"s_mul_i32 s48, s{SKH}, -4")
            Z.I(f"s_add_i32 s48, s48, 1")
            Z.I(f"s_mul_i32 s48, s48, s{SBS}")
            Z.I(f"s_mul_i32 s{T1}, s{T1}, s{SBS}")
            Z.I(f"s_add_u32 s{SBB}, s{SBB}, s{T1}")
            Z.I(f"s_lshl_b32 s{T1}, s{T0}, 10")
            Z.I(f"s_add_u32 s{SBB}, s{SBB}, s{T1}")
            Z.I(f"s_add_u32 s{T0}, s{T0}, s{SQH}")
            Z.I(f"s_lshl_b32 s{SWB}, s{T0}, 15")
            Z.I(f"s_lshl_b32 s{T1}, s{SCT}, 8")
            Z.I(f"s_add_u32 s{SWB}, s{SWB}, s{T1}")
            Z.I(f"s_lshl_b32 s{SM0}, s{SKH}, 16")
            Z.I(f"s_lshl_b32 s{T1}, s{SQH}, 13")
            Z.I(f"s_add_u32 s{SM0}, s{SM0}, s{T1}")
            Z.I("v_and_b32 v16, 15, v1")
            Z.I("v_lshrrev_b32 v17, 4, v1")
            Z.I("v_lshrrev_b32 v18, 1, v16")
            Z.I("v_xor_b32 v18, v18, v17")
            Z.I("v_and_b32 v19, 1, v16")
            Z.I("v_lshlrev_b32 v19, 4, v19")
            Z.I("v_lshl_add_u32 v19, v17, 10, v19")
            Z.I("v_lshl_add_u32 v4, v18, 5, v19")
            Z.I("v_xor_b32 v18, 4, v18")
            Z.I("v_lshl_add_u32 v5, v18, 5, v19")
            Z.I(f"v_add_u32 v6, {2*3072}, v4")
            Z.I(f"v_add_u32 v7, {3*3072}, v5")
            Z.I(f"v_add_u32 v5, {3072}, v5")
            Z.I("s_waitcnt lgkmcnt(0)")
            Z.I(f"s_cmp_eq_u32 s{SP}, 3")
            Z.I(f"s_cselect_b32 s{WW}, s12, s8")
            Z.I(f"s_cselect_b32 s{WW+1}, s13, s9")
            Z.I(f"s_mov_b32 s{T1}, {4*MB}")
            Z.I(f"s_cselect_b32 s{WW+2}, {1376*1024}, s{T1}")
            Z.I(f"s_mov_b32 s{WW+3}, 0x20000")
            Z.I(f"s_mov_b32 s12, s14"); Z.I(f"s_mov_b32 s13, s15"); Z.I(f"s_mov_b32 s14, 1024"); Z.I(f"s_mov_b32 s15, 0x20000")
            Z.I(f"s_mov_b32 s26, {2*MB}"); Z.I("s_mov_b32 s27, 0x20000"); Z.I(f"s_mov_b32 s30, {2*MB}"); Z.I("s_mov_b32 s31, 0x20000")
            Z.I(f"s_lshl_b32 s{T1}, s{SKH}, 14")
            Z.I(f"s_lshl_b32 s{T2}, s{SQH}, 13")
            Z.I(f"s_add_u32 s{T1}, s{T1}, s{T2}")
            Z.I(f"s_add_u32 s{T1}, s{T1}, 131072")
            for pre, x in w4dma(0):
                for y in (pre or []): Z.I(y)
                if pre: Z.I("s_nop 0")
                Z.I(x)
            Z.I("v_bfe_u32 v16, v1, 2, 2")
            Z.I("v_lshl_add_u32 v18, v17, 2, v16")
            Z.I("v_lshlrev_b32 v18, 8, v18")
            Z.I("v_and_b32 v19, 3, v1")
            Z.I("v_lshl_add_u32 v18, v19, 3, v18")
            Z.I(f"s_lshl_b32 s{T1}, s{SKH}, 16")
            Z.I(f"v_add_u32 v18, s{T1}, v18")
            Z.I("v_and_b32 v19, 1, v17")
            Z.I("v_lshl_add_u32 v16, v19, 2, v16")
            Z.I(f"s_mul_i32 s{T1}, s{SKH}, {16384-65536}")
            Z.I(f"s_add_u32 s{T1}, s{T1}, 131072")
            for nb in range(8):
                Z.I(f"v_xor_b32 v19, {nb}, v16")
                Z.I(f"v_lshl_add_u32 v{8+nb}, v19, 5, v18")
                Z.I(f"v_add_u32 v{20+nb}, s{T1}, v{8+nb}")
            Z.I(f"s_mul_i32 s{T0}, s{SP}, 11")
            Z.I(f"s_add_u32 s{T1}, s{T0}, 10")
            Z.I(f"s_min_u32 s{T1}, s{T1}, 31")
            Z.I(f"s_cmp_eq_u32 s{SP}, 3")
            Z.I(f"s_cselect_b32 s{T0}, 0, s{T0}")
            Z.I(f"s_cselect_b32 s{T1}, 28, s{T1}")
            Z.I("v_and_b32 v28, 31, v1")
            Z.I(f"v_add_u32 v28, s{T0}, v28")
            Z.I(f"v_cmp_ge_u32 s[{SEARLY}:{SEARLY+1}], s{T1}, v28")
            Z.I(f"v_min_u32 v28, s{T1}, v28")
            Z.I("v_lshrrev_b32 v29, 2, v28")
            Z.I("v_and_b32 v28, 3, v28")
            Z.I("v_lshl_add_u32 v28, v28, 3, v29")
            Z.I("v_lshlrev_b32 v28, 9, v28")
            Z.I(f"s_sub_u32 s{T0}, 15, s{SRT}")
            Z.I(f"s_min_u32 s{T0}, s{T0}, s{SRT}")
            Z.I(f"s_lshl_b32 s{T0}, s{T0}, 14")
            Z.I(f"s_lshl_b32 s{T1}, s{SQH}, 7")
            Z.I(f"s_add_u32 s{T0}, s{T0}, s{T1}")
            Z.I(f"s_cmp_lt_u32 s{SRT}, 8")
            Z.I(f"s_cselect_b32 s{T1}, 256, 0")
            Z.I(f"s_add_u32 s{T0}, s{T0}, s{T1}")
            Z.I(f"s_cmp_lt_u32 s{SRT}, 8")
            Z.I(f"s_mov_b32 s{T1}, {flag_base(F_A)}")
            Z.I(f"s_cselect_b32 s{T1}, {flag_base(F_B)}, s{T1}")
            Z.I(f"s_mul_i32 s{T2}, s{SQH}, -256")
            Z.I(f"s_addk_i32 s{T2}, 384")
            Z.I(f"s_cmp_lt_u32 s{SRT}, 8")
            Z.I(f"s_cselect_b32 s{T2}, 0, s{T2}")
            Z.I(f"s_cmp_eq_u32 s{SP}, 3")
            Z.I(f"s_cselect_b32 s{T1}, {flag_base(F_H)}, s{T1}")
            Z.I(f"s_cselect_b32 s{T2}, 0, s{T2}")
            Z.I(f"s_add_u32 s{T0}, s{T0}, s{T1}")
            Z.I(f"v_add_u32 v28, s{T0}, v28")
            Z.I("v_lshrrev_b32 v29, 5, v1")
            Z.I(f"v_mul_u32_u24 v29, s{T2}, v29")
            Z.I("v_add_u32 v28, v28, v29")
            if apollA:
                Z.I(f"v_mov_b32 v29, s{S_NONCE}")
                Z.I(f"s_mov_b64 exec, s[{SEARLY}:{SEARLY+1}]")
                for x in pload(29, 28, True): Z.I(x)
                Z.I("s_mov_b64 exec, -1")
            else: Z.I(f"buffer_load_dword v29, v28, {WS}, 0 offen sc1")
            return [x.text for x in Z.check(fix=True, seq=Z.items)]
    def oproj():
        lg4 = Cnt("lgkmcnt", 15)
        WF4 = 192
        wf = lambda mb, kk: WF4 + (mb*2+kk)*4
        def reads(u, mb):
            r = []
            for kk in range(2):
                off = (slot4(u) if u > 0 else 0) + kk*8192
                areg = (8 if u > 0 else 20) + mb
                r += [tr(wf(mb,kk), areg, off), tr(wf(mb,kk)+2, areg, off+4096)]
            return r
        acc = lambda mb, qb: 64 + (mb*4+qb)*4
        def emit(lst):
            for pre, x in lst:
                for y in (pre or []): A.I(y)
                if pre and "lds" in x: A.I("s_nop 0")
                A.I(x)
        su0 = oproj_setup(0)
        k0 = min(i for i, x in enumerate(su0) if " lds" in x) - 3
        for x in su0[:k0]: A.I(x)
        A.I("s_waitcnt vmcnt(0)")
        for x in set_flag(F_A, 30, 31, 34): A.I(x)
        for x in su0[k0:]: A.I(x)
        emit(w4dma(1))
        A.I("s_waitcnt vmcnt(8)")
        A.I("s_barrier")
        for mb in range(7):
            for x in reads(0, mb): A.I(x); lg4.issue(f"R0_{mb}")
        A.I(f"v_cmp_ne_u32 vcc, s{S_NONCE}, v29")
        A.I(f"s_cbranch_vccnz {L('late')}")
        emit(bload(0) + w4dma(2) + w4dma(3) + w4dma(4))
        A.I("s_waitcnt vmcnt(24)")
        A.I(f"s_branch {L('haveB')}")
        A.label(L("late"))
        if apollA: A.I(f"s_mov_b64 exec, s[{SEARLY}:{SEARLY+1}]")
        for x in pload(29, 28, apollA): A.I(x)
        A.I("s_mov_b64 exec, -1")
        emit(w4dma(2) + w4dma(3) + w4dma(4))
        A.I("s_waitcnt vmcnt(24)")
        if apollA: A.I(f"s_mov_b64 exec, s[{SEARLY}:{SEARLY+1}]")
        poll_check(28, 29, T0, atomic=apollA)
        A.I("s_mov_b64 exec, -1")
        emit(bload(0))
        A.I("s_waitcnt vmcnt(0)")
        A.label(L("haveB"))
        vE = Cnt("vmcnt", 63); vL = Cnt("vmcnt", 63)
        for tg in ["W1"]*8 + ["W2"]*8 + ["W3"]*8 + ["W4"]*8: vE.issue(tg)
        class Both:
            def issue(self, t): vE.issue(t); vL.issue(t)
            def wait(self, t):
                a_, b_ = vE.need(t), vL.need(t)
                n_ = [x for x in (a_, b_) if x is not None]
                return f"s_waitcnt vmcnt({min(n_)})" if n_ else None
        vm4 = Both()
        NU = 11
        su = [f"s_lshl_b32 s50, s{SCT}, 8", f"s_lshl_b32 s51, s{SP}, 6", "s_add_u32 s50, s50, s51", "s_add_u32 s54, s49, s50",
              "v_and_b32 v16, 15, v1", "v_lshrrev_b32 v17, 4, v1", "v_lshlrev_b32 v18, 3, v17", "v_lshl_add_u32 v19, v16, 10, v18", "v_add_u32 v20, 16384, v19",
              f"s_lshl_b32 s51, s{S_WAVE}, 14", f"v_add_u32 v21, s51, v{V_L16}", "s_xor_b32 s51, s51, 0x8000", f"v_add_u32 v22, s51, v{V_L16}",
              "s_and_b32 s55, s2, 0xfc", "s_lshl_b32 s56, s55, 9", "s_lshl_b32 s55, s55, 15", f"s_lshl_b32 s51, s{S_WAVE}, 13", "s_add_u32 s55, s55, s51",
              f"s_add_u32 s55, s55, {WS_PART}", f"s_lshl_b32 s51, s{S_WAVE}, 7", "s_add_u32 s56, s56, s51", f"s_add_u32 s56, s56, {flag_base(F_H)}",
              "v_and_b32 v23, 3, v1", "v_lshlrev_b32 v23, 9, v23", "v_add_u32 v23, s56, v23",
              f"s_lshl_b32 s51, s{SP}, 15", "s_add_u32 s56, s55, s51", f"s_lshl_b32 s51, s{SP}, 11", "s_add_u32 s55, s55, s51"]
        for q_ in range(4):
            su += [f"s_add_u32 s{40+q_}, s55, {q_*32768}", f"s_add_u32 s{44+q_}, s56, {q_*2048}", f"s_cmp_eq_u32 s{SP}, {q_}",
                   f"s_cselect_b32 s{40+q_}, {OOB}, s{40+q_}", f"s_cselect_b32 s{44+q_}, {OOB}, s{44+q_}"]
        xl = [f"buffer_load_dwordx2 v[{24+(i*2+j)*2}:{25+(i*2+j)*2}], v{19+i}, s[{SX}:{SX+3}], s54 offen offset:{j*32}" for i in range(2) for j in range(2)] + \
             [f"buffer_load_dwordx2 v[{32+j*2}:{33+j*2}], v18, s[{SB2}:{SB2+3}], s50 offen offset:{j*32}" for j in range(2)] + \
             [f"buffer_load_dword v38, v23, {WS}, 0 offen sc1"]
        for u in range(NU):
            w = vm4.wait(f"B{u}")
            if w: A.I(w)
            w = lg4.wait(f"R{u}_0")
            if w: A.I(w)
            if u == 0: ST.stamp()
            ops = []
            if u+3 < NU: ops += [(p, x, f"B{u+3}") for p, x in bload(u+3)]
            if k3pace:
                wl = [(p, x, f"W{u+3}") for p, x in w4dma(u+3)] if (u >= 1 and u+3 < NU) else []
                ops = ops[:2] + [y for pair in zip(wl[:6], ops[2:]) for y in pair] + wl[6:] if wl else ops
                step = 4 if wl else 8
                if u < 2:
                    ops = [(p, x, f"B{b_}") for b_ in (2*u+1, 2*u+2) for p, x in bload(b_)]
                    vpos = {1 + 4*i: op for i, op in enumerate(ops)}
                else: vpos = {1 + step*i: op for i, op in enumerate(ops)}
            else:
                if u >= 1 and u+3 < NU: ops = [(p, x, f"W{u+3}") for p, x in w4dma(u+3)] + ops
                odd = [g for g in range(9, 64) if g % 2 == 1]
                vpos = {odd[(i*len(odd))//len(ops)]: op for i, op in enumerate(ops)} if ops else {}
            g = 0
            for mb in range(8):
                for qb in range(4):
                    for kk in range(2):
                        q = g % 8
                        c = v(acc(mb,qb),4)
                        A.I(mf(c, v(wf(mb,kk),4), a(Bf(u,qb,kk),4), "0" if (u == 0 and kk == 0) else c))
                        if g == 7 and u+1 < NU:
                            w = vm4.wait(f"W{u+1}")
                            if w: A.I(w)
                            A.I("s_barrier")
                        if g+1 in vpos and vpos[g+1][0]:
                            for x in vpos[g+1][0]: A.I(x)
                        if q == 7 and mb < 7:
                            w = lg4.wait(f"R{u}_{mb+1}")
                            if w: A.I(w)
                        if q % 2 == 0:
                            rd = None
                            if mb == 0: rd = (reads(u, 7)[q//2], f"R{u}_7")
                            elif u+1 < NU: rd = (reads(u+1, mb-1)[q//2], f"R{u+1}_{mb-1}")
                            if rd: A.I(rd[0]); lg4.issue(rd[1])
                        if g in vpos:
                            A.I(vpos[g][1]); vm4.issue(vpos[g][2])
                        if u == 8 and su and g % 2 == 1:
                            A.I(su.pop(0))
                            if su and su[0].startswith("s_"): A.I(su.pop(0))
                        if u == 9 and xl and g % 8 == 3:
                            A.I(xl.pop(0)); vm4.issue("x")
                        g += 1
        ST.stamp()
        A.I("s_barrier")
        for mb in range(8):
            for i in range(2):
                A.I(f"ds_write_b128 v21, {v(acc(mb,2+i),4)} offset:{(mb*2+i)*1024}")
        A.I("s_waitcnt vmcnt(0)")
        for n in range(4):
            for k in range(2):
                A.I(f"v_lshlrev_b32 v{acc(n,2)+2*k}, 16, v{24+n*2+k}")
                A.I(f"v_and_b32 v{acc(n,2)+2*k+1}, 0xffff0000, v{24+n*2+k}")
        for j in range(2):
            for k in range(2):
                A.I(f"v_lshlrev_b32 v{acc(4+j,2)+2*k}, 16, v{32+j*2+k}")
                A.I(f"v_and_b32 v{acc(4+j,2)+2*k+1}, 0xffff0000, v{32+j*2+k}")
        poll_check(23, 38, T0)
        A.I("s_waitcnt lgkmcnt(0)")
        A.I("s_barrier")
        for b in range(16):
            A.I(f"ds_read_b128 {v(WF4+4*b,4)}, v22 offset:{b*1024}")
        for pq in range(4):
            regs = [acc((4*pq+x)//2, x % 2) for x in range(4)]
            for x in range(4):
                A.I(f"s_waitcnt lgkmcnt({15-4*pq-x})")
                for k in range(2): A.I(f"v_pk_add_f32 {v(regs[x]+2*k,2)}, {v(regs[x]+2*k,2)}, {v(WF4+4*(4*pq+x)+2*k,2)}")
            T = 40 + (pq % 2)*8
            for x in range(4):
                A.I(f"v_cvt_pk_bf16_f32 v{T+2*x}, v{regs[x]}, v{regs[x]+1}")
                A.I(f"v_cvt_pk_bf16_f32 v{T+1+2*x}, v{regs[x]+2}, v{regs[x]+3}")
            A.I(f"buffer_store_dwordx4 {v(T,4)}, v{V_L16}, {WS}, s{44+pq} offen sc1")
            A.I(f"buffer_store_dwordx4 {v(T+4,4)}, v{V_L16}, {WS}, s{44+pq} offen offset:1024 sc1")
        ST.stamp()
        def dload():
            for src in range(4):
                for hb in range(2):
                    A.I(f"buffer_load_dwordx4 {v(WF4+(src*2+hb)*4,4)}, v{V_L16}, {WS}, s{40+src} offen offset:{hb*1024} sc1")
        dload()
        for pq in range(4):
            regs = [acc((4*pq+x)//2, x % 2) for x in range(4)]
            A.I(f"s_cmp_lg_u32 s{SP}, {pq}")
            A.I(f"s_cbranch_scc1 {L(f'nown{pq}')}")
            for x in range(4):
                for k in range(4):
                    A.I(f"v_mov_b32 v{(224 if pq < 3 else 240)+4*x+k}, v{regs[x]+k}")
                    A.I(f"v_mov_b32 v{(240 if pq < 3 else 224)+4*x+k}, 0")
            A.label(L(f"nown{pq}"))
        A.I(f"s_mov_b32 s{T2}, {NLOG2E}")
        A.I(f"s_mov_b32 s{T0}, 0")
        A.label(L("dpoll"))
        A.I("s_waitcnt vmcnt(0)")
        A.I("v_max3_u32 v36, v192, v193, v194")
        A.I("v_max3_u32 v37, v195, v196, v197")
        for x in range(198, 222, 4):
            A.I(f"v_max3_u32 v36, v36, v{x}, v{x+1}")
            A.I(f"v_max3_u32 v37, v37, v{x+2}, v{x+3}")
        A.I("v_max3_u32 v36, v36, v222, v223")
        A.I("v_max_u32 v36, v36, v37")
        A.I("v_cmp_eq_u32 vcc, -1, v36")
        A.I(f"s_cbranch_vccz {L('dok')}")
        A.I(f"s_add_u32 s{T0}, s{T0}, 1")
        A.I(f"s_cmp_gt_u32 s{T0}, 0x40000")
        A.I(f"s_cbranch_scc1 {L('dok')}")
        dload()
        A.I(f"s_branch {L('dpoll')}")
        A.label(L("w_kh1")); A.I(f"s_setpc_b64 s[{S_RET}:{S_RET+1}]")
        A.label(L("dok"))
        ST.stamp()
        for src in range(4):
            dst = 224 if src < 3 else 240
            for x in range(8):
                A.I(f"v_lshlrev_b32 v{40+2*x}, 16, v{WF4+src*8+x}")
                A.I(f"v_and_b32 v{41+2*x}, 0xffff0000, v{WF4+src*8+x}")
            for x in range(8): A.I(f"v_pk_add_f32 {v(dst+2*x,2)}, {v(dst+2*x,2)}, {v(40+2*x,2)}")
        for b in range(4):
            for k in range(2): A.I(f"v_pk_add_f32 {v(240+b*4+2*k,2)}, {v(240+b*4+2*k,2)}, {v(acc(4+b//2,2)+2*k,2)}")
        for x in range(16): A.I(f"v_mul_f32 v{40+x}, s{T2}, v{240+x}")
        for x in range(16): A.I(f"v_exp_f32 v{40+x}, v{40+x}")
        for x in range(16): A.I(f"v_add_f32 v{40+x}, 1.0, v{40+x}")
        for x in range(16): A.I(f"v_rcp_f32 v{40+x}, v{40+x}")
        for x in range(8): A.I(f"v_pk_mul_f32 {v(240+2*x,2)}, {v(240+2*x,2)}, {v(40+2*x,2)}")
        for b in range(4):
            j, i = b//2, b % 2
            n = i*2+j
            for k in range(2): A.I(f"v_pk_fma_f32 {v(224+b*4+2*k,2)}, {v(224+b*4+2*k,2)}, {v(240+b*4+2*k,2)}, {v(acc(n,2)+2*k,2)}")
            A.I(f"v_cvt_pk_bf16_f32 v{224+b*4}, v{224+b*4}, v{224+b*4+1}")
            A.I(f"v_cvt_pk_bf16_f32 v{224+b*4+1}, v{224+b*4+2}, v{224+b*4+3}")
            A.I(f"buffer_store_dwordx2 {v(224+b*4,2)}, v{19+i}, s[{SO}:{SO+3}], s54 offen offset:{j*32}{outsc}")
        if padto:
            A.I(f"s_load_dwordx2 s[40:41], s[0:1], {KA['dbg']}")
            A.I("s_waitcnt lgkmcnt(0)")
            A.I("v_mov_b32 v4, 4")
            A.I("global_load_dword v5, v4, s[40:41] sc1")
            A.I("s_waitcnt vmcnt(0)")
            A.I("v_readfirstlane_b32 s42, v5")
            A.I("s_memrealtime s[44:45]")
            A.I("s_waitcnt lgkmcnt(0)")
            A.I("s_sub_u32 s46, s44, s42")
            A.I("v_mov_b32 v6, s46"); A.I("v_mov_b32 v4, 8")
            A.I("s_mov_b64 exec, 1")
            A.I("global_atomic_umax v4, v6, s[40:41] sc1") if padto == 1 else None
            A.label(L("padloop"))
            A.I("s_sleep 8")
            A.I("s_memrealtime s[44:45]")
            A.I("s_waitcnt lgkmcnt(0)")
            A.I("s_sub_u32 s46, s44, s42")
            A.I(f"s_cmp_lt_u32 s46, {padto}")
            A.I(f"s_cbranch_scc1 {L('padloop')}")
        ST.flush(SRD_WS, S_WAVE)
    def saferestart():
        A.label(L("saferestart"))
        R = Asm()
        R.I(f"s_mov_b32 s{S_SAFE}, 0")
        R.I("s_waitcnt vmcnt(0) lgkmcnt(0)")
        R.I("s_barrier")
        for x in q_setup_s: R.I(x)
        R.I(f"s_lshl_b32 s44, s{S_WAVE}, 17")
        R.I(f"s_lshl_b32 s47, s{S_H}, 8")
        R.I("s_add_u32 s44, s44, s47")
        R.I(f"s_mov_b32 s{S_ID}, 0")
        R.I(f"s_mov_b32 s46, {OOB}")
        for x in q_setup_v: R.I(x)
        R.I("s_waitcnt lgkmcnt(0)")
        for x in srd_list(SRD_WQ, 4, 4*MB) + srd_list(SRD_W1, 8, 512*2752) + srd_list(SRD_B1, 10, 2752): R.I(x)
        for fb in range(3):
            R.I(f"buffer_load_dwordx2 v[{26+2*fb}:{27+2*fb}], v19, s[{SRD_B1}:{SRD_B1+3}], s{53 if fb < 2 else 54} offen offset:{fb*32}")
        R.I("v_and_b32 v248, 15, v1")
        R.I("v_lshrrev_b32 v249, 4, v1")
        R.I("v_lshrrev_b32 v250, 1, v248")
        R.I("v_xor_b32 v250, v250, v249")
        R.I("v_and_b32 v251, 1, v248")
        R.I("v_lshlrev_b32 v251, 4, v251")
        R.I("v_lshl_add_u32 v251, v249, 13, v251")
        R.I("v_lshl_add_u32 v4, v250, 5, v251")
        R.I(f"v_add_u32 v5, {32768-1024}, v4")
        R.I("v_xor_b32 v250, 4, v250")
        R.I("v_lshl_add_u32 v6, v250, 5, v251")
        R.I(f"v_add_u32 v6, {2*(32768-1024)}, v6")
        R.I(f"v_add_u32 v7, {32768-1024}, v6")
        R.I("v_bfe_u32 v248, v1, 2, 2")
        R.I("v_lshlrev_b32 v250, 3, v249")
        R.I("v_add_u32 v250, v250, v248")
        R.I("v_lshlrev_b32 v250, 8, v250")
        R.I("v_and_b32 v251, 3, v1")
        R.I("v_lshl_add_u32 v250, v251, 3, v250")
        R.I(f"v_add_u32 v250, {QBASE}, v250")
        R.I("v_and_b32 v251, 1, v249")
        R.I("v_lshl_add_u32 v248, v251, 2, v248")
        for nb in range(8):
            R.I(f"v_xor_b32 v251, {nb}, v248")
            R.I(f"v_lshl_add_u32 v{8+nb}, v251, 5, v250")
        for pre, x in qwdma(0) + qwdma(1) + xload(0) + xload(1) + xload(2):
            for y in (pre or []): R.I(y)
            if pre: R.I("s_nop 0")
            R.I(x)
        R.I("s_waitcnt vmcnt(0)")
        for fb in range(3):
            for k in range(2):
                R.I(f"v_lshlrev_b32 v{32+fb*4+2*k}, 16, v{26+2*fb+k}")
                R.I(f"v_and_b32 v{33+fb*4+2*k}, 0xffff0000, v{26+2*fb+k}")
        for i in range(12): R.I(f"v_mov_b32 v{20+i}, v{32+i}")
        R.I("s_barrier")
        for n in range(5):
            for x in breads(n): R.I(x)
        R.I("s_waitcnt lgkmcnt(0)")
        R.I(f"s_branch {L('qgemm')}")
        A.items += R.check(fix=True, seq=R.items)
    k2.CPF[0] = cpf
    k2.attention(A, L, ST, vm, lg, set_flag, F_H, F_B, F_A, qrest, gel, oproj_setup, oproj, saferestart)
    return A
```

```python
from common import *
import k2
from k2 import *
import math, struct

F_XN, F_KV, F_H, F_B, F_A, F_P, F_ID = range(7)
S_ID = 45
def flag_base(kind): return WS_FLAG + kind*262144
NLOG2E = f2u(-math.log2(math.e))
S_NONCE = 3
S_ROT = 39

def gen(name, prof=False, rot=False, xsc=' sc1', csc=' sc1', xdiag=0, tlb=False, itlb=True, dense=False, slp=0, fstride=7, apoll=0, fullline=True, xtouch=0, fine=0, swarm=1, pf0=2, xst_t=5, pxg=10, pxc=13, tlbw=0, wqg=4, pft=5, pfs=3, wofb=1, t64=0, prer_mode=1, cpf=1, kvsc='', outsc='', padto=0, qeven=1, k3pace=1, wotouch=0, wot=2, wqt=7, wqtouch=1, barpos=9, noln=0, kspread=0, apollA=0, upfront=2):
    A = Asm(); ST = Stamps(A, prof, 0)
    vm = Cnt("vmcnt", 63); lg = Cnt("lgkmcnt", 15)
    L = lambda x: f"L_{x}"
    WS = f"s[{SRD_WS}:{SRD_WS+3}]"
    uniq = [0]
    def set_flag(kind, vz, vd, st, val=S_NONCE):
        wide = True
        return [f"s_lshl_b32 s{st}, s2, {2 if wide else 5}", f"s_add_u32 s{st}, s{st}, s{S_WAVE}", f"s_lshl_b32 s{st}, s{st}, {7 if wide else 2}",
                f"s_add_u32 s{st}, s{st}, {flag_base(kind)}",
                f"v_mov_b32 v{vd}, s{val}", f"v_lshlrev_b32 v{vz}, 2, v1",
                "s_mov_b32 exec_hi, 0" if fullline else "s_mov_b64 exec, 1", f"buffer_store_dword v{vd}, v{vz}, {WS}, s{st} offen sc1", "s_mov_b64 exec, -1"]
    def pload(vdat, vaddr, atomic=False):
        if atomic:
            return [f"v_mov_b32 v{vdat}, 0", f"buffer_atomic_or v{vdat}, v{vaddr}, {WS}, 0 offen sc0 sc1"]
        return [f"buffer_load_dword v{vdat}, v{vaddr}, {WS}, 0 offen {'sc1' if apoll != 2 else 'sc0 sc1 nt'}"]
    def poll_check(vaddr, vdat, st, vmask=None, atomic=False):
        u = uniq[0]; uniq[0] += 1
        A.I(f"s_mov_b32 s{st}, 0")
        A.label(L(f"poll{u}"))
        if vmask is not None:
            A.I(f"v_and_b32 v{vmask}, 0xffffff00, v{vdat}")
            A.I(f"v_cmp_ne_u32 vcc, s{S_NONCE}, v{vmask}")
        else:
            A.I(f"v_cmp_ne_u32 vcc, s{S_NONCE}, v{vdat}")
        A.I(f"s_cbranch_vccz {L(f'pollok{u}')}")
        A.I(f"s_add_u32 s{st}, s{st}, 1")
        A.I(f"s_cmp_gt_u32 s{st}, 0x80000")
        A.I(f"s_cbranch_scc1 {L(f'pollok{u}')}")
        if slp: A.I(f"s_sleep {slp}")
        for x in pload(vdat, vaddr, atomic): A.I(x)
        A.I("s_waitcnt vmcnt(0)")
        A.I(f"s_branch {L(f'poll{u}')}")
        A.label(L(f"pollok{u}"))
    def code_pf(off, nbytes, vt, vd):
        return [f"s_lshr_b32 s{S_TMP}, s2, 3", f"s_lshl_b32 s{S_TMP}, s{S_TMP}, 2", f"s_add_u32 s{S_TMP}, s{S_TMP}, s{S_WAVE}",
                f"s_lshl_b32 s{S_TMP}, s{S_TMP}, 10", f"s_and_b32 s{S_TMP}, s{S_TMP}, {nbytes-1}", f"s_add_u32 s{S_TMP}, s{S_TMP}, {off}",
                f"v_add_u32 v{vt}, s{S_TMP}, v{V_L16}", f"global_load_dwordx4 {v(vd,4)}, v{vt}, s[62:63]"]

    def stub(i):
        if not swarm: return
        A.I(f"s_branch {L(f'sk{i}')}")
        A.label(L(f"st{i}")); A.I(f"s_branch {L('swret')}")
        A.label(L(f"sk{i}"))
    header(A, name)
    A.I("s_cmp_ge_u32 s2, 256")
    A.I(f"s_cbranch_scc1 {L('end')}")
    ST.stamp()
    A.I(f"s_load_dwordx4 s[4:7], s[0:1], {KA['x']}")
    A.I(f"s_load_dwordx4 s[8:11], s[0:1], {KA['wuk']}")
    A.I(f"s_load_dwordx4 s[12:15], s[0:1], {KA['dbg']}")
    A.I("s_getpc_b64 s[62:63]")
    if pf0:
        A.I("v_lshlrev_b32 v244, 4, v0")
        A.I("global_load_dwordx4 v[252:255], v244, s[62:63]"); vm.issue("pf")
        if pf0 == 2:
            A.I("v_add_u32 v245, 4096, v244")
            A.I("global_load_dwordx4 v[252:255], v245, s[62:63]"); vm.issue("pf")
    A.I("s_memrealtime s[52:53]")
    A.I(f"s_mov_b32 s{S_SAFE}, -1")
    A.I("v_and_b32 v1, 63, v0")
    A.I("v_lshrrev_b32 v248, 6, v0")
    A.I(f"s_and_b32 s{S_H}, s2, 7")
    A.I(f"v_readfirstlane_b32 s{S_WAVE}, v248")
    if swarm:
        A.I("s_nop 0")
        for w in range(4):
            A.I(f"s_cmp_eq_u32 s{S_WAVE}, {w}")
            A.I(f"s_cbranch_scc1 {L(f'st{w}')}")
        A.label(L("swret"))
    A.I(f"s_lshr_b32 s47, s2, 3")
    A.I(f"s_lshl_b32 s{S_H}, s{S_H}, 2")
    A.I(f"s_and_b32 s48, s47, 3")
    A.I(f"s_add_u32 s{S_H}, s{S_H}, s48")
    A.I(f"s_lshr_b32 s{S_T}, s47, 2")
    A.I(f"v_lshlrev_b32 v{V_L16}, 4, v1")
    A.I("v_and_b32 v248, 15, v1")
    A.I("v_lshrrev_b32 v249, 4, v1")
    A.I("v_and_b32 v250, 7, v1")
    A.I("v_xor_b32 v250, v250, v249")
    A.I("v_lshrrev_b32 v251, 3, v1")
    A.I("v_lshlrev_b32 v251, 10, v251")
    A.I("v_lshl_add_u32 v208, v250, 4, v251")
    A.I("v_xor_b32 v250, 4, v250")
    A.I("v_lshl_add_u32 v209, v250, 4, v251")
    A.I(f"v_add_u32 v210, {2*(8192-1024)}, v208")
    A.I(f"v_add_u32 v211, {3*(8192-1024)}, v209")
    A.I(f"v_add_u32 v209, {8192-1024}, v209")
    A.I("v_lshrrev_b32 v250, 1, v248")
    A.I("v_xor_b32 v250, v250, v249")
    A.I("v_and_b32 v251, 1, v248")
    A.I("v_lshlrev_b32 v251, 4, v251")
    A.I("v_lshl_add_u32 v251, v249, 13, v251")
    A.I("v_lshl_add_u32 v4, v250, 5, v251")
    A.I(f"v_add_u32 v5, {32768-1024}, v4")
    A.I("v_xor_b32 v250, 4, v250")
    A.I("v_lshl_add_u32 v6, v250, 5, v251")
    A.I(f"v_add_u32 v6, {2*(32768-1024)}, v6")
    A.I(f"v_add_u32 v7, {32768-1024}, v6")
    stub(0)
    A.I(f"s_lshl_b32 s40, s{S_T}, 8")
    A.I(f"s_lshl_b32 s47, s{S_WAVE}, 6")
    A.I("s_add_u32 s40, s40, s47")
    A.I("s_lshl_b32 s40, s40, 10")
    A.I(f"s_lshl_b32 s42, s{S_WAVE}, 13")
    A.I(f"s_lshl_b32 s44, s{S_WAVE}, 17")
    A.I(f"s_lshl_b32 s47, s{S_H}, 8")
    A.I("s_add_u32 s44, s44, s47")
    A.I(f"s_lshl_b32 s{S_W4K}, s{S_WAVE}, 12")
    A.I("s_waitcnt lgkmcnt(0)")
    srd(A, 24, 8, 4*MB); srd(A, 20, 6, 2*MB)

    def rotk(t, shift, base, dst):
        if not rot: return [f"s_add_u32 s{dst}, s{base}, {t << shift}"]
        return [f"s_add_u32 s{dst}, s{S_ROT}, {t}", f"s_and_b32 s{dst}, s{dst}, 7", f"s_lshl_b32 s{dst}, s{dst}, {shift}", f"s_add_u32 s{dst}, s{dst}, s{base}"]
    def wdma(which, t, slot):
        sr = 24 if which == "k" else 28
        pre = rotk(t, 19, 44, 49) + [f"s_add_u32 m0, s{S_W4K}, {slot*16384}"]
        return [(pre if j == 0 else None, f"buffer_load_dwordx4 v{4+j}, s[{sr}:{sr+3}], s49 offen offset:{j*1024} lds") for j in range(4)]
    def cdma(t):
        r = []
        for i in range(8):
            pre = None
            if i == 0: pre = rotk(t, 7, 40, 43) + [f"s_add_u32 m0, s42, {(t%2)*32768}"]
            if i == 4: pre = [f"s_add_u32 s43, s43, 32768", f"s_add_u32 m0, s42, {(t%2)*32768 + 4096}"]
            r.append((pre, f"buffer_load_dwordx4 v{208+i%4}, s[20:23], s43 offen offset:{(i%4)*1024} lds"))
        return r
    def ccopy(t):
        r = []
        for kk in range(2):
            for kb in range(4):
                r.append(f"ds_read_b128 {a((kb*16+2*t+kk)*4,4)}, v{212 + kk} offset:{(t % 2)*32768 + kb*2048}")
        return r
    def issue(lst, tag):
        for pre, x in lst:
            if pre:
                for y in pre: A.I(y)
                if "lds" in x: A.I("s_nop 0")
            A.I(x); vm.issue(tag)
    A.I("s_lshl_b32 s54, s2, 2")
    A.I(f"s_add_u32 s54, s54, s{S_WAVE}")
    A.I("s_lshl_b32 s55, s54, 12")
    A.I("s_lshl_b32 s54, s54, 11")
    prer = [(None, f"buffer_load_dwordx4 v[252:255], v{V_L16}, s[20:23], s53 offen offset:{j*1024}") for j in range(2)] + \
           [(None, f"buffer_load_dwordx4 v[252:255], v{V_L16}, s[24:27], s55 offen offset:{j*1024}") for j in range(4)]
    A.I("s_mov_b32 s53, s54")
    ST.stamp()
    if upfront in (4, 5, 6): issue(prer, "pr")
    if upfront == 6:
        A.I("v_and_b32 v3, 31, v1"); A.I("v_lshlrev_b32 v3, 7, v3"); A.I("v_add_u32 v3, s55, v3")
        A.I(f"buffer_load_dword v252, v3, s[28:31], 0 offen"); vm.issue("pr")
    issue(wdma("k", 0, 7), "Wk0"); issue(cdma(0), "C0")
    ST.stamp()
    stub(1)
    srd(A, 32, 4, 2*MB); srd(A, SRD_WS, 14, WS_END); srd(A, 28, 10, 4*MB)
    A.I("s_lshl_b32 s47, s2, 3")
    A.I(f"s_lshl_b32 s48, s{S_WAVE}, 1")
    A.I("s_add_u32 s47, s47, s48")
    A.I("v_lshrrev_b32 v241, 5, v1")
    A.I("v_add_u32 v241, s47, v241")
    A.I("v_and_b32 v242, 31, v1")
    A.I("v_lshlrev_b32 v243, 10, v241")
    A.I("v_lshl_add_u32 v243, v242, 4, v243")
    A.I("buffer_load_dwordx4 v[216:219], v243, s[32:35], 0 offen"); vm.issue("x")
    A.I("buffer_load_dwordx4 v[220:223], v243, s[32:35], 0 offen offset:512"); vm.issue("x")
    A.I(f"s_load_dwordx2 s[68:69], s[0:1], {KA['wq']}")
    A.I(f"s_load_dwordx2 s[70:71], s[0:1], {KA['wo']}")
    A.I(f"s_load_dwordx2 s[64:65], s[0:1], {KA['w1']}")
    A.I(f"s_load_dwordx2 s[66:67], s[0:1], {KA['w2']}")
    if upfront == 0:
        issue(prer, "pr"); issue(wdma("k", 1, 8), "Wk1"); issue(cdma(1), "C1")
    elif upfront == 1:
        issue(prer, "pr")
    elif upfront == 2:
        issue(wdma("k", 1, 8), "Wk1"); issue(cdma(1), "C1")
    if upfront == 7:
        issue(wdma("k", 1, 8), "Wk1"); issue(cdma(1), "C1"); issue(prer, "pr")
    stub(2)
    for x in code_pf(0, 131072, 244, 252): A.I(x)
    vm.issue("pf")
    A.I(f"s_or_b32 s47, s2, s{S_WAVE}")
    A.I(f"s_cmp_lg_u32 s47, 0")
    A.I(f"s_cbranch_scc1 {L('nocas')}")
    if padto:
        A.I("v_mov_b32 v184, s52"); A.I("v_mov_b32 v185, 4"); A.I("global_store_dword v185, v184, s[12:13] sc1"); A.I("s_nop 1")
    A.I("s_and_b32 s52, s52, 0xffffff00")
    A.I("s_or_b32 s52, s52, 0x100")
    A.I("v_mov_b32 v184, s52")
    A.I("v_mov_b32 v185, 0")
    A.I("s_mov_b64 exec, 1")
    A.I("global_store_dword v185, v184, s[12:13] sc1")
    A.I("s_mov_b64 exec, -1")
    A.label(L("nocas"))
    ST.stamp()
    A.I("v_lshrrev_b32 v250, 1, v248")
    A.I("v_xor_b32 v250, v250, v249")
    A.I("v_lshlrev_b32 v251, 7, v248")
    A.I("v_add_u32 v251, s42, v251")
    A.I("v_lshl_add_u32 v212, v250, 4, v251")
    A.I("v_xor_b32 v250, 4, v250")
    A.I("v_lshl_add_u32 v213, v250, 4, v251")
    A.I("v_bfe_u32 v248, v1, 2, 2")
    A.I("v_lshlrev_b32 v250, 3, v249")
    A.I("v_add_u32 v250, v250, v248")
    A.I("v_lshlrev_b32 v250, 8, v250")
    A.I("v_and_b32 v251, 3, v1")
    A.I("v_lshl_add_u32 v250, v251, 3, v250")
    A.I("v_add_u32 v250, 114688, v250")
    A.I("v_and_b32 v251, 1, v249")
    A.I("v_lshl_add_u32 v248, v251, 2, v248")
    for nb in range(8):
        A.I(f"v_xor_b32 v251, {nb}, v248")
        A.I(f"v_lshl_add_u32 v{8+nb}, v251, 5, v250")
    stub(3)
    A.I("v_lshrrev_b32 v250, 4, v241")
    A.I("v_lshlrev_b32 v250, 14, v250")
    A.I("v_lshrrev_b32 v251, 2, v242")
    A.I("v_lshl_add_u32 v250, v251, 10, v250")
    A.I("v_and_b32 v251, 3, v242")
    A.I("v_lshl_add_u32 v250, v251, 8, v250")
    A.I("v_and_b32 v251, 15, v241")
    A.I("v_lshl_add_u32 v240, v251, 4, v250")
    A.I(f"s_lshl_b32 s46, s{S_H}, 5")
    A.I(f"s_lshl_b32 s47, s{S_T}, 2")
    A.I("s_add_u32 s46, s46, s47")
    A.I(f"s_add_u32 s46, s46, s{S_WAVE}")
    A.I("s_lshl_b32 s46, s46, 15")
    A.I(f"s_add_u32 s46, s46, {WS_KV}")
    if xtouch:
        A.I("s_lshr_b32 s47, s2, 3"); A.I("s_lshl_b32 s47, s47, 2"); A.I(f"s_add_u32 s47, s47, s{S_WAVE}"); A.I("s_lshl_b32 s47, s47, 15")
        A.I("s_and_b32 s48, s2, 7"); A.I("s_lshl_b32 s48, s48, 10"); A.I("s_add_u32 s47, s47, s48")
        A.I("v_bfe_u32 v3, v1, 3, 2"); A.I("v_lshlrev_b32 v3, 13, v3"); A.I("v_and_b32 v250, 7, v1"); A.I("v_lshl_add_u32 v3, v250, 7, v3")
        A.I("v_add_u32 v3, s47, v3")
    else:
        A.I("v_and_b32 v3, 31, v1" if not t64 else "v_mov_b32 v3, v1")
        A.I(f"v_lshlrev_b32 v3, {7 if not t64 else 6}, v3")
        A.I("v_add_u32 v3, s55, v3")
    A.I("s_mul_i32 s54, s54, 11")
    A.I("s_lshr_b32 s54, s54, 4")
    A.I(f"v_min_u32 v250, {10 if not t64 else 21}, v1")
    A.I(f"v_lshlrev_b32 v250, {7 if not t64 else 6}, v250")
    A.I("v_add_u32 v250, s54, v250")
    A.I(f"v_min_u32 v250, {1376*1024-4}, v250")
    LN = Asm()
    X = 224
    for i in range(8):
        LN.I(f"v_lshlrev_b32 v{X+2*i}, 16, v{216+i}")
        LN.I(f"v_and_b32 v{X+2*i+1}, 0xffff0000, v{216+i}")
    LN.I(f"v_add_f32 v243, v{X}, v{X+1}")
    LN.I(f"v_add_f32 v244, v{X+2}, v{X+3}")
    for i in range(4, 16, 2):
        LN.I(f"v_add_f32 v243, v243, v{X+i}")
        LN.I(f"v_add_f32 v244, v244, v{X+i+1}")
    LN.I("v_add_f32 v243, v243, v244")
    row_allreduce32(LN, 243, 244)
    LN.I("v_mul_f32 v243, 0x3b000000, v243")
    LN.I("v_mov_b32 v245, 0")
    LN.I("v_mov_b32 v246, 0")
    for i in range(16):
        LN.I(f"v_sub_f32 v247, v{X+i}, v243")
        LN.I(f"v_fmac_f32 v{245+i%2}, v247, v247")
    LN.I("v_add_f32 v245, v245, v246")
    row_allreduce32(LN, 245, 244)
    LN.I("v_mul_f32 v245, 0x3b000000, v245")
    LN.I("v_cvt_pk_bf16_f32 v243, v243, v245")
    LN.I("v_and_b32 v245, 0xffff0000, v243")
    LN.I("v_lshlrev_b32 v243, 16, v243")
    LN.I("v_add_f32 v245, 0x3727c5ac, v245")
    LN.I("v_cvt_pk_bf16_f32 v245, v245, v245")
    LN.I("v_lshlrev_b32 v245, 16, v245")
    LN.I("v_sqrt_f32 v245, v245")
    LN.I("s_nop 0")
    LN.I("v_cvt_pk_bf16_f32 v245, v245, v245")
    LN.I("v_lshlrev_b32 v245, 16, v245")
    LN.I("v_rcp_f32 v245, v245")
    for i in range(16):
        LN.I(f"v_sub_f32 v{X+i}, v{X+i}, v243")
    for i in range(8):
        LN.I(f"v_cvt_pk_bf16_f32 v{216+i}, v{X+2*i}, v{X+2*i+1}")
    for i in range(8):
        LN.I(f"v_lshlrev_b32 v{X+2*i}, 16, v{216+i}")
        LN.I(f"v_and_b32 v{X+2*i+1}, 0xffff0000, v{216+i}")
        LN.I(f"v_mul_f32 v{X+2*i}, v{X+2*i}, v245")
        LN.I(f"v_mul_f32 v{X+2*i+1}, v{X+2*i+1}, v245")
    for i in range(8):
        LN.I(f"v_cvt_pk_bf16_f32 v{216+i}, v{X+2*i}, v{X+2*i+1}")
    lnq = [x.text for x in LN.items if not x.text.startswith("s_nop")]
    if noln: lnq = []
    A.I("v_add_u32 v241, 8192, v240")
    A.I(f"s_getreg_b32 s{S_ID}, hwreg(HW_REG_XCC_ID)")
    A.I(f"s_lshr_b32 s47, s{S_ID}, 12")
    A.I(f"s_and_b32 s47, s47, 0xf0")
    A.I(f"s_and_b32 s{S_ID}, s{S_ID}, 15")
    A.I(f"s_or_b32 s{S_ID}, s{S_ID}, s47")

    WF = 144
    wfrag = lambda db, kk: WF + (db*2+kk)*4
    tr = lambda dst, areg, off: f"ds_read_b64_tr_b16 {v(dst,2)}, v{areg} offset:{off}"
    def reads1(t, db):
        r = []
        for kk in range(2):
            off = (t % 3)*16384 + kk*8192
            r += [tr(wfrag(db,kk), 8+db, off), tr(wfrag(db,kk)+2, 8+db, off+1024)]
        return r
    accK = lambda db, kb: 16 + (db*4+kb)*4
    ST.stamp()
    A.I("s_waitcnt lgkmcnt(0)")
    if upfront == 7:
        A.I("s_mov_b64 exec, 1")
        for (va, sp) in ((3, 68), (250, 64), (3, 70), (250, 66)):
            A.I(f"global_load_dword v252, v{va}, s[{sp}:{sp+1}]"); vm.issue("pr")
        A.I("s_mov_b64 exec, -1")
    if itlb == 2:
        for w, lab in enumerate(["main_d", "main_s", "b_full_full_1fd", "b_None_diag_0epi"]):
            A.I(f"s_cmp_lg_u32 s{S_WAVE}, {w}")
            A.I(f"s_cbranch_scc1 {L(f'nsu{w}')}")
            A.I(f"s_call_b64 s[56:57], {L('w2_' + lab)}")
            A.label(L(f"nsu{w}"))
    A.I(vm.wait("x"))
    A.I("s_barrier")
    for x in ccopy(0): A.I(x); lg.issue("c0")
    for db in range(7):
        for x in reads1(0, db): A.I(x); lg.issue(f"R0_{db}")
    if upfront == 3:
        issue(wdma("k", 1, 8), "Wk1"); issue(cdma(1), "C1"); issue(prer, "pr")
    if upfront in (1, 4, 6):
        issue(wdma("k", 1, 8), "Wk1"); issue(cdma(1), "C1")
    elif upfront == 2:
        if prer_mode == 1: issue(prer, "pr")
        if tlbw:
            A.I("s_mov_b64 exec, 1")
            for (va, sp) in ((3, 68), (250, 64), (3, 70), (250, 66)):
                A.I(f"global_load_dword v252, v{va}, s[{sp}:{sp+1}]"); vm.issue("pr")
            A.I("s_mov_b64 exec, -1")
        elif prer_mode == 2:
            A.I("v_lshrrev_b32 v244, 1, v3"); A.I("v_and_b32 v244, 0xffffffc0, v244")
            A.I("buffer_load_dword v252, v244, s[20:23], 0 offen"); vm.issue("pr")
            A.I("buffer_load_dword v252, v3, s[24:27], 0 offen"); vm.issue("pr")
    vslot = lambda tt: [4,5,6,0,1,7,2,3][tt]
    p2addr = lambda G: (G//8, (G//2) % 4, G % 2)
    p2areg = lambda p, dbl, win: 240 + (p % 2)*4 + dbl*2 + win
    def reads2(G):
        p, ksg, dbl = p2addr(G)
        r = []
        for k4 in range(4):
            ks = ksg*4 + k4
            byte = vslot(ks//2)*16384 + (ks % 2)*8192
            dst = WF + (G % 4)*16 + k4*4
            r += [tr(dst, p2areg(p, dbl, byte//65536), byte % 65536), tr(dst+2, p2areg(p, dbl, byte//65536), byte % 65536 + 1024)]
        return r
    def p2setup(p):
        return [f"v_subrev_u32 v{p2areg(p,dbl,win)}, {114688 - win*65536}, v{8+2*p+dbl}" for dbl in range(2) for win in (0, 1)]
    def pubxn():
        assert vm.need("nonce") is None
        A.I(f"s_mov_b32 s47, 0")
        A.label(L("npoll"))
        A.I(f"v_readfirstlane_b32 s{S_NONCE}, v249")
        A.I("s_nop 0")
        A.I(f"s_cmp_lg_u32 s{S_NONCE}, 0")
        A.I(f"s_cbranch_scc1 {L('npollok')}")
        A.I("s_add_u32 s47, s47, 1")
        A.I("s_cmp_gt_u32 s47, 0x80000")
        A.I(f"s_cbranch_scc1 {L('npollok')}")
        A.I("s_sleep 2")
        A.I("global_load_dword v249, v248, s[12:13] sc1")
        A.I("s_waitcnt vmcnt(0)")
        A.I(f"s_branch {L('npoll')}")
        A.label(L("npollok"))
        A.I(f"s_add_u32 s{S_ID}, s{S_ID}, s{S_NONCE}")
        for x in set_flag(F_XN, 248, 249, 47, S_ID): A.I(x)
        vm.issue("fl")
    lastln = [None]
    kj0 = [(accK(0,kb), accK(1,kb), kb*4) for kb in range(2)]
    BAR = barpos
    for t in range(8):
        M = []
        for db in range(8):
            for kb in range(4):
                for kk in range(2):
                    c = v(accK(db,kb),4)
                    M.append(mf(c, v(wfrag(db,kk),4), a((kb*16+2*t+kk)*4,4), "0" if (t==0 and kk==0) else c))
        A.I(lg.wait([f"R{t}_0", f"c{t}", f"c{t}_0"]))
        if t in (0, 4) or fine: ST.stamp()
        if t < 6: ops = [(d, f"Wk{t+2}", pre) for pre, d in wdma("k", t+2, 7 + (t+2) % 3)] + [(d, f"C{t+2}_{i//2}", pre) for i, (pre, d) in enumerate(cdma(t+2))]
        else: ops = [(d, f"Wv{tt}", pre) for tt in range(3*(t-6), 3*(t-6)+3) for pre, d in wdma("v", tt, vslot(tt))]
        vg = [1, 5, 11, 15, 21, 25, 29, 33, 37, 41, 45, 51] if t < 7 else [1, 5, 11, 15, 21, 27, 31, 37, 43, 49, 55, 61]
        if t == 6: vg = [BAR+2 + 4*i for i in range(12)] if False else vg
        vpos = {vg[i]: op for i, op in enumerate(ops)}
        rq = []
        if t < 7:
            for db in range(7): rq += [(8*db+8, x, f"R{t+1}_{db}") for x in reads1(t+1, db)]
        else:
            for G in range(2): rq += [(16*G+16, x, f"S{G}") for x in reads2(G)]
        cpos = {}
        if t < 7:
            cc = ccopy(t+1)
            for kb in range(4):
                for kk in range(2): cpos[[47, 49, 53, 55, 57, 59, 61, 63][kb*2+kk]] = (cc[kk*4+kb], kb, kk)
        for g in range(64):
            db = g // 8; q = g % 8
            A.I(M[g])
            if g == BAR:
                A.I((vm.wait(f"Wk{t+1}" if t < 7 else "Wv1") or "s_waitcnt") + " lgkmcnt(0)"); lg.drain()
                A.I("s_barrier")
            if t == 1 and g == 52:
                A.I(f"buffer_load_dword v252, v3, s[28:31], 0 offen"); vm.issue("pr")
            if (t, g) in ((wot, 52), (wot, 54)) and not wofb:
                A.I("global_load_dword v252, v3, s[70:71]" if g == 52 else "global_load_dword v253, v250, s[66:67]"); vm.issue("pr")
            if t == wqt and g in (53, 57) and wqtouch and not wqg:
                A.I("global_load_dword v252, v3, s[68:69]" if g == 53 else "global_load_dword v253, v250, s[64:65]"); vm.issue("pr")
            if t == xst_t and g == 63:
                assert not lnq
                A.I(f"buffer_store_dwordx4 v[216:219], v240, {WS}, 0 offen sc1"); vm.issue("xs")
                A.I(f"buffer_store_dwordx4 v[220:223], v241, {WS}, 0 offen sc1"); vm.issue("xs")
                A.I("v_mov_b32 v248, 0")
                A.I("global_load_dword v249, v248, s[12:13] sc1"); vm.issue("nonce")
            if itlb == 1 and g == BAR-1 and t in (0, 1, 2, 3):
                WARM = [["main_d", "main_s", "b_full_full_1fd", "b_full_full_1"], ["b_diag_full_0", "b_full_diag_0", "b_None_diag_0epi", "b_diag_None_0st"],
                        ["b_full_diag_1", "b_full_None_0st", "b_None_full_0last", "merge"], ["role0", "role2", "role3", "mhi"]][t]
                for w in range(4):
                    A.I(f"s_cmp_lg_u32 s{S_WAVE}, {w}")
                    A.I(f"s_cbranch_scc1 {L(f'nst{t}_{w}')}")
                    A.I(f"s_call_b64 s[{S_RET}:{S_RET+1}], {L('w_' + WARM[w])}")
                    A.label(L(f"nst{t}_{w}"))
            if g+1 in vpos and vpos[g+1][2]:
                for x in vpos[g+1][2]: A.I(x)
                if not (db == 0 and q % 2 == 0): A.I("s_nop 0") if False else None
            if q == 7 and db < 7: A.I(lg.wait(f"R{t}_{db+1}"))
            if g in (1, 3, 5): A.I(lg.wait(f"c{t}_{(g+1)//2}"))
            nds = 0
            if db == 0 and q % 2 == 0:
                A.I(reads1(t, 7)[q//2]); lg.issue(f"R{t}_7"); nds = 1
            if g > BAR and g % 2 == 0 or (g > BAR and g not in vpos and g not in cpos and rq and rq[0][0] <= g - 6):
                if rq and rq[0][0] <= g:
                    x = rq.pop(0); A.I(x[1]); lg.issue(x[2]); nds += 1
            if g in cpos:
                if cpos[g][2] == 0: A.I(vm.wait([f"C{t+1}_{cpos[g][1]}", f"C{t+1}"]))
                A.I(cpos[g][0]); lg.issue(f"c{t+1}_{cpos[g][1]}"); nds += 1
            if xst_t < 6 and t == xst_t + 2 and g == BAR + 1: pubxn()
            if t == 7 and g == 8:
                for x in p2setup(0): A.I(x)
                A.I(f"s_mov_b32 s52, {QSCALE}")
            if t == 7 and g in (18, 34, 50):
                s_ = (g-18)//16
                lnq += [f"v_mul_f32 v{r+k}, s52, v{r+k}" for kb in range(4) for r in (accK(2*s_,kb), accK(2*s_+1,kb)) for k in range(4)]
            if g in vpos:
                A.I(vpos[g][0]); vm.issue(vpos[g][1])
            nln = 0 if (g in vpos or nds > 1) else (1 if nds else 2)
            while nln and lnq:
                x = lnq[0]
                sp = ("row_ror" in x or "permlane" in x or "sqrt" in x or "rcp" in x)
                if sp and nln == 2 and lastln[0] == (t, g): break
                A.I(lnq.pop(0)); nln -= 1
                dep = sp or (lnq and ("row_ror" in lnq[0] or "permlane" in lnq[0]))
                lastln[0] = (t, g)
                if dep:
                    if lnq and ("row_ror" in lnq[0] or "permlane" in lnq[0]): A.I("s_nop 0")
                    break
        assert not rq, (t, len(rq))
    ST.stamp()
    def cvt_frag(r0, r1):
        return [f"v_cvt_pk_bf16_f32 v{r0}, v{r0}, v{r0+1}", f"v_cvt_pk_bf16_f32 v{r0+1}, v{r0+2}, v{r0+3}",
                f"v_cvt_pk_bf16_f32 v{r0+2}, v{r1}, v{r1+1}", f"v_cvt_pk_bf16_f32 v{r0+3}, v{r1+2}, v{r1+3}"]
    def store_frag(r0, f):
        return [f"s_add_u32 s47, s46, {(f>>2)*4096}", f"buffer_store_dwordx4 {v(r0,4)}, v{V_L16}, {WS}, s47 offen offset:{(f&3)*1024}{kvsc}"]
    accV = lambda p, dbl, kb: (208 + dbl*16 if p % 2 == 0 else (128, 96)[dbl]) + kb*4
    epi = {}
    kj = [(accK(2*s_,kb), accK(2*s_+1,kb), kb*4+s_) for s_ in range(4) for kb in range(4)]
    for i, job in enumerate(kj): epi.setdefault(i//2, []).append(job)
    sts = {}
    for i, job in enumerate(kj): sts[[0,1,2,3, 4,5,6,7, 8,10,12,14, 16,18,20,22][i]] = job
    for p in range(3):
        vj = [(accV(p,dbl,2*j), accV(p,dbl,2*j+1), 16 + j*8 + 2*p+dbl) for dbl in range(2) for j in range(2)]
        for i, job in enumerate(vj):
            G_ = (p+1)*8 + (1 + 2*i if p < 2 else i)
            epi.setdefault(G_, []).append(job); sts[G_] = job
    RB = [138240, 87040, 61440, 112640]
    QBASE = 87040
    def qwdma(t):
        slot = RB[t % 4]
        return [(rotk(t, 19, 44, S_TMP) + [f"s_add_u32 m0, s{S_W4K}, {slot}"], f"buffer_load_dwordx4 v4, s[{SRD_WQ}:{SRD_WQ+3}], s{S_TMP} offen lds")] + \
               [(None, f"buffer_load_dwordx4 v{4+j}, s[{SRD_WQ}:{SRD_WQ+3}], s{S_TMP} offen offset:{j*1024} lds") for j in range(1, 4)] + \
               [([f"s_add_u32 s{S_TMP}, s33, {t*64*2752}",
                  f"s_add_u32 m0, s35, {slot+16384}"], f"buffer_load_dwordx4 v16, s[{SRD_W1}:{SRD_W1+3}], s{S_TMP} offen lds"),
                (None, f"buffer_load_dwordx4 v17, s[{SRD_W1}:{SRD_W1+3}], s{S_TMP} offen offset:1152 lds")]
    def xload(t):
        r = []
        for qb in range(4):
            for kk in range(2):
                pre = None
                if qb == 0 and kk == 0: pre = rotk(t, 11, 34, S_TMP2)
                elif kk == 0: pre = [f"s_add_u32 s{S_TMP2}, s{S_TMP2}, 16384"]
                r.append((pre, f"buffer_load_dwordx4 {a((qb*16+2*t+kk)*4,4)}, v{V_L16}, {WS}, s{S_TMP2} offen offset:{kk*1024}{xsc}"))
        return r
    WR = 208
    def blk(n):
        t, c = n//11, n % 11
        return t, (c if t < 7 else (c+8) % 11)
    def breads(n):
        t, cb = blk(n)
        r = []
        so = RB[t % 4] - QBASE
        if so < 0: so = 0
        for kk in range(2):
            dst = WR + (n % 6)*8 + kk*4
            if cb < 8: off = so + kk*8192; areg = 8+cb; h2 = 1024
            else: off = so + kk*4608 + (cb-8)*32; areg = 18; h2 = 384
            r += [tr(dst, areg, off), tr(dst+2, areg, off+h2)]
        return r
    def bump(n):
        t, cb = blk(n)
        if cb <= 8 and t % 4 in (2, 3):
            areg = 8+cb if cb < 8 else 18
            return [f"v_subrev_u32 v{areg}, {WSLOT}, v{areg}" if t % 4 == 2 else f"v_add_u32 v{areg}, {WSLOT}, v{areg}"]
        return []
    q_setup_s = [
        f"s_load_dwordx2 s[4:5], s[0:1], {KA['wq']}", f"s_load_dwordx4 s[8:11], s[0:1], {KA['w1']}",
        f"s_lshl_b32 s{S_T2}, s{S_T}, 1",
        f"s_lshr_b32 s{S_STRM}, s{S_WAVE}, 1", f"s_lshl_b32 s{S_STRM}, s{S_STRM}, 16",
        f"s_and_b32 s{S_TMP}, s{S_WAVE}, 1", f"s_lshl_b32 s{S_TMP}, s{S_TMP}, 2",
        f"s_lshr_b32 s{S_TMP2}, s{S_WAVE}, 1", f"s_xor_b32 s{S_TMP2}, s{S_TMP2}, s{S_WAVE}", f"s_and_b32 s{S_TMP2}, s{S_TMP2}, 1", f"s_lshl_b32 s{S_TMP2}, s{S_TMP2}, 2",
        f"s_sub_u32 s{S_QA}, 15, s{S_T}", f"s_lshl_b32 s{S_QA}, s{S_QA}, 3", f"s_add_u32 s{S_QA}, s{S_QA}, s{S_TMP2}",
        f"s_lshl_b32 s{S_Q0}, s{S_T}, 3", f"s_add_u32 s{S_Q0}, s{S_Q0}, s{S_TMP}",
        f"s_cmp_lt_u32 s{S_WAVE}, 2", f"s_cselect_b32 s{S_Q0}, s{S_QA}, s{S_Q0}",
        f"s_lshl_b32 s{S_KVB}, s{S_H}, 20", f"s_add_u32 s{S_KVB}, s{S_KVB}, s{S_W4K}", f"s_add_u32 s{S_KVB}, s{S_KVB}, {WS_KV}",
        f"s_and_b32 s7, s{S_H}, 1", "s_lshl_b32 s6, s7, 5", "s_lshl_b32 s7, s7, 1",
        f"s_mul_i32 s32, s{S_H}, 96", f"s_mul_i32 s33, s{S_WAVE}, {16*2752}", f"s_add_u32 s33, s33, s32",
        f"s_lshl_b32 s34, s{S_Q0}, 14", f"s_add_u32 s34, s34, {xdiag}", f"s_mul_i32 s35, s{S_WAVE}, 2304",
        "s_add_u32 s53, s32, s6", "s_lshl_b32 s6, s6, 1", "s_sub_u32 s54, s32, s6"]
    q_setup_v = [
        f"v_mul_u32_u24 v20, 43, v1", "v_lshrrev_b32 v20, 8, v20", "v_mul_u32_u24 v21, 6, v20", "v_sub_u32 v21, v1, v21",
        "v_add_u32 v21, s7, v21", "v_subrev_u32 v22, 6, v21", "v_min_u32 v21, v21, v22",
        "v_mul_u32_u24 v16, 2752, v20", "v_lshl_add_u32 v16, v21, 4, v16", "v_cmp_gt_u32 vcc, 48, v1", f"v_mov_b32 v20, {OOB}",
        "v_lshrrev_b32 v21, 4, v1", "v_cndmask_b32 v16, v20, v16, vcc", f"v_add_u32 v17, {8*2752-1152}, v16",
        "v_mul_u32_u24 v18, 1152, v21", "v_bfe_u32 v22, v1, 2, 2", "v_mul_u32_u24 v22, 96, v22", "v_add_u32 v18, v18, v22",
        "v_and_b32 v22, 3, v1", "v_lshl_add_u32 v18, v22, 3, v18", f"v_add_u32 v18, {QBASE+16384}, v18",
        "v_lshlrev_b32 v19, 3, v21",
        "v_and_b32 v24, 31, v1", "v_lshlrev_b32 v24, 7, v24"]
    def srd_list(dst, ptr, nbytes):
        return [f"s_mov_b32 s{dst}, s{ptr}", f"s_mov_b32 s{dst+1}, s{ptr+1}", f"s_mov_b32 s{dst+2}, {nbytes}", f"s_mov_b32 s{dst+3}, 0x20000"]
    extra = {}
    def put(G, g, items): extra.setdefault((G, g), []).extend(items)
    for i, x in enumerate(q_setup_s): put(2 + i//12, (4, 5, 6, 8, 9, 10, 11, 12, 13, 14, 14, 14)[i % 12] if i < 12 else (0, 1, 2, 3, 4, 5, 8, 9, 10, 11, 12, 13)[i % 12], [x])
    for i, x in enumerate(q_setup_v): put(5 + i//10, (1, 3, 5, 5, 9, 9, 11, 11, 13, 13)[i % 10], [x])
    put(5, 15, ["s_waitcnt lgkmcnt(0)"])


    for i, x in enumerate(srd_list(SRD_WQ, 4, 4*MB) + srd_list(SRD_W1, 8, 512*2752) + srd_list(SRD_B1, 10, 2752)): put(6, i, [x])
    put(8, 1, [f"s_lshl_b32 s{S_TMP}, s{S_Q0}, 10", f"s_add_u32 s{S_TMP}, s{S_TMP}, {flag_base(F_XN)}"])
    put(8, 3, [f"v_add_u32 v24, s{S_TMP}, v24"])
    put(pxg, 13, [(f"buffer_load_dword v25, v24, {WS}, 0 offen sc1", "pollx")])
    for fb in range(3):
        put(8, 7+2*fb, [(f"buffer_load_dwordx2 v[{26+2*fb}:{27+2*fb}], v19, s[{SRD_B1}:{SRD_B1+3}], s{53 if fb < 2 else 54} offen offset:{fb*32}", "b")])
    def put_ops(G0, g0, lst, tag, step=2):
        G, g = G0, g0
        for pre, x in lst:
            if pre: put(G, g-1, [("P", y) for y in pre])
            put(G, g, [(x, tag)])
            g += step
            while g > 15: G += 1; g -= 16
        return G, g
    if tlb:
        tl = [f"s_mul_i32 s39, s{S_Q0}, 49152", f"s_add_u32 s39, s39, {WS_H}",
              f"s_lshl_b32 s39, s{S_Q0}, 17", f"s_add_u32 s39, s39, {WS_CTX}",
              f"s_lshl_b32 s39, s{S_QA}, 17", f"s_add_u32 s39, s39, {WS_CTX}",
              "s_lshl_b32 s39, s2, 15", f"s_add_u32 s39, s39, {WS_PART}"]
        for i in range(4):
            put(tlb, 4*i, [tl[2*i], tl[2*i+1]])
            put(tlb, 4*i+1, [(f"buffer_load_dword v252, v1, {WS}, s39 offen", "pr")])
    put_ops(0, 1, wdma("v", 6, vslot(6)), "Wv6", 4)
    put_ops(1, 1, wdma("v", 7, vslot(7)), "Wv7", 4)
    cp2 = code_pf(32768, 32768, 32, 44)
    put(9, 1, cp2[:3]); put(9, 3, cp2[3:6]); put(9, 5, [cp2[6]]); put(9, 7, [(cp2[7], "pf2")])
    put(9, 11, ["v_add_u32 v33, 0x8000, v32"]); put(9, 13, [("global_load_dwordx4 v[44:47], v33, s[62:63]", "pf2")])
    if wqg:
        put(wqg+1, 1, [("global_load_dword v252, v3, s[68:69]", "pr")]); put(wqg+1, 5, [("global_load_dword v253, v250, s[64:65]", "pr")])
    put_ops(pxc+9, 3, qwdma(0), "W0", 6)
    XS = lambda i: (64, 48, 32, 80)[i//4] + (i % 4)*4
    xs01 = [(pre, x.replace(x.split()[1], v(XS(i), 4) + ",")) for i, (pre, x) in enumerate(xload(0) + xload(1))]
    put_ops(pxc, 7, xs01, "X01", 8)
    for nb in range(8): put(23, 1+2*nb, [f"v_subrev_u32 v{8+nb}, {114688-QBASE}, v{8+nb}"])
    put(27, 0, ["WAITX"])
    mv = []
    for i in range(16):
        t_, qb, kk = i//8, (i//2) % 4, i % 2
        mv += [f"v_accvgpr_write_b32 a{(qb*16+2*t_+kk)*4+r}, v{XS(i)+r}" for r in range(4)]
    for i, x in enumerate(mv): put(27 + i//16, 1 + 2*((i % 16)//2), [x])
    put_ops(28, 3, qwdma(1), "W1", 4)
    put_ops(30, 1, xload(2), "X2", 4)
    for G in range(32):
        p, ksg, dbl = p2addr(G)
        M = []
        for kb in range(4):
            for k4 in range(4):
                ks = ksg*4+k4
                c = v(accV(p,dbl,kb),4)
                M.append(mf(c, a((kb*16+ks)*4,4), v(WF + (G%4)*16 + k4*4,4), "0" if ks == 0 else c))
        w = lg.wait(f"S{G}")
        if w: A.I(w)
        if G in (4, 12, 20, 27) and not fine or (fine and G % 4 == 0 and G > 0): ST.stamp()
        if G == pxc:
            A.I(vm.wait(["pollx", "b"]))
            poll_check(24, 25, S_TMP, vmask=23)
            for fb in range(3):
                for k in range(2):
                    A.I(f"v_lshlrev_b32 v{32+fb*4+2*k}, 16, v{26+2*fb+k}")
                    A.I(f"v_and_b32 v{33+fb*4+2*k}, 0xffff0000, v{26+2*fb+k}")
            for i in range(12): A.I(f"v_mov_b32 v{20+i}, v{32+i}")
        if G in (0, 2, 5):
            A.I(vm.wait({0: "Wv3", 2: "Wv5", 5: "Wv7"}[G]))
            A.I("s_barrier")
        if G == 0 and xst_t == 6: pubxn()
        rsched = {0: [2], 1: [3], 2: [4], 3: [5], 4: [], 5: [6, 7], 6: [8, 9]}.get(G, [G+3] if G+3 < 32 else [])
        rl = [(x, f"S{G2}") for G2 in rsched for x in reads2(G2)]
        if G == 28:
            A.I(vm.wait("W0"))
            A.I("s_barrier")
        jobs = epi.get(G, [])
        ml = []
        if G < 8:
            if G == 0: lnq += [f"v_mul_f32 v{r+k}, s52, v{r+k}" for kb in range(4) for r in (accK(6,kb), accK(7,kb)) for k in range(4)]
            ml = lnq
            while len(lnq) > 128 - 16*(G+1): A.I(lnq.pop(0)); print("flush mul", G)
        cv = []; st = {}
        for i, (r0, r1, f) in enumerate(jobs): cv += cvt_frag(r0, r1)
        if G in sts: st[15 if G < 8 else 11] = store_frag(sts[G][0], sts[G][2])
        for g in range(16):
            A.I(M[g])
            ex = extra.get((G, g), [])
            for x in ex:
                if x == "WAITX": A.I(vm.wait("X01"))
                elif isinstance(x, tuple) and x[0] == "P": A.I(x[1])
                elif isinstance(x, str) and x.startswith("s_"):
                    A.I(x)
                    if x == "s_waitcnt lgkmcnt(0)": lg.drain()
            if g in st: A.I(st[g][0])
            if rl and g not in st and (g % 2 == 0 or len(rsched) > 1):
                for _ in range(2 if len(rl) > 15 - g and len(rsched) > 1 else 1):
                    if rl:
                        x = rl.pop(0); A.I(x[0]); lg.issue(x[1])
            if G >= 29 and g % 2 == 0:
                n = (G-29)*2 + g//8
                if n < 5: A.I(breads(n)[(g//2) % 4]); lg.issue(f"R{n}")
            if g in st:
                A.I(st[g][1]); vm.issue("st")
            for x in ex:
                if isinstance(x, tuple) and x[0] != "P": A.I(x[0]); vm.issue(x[1])
                elif isinstance(x, str) and not x.startswith("s_") and x != "WAITX": A.I(x)
            if g % 2 == 1 and g not in st:
                for _ in range(0 if any(isinstance(x, tuple) and x[0] != 'P' for x in ex) else 2):
                    if ml: A.I(ml.pop(0))
            if len(jobs) > 1:
                if g % 2 == 0: A.I(cv[g//2])
            elif len(jobs) == 1 and g % 2 == 0 and g < 8:
                A.I(cv[g//2])
            if (G+4) % 8 == 0 and G+4 < 32 and g in (1, 3, 5, 9):
                A.I(p2setup((G+4)//8)[(1,3,5,9).index(g)])
        assert not rl, G
    A.I("s_barrier")
    ST.stamp()
    A.label(L("qgemm"))
    def kvdma(tile, voff, ldsoff):
        return [([f"s_add_u32 s{S_TMP}, s{S_KVB}, {tile*32768+voff}", f"s_add_u32 m0, s{S_W4K}, {ldsoff}"] if j == 0 else None,
                 f"buffer_load_dwordx4 v{V_L16}, {WS}, s{S_TMP} offen offset:{j*1024} sc1 lds") for j in range(4)]
    xt = {t: f"X{t}" for t in range(8)}
    pend = []
    gel = []
    for qb in range(4):
        for fb in range(3):
            x0 = accF(fb, qb); T = [20+r for r in range(4)]
            for r in range(4): gel.append(f"v_mul_f32 v{T[r]}, v{x0+r}, v{x0+r}")
            for r in range(4): gel.append(f"v_fma_f32 v{T[r]}, v{T[r]}, s32, v28")
            for r in range(4): gel.append(f"v_mul_f32 v{T[r]}, v{T[r]}, v{x0+r}")
            for r in range(4): gel.append(f"v_exp_f32 v{T[r]}, v{T[r]}")
            for r in range(4): gel.append(f"v_add_f32 v{T[r]}, 1.0, v{T[r]}")
            for r in range(4): gel.append(f"v_rcp_f32 v{T[r]}, v{T[r]}")
            for r in range(4): gel.append(f"v_mul_f32 v{x0+r}, v{x0+r}, v{T[r]}")
            d0 = accF(0, qb) + 2*fb if fb < 2 else x0
            gel.append(f"v_cvt_pk_bf16_f32 v{d0}, v{x0}, v{x0+1}")
            gel.append(f"v_cvt_pk_bf16_f32 v{d0+1}, v{x0+2}, v{x0+3}")
            if fb == 1:
                gel.append(f"s_add_u32 s35, s34, {qb*49152}")
                gel.append(f"buffer_store_dwordx4 {v(accF(0,qb),4)}, v29, {WS}, s35 offen sc1")
            if fb == 2:
                gel.append(f"buffer_store_dwordx2 {v(x0,2)}, v30, {WS}, s35 offen sc1")
    qfin = []
    for s_ in range(4):
        grp = []
        for qb in range(4):
            r0, r1 = accQ(2*s_, qb), accQ(2*s_+1, qb)
            grp += cvt_frag(r0, r1)
            grp.append(f"ds_write_b128 v27, {v(r0,4)} offset:{(qb*4+s_)*1024}")
        qfin.append(grp)
    vq = []; sq = []
    def take(budget):
        while budget > 0 and (vq or (gel and gel_ok[0])):
            src = vq if vq else gel
            x = src[0]
            cost = 2 if ("v_exp" in x or "v_rcp" in x or "buffer" in x or "ds_write" in x) else (0 if x.startswith("s_") else 1)
            if cost > budget: break
            A.I(src.pop(0)); budget -= cost
            if "buffer" in x: vm.issue("hs")
            if "ds_write" in x: lg.issue("qs")
    gel_ok = [False]
    pfq = []
    slotok = lambda gg, t: (gg % 6 == 1) if qeven else (gg % 4 == 1)
    tail = []
    for dbl in (1, 0):
        for j in range(2):
            r0, r1 = accV(3,dbl,2*j), accV(3,dbl,2*j+1)
            tail.append((cvt_frag(r0, r1), store_frag(r0, 16 + j*8 + 6+dbl)))
    for n in range(88):
        t, cb = blk(n)
        c_ = n % 11
        if n == 66:
            for x in [f"s_mov_b32 s32, {G2}", f"s_mov_b32 s33, {G1}", "v_mov_b32 v28, s33",
                      f"s_mul_i32 s34, s{S_Q0}, 49152", f"s_add_u32 s34, s34, {WS_H}",
                      f"s_mul_i32 s47, s{S_H}, 3", "s_add_u32 s35, s47, 1", "s_lshr_b32 s35, s35, 1", "s_lshl_b32 s35, s35, 10",
                      f"v_add_u32 v29, s35, v{V_L16}",
                      f"s_and_b32 s47, s{S_H}, 1", f"s_mul_i32 s47, s47, {8-2048}", "s_add_u32 s47, s47, 1024", "v_add_u32 v30, s47, v29",
                      "s_lshl_b32 s61, s2, 1", f"s_lshr_b32 s47, s{S_WAVE}, 1", f"s_xor_b32 s47, s47, s{S_WAVE}", "s_and_b32 s47, s47, 1",
                      "s_add_u32 s61, s61, s47", "s_lshl_b32 s61, s61, 10", f"s_add_u32 s61, s61, {WS_NEGM - 16384}",
                      "s_lshl_b32 s47, s47, 14", "s_add_u32 s47, s47, 131072", f"v_add_u32 v31, s47, v{V_L16}",
                      f"s_cmp_lt_u32 s{S_WAVE}, 2", f"s_cselect_b32 s47, s47, 0x10000", f"v_add_u32 v27, s47, v{V_L16}"]: A.I(x)
        if n == 68:
            sq += [f"s_mov_b32 s{S_I}, -1", f"s_add_u32 s{S_E}, s{S_T2}, 2", f"s_add_u32 s{S_C}, s{S_T2}, 4", f"s_sub_u32 s{S_DG}, 30, s{S_T2}", f"s_mov_b32 s{S_FAIL}, 0"] + \
                  tile_calc(S_K0, 3, 0, 0) + tile_calc(S_V0, 2, 0, 16384) + lds_calc() + tile_calc(S_K1, 3, 1, 0) + tile_calc(S_V1, 2, 1, 16384) + [f"s_mov_b32 s{S_I}, 0"]
            vq += ["v_and_b32 v24, 15, v1", "v_lshrrev_b32 v25, 4, v1", "v_lshlrev_b32 v25, 2, v25"]
            for r in range(4):
                vq += [f"v_add_u32 v26, {r}, v25", f"v_cmp_le_u32 s[{S_MASK+2*r}:{S_MASK+2*r+1}], v26, v24"]
            vq += ["v_and_b32 v24, 3, v1", "v_cmp_eq_u32 vcc, 0, v24", "v_mov_b32 v25, 0x3f803f80", "v_nop", "v_cndmask_b32 v24, 0, v25, vcc"]
            vq += [f"v_accvgpr_write_b32 a{ONES+i}, v24" for i in range(4)]
        if t == 7:
            if c_ == 4:
                gel_ok[0] = True
                A.I("s_barrier")
            if c_ >= 6 and c_ % 2 == 0: vq += qfin[(c_-6)//2]
        if c_ == 0:
            w = vm.wait(xt[t])
            if w: A.I(w)
            if t <= 5: pend += [(p, x, f"W{t+2}") for p, x in qwdma(t+2)]
            if t <= 4: pend += [(p, x, f"X{t+3}") for p, x in xload(t+3)]
            if t == 0:
                A.I(f"s_and_b32 s{S_TMP}, s2, 31")
                A.I(f"s_lshl_b32 s{S_TMP}, s{S_TMP}, 9")
                A.I(f"s_add_u32 s{S_TMP}, s{S_TMP}, {flag_base(F_XN)}")
                A.I("v_bfe_u32 v3, v1, 2, 3")
                A.I("v_lshlrev_b32 v3, 14, v3")
                A.I("v_and_b32 v19, 3, v1")
                A.I("v_lshl_add_u32 v3, v19, 7, v3")
                A.I(f"v_add_u32 v3, s{S_TMP}, v3")
                A.I(f"buffer_load_dword v19, v3, {WS}, 0 offen sc1"); vm.issue("pollid")
            if t == 5:
                cp3 = code_pf(34816, 65536, 3, 20)
                for x in cp3: A.I(x)
                vm.issue("pf3")
            if t == 5: pend += [(p, x, "KV0") for p, x in kvdma(0, 0, 0) + kvdma(1, 0, 16384)]
            if t == pft:
                for i in range(4): A.I(f"v_accvgpr_write_b32 a{i}, -1")
                for x in [f"s_lshl_b32 s64, s2, 2", f"s_add_u32 s64, s64, s{S_WAVE}", f"s_lshl_b32 s64, s64, 13", f"s_add_u32 s64, s64, {WS_PART}", f"s_add_u32 s65, s64, 4096"]: A.I(x)
                pfq += [f"buffer_store_dwordx4 a[0:3], v{V_L16}, {WS}, s{64+i//4} offen offset:{(i%4)*1024} sc1" for i in range(8)]
            if t == 6: pend += [(p, x, "KV0") for p, x in kvdma(0, 16384, 32768)]
            if t == 3:
                A.I(f"v_add_u32 v3, {flag_base(F_KV) - flag_base(F_XN)}, v3")
                A.I(f"buffer_load_dword v19, v3, {WS}, 0 offen sc1"); vm.issue("pollkv")
            if t == 4:
                A.I(vm.wait("pollkv"))
                poll_check(3, 19, 47)
        w = lg.wait(f"R{n}")
        if w: A.I(w)
        if c_ == 0 and (t in (2, 4, 6) or (fine and t > 0)): ST.stamp()
        if c_ == 6 and t < 7:
            tags = [f"W{t+1}"] + (["st"] if t == 1 else [])
            A.I(vm.wait(tags))
            A.I("s_barrier")
            if t == 1:
                assert vm.need("pollid") is None
                poll_check(3, 19, 47, vmask=31)
                A.I(f"v_cmp_ne_u32 vcc, s{S_ID}, v19")
                A.I(f"s_cbranch_vccz {L('samexcd')}")
                A.I("buffer_wbl2 sc1")
                A.I("s_waitcnt vmcnt(0)")
                A.label(L("samexcd"))
                for x in set_flag(F_KV, 31, 19, 47): A.I(x)
                vm.issue("fl")
        nx = n+5
        rds = breads(nx) if nx < 88 else []
        if nx < 88:
            for x in bump(nx): A.I(x)
        i = 0
        for qb in range(4):
            for kk in range(2):
                if cb < 8: d = v(accQ(cb, qb), 4); c0 = "0"
                else: d = v(accF(cb-8, qb), 4); c0 = v(20+(cb-8)*4, 4)
                A.I(mf(d, v(WR + (n % 6)*8 + kk*4, 4), a((qb*16+2*t+kk)*4, 4), c0 if (t == 0 and kk == 0) else d))
                if i % 2 == 0:
                    if pend and pend[0][0] and slotok(c_*8 + i + 1, t):
                        for y in pend[0][0]: A.I(y)
                        pend[0] = (None,) + pend[0][1:]
                        if not rds: A.I("s_nop 0")
                    if rds: A.I(rds[i//2]); lg.issue(f"R{nx}")
                elif pend and slotok(c_*8 + i, t) and not pend[0][0]:
                    p, x, tag = pend.pop(0)
                    A.I(x); vm.issue(tag)
                if pfq and i == 3 and n % pfs == 0:
                    A.I(pfq.pop(0)); vm.issue("pfl")
                tn = {1: 0, 2: 1, 4: 2, 5: 3}.get(n)
                if tn is not None:
                    if i % 2 == 0: A.I(tail[tn][0][i//2])
                    if i == 7:
                        for x in tail[tn][1]: A.I(x)
                        vm.issue("st")
                if n >= 68:
                    if sq: A.I(sq.pop(0))
                    take(1 if (i % 2 == 0 and rds) else (0 if (i == 3 and n % pfs == 0 and n < 55 + 8*pfs) else 2))
                i += 1
    assert not pend and not pfq
    assert not sq
    qrest = vq + qfin[3]
    k2.WTOUCH[:] = ["s_lshl_b32 s7, s2, 2", f"s_add_u32 s7, s7, s{S_WAVE}", "v_and_b32 v18, 31, v1", "v_lshlrev_b32 v18, 7, v18", "v_min_u32 v17, 0x500, v18",
              "s_lshl_b32 s33, s7, 12", "v_add_u32 v18, s33, v18", "s_mul_i32 s7, s7, 1408", "v_add_u32 v17, s7, v17", f"v_min_u32 v17, {1376*1024-4}, v17",
              "global_load_dword v4, v18, s[70:71]", "global_load_dword v4, v17, s[66:67]"]
    k2.WOFB[0] = wofb
    if wofb: k2.WTOUCH[:] = k2.WTOUCH[:-2]
    elif not wotouch: k2.WTOUCH[:] = []
    ST.stamp()
    SP, SRT, SCT, SQH, SKH, SBB, SBS, SNV, SWB, SM0 = 64, 65, 66, 67, 68, 69, 70, 71, 4, 5
    T0, T1, T2 = 6, 7, 35
    SEARLY = 58
    WW, SX, SO, SB2 = 20, 24, 28, 12
    vm4 = Cnt("vmcnt", 63)
    def slot4(u):
        return [2, 0, 1, 3][(u-1) % 4]*16384
    def w4dma(u):
        r = []
        for i in range(8):
            pre = None
            if i % 4 == 0:
                m0 = f"s_add_u32 m0, s{SM0}, {slot4(u) + (i//4)*4096}" if u > 0 else f"s_add_u32 m0, s{T1}, {(i//4)*4096}"
                pre = [f"s_add_u32 s{T0}, s{SWB}, {u*65536 + (i//4)*16384}", m0]
            r.append((pre, f"buffer_load_dwordx4 v{4+i%4}, s[{WW}:{WW+3}], s{T0} offen offset:{(i%4)*1024} lds"))
        return r
    def issue4(lst, tag):
        for pre, x in lst:
            if pre:
                for y in pre: A.I(y)
                if "lds" in x: A.I("s_nop 0")
            A.I(x); vm4.issue(tag)
    Bf = lambda u, qb, kk: 128 + (u % 4)*32 + (qb*2+kk)*4
    def bload(u):
        r = []
        for qb in range(4):
            for kk in range(2):
                ks = 2*u+kk
                pre = []
                if qb == 0 and kk == 0: pre.append(f"s_add_u32 s{T1}, s{SBB}, {(ks>>2)*4096}")
                elif kk == 0: pre.append(f"s_add_u32 s{T1}, s{T1}, s{SBS if qb != 2 else 48}")
                so = T1
                if ks >= 18:
                    pre += [f"s_cmp_gt_u32 s{SNV}, {ks}", f"s_cselect_b32 s{T2}, s{T1}, {OOB}"]
                    so = T2
                r.append((pre or None, f"buffer_load_dwordx4 {a(Bf(u,qb,kk),4)}, v{V_L16}, {WS}, s{so} offen offset:{(ks&3)*1024}{csc}"))
        return r
    def oproj_setup(stage):
        if stage == 0:
            Z = Asm()
            Z.I(f"s_load_dwordx2 s[8:9], s[0:1], {KA['wo']}")
            Z.I(f"s_load_dwordx4 s[12:15], s[0:1], {KA['w2']}")
            Z.I(f"s_load_dwordx2 s[24:25], s[0:1], {KA['x']}")
            Z.I(f"s_load_dwordx2 s[28:29], s[0:1], {KA['out']}")
            Z.I(f"s_and_b32 s{SP}, s2, 3")
            Z.I(f"s_lshr_b32 s{T0}, s2, 3")
            Z.I(f"s_and_b32 s{SCT}, s{T0}, 3")
            Z.I(f"s_lshr_b32 s{SRT}, s{T0}, 2")
            Z.I(f"s_and_b32 s{T1}, s2, 4")
            Z.I(f"s_lshl_b32 s{T1}, s{T1}, 1")
            Z.I(f"s_add_u32 s{SRT}, s{SRT}, s{T1}")
            Z.I(f"s_and_b32 s{SQH}, s{S_WAVE}, 1")
            Z.I(f"s_lshr_b32 s{SKH}, s{S_WAVE}, 1")
            Z.I(f"s_lshl_b32 s{T0}, s{SP}, 1")
            Z.I(f"s_add_u32 s{T0}, s{T0}, s{SKH}")
            Z.I(f"s_cmp_eq_u32 s{T0}, 5")
            Z.I(f"s_cselect_b32 s{SNV}, 18, 22")
            Z.I(f"s_sub_u32 s{T1}, 22, s{SKH}")
            Z.I(f"s_cmp_eq_u32 s{SP}, 3")
            Z.I(f"s_cselect_b32 s{SNV}, s{T1}, s{SNV}")
            Z.I(f"s_cselect_b32 s{T0}, s{SKH}, s{T0}")
            Z.I(f"s_mov_b32 s{T2}, 131072")
            Z.I(f"s_cselect_b32 s{SBS}, 49152, s{T2}")
            Z.I(f"s_mov_b32 s{T2}, {WS_CTX}")
            Z.I(f"s_cselect_b32 s{SBB}, {WS_H}, s{T2}")
            Z.I(f"s_mul_i32 s{T0}, s{T0}, 22")
            Z.I(f"s_lshl_b32 s{T1}, s{SRT}, 3")
            Z.I(f"s_lshl_b32 s{T2}, s{SQH}, 2")
            Z.I(f"s_add_u32 s{T1}, s{T1}, s{T2}")
            Z.I(f"s_lshl_b32 s{T2}, s{SKH}, 1")
            Z.I(f"s_add_u32 s{T1}, s{T1}, s{T2}")
            Z.I(f"s_lshl_b32 s49, s{T1}, 14")
            Z.I(f"s_mul_i32 s48, s{SKH}, -4")
            Z.I(f"s_add_i32 s48, s48, 1")
            Z.I(f"s_mul_i32 s48, s48, s{SBS}")
            Z.I(f"s_mul_i32 s{T1}, s{T1}, s{SBS}")
            Z.I(f"s_add_u32 s{SBB}, s{SBB}, s{T1}")
            Z.I(f"s_lshl_b32 s{T1}, s{T0}, 10")
            Z.I(f"s_add_u32 s{SBB}, s{SBB}, s{T1}")
            Z.I(f"s_add_u32 s{T0}, s{T0}, s{SQH}")
            Z.I(f"s_lshl_b32 s{SWB}, s{T0}, 15")
            Z.I(f"s_lshl_b32 s{T1}, s{SCT}, 8")
            Z.I(f"s_add_u32 s{SWB}, s{SWB}, s{T1}")
            Z.I(f"s_lshl_b32 s{SM0}, s{SKH}, 16")
            Z.I(f"s_lshl_b32 s{T1}, s{SQH}, 13")
            Z.I(f"s_add_u32 s{SM0}, s{SM0}, s{T1}")
            Z.I("v_and_b32 v16, 15, v1")
            Z.I("v_lshrrev_b32 v17, 4, v1")
            Z.I("v_lshrrev_b32 v18, 1, v16")
            Z.I("v_xor_b32 v18, v18, v17")
            Z.I("v_and_b32 v19, 1, v16")
            Z.I("v_lshlrev_b32 v19, 4, v19")
            Z.I("v_lshl_add_u32 v19, v17, 10, v19")
            Z.I("v_lshl_add_u32 v4, v18, 5, v19")
            Z.I("v_xor_b32 v18, 4, v18")
            Z.I("v_lshl_add_u32 v5, v18, 5, v19")
            Z.I(f"v_add_u32 v6, {2*3072}, v4")
            Z.I(f"v_add_u32 v7, {3*3072}, v5")
            Z.I(f"v_add_u32 v5, {3072}, v5")
            Z.I("s_waitcnt lgkmcnt(0)")
            Z.I(f"s_cmp_eq_u32 s{SP}, 3")
            Z.I(f"s_cselect_b32 s{WW}, s12, s8")
            Z.I(f"s_cselect_b32 s{WW+1}, s13, s9")
            Z.I(f"s_mov_b32 s{T1}, {4*MB}")
            Z.I(f"s_cselect_b32 s{WW+2}, {1376*1024}, s{T1}")
            Z.I(f"s_mov_b32 s{WW+3}, 0x20000")
            Z.I(f"s_mov_b32 s12, s14"); Z.I(f"s_mov_b32 s13, s15"); Z.I(f"s_mov_b32 s14, 1024"); Z.I(f"s_mov_b32 s15, 0x20000")
            Z.I(f"s_mov_b32 s26, {2*MB}"); Z.I("s_mov_b32 s27, 0x20000"); Z.I(f"s_mov_b32 s30, {2*MB}"); Z.I("s_mov_b32 s31, 0x20000")
            Z.I(f"s_lshl_b32 s{T1}, s{SKH}, 14")
            Z.I(f"s_lshl_b32 s{T2}, s{SQH}, 13")
            Z.I(f"s_add_u32 s{T1}, s{T1}, s{T2}")
            Z.I(f"s_add_u32 s{T1}, s{T1}, 131072")
            for pre, x in w4dma(0):
                for y in (pre or []): Z.I(y)
                if pre: Z.I("s_nop 0")
                Z.I(x)
            Z.I("v_bfe_u32 v16, v1, 2, 2")
            Z.I("v_lshl_add_u32 v18, v17, 2, v16")
            Z.I("v_lshlrev_b32 v18, 8, v18")
            Z.I("v_and_b32 v19, 3, v1")
            Z.I("v_lshl_add_u32 v18, v19, 3, v18")
            Z.I(f"s_lshl_b32 s{T1}, s{SKH}, 16")
            Z.I(f"v_add_u32 v18, s{T1}, v18")
            Z.I("v_and_b32 v19, 1, v17")
            Z.I("v_lshl_add_u32 v16, v19, 2, v16")
            Z.I(f"s_mul_i32 s{T1}, s{SKH}, {16384-65536}")
            Z.I(f"s_add_u32 s{T1}, s{T1}, 131072")
            for nb in range(8):
                Z.I(f"v_xor_b32 v19, {nb}, v16")
                Z.I(f"v_lshl_add_u32 v{8+nb}, v19, 5, v18")
                Z.I(f"v_add_u32 v{20+nb}, s{T1}, v{8+nb}")
            Z.I(f"s_mul_i32 s{T0}, s{SP}, 11")
            Z.I(f"s_add_u32 s{T1}, s{T0}, 10")
            Z.I(f"s_min_u32 s{T1}, s{T1}, 31")
            Z.I(f"s_cmp_eq_u32 s{SP}, 3")
            Z.I(f"s_cselect_b32 s{T0}, 0, s{T0}")
            Z.I(f"s_cselect_b32 s{T1}, 28, s{T1}")
            Z.I("v_and_b32 v28, 31, v1")
            Z.I(f"v_add_u32 v28, s{T0}, v28")
            Z.I(f"v_cmp_ge_u32 s[{SEARLY}:{SEARLY+1}], s{T1}, v28")
            Z.I(f"v_min_u32 v28, s{T1}, v28")
            Z.I("v_lshrrev_b32 v29, 2, v28")
            Z.I("v_and_b32 v28, 3, v28")
            Z.I("v_lshl_add_u32 v28, v28, 3, v29")
            Z.I("v_lshlrev_b32 v28, 9, v28")
            Z.I(f"s_sub_u32 s{T0}, 15, s{SRT}")
            Z.I(f"s_min_u32 s{T0}, s{T0}, s{SRT}")
            Z.I(f"s_lshl_b32 s{T0}, s{T0}, 14")
            Z.I(f"s_lshl_b32 s{T1}, s{SQH}, 7")
            Z.I(f"s_add_u32 s{T0}, s{T0}, s{T1}")
            Z.I(f"s_cmp_lt_u32 s{SRT}, 8")
            Z.I(f"s_cselect_b32 s{T1}, 256, 0")
            Z.I(f"s_add_u32 s{T0}, s{T0}, s{T1}")
            Z.I(f"s_cmp_lt_u32 s{SRT}, 8")
            Z.I(f"s_mov_b32 s{T1}, {flag_base(F_A)}")
            Z.I(f"s_cselect_b32 s{T1}, {flag_base(F_B)}, s{T1}")
            Z.I(f"s_mul_i32 s{T2}, s{SQH}, -256")
            Z.I(f"s_addk_i32 s{T2}, 384")
            Z.I(f"s_cmp_lt_u32 s{SRT}, 8")
            Z.I(f"s_cselect_b32 s{T2}, 0, s{T2}")
            Z.I(f"s_cmp_eq_u32 s{SP}, 3")
            Z.I(f"s_cselect_b32 s{T1}, {flag_base(F_H)}, s{T1}")
            Z.I(f"s_cselect_b32 s{T2}, 0, s{T2}")
            Z.I(f"s_add_u32 s{T0}, s{T0}, s{T1}")
            Z.I(f"v_add_u32 v28, s{T0}, v28")
            Z.I("v_lshrrev_b32 v29, 5, v1")
            Z.I(f"v_mul_u32_u24 v29, s{T2}, v29")
            Z.I("v_add_u32 v28, v28, v29")
            if apollA:
                Z.I(f"v_mov_b32 v29, s{S_NONCE}")
                Z.I(f"s_mov_b64 exec, s[{SEARLY}:{SEARLY+1}]")
                for x in pload(29, 28, True): Z.I(x)
                Z.I("s_mov_b64 exec, -1")
            else: Z.I(f"buffer_load_dword v29, v28, {WS}, 0 offen sc1")
            return [x.text for x in Z.check(fix=True, seq=Z.items)]
    def oproj():
        lg4 = Cnt("lgkmcnt", 15)
        WF4 = 192
        wf = lambda mb, kk: WF4 + (mb*2+kk)*4
        def reads(u, mb):
            r = []
            for kk in range(2):
                off = (slot4(u) if u > 0 else 0) + kk*8192
                areg = (8 if u > 0 else 20) + mb
                r += [tr(wf(mb,kk), areg, off), tr(wf(mb,kk)+2, areg, off+4096)]
            return r
        acc = lambda mb, qb: 64 + (mb*4+qb)*4
        def emit(lst):
            for pre, x in lst:
                for y in (pre or []): A.I(y)
                if pre and "lds" in x: A.I("s_nop 0")
                A.I(x)
        su0 = oproj_setup(0)
        k0 = min(i for i, x in enumerate(su0) if " lds" in x) - 3
        for x in su0[:k0]: A.I(x)
        A.I("s_waitcnt vmcnt(0)")
        for x in set_flag(F_A, 30, 31, 34): A.I(x)
        for x in su0[k0:]: A.I(x)
        emit(w4dma(1))
        A.I("s_waitcnt vmcnt(8)")
        A.I("s_barrier")
        for mb in range(7):
            for x in reads(0, mb): A.I(x); lg4.issue(f"R0_{mb}")
        A.I(f"v_cmp_ne_u32 vcc, s{S_NONCE}, v29")
        A.I(f"s_cbranch_vccnz {L('late')}")
        emit(bload(0) + w4dma(2) + w4dma(3) + w4dma(4))
        A.I("s_waitcnt vmcnt(24)")
        A.I(f"s_branch {L('haveB')}")
        A.label(L("late"))
        if apollA: A.I(f"s_mov_b64 exec, s[{SEARLY}:{SEARLY+1}]")
        for x in pload(29, 28, apollA): A.I(x)
        A.I("s_mov_b64 exec, -1")
        emit(w4dma(2) + w4dma(3) + w4dma(4))
        A.I("s_waitcnt vmcnt(24)")
        if apollA: A.I(f"s_mov_b64 exec, s[{SEARLY}:{SEARLY+1}]")
        poll_check(28, 29, T0, atomic=apollA)
        A.I("s_mov_b64 exec, -1")
        emit(bload(0))
        A.I("s_waitcnt vmcnt(0)")
        A.label(L("haveB"))
        vE = Cnt("vmcnt", 63); vL = Cnt("vmcnt", 63)
        for tg in ["W1"]*8 + ["W2"]*8 + ["W3"]*8 + ["W4"]*8: vE.issue(tg)
        class Both:
            def issue(self, t): vE.issue(t); vL.issue(t)
            def wait(self, t):
                a_, b_ = vE.need(t), vL.need(t)
                n_ = [x for x in (a_, b_) if x is not None]
                return f"s_waitcnt vmcnt({min(n_)})" if n_ else None
        vm4 = Both()
        NU = 11
        su = [f"s_lshl_b32 s50, s{SCT}, 8", f"s_lshl_b32 s51, s{SP}, 6", "s_add_u32 s50, s50, s51", "s_add_u32 s54, s49, s50",
              "v_and_b32 v16, 15, v1", "v_lshrrev_b32 v17, 4, v1", "v_lshlrev_b32 v18, 3, v17", "v_lshl_add_u32 v19, v16, 10, v18", "v_add_u32 v20, 16384, v19",
              f"s_lshl_b32 s51, s{S_WAVE}, 14", f"v_add_u32 v21, s51, v{V_L16}", "s_xor_b32 s51, s51, 0x8000", f"v_add_u32 v22, s51, v{V_L16}",
              "s_and_b32 s55, s2, 0xfc", "s_lshl_b32 s56, s55, 9", "s_lshl_b32 s55, s55, 15", f"s_lshl_b32 s51, s{S_WAVE}, 13", "s_add_u32 s55, s55, s51",
              f"s_add_u32 s55, s55, {WS_PART}", f"s_lshl_b32 s51, s{S_WAVE}, 7", "s_add_u32 s56, s56, s51", f"s_add_u32 s56, s56, {flag_base(F_H)}",
              "v_and_b32 v23, 3, v1", "v_lshlrev_b32 v23, 9, v23", "v_add_u32 v23, s56, v23",
              f"s_lshl_b32 s51, s{SP}, 15", "s_add_u32 s56, s55, s51", f"s_lshl_b32 s51, s{SP}, 11", "s_add_u32 s55, s55, s51"]
        for q_ in range(4):
            su += [f"s_add_u32 s{40+q_}, s55, {q_*32768}", f"s_add_u32 s{44+q_}, s56, {q_*2048}", f"s_cmp_eq_u32 s{SP}, {q_}",
                   f"s_cselect_b32 s{40+q_}, {OOB}, s{40+q_}", f"s_cselect_b32 s{44+q_}, {OOB}, s{44+q_}"]
        xl = [f"buffer_load_dwordx2 v[{24+(i*2+j)*2}:{25+(i*2+j)*2}], v{19+i}, s[{SX}:{SX+3}], s54 offen offset:{j*32}" for i in range(2) for j in range(2)] + \
             [f"buffer_load_dwordx2 v[{32+j*2}:{33+j*2}], v18, s[{SB2}:{SB2+3}], s50 offen offset:{j*32}" for j in range(2)] + \
             [f"buffer_load_dword v38, v23, {WS}, 0 offen sc1"]
        for u in range(NU):
            w = vm4.wait(f"B{u}")
            if w: A.I(w)
            w = lg4.wait(f"R{u}_0")
            if w: A.I(w)
            if u == 0: ST.stamp()
            ops = []
            if u+3 < NU: ops += [(p, x, f"B{u+3}") for p, x in bload(u+3)]
            if k3pace:
                wl = [(p, x, f"W{u+3}") for p, x in w4dma(u+3)] if (u >= 1 and u+3 < NU) else []
                ops = ops[:2] + [y for pair in zip(wl[:6], ops[2:]) for y in pair] + wl[6:] if wl else ops
                step = 4 if wl else 8
                if u < 2:
                    ops = [(p, x, f"B{b_}") for b_ in (2*u+1, 2*u+2) for p, x in bload(b_)]
                    vpos = {1 + 4*i: op for i, op in enumerate(ops)}
                else: vpos = {1 + step*i: op for i, op in enumerate(ops)}
            else:
                if u >= 1 and u+3 < NU: ops = [(p, x, f"W{u+3}") for p, x in w4dma(u+3)] + ops
                odd = [g for g in range(9, 64) if g % 2 == 1]
                vpos = {odd[(i*len(odd))//len(ops)]: op for i, op in enumerate(ops)} if ops else {}
            g = 0
            for mb in range(8):
                for qb in range(4):
                    for kk in range(2):
                        q = g % 8
                        c = v(acc(mb,qb),4)
                        A.I(mf(c, v(wf(mb,kk),4), a(Bf(u,qb,kk),4), "0" if (u == 0 and kk == 0) else c))
                        if g == 7 and u+1 < NU:
                            w = vm4.wait(f"W{u+1}")
                            if w: A.I(w)
                            A.I("s_barrier")
                        if g+1 in vpos and vpos[g+1][0]:
                            for x in vpos[g+1][0]: A.I(x)
                        if q == 7 and mb < 7:
                            w = lg4.wait(f"R{u}_{mb+1}")
                            if w: A.I(w)
                        if q % 2 == 0:
                            rd = None
                            if mb == 0: rd = (reads(u, 7)[q//2], f"R{u}_7")
                            elif u+1 < NU: rd = (reads(u+1, mb-1)[q//2], f"R{u+1}_{mb-1}")
                            if rd: A.I(rd[0]); lg4.issue(rd[1])
                        if g in vpos:
                            A.I(vpos[g][1]); vm4.issue(vpos[g][2])
                        if u == 8 and su and g % 2 == 1:
                            A.I(su.pop(0))
                            if su and su[0].startswith("s_"): A.I(su.pop(0))
                        if u == 9 and xl and g % 8 == 3:
                            A.I(xl.pop(0)); vm4.issue("x")
                        g += 1
        ST.stamp()
        A.I("s_barrier")
        for mb in range(8):
            for i in range(2):
                A.I(f"ds_write_b128 v21, {v(acc(mb,2+i),4)} offset:{(mb*2+i)*1024}")
        A.I("s_waitcnt vmcnt(0)")
        for n in range(4):
            for k in range(2):
                A.I(f"v_lshlrev_b32 v{acc(n,2)+2*k}, 16, v{24+n*2+k}")
                A.I(f"v_and_b32 v{acc(n,2)+2*k+1}, 0xffff0000, v{24+n*2+k}")
        for j in range(2):
            for k in range(2):
                A.I(f"v_lshlrev_b32 v{acc(4+j,2)+2*k}, 16, v{32+j*2+k}")
                A.I(f"v_and_b32 v{acc(4+j,2)+2*k+1}, 0xffff0000, v{32+j*2+k}")
        poll_check(23, 38, T0)
        A.I("s_waitcnt lgkmcnt(0)")
        A.I("s_barrier")
        for b in range(16):
            A.I(f"ds_read_b128 {v(WF4+4*b,4)}, v22 offset:{b*1024}")
        for pq in range(4):
            regs = [acc((4*pq+x)//2, x % 2) for x in range(4)]
            for x in range(4):
                A.I(f"s_waitcnt lgkmcnt({15-4*pq-x})")
                for k in range(2): A.I(f"v_pk_add_f32 {v(regs[x]+2*k,2)}, {v(regs[x]+2*k,2)}, {v(WF4+4*(4*pq+x)+2*k,2)}")
            T = 40 + (pq % 2)*8
            for x in range(4):
                A.I(f"v_cvt_pk_bf16_f32 v{T+2*x}, v{regs[x]}, v{regs[x]+1}")
                A.I(f"v_cvt_pk_bf16_f32 v{T+1+2*x}, v{regs[x]+2}, v{regs[x]+3}")
            A.I(f"buffer_store_dwordx4 {v(T,4)}, v{V_L16}, {WS}, s{44+pq} offen sc1")
            A.I(f"buffer_store_dwordx4 {v(T+4,4)}, v{V_L16}, {WS}, s{44+pq} offen offset:1024 sc1")
        ST.stamp()
        def dload():
            for src in range(4):
                for hb in range(2):
                    A.I(f"buffer_load_dwordx4 {v(WF4+(src*2+hb)*4,4)}, v{V_L16}, {WS}, s{40+src} offen offset:{hb*1024} sc1")
        dload()
        for pq in range(4):
            regs = [acc((4*pq+x)//2, x % 2) for x in range(4)]
            A.I(f"s_cmp_lg_u32 s{SP}, {pq}")
            A.I(f"s_cbranch_scc1 {L(f'nown{pq}')}")
            for x in range(4):
                for k in range(4):
                    A.I(f"v_mov_b32 v{(224 if pq < 3 else 240)+4*x+k}, v{regs[x]+k}")
                    A.I(f"v_mov_b32 v{(240 if pq < 3 else 224)+4*x+k}, 0")
            A.label(L(f"nown{pq}"))
        A.I(f"s_mov_b32 s{T2}, {NLOG2E}")
        A.I(f"s_mov_b32 s{T0}, 0")
        A.label(L("dpoll"))
        A.I("s_waitcnt vmcnt(0)")
        A.I("v_max3_u32 v36, v192, v193, v194")
        A.I("v_max3_u32 v37, v195, v196, v197")
        for x in range(198, 222, 4):
            A.I(f"v_max3_u32 v36, v36, v{x}, v{x+1}")
            A.I(f"v_max3_u32 v37, v37, v{x+2}, v{x+3}")
        A.I("v_max3_u32 v36, v36, v222, v223")
        A.I("v_max_u32 v36, v36, v37")
        A.I("v_cmp_eq_u32 vcc, -1, v36")
        A.I(f"s_cbranch_vccz {L('dok')}")
        A.I(f"s_add_u32 s{T0}, s{T0}, 1")
        A.I(f"s_cmp_gt_u32 s{T0}, 0x40000")
        A.I(f"s_cbranch_scc1 {L('dok')}")
        dload()
        A.I(f"s_branch {L('dpoll')}")
        A.label(L("w_kh1")); A.I(f"s_setpc_b64 s[{S_RET}:{S_RET+1}]")
        A.label(L("dok"))
        ST.stamp()
        for src in range(4):
            dst = 224 if src < 3 else 240
            for x in range(8):
                A.I(f"v_lshlrev_b32 v{40+2*x}, 16, v{WF4+src*8+x}")
                A.I(f"v_and_b32 v{41+2*x}, 0xffff0000, v{WF4+src*8+x}")
            for x in range(8): A.I(f"v_pk_add_f32 {v(dst+2*x,2)}, {v(dst+2*x,2)}, {v(40+2*x,2)}")
        for b in range(4):
            for k in range(2): A.I(f"v_pk_add_f32 {v(240+b*4+2*k,2)}, {v(240+b*4+2*k,2)}, {v(acc(4+b//2,2)+2*k,2)}")
        for x in range(16): A.I(f"v_mul_f32 v{40+x}, s{T2}, v{240+x}")
        for x in range(16): A.I(f"v_exp_f32 v{40+x}, v{40+x}")
        for x in range(16): A.I(f"v_add_f32 v{40+x}, 1.0, v{40+x}")
        for x in range(16): A.I(f"v_rcp_f32 v{40+x}, v{40+x}")
        for x in range(8): A.I(f"v_pk_mul_f32 {v(240+2*x,2)}, {v(240+2*x,2)}, {v(40+2*x,2)}")
        for b in range(4):
            j, i = b//2, b % 2
            n = i*2+j
            for k in range(2): A.I(f"v_pk_fma_f32 {v(224+b*4+2*k,2)}, {v(224+b*4+2*k,2)}, {v(240+b*4+2*k,2)}, {v(acc(n,2)+2*k,2)}")
            A.I(f"v_cvt_pk_bf16_f32 v{224+b*4}, v{224+b*4}, v{224+b*4+1}")
            A.I(f"v_cvt_pk_bf16_f32 v{224+b*4+1}, v{224+b*4+2}, v{224+b*4+3}")
            A.I(f"buffer_store_dwordx2 {v(224+b*4,2)}, v{19+i}, s[{SO}:{SO+3}], s54 offen offset:{j*32}{outsc}")
        if padto:
            A.I(f"s_load_dwordx2 s[40:41], s[0:1], {KA['dbg']}")
            A.I("s_waitcnt lgkmcnt(0)")
            A.I("v_mov_b32 v4, 4")
            A.I("global_load_dword v5, v4, s[40:41] sc1")
            A.I("s_waitcnt vmcnt(0)")
            A.I("v_readfirstlane_b32 s42, v5")
            A.I("s_memrealtime s[44:45]")
            A.I("s_waitcnt lgkmcnt(0)")
            A.I("s_sub_u32 s46, s44, s42")
            A.I("v_mov_b32 v6, s46"); A.I("v_mov_b32 v4, 8")
            A.I("s_mov_b64 exec, 1")
            A.I("global_atomic_umax v4, v6, s[40:41] sc1") if padto == 1 else None
            A.label(L("padloop"))
            A.I("s_sleep 8")
            A.I("s_memrealtime s[44:45]")
            A.I("s_waitcnt lgkmcnt(0)")
            A.I("s_sub_u32 s46, s44, s42")
            A.I(f"s_cmp_lt_u32 s46, {padto}")
            A.I(f"s_cbranch_scc1 {L('padloop')}")
        ST.flush(SRD_WS, S_WAVE)
    def saferestart():
        A.label(L("saferestart"))
        R = Asm()
        R.I(f"s_mov_b32 s{S_SAFE}, 0")
        R.I("s_waitcnt vmcnt(0) lgkmcnt(0)")
        R.I("s_barrier")
        for x in q_setup_s: R.I(x)
        R.I(f"s_lshl_b32 s44, s{S_WAVE}, 17")
        R.I(f"s_lshl_b32 s47, s{S_H}, 8")
        R.I("s_add_u32 s44, s44, s47")
        R.I(f"s_mov_b32 s{S_ID}, 0")
        R.I(f"s_mov_b32 s46, {OOB}")
        for x in q_setup_v: R.I(x)
        R.I("s_waitcnt lgkmcnt(0)")
        for x in srd_list(SRD_WQ, 4, 4*MB) + srd_list(SRD_W1, 8, 512*2752) + srd_list(SRD_B1, 10, 2752): R.I(x)
        for fb in range(3):
            R.I(f"buffer_load_dwordx2 v[{26+2*fb}:{27+2*fb}], v19, s[{SRD_B1}:{SRD_B1+3}], s{53 if fb < 2 else 54} offen offset:{fb*32}")
        R.I("v_and_b32 v248, 15, v1")
        R.I("v_lshrrev_b32 v249, 4, v1")
        R.I("v_lshrrev_b32 v250, 1, v248")
        R.I("v_xor_b32 v250, v250, v249")
        R.I("v_and_b32 v251, 1, v248")
        R.I("v_lshlrev_b32 v251, 4, v251")
        R.I("v_lshl_add_u32 v251, v249, 13, v251")
        R.I("v_lshl_add_u32 v4, v250, 5, v251")
        R.I(f"v_add_u32 v5, {32768-1024}, v4")
        R.I("v_xor_b32 v250, 4, v250")
        R.I("v_lshl_add_u32 v6, v250, 5, v251")
        R.I(f"v_add_u32 v6, {2*(32768-1024)}, v6")
        R.I(f"v_add_u32 v7, {32768-1024}, v6")
        R.I("v_bfe_u32 v248, v1, 2, 2")
        R.I("v_lshlrev_b32 v250, 3, v249")
        R.I("v_add_u32 v250, v250, v248")
        R.I("v_lshlrev_b32 v250, 8, v250")
        R.I("v_and_b32 v251, 3, v1")
        R.I("v_lshl_add_u32 v250, v251, 3, v250")
        R.I(f"v_add_u32 v250, {QBASE}, v250")
        R.I("v_and_b32 v251, 1, v249")
        R.I("v_lshl_add_u32 v248, v251, 2, v248")
        for nb in range(8):
            R.I(f"v_xor_b32 v251, {nb}, v248")
            R.I(f"v_lshl_add_u32 v{8+nb}, v251, 5, v250")
        for pre, x in qwdma(0) + qwdma(1) + xload(0) + xload(1) + xload(2):
            for y in (pre or []): R.I(y)
            if pre: R.I("s_nop 0")
            R.I(x)
        R.I("s_waitcnt vmcnt(0)")
        for fb in range(3):
            for k in range(2):
                R.I(f"v_lshlrev_b32 v{32+fb*4+2*k}, 16, v{26+2*fb+k}")
                R.I(f"v_and_b32 v{33+fb*4+2*k}, 0xffff0000, v{26+2*fb+k}")
        for i in range(12): R.I(f"v_mov_b32 v{20+i}, v{32+i}")
        R.I("s_barrier")
        for n in range(5):
            for x in breads(n): R.I(x)
        R.I("s_waitcnt lgkmcnt(0)")
        R.I(f"s_branch {L('qgemm')}")
        A.items += R.check(fix=True, seq=R.items)
    k2.CPF[0] = cpf
    k2.attention(A, L, ST, vm, lg, set_flag, F_H, F_B, F_A, qrest, gel, oproj_setup, oproj, saferestart)
    return A
```

```python
from common import *
import math, struct
def f2u(x): return struct.unpack("<I", struct.pack("<f", x))[0]

QSCALE = f2u(math.log2(math.e) / math.sqrt(128.0))
G1 = f2u(-2.0 * math.log2(math.e) * math.sqrt(2.0 / math.pi))
G2 = f2u(-2.0 * math.log2(math.e) * math.sqrt(2.0 / math.pi) * 0.044715)
LTHR = f2u(2.0 ** 62)
OOB = 0x40000000

V_LANE, V_L16, V_K, V_V = 1, 2, 3, 19
accQ = lambda db, qb: 32 + (db*4+qb)*4
accF = lambda fb, qb: 160 + (fb*4+qb)*4
Qf = lambda qb, s_: accQ(2*s_, qb)
def Sreg(buf, kbl, qb):
    i = buf*8 + kbl*4 + qb
    return accQ(2*(i//4)+1, i % 4)
Preg = lambda buf, qb: 208 + buf*16 + qb*4
NEGM = lambda qb: 240 + qb*4
TMP = 160
Oreg = lambda db, qb: (db*4+qb)*4
VA, KA_, VB, KB = 128, 144, 160, 176
Lreg = lambda qb: 192 + qb*4
ONES = 208
S_WAVE, S_H, S_T, S_I = 36, 37, 38, 39
S_KVB = 40
S_W4K = 41
S_K0, S_V0, S_K1, S_V1 = 42, 43, 44, 45
S_AK, S_AV = 46, 47
S_STRM = 48
S_T2 = 49
S_TMP, S_TMP2 = 50, 51
S_RET = 52
S_CNT = 54
S_FAIL = 55
S_Q0 = 56
S_QA = 57
S_MASK = 8
S_MK, S_MV = 58, 59
S_SAFE = 60
SRD_WS, SRD_WQ, SRD_W1, SRD_B1 = 16, 20, 24, 28
WRING = 61440; WSLOT = 25600

def dma4(soff, m0expr):
    return [f"buffer_load_dwordx4 v{V_L16}, s[{SRD_WS}:{SRD_WS+3}], s{soff} offen offset:{j*1024} sc1 lds" for j in range(4)]

S_E, S_C, S_DG = 4, 5, 6
def tile_calc(dst, nadd, strm, voff):
    r = [f"s_add_u32 s{S_TMP}, s{S_I}, {nadd}",
         f"s_lshl_b32 s{S_TMP2}, s{S_TMP}, 1",
         f"s_sub_u32 s{S_TMP2}, s{S_TMP2}, s{S_C}",
         f"s_cmp_eq_u32 s{S_TMP}, s{S_E}",
         f"s_cselect_b32 s{S_TMP2}, s{S_DG}, s{S_TMP2}"]
    if strm: r += [f"s_add_u32 s{S_TMP2}, s{S_TMP2}, 1"]
    r += [f"s_cmp_lt_u32 s{S_TMP}, s{S_E}",
          f"s_cselect_b32 s{S_TMP2}, s{S_TMP}, s{S_TMP2}" if strm == 0 else f"s_cselect_b32 s{S_TMP2}, 0x8000, s{S_TMP2}",
          f"s_cmp_gt_u32 s{S_TMP}, 16",
          f"s_cselect_b32 s{S_TMP2}, 0x8000, s{S_TMP2}",
          f"s_lshl_b32 s{S_TMP2}, s{S_TMP2}, 15",
          f"s_add_u32 s{dst}, s{S_TMP2}, s{S_KVB}"]
    if voff: r += [f"s_add_u32 s{dst}, s{dst}, {voff}"]
    return r

def lds_calc():
    return [f"s_and_b32 s{S_TMP}, s{S_I}, 1",
            f"s_lshl_b32 s{S_TMP}, s{S_TMP}, 14",
            f"s_add_u32 s{S_TMP2}, s{S_I}, 2",
            f"s_sub_u32 s{S_TMP2}, s{S_TMP2}, s{S_T2}",
            f"s_cmp_ge_i32 s{S_TMP2}, 2",
            f"s_cselect_b32 s{S_AK}, s{S_STRM}, 0",
            f"s_add_u32 s{S_AK}, s{S_AK}, s{S_TMP}",
            f"s_cmp_ge_i32 s{S_TMP2}, 3",
            f"s_cselect_b32 s{S_AV}, s{S_STRM}, 0",
            f"s_xor_b32 s{S_TMP2}, s{S_TMP}, 0x4000",
            f"s_add_u32 s{S_AV}, s{S_AV}, s{S_TMP2}",
            f"s_add_u32 s{S_AV}, s{S_AV}, 0x8000",
            f"s_add_u32 s{S_MK}, s{S_TMP2}, s{S_W4K}",
            f"s_add_u32 s{S_MV}, s{S_TMP}, s{S_W4K}",
            f"s_add_u32 s{S_MV}, s{S_MV}, 0x8000"]

def rdfrag(dst, areg, f): return f"ds_read_b128 {a(dst,4)}, v{areg} offset:{f*1024}"

PROF = [0]
CPF = [1]
WTOUCH = []
def body(A, qk, pv, first, adma, lg, mid=None, last=None, vmn=0, xst=None, vfill=None):
    if PROF[0]:
        A.I(f"s_add_u32 m0, s{S_I}, 40")
        A.I("s_nop 0")
        A.I("v_writelane_b32 v0, s76, m0")
        A.I("s_memtime s[76:77]" if PROF[0] == 2 else "s_memrealtime s[76:77]")
    for per in range(2):
        spine = [None]*68; gaps = [[] for _ in range(68)]
        pre = [[] for _ in range(68)]
        eb = 1 - per
        etype = pv if per == 0 else qk
        if pv:
            qbs = [2, 3] if (pv == "diag" and per == 1) else [0, 1, 2, 3]
            cz = first and per == 0
            for qb in qbs:
                d = a(Lreg(qb), 4)
                spine[qb] = mf(d, a(ONES, 4), v(Preg(per, qb), 4), "0" if cz else d)
                for db in range(8):
                    d = a(Oreg(db, qb), 4)
                    fr = (VA if db < 4 else VB) + (db % 4)*4
                    pos = (4 if db < 4 else 36) + ((db % 4)*4 + qb)*(1 if qk else 2)
                    spine[pos] = mf(d, a(fr, 4), v(Preg(per, qb), 4), "0" if cz else d)
        if qk:
            for kbl in range(2):
                kb = per*2 + kbl
                for qb in range(4):
                    if qk == "diag" and kb > qb: continue
                    for s_ in range(4):
                        d = v(Sreg(per, kbl, qb), 4)
                        pos = ((20 if kbl == 0 else 52) + qb*4 + s_) if pv else ((4 if kbl == 0 else 36) + (qb*4 + s_)*2)
                        spine[pos] = mf(d, a((KA_ if kbl == 0 else KB) + s_*4, 4), v(Qf(qb, s_), 4), v(NEGM(qb), 4) if s_ == 0 else d)
        if etype:
            ehalf = 1 if per == 0 else 0
            for e in range(32):
                qb, kbl, r = e//8, (e//4) % 2, e % 4
                kb = ehalf*2 + kbl
                reg = Sreg(eb, kbl, qb) + r
                if etype == "diag" and ehalf == 1 and qb < 2: continue
                if etype == "diag" and kb > qb:
                    gaps[2*e].append(f"v_mov_b32 v{reg}, 0")
                else:
                    gaps[2*e].append(f"v_exp_f32 v{reg}, v{reg}")
                    if etype == "diag" and kb == qb:
                        gaps[2*e+1].append(f"v_cndmask_b32 v{reg}, 0, v{reg}, s[{S_MASK+2*r}:{S_MASK+2*r+1}]")
            for c in range(16):
                qb, k = c//4, c % 4
                if etype == "diag" and ehalf == 1 and qb < 2: continue
                src = Sreg(eb, k//2, qb) + (k % 2)*2
                gaps[4*c+3].append(f"v_cvt_pk_bf16_f32 v{Preg(eb,qb)+k}, v{src}, v{src+1}")
        kbpos = [3, 7, 11, 15] if per == 0 else [1, 3, 5, 7]
        rd = {}
        for i in range(4):
            rd[kbpos[i]] = (rdfrag(KB + 4*i, V_K, (per*2+1)*4 + i), "KB")
            rd[23+4*i] = (rdfrag(VA + 4*i, V_V, (1-per)*8 + i), "VA")
            rd[39+4*i] = (rdfrag(KA_ + 4*i, V_K, ((1-per)*2)*4 + i), "KA")
            rd[55+4*i] = (rdfrag(VB + 4*i, V_V, (1-per)*8 + 4 + i), "VB")
        waits = {2: "VA", 18: "KA", 34: "VB", 50: "KB"}
        if pv is None: waits = {2: "KA", 34: "KB"}
        if qk is None: rd = {g: x for g, x in rd.items() if not (x[1] == "KB" or (per == 0 and x[1] == "KA"))}
        if pv is None and per == 0: rd = {g: x for g, x in rd.items() if x[1] not in ("VA", "VB")}
        if last is not None:
            rd = {g: x for g, x in rd.items() if per == 0 and x[1] in ("VA", "VB")}
            waits = {2: "VA", 34: "VB"}
        dm = {}
        salu = []
        if per == 0:
            if adma:
                for i, x in enumerate(dma4(S_K1, None)): dm[5+4*i] = x
                for i, x in enumerate(dma4(S_V1, None)): dm[21+4*i] = x
                pre[4].append(f"s_add_u32 m0, s{S_MK}, 0x10000")
                pre[20].append(f"s_add_u32 m0, s{S_MV}, 0x10000")
            salu = tile_calc(S_K0, 3, 0, 0) + tile_calc(S_V0, 2, 0, 16384)
            spos = [g for g in range(22, 64, 2) if g not in (34, 50)] + [64, 65, 65, 66, 66]
        else:
            for i, x in enumerate(dma4(S_K0, None)): dm[25+4*i] = x
            for i, x in enumerate(dma4(S_V0, None)): dm[41+4*i] = x
            pre[24].append(f"s_mov_b32 m0, s{S_MK}")
            pre[40].append(f"s_mov_b32 m0, s{S_MV}")
            lc = lds_calc()
            for i, x in enumerate(lc): pre[[0,4,6,8,9,9,10,11,12,13,13,14,16,17,17][i]].append(x)
            salu = tile_calc(S_K1, 3, 1, 0) + tile_calc(S_V1, 2, 1, 16384) + [f"s_add_u32 s{S_I}, s{S_I}, 1"]
            spos = [g for g in range(26, 64, 2) if g not in (34, 40, 50)] + [57, 57, 61, 61, 64, 64, 65, 65, 66, 66]
            spos.sort()
        if last is not None:
            dm = {}; salu = []; pre = [[] for _ in range(68)]
        if per == 1 and mid: mid()
        if per == 1 and last is not None: A.I("s_waitcnt vmcnt(0)")
        assert len(salu) <= len(spos), (len(salu), len(spos))
        for i, x in enumerate(salu): pre[spos[i]].append(x)
        for g in range(68):
            if spine[g]: A.I(spine[g])
            for x in pre[g]: A.I(x)
            if g in waits:
                w = lg.wait(waits[g])
                if w: A.I(w)
            if per == 1 and last is not None and spine[g]:
                for _ in range(2):
                    if last: A.I(last.pop(0))
            if per == 1 and g == 19 and last is None:
                if vmn == "auto":
                    tl = [x.text for x in A.items if isinstance(x, Ins) and x.kind in ("dma", "store")]
                    vmn = len(tl) - 1 - max(i for i, x in enumerate(tl) if " lds" in x)
                dbg = PROF[0] == 2 and ((vmn != 0 and first) or mid is not None)
                base = 58 if vmn else 61
                if dbg: A.I("s_memtime s[78:79]")
                A.I(f"s_waitcnt vmcnt({vmn}) lgkmcnt(0)"); lg.drain()
                if dbg:
                    A.I(f"v_writelane_b32 v0, s78, {base}"); A.I("s_memtime s[78:79]"); A.I("s_waitcnt lgkmcnt(0)"); A.I(f"v_writelane_b32 v0, s78, {base+1}")
                A.I("s_barrier")
                if dbg:
                    A.I("s_memtime s[78:79]"); A.I("s_waitcnt lgkmcnt(0)"); A.I(f"v_writelane_b32 v0, s78, {base+2}")
            if per == 1 and g == 21 and last is None:
                A.I(f"v_add_u32 v{V_K}, s{S_AK}, v{V_L16}")
                A.I(f"v_add_u32 v{V_V}, s{S_AV}, v{V_L16}")
            if g in rd:
                A.I(rd[g][0]); lg.issue(rd[g][1])
            if g in dm: A.I(dm[g])
            if CPF[0] and per == 0 and g == 37 and qk == "full" and pv == "full" and not first:
                A.I("global_load_dwordx4 v[12:15], v16, s[62:63]")
            if xst and (per, g) in xst:
                for x in xst[(per, g)]: A.I(x)
            for x in gaps[g]: A.I(x)
            if vfill and per == 0 and spine[g]:
                k = 2
                while k and vfill:
                    x = vfill.pop(0); A.I(x)
                    if x.startswith("buffer"): break
                    if not x.startswith("s_"): k -= 1
        if vfill and per == 0:
            while vfill: A.I(vfill.pop(0))
    if last is not None:
        for x in last: A.I(x)

def entry_lg():
    lg = Cnt("lgkmcnt", 15)
    for t in ["VA"]*4 + ["KA"]*4 + ["VB"]*4: lg.issue(t)
    return lg

def attention(A, L, ST, vm, lg, set_flag, F_H, F_B, F_A, qrest, gel, oproj_setup, oproj, saferestart):
    WSS = f"s[{SRD_WS}:{SRD_WS+3}]"
    PROF[0] = int(ST.on)
    A.I("s_waitcnt vmcnt(0)"); vm.drain()
    A.I("s_barrier")
    if ST.on == 2: ST.stamp()
    A.I(f"v_mov_b32 v{V_K}, v{V_L16}")
    for kb, base in enumerate((KA_, KB, VA, VB)):
        for s_ in range(4):
            A.I(rdfrag(base+4*s_, V_K, kb*4+s_)); lg.issue(f"k{kb}")
    for x in qrest: A.I(x)
    A.I(f"s_cmp_lg_u32 s{S_SAFE}, 0")
    A.I(f"s_cbranch_scc1 {L('nomaxpass')}")
    A.I(f"s_call_b64 s[{S_RET}:{S_RET+1}], {L('maxpass')}")
    A.label(L("nomaxpass"))
    vq = []
    def fill(budget, usegel=True):
        while budget > 0 and (vq or (gel and usegel)):
            src = vq if vq else gel
            x = src[0]
            cost = 2 if ("v_exp" in x or "v_rcp" in x or "buffer" in x) else (0 if x.startswith("s_") else 1)
            if cost > budget: break
            A.I(src.pop(0)); budget -= cost
    def qk0(kb, base):
        A.I(lg.wait(f"k{kb}"))
        for qb in range(4):
            for s_ in range(4):
                d = v(Sreg(kb//2, kb % 2, qb), 4)
                c0 = "0" if kb == 0 else v(NEGM(qb), 4)
                A.I(mf(d, a(base+4*s_, 4), v(Qf(qb, s_), 4), c0 if s_ == 0 else d))
                fill(2)
    if ST.on == 2: ST.stamp()
    qk0(0, KA_)
    fill(8)
    A.I(f"s_cmp_lg_u32 s{S_Q0}, 0")
    A.I(f"s_cbranch_scc1 {L('nodiag0')}")
    A.I("v_mov_b32 v8, 0xff7fffff")
    for r in range(4):
        reg = Sreg(0, 0, 0) + r
        A.I(f"v_cndmask_b32 v{reg}, v8, v{reg}, s[{S_MASK+2*r}:{S_MASK+2*r+1}]")
    A.label(L("nodiag0"))
    for qb in range(4):
        r0 = Sreg(0, 0, qb)
        A.I(f"v_max3_f32 v{NEGM(qb)}, v{r0}, v{r0+1}, v{r0+2}")
    for qb in range(4):
        A.I(f"v_max_f32 v{NEGM(qb)}, v{NEGM(qb)}, v{Sreg(0, 0, qb)+3}")
    A.I(f"s_cmp_lg_u32 s{S_SAFE}, 0")
    A.I(f"s_cbranch_scc1 {L('fastmax')}")
    for qb in range(4): A.I(f"v_mov_b32 v{NEGM(qb)}, v{12+qb}")
    A.label(L("fastmax"))
    for swp in ("v_permlane16_swap_b32", "v_permlane32_swap_b32"):
        for qb in range(4): A.I(f"v_mov_b32 v{NEGM(qb)+1}, v{NEGM(qb)}")
        A.I("s_nop 0")
        for qb in range(4): A.I(f"{swp} v{NEGM(qb)}, v{NEGM(qb)+1}")
        A.I("s_nop 0")
        for qb in range(4): A.I(f"v_max_f32 v{NEGM(qb)}, v{NEGM(qb)}, v{NEGM(qb)+1}")
    for qb in range(4):
        A.I(f"v_sub_f32 v{NEGM(qb)}, 0, v{NEGM(qb)}")
    for qb in range(4):
        for r in range(1, 4): A.I(f"v_mov_b32 v{NEGM(qb)+r}, v{NEGM(qb)}")
    for qb in range(4):
        for r in range(4): vq.append(f"v_add_f32 v{Sreg(0,0,qb)+r}, v{Sreg(0,0,qb)+r}, v{NEGM(qb)}")
    for qb in range(4):
        for r in range(4): vq.append(f"v_exp_f32 v{Sreg(0,0,qb)+r}, v{Sreg(0,0,qb)+r}")
    A.I("s_nop 0")
    if ST.on == 2: ST.stamp()
    qk0(1, KB)
    qk0(2, VA)
    for qb in range(4):
        for r in range(4): vq.append(f"v_exp_f32 v{Sreg(0,1,qb)+r}, v{Sreg(0,1,qb)+r}")
    qk0(3, VB)
    if ST.on == 2: ST.stamp()
    A.I("s_barrier")
    A.I(f"s_mov_b32 m0, s{S_MK}")
    A.I(f"v_add_u32 v{V_K}, s{S_AK}, v{V_L16}")
    for x in dma4(S_K0, None): A.I(x)
    A.I(f"s_mov_b32 m0, s{S_MV}")
    A.I(f"v_add_u32 v{V_V}, s{S_AV}, v{V_L16}")
    for x in dma4(S_V0, None): A.I(x)
    for i in range(4): A.I(rdfrag(VA+4*i, V_V, i))
    for i in range(4): A.I(rdfrag(KA_+4*i, V_K, i))
    for i in range(4): A.I(rdfrag(VB+4*i, V_V, 4+i))
    if ST.on == 2: ST.stamp()
    print("gel left", len(gel), "vq", len(vq), "qrest", len(qrest))
    for x in WTOUCH: A.I(x)
    nyoung = (2 if WTOUCH else 0) + sum(1 for x in gel if "buffer" in x)
    import re as _re
    isstart = lambda x: _re.match(r"v_mul_f32 v20, v(\d+), v\1$", x)
    while vq or (gel and not isstart(gel[0])): fill(2)
    A.I("v_mov_b32 v8, 1.0"); A.I("v_mov_b32 v9, 1.0"); A.I("v_mov_b32 v10, v28"); A.I("v_mov_b32 v11, v28"); A.I("s_mov_b32 s33, s32")
    k_ = 0
    while gel:
        x0 = int(isstart(gel[0]).group(1)); T = 20 if k_ % 2 == 0 else 12; k_ += 1
        gel[:] = gel[28:]
        for h_ in range(2): A.I(f"v_pk_mul_f32 {v(T+2*h_,2)}, {v(x0+2*h_,2)}, {v(x0+2*h_,2)}")
        for h_ in range(2): A.I(f"v_pk_fma_f32 {v(T+2*h_,2)}, {v(T+2*h_,2)}, s[32:33], v[10:11]")
        for h_ in range(2): A.I(f"v_pk_mul_f32 {v(T+2*h_,2)}, {v(T+2*h_,2)}, {v(x0+2*h_,2)}")
        for r in range(4): A.I(f"v_exp_f32 v{T+r}, v{T+r}")
        for h_ in range(2): A.I(f"v_pk_add_f32 {v(T+2*h_,2)}, {v(T+2*h_,2)}, v[8:9]")
        for r in range(4): A.I(f"v_rcp_f32 v{T+r}, v{T+r}")
        for h_ in range(2): A.I(f"v_pk_mul_f32 {v(x0+2*h_,2)}, {v(x0+2*h_,2)}, {v(T+2*h_,2)}")
        while gel and not isstart(gel[0]): A.I(gel.pop(0))
    ST.stamp()
    A.I(f"s_cmp_ge_u32 s{S_WAVE}, 2")
    A.I(f"s_cbranch_scc1 {L('nostash2')}")
    for qb in range(4): A.I(f"v_mov_b32 v{8+qb}, v{NEGM(qb)}")
    A.I(f"s_add_u32 s{S_TMP}, s61, 16384")
    A.I(f"buffer_store_dwordx4 v[8:11], v{V_L16}, s[{SRD_WS}:{SRD_WS+3}], s{S_TMP} offen")
    A.label(L("nostash2"))
    A.I(f"s_cmp_lg_u32 s{S_Q0}, 0")
    A.I(f"s_cbranch_scc1 {L('nodiag1')}")
    for r in range(4):
        A.I(f"v_mov_b32 v{Sreg(0,1,0)+r}, 0")
        A.I(f"v_cndmask_b32 v{Sreg(0,1,1)+r}, 0, v{Sreg(0,1,1)+r}, s[{S_MASK+2*r}:{S_MASK+2*r+1}]")
    A.label(L("nodiag1"))
    for qb in range(4):
        for k in range(4):
            src = Sreg(0, k//2, qb) + (k % 2)*2
            A.I(f"v_cvt_pk_bf16_f32 v{Preg(0,qb)+k}, v{src}, v{src+1}")
    ST.stamp()
    if ST.on == 2: ST.stamp()
    A.I(f"s_lshr_b32 s32, s2, 3"); A.I("s_lshl_b32 s32, s32, 2"); A.I(f"s_add_u32 s32, s32, s{S_WAVE}"); A.I("s_and_b32 s32, s32, 63")
    A.I("s_lshl_b32 s32, s32, 10"); A.I("s_add_u32 s32, s32, 34816"); A.I(f"v_add_u32 v16, s32, v{V_L16}")
    A.I("s_nop 1")
    used = {}
    def flag(kind, cond=False):
        if cond:
            u = f"nf{len(A.items)}"
            A.I(f"s_and_b32 s34, s{S_FAIL}, s{S_SAFE}")
            A.I(f"s_cbranch_scc1 {L(u)}")
        for x in set_flag(kind, 204, 205, 34): A.I(x)
        if cond: A.label(L(u))
    def call(qk, pv, first=False, kind=""):
        key = f"b_{qk}_{pv}_{int(first)}{kind}"
        used[key] = (qk, pv, first, kind)
        if kind.startswith("last"): flag(F_H)
        A.I(f"s_call_b64 s[{S_RET}:{S_RET+1}], {L(key)}")
    def loop(kind, last_expr_sgpr_or_imm, uniq):
        A.I(f"s_mov_b32 s{S_CNT}, {last_expr_sgpr_or_imm}")
        A.I(f"s_cmp_gt_i32 s{S_I}, s{S_CNT}")
        A.I(f"s_cbranch_scc1 {L('skip_'+uniq)}")
        A.I(f"s_call_b64 s[{S_RET}:{S_RET+1}], {L('main_'+kind)}")
        A.label(L("skip_"+uniq))
    FREE = [Sreg(b_, k_, q_) for b_ in range(2) for k_ in range(2) for q_ in range(4)]
    def packed(n): return FREE[8+n] if n < 8 else TMP + (n-8)*4
    def epi_half(B, qbs):
        B.I("s_nop 7")
        for qb in qbs: B.I(f"v_accvgpr_read_b32 v{192+qb}, a{Lreg(qb)}")
        B.I(f"v_mov_b32 v196, {LTHR}")
        for qb in qbs:
            B.I(f"v_cmp_nle_f32 vcc, v{192+qb}, v196")
            B.I(f"s_or_b32 s{S_FAIL}, s{S_FAIL}, vcc_lo")
            B.I(f"s_or_b32 s{S_FAIL}, s{S_FAIL}, vcc_hi")
        for qb in qbs: B.I(f"v_rcp_f32 v{192+qb}, v{192+qb}")
        if qbs[0] == 0:
            B.I(f"s_lshl_b32 s32, s{S_Q0}, 5")
            B.I(f"s_add_u32 s32, s32, s{S_H}")
            B.I(f"s_lshl_b32 s32, s32, 12")
            B.I(f"s_add_u32 s32, s32, {WS_CTX}")
        for qb in qbs:
            for s_ in range(4):
                n = qb*4 + s_
                T = [FREE[(2*n) % 8], FREE[(2*n+1) % 8]]
                for i in range(8): B.I(f"v_accvgpr_read_b32 v{T[i//4] + i % 4}, a{Oreg(2*s_ + i//4, qb) + i % 4}")
                for i in range(4):
                    r = T[i//2] + 2*(i % 2)
                    B.I(f"v_pk_mul_f32 {v(r,2)}, {v(r,2)}, {v(192+2*(qb//2),2)} op_sel:[0,{qb%2}] op_sel_hi:[1,{qb%2}]")
                for i in range(4):
                    r = T[i//2] + 2*(i % 2)
                    B.I(f"v_cvt_pk_bf16_f32 v{packed(n)+i}, v{r}, v{r+1}")
    def epi_late(nplain):
        r = []
        for qb in (2, 3): r.append(f"v_accvgpr_read_b32 v{192+qb}, a{Lreg(qb)}")
        r.append(f"v_mov_b32 v196, {LTHR}")
        for qb in (2, 3):
            r += [f"v_cmp_nle_f32 vcc, v{192+qb}, v196", f"s_or_b32 s34, vcc_lo, vcc_hi", f"s_or_b32 s{S_FAIL}, s{S_FAIL}, s34"]
        for qb in (2, 3): r.append(f"v_rcp_f32 v{192+qb}, v{192+qb}")
        r += [f"s_add_u32 s33, s32, {2*32*4096}", f"s_add_u32 s35, s32, {3*32*4096}"]
        for qb in (2, 3):
            for s_ in range(4):
                n = qb*4 + s_
                T = Preg(1, 0) + (n % 2)*8
                for i in range(8): r.append(f"v_accvgpr_read_b32 v{T+i}, a{Oreg(2*s_ + i//4, qb) + i % 4}")
                if n < 8 + nplain:
                    for i in range(8): r.append(f"v_mul_f32 v{T+i}, v{T+i}, v{192+qb}")
                else:
                    for i in range(4): r.append(f"v_pk_mul_f32 {v(T+2*i,2)}, {v(T+2*i,2)}, v[194:195] op_sel:[0,{qb%2}] op_sel_hi:[1,{qb%2}]")
                for i in range(4): r.append(f"v_cvt_pk_bf16_f32 v{packed(n)+i}, v{T+2*i}, v{T+2*i+1}")
                r.append(f"buffer_store_dwordx4 {v(packed(n),4)}, v{V_L16}, s[{SRD_WS}:{SRD_WS+3}], s{33 if qb == 2 else 35} offen offset:{s_*1024} sc1")
        return r
    def epi_st(n):
        qb, s_ = n//4, n % 4
        return ([f"s_add_u32 s33, s32, {qb*32*4096}"] if s_ == 0 else []) + \
               [f"buffer_store_dwordx4 {v(packed(n),4)}, v{V_L16}, s[{SRD_WS}:{SRD_WS+3}], s33 offen offset:{s_*1024} sc1"]
    def load_QA():
        A.I(f"s_add_u32 s{S_TMP}, s61, 16384")
        A.I(f"buffer_load_dwordx4 v[200:203], v{V_L16}, s[{SRD_WS}:{SRD_WS+3}], s{S_TMP} offen")
        A.I("s_waitcnt lgkmcnt(0)")
        for qb in range(4):
            for s_ in range(4):
                A.I(f"ds_read_b128 {v(Qf(qb,s_),4)}, v31 offset:{(qb*4+s_)*1024}")
        A.I("s_waitcnt lgkmcnt(0)")
    def fin_QA(n):
        A.I(f"s_waitcnt vmcnt({n})")
        A.I("s_nop 3")
        for qb in range(4):
            for r in range(4): A.I(f"v_mov_b32 v{NEGM(qb)+r}, v{200+qb}")
        A.I("s_nop 1")
    A.I(f"s_sub_u32 s32, s{S_T2}, 1")
    A.I(f"s_sub_u32 s33, s{S_T2}, 2")
    A.I(f"s_cmp_eq_u32 s{S_WAVE}, 2")
    A.I(f"s_cbranch_scc1 {L('role2')}")
    A.I(f"s_cmp_eq_u32 s{S_WAVE}, 3")
    A.I(f"s_cbranch_scc1 {L('role3')}")
    A.I(f"s_cmp_eq_u32 s{S_T}, 0")
    A.I(f"s_cbranch_scc1 {L('r01_t0')}")
    call("full", "full", True, "fd")
    A.I(f"s_branch {L('r01_c')}")
    A.label(L("r01_t0"))
    call("full", "full", True)
    A.label(L("r01_c"))
    loop("d", "s32", "r01d")
    A.I(f"s_cmp_eq_u32 s{S_WAVE}, 0")
    A.I(f"s_cbranch_scc1 {L('role0')}")
    loop("s", 15, "r1s")
    call(None, "full", False, "last")
    A.I(f"s_branch {L('merge')}")
    A.label(L("w_role0")); A.I(f"s_setpc_b64 s[{S_RET}:{S_RET+1}]")
    A.label(L("role0"))
    loop("s", f"s{S_T2}", "r0s")
    call("diag", "full")
    A.I(f"s_cmp_eq_u32 s{S_T}, 7")
    A.I(f"s_cbranch_scc1 {L('role0_t7')}")
    call("full", "diag")
    loop("s", 15, "r0s2")
    call(None, "full", False, "last")
    A.I(f"s_branch {L('merge')}")
    A.label(L("role0_t7"))
    call(None, "diag", False, "last")
    A.I(f"s_branch {L('merge')}")
    A.label(L("w_role2")); A.I(f"s_setpc_b64 s[{S_RET}:{S_RET+1}]")
    A.label(L("role2"))
    A.I(f"s_cmp_eq_u32 s{S_T}, 0")
    A.I(f"s_cbranch_scc1 {L('role2_t0')}")
    call("full", "full", True, "fd")
    loop("d", "s33", "r2d")
    call("diag", "full")
    call(None, "diag", False, "epi")
    A.I(f"s_branch {L('role2_b')}")
    A.label(L("role2_t0"))
    call(None, "diag", True, "epi")
    A.label(L("role2_b"))
    fin_QA(16)
    call("diag", None, False, "st")
    A.I(f"s_cmp_eq_u32 s{S_T}, 7")
    A.I(f"s_cbranch_scc1 {L('role2_t7')}")
    call("full", "diag", True)
    flag(F_B, True)
    loop("s", 15, "r2s")
    call(None, "full", False, "last")
    A.I(f"s_branch {L('merge')}")
    A.label(L("role2_t7"))
    call(None, "diag", True, "last")
    flag(F_B, True)
    A.I(f"s_branch {L('merge')}")
    A.label(L("w_role3")); A.I(f"s_setpc_b64 s[{S_RET}:{S_RET+1}]")
    A.label(L("role3"))
    A.I(f"s_cmp_eq_u32 s{S_T}, 0")
    A.I(f"s_cbranch_scc1 {L('role3_t0')}")
    call("full", "full", True, "fd")
    loop("d", "s32", "r3d")
    call("diag", "full")
    A.I(f"s_branch {L('role3_b')}")
    A.label(L("role3_t0"))
    call("diag", "full", True)
    A.label(L("role3_b"))
    call(None, "diag", False, "epi")
    fin_QA(16)
    A.I(f"s_cmp_eq_u32 s{S_T}, 7")
    A.I(f"s_cbranch_scc1 {L('role3_t7')}")
    call("full", None, False, "st")
    call("full", "full", True)
    flag(F_B, True)
    loop("s", 15, "r3s")
    call(None, "full", False, "last")
    A.I(f"s_branch {L('merge')}")
    A.label(L("role3_t7"))
    call(None, None, False, "lastst")
    for i in range(128): A.I(f"v_accvgpr_write_b32 a{i}, 0")
    for i in range(16): A.I(f"v_accvgpr_write_b32 a{Lreg(0)+i}, 0")
    flag(F_B, True)
    A.I(f"s_branch {L('merge')}")
    A.label(L("w_merge")); A.I(f"s_setpc_b64 s[{S_RET}:{S_RET+1}]")
    A.label(L("merge"))
    if ST.on: A.I("v_writelane_b32 v0, s76, 57")
    ST.stamp()
    for qb in range(4): A.I(f"v_accvgpr_read_b32 v{192+qb}, a{Lreg(qb)}")
    A.I(f"v_mov_b32 v196, {LTHR}")
    for qb in range(4):
        A.I(f"v_cmp_nle_f32 vcc, v{192+qb}, v196")
        A.I(f"s_or_b32 s{S_FAIL}, s{S_FAIL}, vcc_lo")
        A.I(f"s_or_b32 s{S_FAIL}, s{S_FAIL}, vcc_hi")
    A.I(f"s_lshr_b32 s32, s{S_WAVE}, 1")
    A.I(f"s_lshl_b32 s32, s32, 16")
    A.I(f"s_and_b32 s33, s{S_WAVE}, 1")
    A.I(f"s_lshl_b32 s33, s33, 14")
    A.I(f"s_add_u32 s32, s32, s33")
    A.I(f"s_xor_b32 s33, s32, 0x14000")
    A.I(f"v_add_u32 v197, s32, v{V_L16}")
    A.I(f"v_add_u32 v198, s33, v{V_L16}")
    A.I(f"s_lshl_b32 s32, s{S_WAVE}, 10")
    A.I(f"s_add_u32 s32, s32, 49152")
    A.I(f"s_xor_b32 s33, s32, 3072")
    A.I(f"v_add_u32 v199, s32, v{V_L16}")
    A.I(f"v_add_u32 v200, s33, v{V_L16}")
    A.I(f"s_lshl_b32 s34, s{S_WAVE}, 2")
    A.I(f"s_add_u32 s34, s34, {49152+4096}")
    A.I(f"v_mov_b32 v201, s34")
    A.I(f"v_mov_b32 v202, s{S_FAIL}")
    A.I("s_barrier")
    A.I(f"ds_write_b128 v199, v[192:195]")
    A.I(f"ds_write_b32 v201, v202")
    A.I(f"s_cmp_ge_u32 s{S_WAVE}, 2")
    A.I(f"s_cbranch_scc1 {L('mhi')}")
    OWN = 128
    def merge_half(keep, u):
        send = [q for q in range(4) if q not in keep]
        for i, qb in enumerate(send):
            for db in range(8):
                A.I(f"ds_write_b128 v197, {a(Oreg(db,qb),4)} offset:{(i*8+db)*1024}")
        for i, qb in enumerate(keep):
            for k in range(32): A.I(f"v_accvgpr_read_b32 v{OWN + i*32 + k}, a{Oreg(k//4, qb) + k % 4}")
        A.I("s_waitcnt lgkmcnt(0)")
        A.I("s_barrier")
        A.I(f"v_mov_b32 v201, {49152+4096}")
        A.I(f"ds_read_b128 v[204:207], v201")
        A.I(f"ds_read_b128 v[208:211], v200")
        R = 64
        for i in range(16):
            A.I(f"ds_read_b128 {v(R+4*i,4)}, v198 offset:{i*1024}")
        A.I(f"s_lshl_b32 s32, s{S_QA}, 5")
        A.I(f"s_add_u32 s32, s32, s{S_H}")
        A.I(f"s_lshl_b32 s32, s32, 12")
        A.I(f"s_add_u32 s32, s32, {WS_CTX}")
        A.I("s_waitcnt lgkmcnt(15)")
        A.I("v_or_b32 v204, v204, v205")
        A.I("v_or3_b32 v204, v204, v206, v207")
        for qb in keep:
            A.I(f"v_add_f32 v{192+qb}, v{192+qb}, v{208+qb}")
        A.I(f"v_readfirstlane_b32 s{S_FAIL}, v204")
        for qb in keep:
            A.I(f"v_rcp_f32 v{192+qb}, v{192+qb}")
        n = 0
        for i, qb in enumerate(keep):
            A.I(f"s_add_u32 s33, s32, {qb*32*4096}")
            for s_ in range(4):
                T = OWN + i*32 + s_*8
                A.I(f"s_waitcnt lgkmcnt({14 - (i*8+2*s_)})")
                for k in range(4): A.I(f"v_pk_add_f32 {v(T+2*k,2)}, {v(T+2*k,2)}, {v(R + (i*8+2*s_)*4 + 2*k,2)}")
                for k in range(4): A.I(f"v_pk_mul_f32 {v(T+2*k,2)}, {v(T+2*k,2)}, {v(192+2*(qb//2),2)} op_sel:[0,{qb%2}] op_sel_hi:[1,{qb%2}]")
                for k in range(4): A.I(f"v_cvt_pk_bf16_f32 v{T+k}, v{T+2*k}, v{T+2*k+1}")
                A.I(f"buffer_store_dwordx4 {v(T,4)}, v{V_L16}, s[{SRD_WS}:{SRD_WS+3}], s33 offen offset:{s_*1024} sc1")
    merge_half([0, 1], "lo")
    A.I(f"s_branch {L('done')}")
    A.label(L("w_mhi")); A.I(f"s_setpc_b64 s[{S_RET}:{S_RET+1}]")
    A.label(L("mhi"))
    merge_half([2, 3], "hi")
    A.label(L("done"))
    ST.stamp()
    A.I("s_waitcnt vmcnt(8)")
    A.I("s_barrier")
    A.I(f"s_and_b32 s34, s{S_FAIL}, s{S_SAFE}")
    A.I(f"s_cbranch_scc1 {L('saferestart')}")
    oproj()
    A.label(L("end"))
    A.I("s_endpgm")
    A.label(L("maxpass"))
    M = Asm()
    for qb in range(4): M.I(f"v_mov_b32 v{12+qb}, 0xff7fffff")
    M.I("v_mov_b32 v8, 0xff7fffff")
    M.I(f"v_add_u32 v9, 0x10000, v{V_L16}")
    MI_, ML_ = 64, 65
    M.I(f"s_mov_b32 s{MI_}, 0")
    M.I(f"s_lshr_b32 s{S_CNT}, s{S_Q0}, 2")
    M.I(f"s_sub_u32 s{ML_}, 31, s{S_T2}")
    M.I("s_waitcnt lgkmcnt(0)")
    M.label(L("mp_loop"))
    M.I(f"s_lshl_b32 s{S_TMP}, s{MI_}, 15")
    M.I(f"s_add_u32 s{S_TMP}, s{S_TMP}, s{S_KVB}")
    M.I(f"s_add_u32 m0, s{S_W4K}, 0x10000")
    M.I("s_nop 0")
    for x in dma4(S_TMP, None): M.I(x)
    M.I("s_waitcnt vmcnt(0)")
    M.I("s_barrier")
    M.I(f"s_cmp_gt_u32 s{MI_}, s{S_CNT}")
    M.I(f"s_cbranch_scc1 {L('mp_next')}")
    for kb, base in enumerate((KA_, KB, VA, VB)):
        for s_ in range(4): M.I(rdfrag(base+4*s_, 9, kb*4+s_))
    M.I("s_waitcnt lgkmcnt(0)")
    for kb, base in enumerate((KA_, KB, VA, VB)):
        for qb in range(4):
            for s_ in range(4):
                d = v(Sreg(kb//2, kb % 2, qb), 4)
                M.I(mf(d, a(base+4*s_, 4), v(Qf(qb, s_), 4), "0" if s_ == 0 else d))
    M.I("s_nop 7")
    M.I(f"s_cmp_lg_u32 s{MI_}, s{S_CNT}")
    M.I(f"s_cbranch_scc1 {L('mp_nomask')}")
    for kb in range(4):
        for qb in range(4):
            for r in range(4):
                reg = Sreg(kb//2, kb % 2, qb) + r
                if kb > qb: M.I(f"v_mov_b32 v{reg}, v8")
                elif kb == qb: M.I(f"v_cndmask_b32 v{reg}, v8, v{reg}, s[{S_MASK+2*r}:{S_MASK+2*r+1}]")
    M.label(L("mp_nomask"))
    for qb in range(4):
        regs = [Sreg(kb//2, kb % 2, qb) + r for kb in range(4) for r in range(4)]
        for i in range(0, 16, 2): M.I(f"v_max3_f32 v{12+qb}, v{12+qb}, v{regs[i]}, v{regs[i+1]}")
    M.label(L("mp_next"))
    M.I("s_barrier")
    M.I(f"s_add_u32 s{MI_}, s{MI_}, 1")
    M.I(f"s_cmp_le_u32 s{MI_}, s{ML_}")
    M.I(f"s_cbranch_scc1 {L('mp_loop')}")
    for kb, base in enumerate((KA_, KB, VA, VB)):
        for s_ in range(4): M.I(rdfrag(base+4*s_, V_K, kb*4+s_))
    M.I("s_waitcnt lgkmcnt(0)")
    M.I(f"s_setpc_b64 s[{S_RET}:{S_RET+1}]")
    A.items += M.check(fix=True, seq=M.items)
    saferestart()
    allb = {}
    QA = [f"s_add_u32 s34, s61, 16384", f"buffer_load_dwordx4 v[200:203], v{V_L16}, s[{SRD_WS}:{SRD_WS+3}], s34 offen"] + \
         [f"ds_read_b128 {v(Qf(qb,s_),4)}, v31 offset:{(qb*4+s_)*1024}" for qb in range(4) for s_ in range(4)]
    for kind, adma in (("d", False), ("s", True)):
        B = Asm(); l2 = entry_lg(); body(B, "full", "full", False, adma, l2)
        assert l2.q == entry_lg().q, l2.q
        for p in B.check(seq=B.items + B.items, name="main_"+kind): print("HAZARD(main)", p)
        allb["main_"+kind] = B.items
    for key, (qk, pv, first, kind) in used.items():
        B = Asm(); l2 = entry_lg()
        body(B, qk, pv, first, kind != "fd", l2, vmn={"fd": nyoung, "st": "auto"}.get(kind, 0),
             xst={"epi": {**{(1, 40+(i//2)*8+(i%2)*2): epi_st(i) for i in range(8)}, (1, 20): QA}, }.get(kind), vfill=epi_late({"full": 3, "diag": 2, None: 0}[qk]) if kind in ("st", "lastst") else None, mid=(lambda: epi_half(B, [0, 1])) if kind == "epi" else None, last=oproj_setup(0) if kind.startswith("last") else None)
        allb[key] = B.check(fix=True, seq=B.items)
    link = [Ins("s_nop 0"), Ins("s_nop 0")]
    for key, items in allb.items():
        pad = 0
        while True:
            seq = items[-40:] + [Ins("s_nop 0")]*pad + link
            if not any(Asm().check(seq=seq + nxt[:40]) for nxt in allb.values()): break
            pad += 1
        A.I(".p2align 6")
        A.label(L("w_" + key)); A.I(f"s_setpc_b64 s[{S_RET}:{S_RET+1}]")
        if key.startswith("main"): A.I("s_nop 0")
        A.label(L(key))
        A.items += items
        if key.startswith("main"):
            assert pad == 0
            A.I(f"s_cmp_le_i32 s{S_I}, s{S_CNT}")
            A.I(f"s_cbranch_scc1 {L(key)}")
        elif "last" in key: A.I("s_nop 7")
        elif pad: A.I(f"s_nop {pad-1}")
        A.I(f"s_setpc_b64 s[{S_RET}:{S_RET+1}]")
    return A
```

```python
from common import *
import math, struct
def f2u(x): return struct.unpack("<I", struct.pack("<f", x))[0]

QSCALE = f2u(math.log2(math.e) / math.sqrt(128.0))
G1 = f2u(-2.0 * math.log2(math.e) * math.sqrt(2.0 / math.pi))
G2 = f2u(-2.0 * math.log2(math.e) * math.sqrt(2.0 / math.pi) * 0.044715)
LTHR = f2u(2.0 ** 62)
OOB = 0x40000000

V_LANE, V_L16, V_K, V_V = 1, 2, 3, 19
accQ = lambda db, qb: 32 + (db*4+qb)*4
accF = lambda fb, qb: 160 + (fb*4+qb)*4
Qf = lambda qb, s_: accQ(2*s_, qb)
def Sreg(buf, kbl, qb):
    i = buf*8 + kbl*4 + qb
    return accQ(2*(i//4)+1, i % 4)
Preg = lambda buf, qb: 208 + buf*16 + qb*4
NEGM = lambda qb: 240 + qb*4
TMP = 160
Oreg = lambda db, qb: (db*4+qb)*4
VA, KA_, VB, KB = 128, 144, 160, 176
Lreg = lambda qb: 192 + qb*4
ONES = 208
S_WAVE, S_H, S_T, S_I = 36, 37, 38, 39
S_KVB = 40
S_W4K = 41
S_K0, S_V0, S_K1, S_V1 = 42, 43, 44, 45
S_AK, S_AV = 46, 47
S_STRM = 48
S_T2 = 49
S_TMP, S_TMP2 = 50, 51
S_RET = 52
S_CNT = 54
S_FAIL = 55
S_Q0 = 56
S_QA = 57
S_MASK = 8
S_MK, S_MV = 58, 59
S_SAFE = 60
SRD_WS, SRD_WQ, SRD_W1, SRD_B1 = 16, 20, 24, 28
WRING = 61440; WSLOT = 25600

def dma4(soff, m0expr):
    return [f"buffer_load_dwordx4 v{V_L16}, s[{SRD_WS}:{SRD_WS+3}], s{soff} offen offset:{j*1024} sc1 lds" for j in range(4)]

S_E, S_C, S_DG = 4, 5, 6
def tile_calc(dst, nadd, strm, voff):
    r = [f"s_add_u32 s{S_TMP}, s{S_I}, {nadd}",
         f"s_lshl_b32 s{S_TMP2}, s{S_TMP}, 1",
         f"s_sub_u32 s{S_TMP2}, s{S_TMP2}, s{S_C}",
         f"s_cmp_eq_u32 s{S_TMP}, s{S_E}",
         f"s_cselect_b32 s{S_TMP2}, s{S_DG}, s{S_TMP2}"]
    if strm: r += [f"s_add_u32 s{S_TMP2}, s{S_TMP2}, 1"]
    r += [f"s_cmp_lt_u32 s{S_TMP}, s{S_E}",
          f"s_cselect_b32 s{S_TMP2}, s{S_TMP}, s{S_TMP2}" if strm == 0 else f"s_cselect_b32 s{S_TMP2}, 0x8000, s{S_TMP2}",
          f"s_cmp_gt_u32 s{S_TMP}, 16",
          f"s_cselect_b32 s{S_TMP2}, 0x8000, s{S_TMP2}",
          f"s_lshl_b32 s{S_TMP2}, s{S_TMP2}, 15",
          f"s_add_u32 s{dst}, s{S_TMP2}, s{S_KVB}"]
    if voff: r += [f"s_add_u32 s{dst}, s{dst}, {voff}"]
    return r

def lds_calc():
    return [f"s_and_b32 s{S_TMP}, s{S_I}, 1",
            f"s_lshl_b32 s{S_TMP}, s{S_TMP}, 14",
            f"s_add_u32 s{S_TMP2}, s{S_I}, 2",
            f"s_sub_u32 s{S_TMP2}, s{S_TMP2}, s{S_T2}",
            f"s_cmp_ge_i32 s{S_TMP2}, 2",
            f"s_cselect_b32 s{S_AK}, s{S_STRM}, 0",
            f"s_add_u32 s{S_AK}, s{S_AK}, s{S_TMP}",
            f"s_cmp_ge_i32 s{S_TMP2}, 3",
            f"s_cselect_b32 s{S_AV}, s{S_STRM}, 0",
            f"s_xor_b32 s{S_TMP2}, s{S_TMP}, 0x4000",
            f"s_add_u32 s{S_AV}, s{S_AV}, s{S_TMP2}",
            f"s_add_u32 s{S_AV}, s{S_AV}, 0x8000",
            f"s_add_u32 s{S_MK}, s{S_TMP2}, s{S_W4K}",
            f"s_add_u32 s{S_MV}, s{S_TMP}, s{S_W4K}",
            f"s_add_u32 s{S_MV}, s{S_MV}, 0x8000"]

def rdfrag(dst, areg, f): return f"ds_read_b128 {a(dst,4)}, v{areg} offset:{f*1024}"

PROF = [0]
CPF = [1]
WOFB = [0]
WTOUCH = []
def body(A, qk, pv, first, adma, lg, mid=None, last=None, vmn=0, xst=None, vfill=None, wo=False):
    if PROF[0]:
        A.I(f"s_add_u32 m0, s{S_I}, 40")
        A.I("s_nop 0")
        A.I("v_writelane_b32 v0, s76, m0")
        A.I("s_memtime s[76:77]" if PROF[0] == 2 else "s_memrealtime s[76:77]")
    for per in range(2):
        spine = [None]*68; gaps = [[] for _ in range(68)]
        pre = [[] for _ in range(68)]
        eb = 1 - per
        etype = pv if per == 0 else qk
        if pv:
            qbs = [2, 3] if (pv == "diag" and per == 1) else [0, 1, 2, 3]
            cz = first and per == 0
            for qb in qbs:
                d = a(Lreg(qb), 4)
                spine[qb] = mf(d, a(ONES, 4), v(Preg(per, qb), 4), "0" if cz else d)
                for db in range(8):
                    d = a(Oreg(db, qb), 4)
                    fr = (VA if db < 4 else VB) + (db % 4)*4
                    pos = (4 if db < 4 else 36) + ((db % 4)*4 + qb)*(1 if qk else 2)
                    spine[pos] = mf(d, a(fr, 4), v(Preg(per, qb), 4), "0" if cz else d)
        if qk:
            for kbl in range(2):
                kb = per*2 + kbl
                for qb in range(4):
                    if qk == "diag" and kb > qb: continue
                    for s_ in range(4):
                        d = v(Sreg(per, kbl, qb), 4)
                        pos = ((20 if kbl == 0 else 52) + qb*4 + s_) if pv else ((4 if kbl == 0 else 36) + (qb*4 + s_)*2)
                        spine[pos] = mf(d, a((KA_ if kbl == 0 else KB) + s_*4, 4), v(Qf(qb, s_), 4), v(NEGM(qb), 4) if s_ == 0 else d)
        if etype:
            ehalf = 1 if per == 0 else 0
            for e in range(32):
                qb, kbl, r = e//8, (e//4) % 2, e % 4
                kb = ehalf*2 + kbl
                reg = Sreg(eb, kbl, qb) + r
                if etype == "diag" and ehalf == 1 and qb < 2: continue
                if etype == "diag" and kb > qb:
                    gaps[2*e].append(f"v_mov_b32 v{reg}, 0")
                else:
                    gaps[2*e].append(f"v_exp_f32 v{reg}, v{reg}")
                    if etype == "diag" and kb == qb:
                        gaps[2*e+1].append(f"v_cndmask_b32 v{reg}, 0, v{reg}, s[{S_MASK+2*r}:{S_MASK+2*r+1}]")
            for c in range(16):
                qb, k = c//4, c % 4
                if etype == "diag" and ehalf == 1 and qb < 2: continue
                src = Sreg(eb, k//2, qb) + (k % 2)*2
                gaps[4*c+3].append(f"v_cvt_pk_bf16_f32 v{Preg(eb,qb)+k}, v{src}, v{src+1}")
        kbpos = [3, 7, 11, 15] if per == 0 else [1, 3, 5, 7]
        rd = {}
        for i in range(4):
            rd[kbpos[i]] = (rdfrag(KB + 4*i, V_K, (per*2+1)*4 + i), "KB")
            rd[23+4*i] = (rdfrag(VA + 4*i, V_V, (1-per)*8 + i), "VA")
            rd[39+4*i] = (rdfrag(KA_ + 4*i, V_K, ((1-per)*2)*4 + i), "KA")
            rd[55+4*i] = (rdfrag(VB + 4*i, V_V, (1-per)*8 + 4 + i), "VB")
        waits = {2: "VA", 18: "KA", 34: "VB", 50: "KB"}
        if pv is None: waits = {2: "KA", 34: "KB"}
        if qk is None: rd = {g: x for g, x in rd.items() if not (x[1] == "KB" or (per == 0 and x[1] == "KA"))}
        if pv is None and per == 0: rd = {g: x for g, x in rd.items() if x[1] not in ("VA", "VB")}
        if last is not None:
            rd = {g: x for g, x in rd.items() if per == 0 and x[1] in ("VA", "VB")}
            waits = {2: "VA", 34: "VB"}
        dm = {}
        salu = []
        if per == 0:
            if adma:
                for i, x in enumerate(dma4(S_K1, None)): dm[5+4*i] = x
                for i, x in enumerate(dma4(S_V1, None)): dm[21+4*i] = x
                pre[4].append(f"s_add_u32 m0, s{S_MK}, 0x10000")
                pre[20].append(f"s_add_u32 m0, s{S_MV}, 0x10000")
            salu = tile_calc(S_K0, 3, 0, 0) + tile_calc(S_V0, 2, 0, 16384)
            spos = [g for g in range(22, 64, 2) if g not in (34, 50)] + [64, 65, 65, 66, 66]
        else:
            for i, x in enumerate(dma4(S_K0, None)): dm[25+4*i] = x
            for i, x in enumerate(dma4(S_V0, None)): dm[41+4*i] = x
            pre[24].append(f"s_mov_b32 m0, s{S_MK}")
            pre[40].append(f"s_mov_b32 m0, s{S_MV}")
            lc = lds_calc()
            for i, x in enumerate(lc): pre[[0,4,6,8,9,9,10,11,12,13,13,14,16,17,17][i]].append(x)
            salu = tile_calc(S_K1, 3, 1, 0) + tile_calc(S_V1, 2, 1, 16384) + [f"s_add_u32 s{S_I}, s{S_I}, 1"]
            spos = [g for g in range(26, 64, 2) if g not in (34, 40, 50)] + [57, 57, 61, 61, 64, 64, 65, 65, 66, 66]
            spos.sort()
        if last is not None:
            dm = {}; salu = []; pre = [[] for _ in range(68)]
        if per == 1 and mid: mid()
        if per == 1 and last is not None: A.I("s_waitcnt vmcnt(0)")
        assert len(salu) <= len(spos), (len(salu), len(spos))
        for i, x in enumerate(salu): pre[spos[i]].append(x)
        for g in range(68):
            if spine[g]: A.I(spine[g])
            for x in pre[g]: A.I(x)
            if g in waits:
                w = lg.wait(waits[g])
                if w: A.I(w)
            if per == 1 and last is not None and spine[g]:
                k = 2
                while k > 0 and last and last[0][0] <= g:
                    x = last.pop(0)[1]; A.I(x); k -= 2 if x.startswith("ds_") else 1
            if per == 1 and g == 19 and last is None:
                if vmn == "auto":
                    tl = [x.text for x in A.items if isinstance(x, Ins) and x.kind in ("dma", "store")]
                    vmn = len(tl) - 1 - max(i for i, x in enumerate(tl) if " lds" in x)
                dbg = PROF[0] == 2 and ((vmn != 0 and first) or mid is not None)
                base = 58 if vmn else 61
                if dbg: A.I("s_memtime s[78:79]")
                A.I(f"s_waitcnt vmcnt({vmn}) lgkmcnt(0)"); lg.drain()
                if dbg:
                    A.I(f"v_writelane_b32 v0, s78, {base}"); A.I("s_memtime s[78:79]"); A.I("s_waitcnt lgkmcnt(0)"); A.I(f"v_writelane_b32 v0, s78, {base+1}")
                A.I("s_barrier")
                if dbg:
                    A.I("s_memtime s[78:79]"); A.I("s_waitcnt lgkmcnt(0)"); A.I(f"v_writelane_b32 v0, s78, {base+2}")
            if per == 1 and g == 21 and last is None:
                A.I(f"v_add_u32 v{V_K}, s{S_AK}, v{V_L16}")
                A.I(f"v_add_u32 v{V_V}, s{S_AV}, v{V_L16}")
            if g in rd:
                A.I(rd[g][0]); lg.issue(rd[g][1])
            if g in dm: A.I(dm[g])
            if WOFB[0] and wo and per == 1 and g in (57, 61):
                A.I("global_load_dword v4, v18, s[70:71]" if g == 57 else "global_load_dword v4, v17, s[66:67]")
            if CPF[0] and per == 0 and g == 37 and qk == "full" and pv == "full" and not first:
                A.I("global_load_dwordx4 v[12:15], v16, s[62:63]")
            if xst and (per, g) in xst:
                for x in xst[(per, g)]: A.I(x)
            for x in gaps[g]: A.I(x)
            if vfill and per == 0 and spine[g]:
                k = 2
                while k and vfill:
                    x = vfill.pop(0); A.I(x)
                    if x.startswith("buffer"): break
                    if not x.startswith("s_"): k -= 1
        if vfill and per == 0:
            while vfill: A.I(vfill.pop(0))
    if last is not None:
        for x in last: A.I(x[1])

def entry_lg():
    lg = Cnt("lgkmcnt", 15)
    for t in ["VA"]*4 + ["KA"]*4 + ["VB"]*4: lg.issue(t)
    return lg

def attention(A, L, ST, vm, lg, set_flag, F_H, F_B, F_A, qrest, gel, oproj_setup, oproj, saferestart):
    WSS = f"s[{SRD_WS}:{SRD_WS+3}]"
    PROF[0] = int(ST.on)
    for s_ in range(4):
        A.I(rdfrag(KB+4*s_, V_K, 3*4+s_)); lg.issue("k3")
    for x in qrest: A.I(x)
    A.I(f"s_cmp_lg_u32 s{S_SAFE}, 0")
    A.I(f"s_cbranch_scc1 {L('nomaxpass')}")
    A.I(f"s_call_b64 s[{S_RET}:{S_RET+1}], {L('maxpass')}")
    A.label(L("nomaxpass"))
    vq = []
    def fill(budget, usegel=True):
        while budget > 0 and (vq or (gel and usegel)):
            src = vq if vq else gel
            x = src[0]
            cost = 2 if ("v_exp" in x or "v_rcp" in x or "buffer" in x) else (0 if x.startswith("s_") else 1)
            if cost > budget: break
            A.I(src.pop(0)); budget -= cost
    def qk0(kb, base):
        A.I(lg.wait(f"k{kb}"))
        for qb in range(4):
            for s_ in range(4):
                d = v(Sreg(kb//2, kb % 2, qb), 4)
                c0 = "0" if kb == 0 else v(NEGM(qb), 4)
                A.I(mf(d, a(base+4*s_, 4), v(Qf(qb, s_), 4), c0 if s_ == 0 else d))
                fill(2)
    if ST.on == 2: ST.stamp()
    qk0(0, KA_)
    fill(8)
    A.I(f"s_cmp_lg_u32 s{S_Q0}, 0")
    A.I(f"s_cbranch_scc1 {L('nodiag0')}")
    A.I("v_mov_b32 v8, 0xff7fffff")
    for r in range(4):
        reg = Sreg(0, 0, 0) + r
        A.I(f"v_cndmask_b32 v{reg}, v8, v{reg}, s[{S_MASK+2*r}:{S_MASK+2*r+1}]")
    A.label(L("nodiag0"))
    for qb in range(4):
        r0 = Sreg(0, 0, qb)
        A.I(f"v_max3_f32 v{NEGM(qb)}, v{r0}, v{r0+1}, v{r0+2}")
    for qb in range(4):
        A.I(f"v_max_f32 v{NEGM(qb)}, v{NEGM(qb)}, v{Sreg(0, 0, qb)+3}")
    A.I(f"s_cmp_lg_u32 s{S_SAFE}, 0")
    A.I(f"s_cbranch_scc1 {L('fastmax')}")
    for qb in range(4): A.I(f"v_mov_b32 v{NEGM(qb)}, v{12+qb}")
    A.label(L("fastmax"))
    for swp in ("v_permlane16_swap_b32", "v_permlane32_swap_b32"):
        for qb in range(4): A.I(f"v_mov_b32 v{NEGM(qb)+1}, v{NEGM(qb)}")
        A.I("s_nop 0")
        for qb in range(4): A.I(f"{swp} v{NEGM(qb)}, v{NEGM(qb)+1}")
        A.I("s_nop 0")
        for qb in range(4): A.I(f"v_max_f32 v{NEGM(qb)}, v{NEGM(qb)}, v{NEGM(qb)+1}")
    for qb in range(4):
        A.I(f"v_sub_f32 v{NEGM(qb)}, 0, v{NEGM(qb)}")
    for qb in range(4):
        for r in range(1, 4): A.I(f"v_mov_b32 v{NEGM(qb)+r}, v{NEGM(qb)}")
    for qb in range(4):
        for r in range(4): vq.append(f"v_add_f32 v{Sreg(0,0,qb)+r}, v{Sreg(0,0,qb)+r}, v{NEGM(qb)}")
    for qb in range(4):
        for r in range(4): vq.append(f"v_exp_f32 v{Sreg(0,0,qb)+r}, v{Sreg(0,0,qb)+r}")
    A.I("s_nop 0")
    if ST.on == 2: ST.stamp()
    qk0(1, VA)
    qk0(2, VB)
    for qb in range(4):
        for r in range(4): vq.append(f"v_exp_f32 v{Sreg(0,1,qb)+r}, v{Sreg(0,1,qb)+r}")
    qk0(3, KB)
    if ST.on == 2: ST.stamp()
    A.I("s_barrier")
    A.I(f"v_add_u32 v{V_K}, s{S_AK}, v{V_L16}")
    A.I(f"v_add_u32 v{V_V}, s{S_AV}, v{V_L16}")
    side = [f"s_mov_b32 m0, s{S_MK}"] + dma4(S_K0, None) + [f"s_mov_b32 m0, s{S_MV}"] + dma4(S_V0, None) + \
           [rdfrag(VA+4*i, V_V, i) for i in range(4)] + [rdfrag(KA_+4*i, V_K, i) for i in range(4)] + [rdfrag(VB+4*i, V_V, 4+i) for i in range(4)]
    i0 = len(A.items)
    if ST.on == 2: ST.stamp()
    for x in WTOUCH: A.I(x)
    nyoung = (2 if (WTOUCH and not WOFB[0]) else 0) + sum(1 for x in gel if "buffer" in x)
    import re as _re
    isstart = lambda x: _re.match(r"v_mul_f32 v20, v(\d+), v\1$", x)
    while vq or (gel and not isstart(gel[0])): fill(2)
    A.I("v_mov_b32 v8, 1.0"); A.I("v_mov_b32 v9, 1.0"); A.I("v_mov_b32 v10, v28"); A.I("v_mov_b32 v11, v28"); A.I("s_mov_b32 s33, s32")
    k_ = 0
    while gel:
        x0 = int(isstart(gel[0]).group(1)); T = 20 if k_ % 2 == 0 else 12; k_ += 1
        gel[:] = gel[28:]
        for h_ in range(2): A.I(f"v_pk_mul_f32 {v(T+2*h_,2)}, {v(x0+2*h_,2)}, {v(x0+2*h_,2)}")
        for h_ in range(2): A.I(f"v_pk_fma_f32 {v(T+2*h_,2)}, {v(T+2*h_,2)}, s[32:33], v[10:11]")
        for h_ in range(2): A.I(f"v_pk_mul_f32 {v(T+2*h_,2)}, {v(T+2*h_,2)}, {v(x0+2*h_,2)}")
        for r in range(4): A.I(f"v_exp_f32 v{T+r}, v{T+r}")
        for h_ in range(2): A.I(f"v_pk_add_f32 {v(T+2*h_,2)}, {v(T+2*h_,2)}, v[8:9]")
        for r in range(4): A.I(f"v_rcp_f32 v{T+r}, v{T+r}")
        for h_ in range(2): A.I(f"v_pk_mul_f32 {v(x0+2*h_,2)}, {v(x0+2*h_,2)}, {v(T+2*h_,2)}")
        while gel and not isstart(gel[0]): A.I(gel.pop(0))
    tail = A.items[i0:]; A.items[i0:] = []
    k = 0
    for it in tail:
        if side and k % 3 == 0 and not (isinstance(it, Ins) and it.kind == "store"): A.I(side.pop(0))
        A.items.append(it); k += 1
    assert not side
    tl = [x for x in A.items[i0:] if isinstance(x, Ins) and x.kind in ("dma", "store", "vmem")]
    nyoung = len(tl) - 1 - max(i for i, x in enumerate(tl) if x.kind == "dma")
    ST.stamp()
    A.I(f"s_cmp_ge_u32 s{S_WAVE}, 2")
    A.I(f"s_cbranch_scc1 {L('nostash2')}")
    for qb in range(4): A.I(f"v_mov_b32 v{8+qb}, v{NEGM(qb)}")
    A.I(f"s_add_u32 s{S_TMP}, s61, 16384")
    A.I(f"buffer_store_dwordx4 v[8:11], v{V_L16}, s[{SRD_WS}:{SRD_WS+3}], s{S_TMP} offen")
    A.label(L("nostash2"))
    A.I(f"s_cmp_lg_u32 s{S_Q0}, 0")
    A.I(f"s_cbranch_scc1 {L('nodiag1')}")
    for r in range(4):
        A.I(f"v_mov_b32 v{Sreg(0,1,0)+r}, 0")
        A.I(f"v_cndmask_b32 v{Sreg(0,1,1)+r}, 0, v{Sreg(0,1,1)+r}, s[{S_MASK+2*r}:{S_MASK+2*r+1}]")
    A.label(L("nodiag1"))
    for qb in range(4):
        for k in range(4):
            src = Sreg(0, k//2, qb) + (k % 2)*2
            A.I(f"v_cvt_pk_bf16_f32 v{Preg(0,qb)+k}, v{src}, v{src+1}")
    ST.stamp()
    if ST.on == 2: ST.stamp()
    A.I(f"s_lshr_b32 s32, s2, 3"); A.I("s_lshl_b32 s32, s32, 2"); A.I(f"s_add_u32 s32, s32, s{S_WAVE}"); A.I("s_and_b32 s32, s32, 63")
    A.I("s_lshl_b32 s32, s32, 10"); A.I("s_add_u32 s32, s32, 34816"); A.I(f"v_add_u32 v16, s32, v{V_L16}")
    A.I("s_nop 1")
    used = {}
    OWN = 128
    def flag(kind, cond=False):
        if cond:
            u = f"nf{len(A.items)}"
            A.I(f"s_and_b32 s34, s{S_FAIL}, s{S_SAFE}")
            A.I(f"s_cbranch_scc1 {L(u)}")
        for x in set_flag(kind, 204, 205, 34): A.I(x)
        if cond: A.label(L(u))
    def call(qk, pv, first=False, kind=""):
        key = f"b_{qk}_{pv}_{int(first)}{kind}"
        used[key] = (qk, pv, first, kind)
        if kind.startswith("last"):
            flag(F_H)
            A.I(f"s_call_b64 s[{S_RET}:{S_RET+1}], {L('maddr')}")
        A.I(f"s_call_b64 s[{S_RET}:{S_RET+1}], {L(key)}")
    def loop(kind, last_expr_sgpr_or_imm, uniq):
        A.I(f"s_mov_b32 s{S_CNT}, {last_expr_sgpr_or_imm}")
        A.I(f"s_cmp_gt_i32 s{S_I}, s{S_CNT}")
        A.I(f"s_cbranch_scc1 {L('skip_'+uniq)}")
        A.I(f"s_call_b64 s[{S_RET}:{S_RET+1}], {L('main_'+kind)}")
        A.label(L("skip_"+uniq))
    FREE = [Sreg(b_, k_, q_) for b_ in range(2) for k_ in range(2) for q_ in range(4)]
    def packed(n): return FREE[8+n] if n < 8 else TMP + (n-8)*4
    def epi_half(B, qbs):
        B.I("s_nop 7")
        for qb in qbs: B.I(f"v_accvgpr_read_b32 v{192+qb}, a{Lreg(qb)}")
        B.I(f"v_mov_b32 v196, {LTHR}")
        for qb in qbs:
            B.I(f"v_cmp_nle_f32 vcc, v{192+qb}, v196")
            B.I(f"s_or_b32 s{S_FAIL}, s{S_FAIL}, vcc_lo")
            B.I(f"s_or_b32 s{S_FAIL}, s{S_FAIL}, vcc_hi")
        for qb in qbs: B.I(f"v_rcp_f32 v{192+qb}, v{192+qb}")
        if qbs[0] == 0:
            B.I(f"s_lshl_b32 s32, s{S_Q0}, 5")
            B.I(f"s_add_u32 s32, s32, s{S_H}")
            B.I(f"s_lshl_b32 s32, s32, 12")
            B.I(f"s_add_u32 s32, s32, {WS_CTX}")
        for qb in qbs:
            for s_ in range(4):
                n = qb*4 + s_
                T = [FREE[(2*n) % 8], FREE[(2*n+1) % 8]]
                for i in range(8): B.I(f"v_accvgpr_read_b32 v{T[i//4] + i % 4}, a{Oreg(2*s_ + i//4, qb) + i % 4}")
                for i in range(4):
                    r = T[i//2] + 2*(i % 2)
                    B.I(f"v_pk_mul_f32 {v(r,2)}, {v(r,2)}, {v(192+2*(qb//2),2)} op_sel:[0,{qb%2}] op_sel_hi:[1,{qb%2}]")
                for i in range(4):
                    r = T[i//2] + 2*(i % 2)
                    B.I(f"v_cvt_pk_bf16_f32 v{packed(n)+i}, v{r}, v{r+1}")
    def epi_late(nplain):
        r = []
        for qb in (2, 3): r.append(f"v_accvgpr_read_b32 v{192+qb}, a{Lreg(qb)}")
        r.append(f"v_mov_b32 v196, {LTHR}")
        for qb in (2, 3):
            r += [f"v_cmp_nle_f32 vcc, v{192+qb}, v196", f"s_or_b32 s34, vcc_lo, vcc_hi", f"s_or_b32 s{S_FAIL}, s{S_FAIL}, s34"]
        for qb in (2, 3): r.append(f"v_rcp_f32 v{192+qb}, v{192+qb}")
        r += [f"s_add_u32 s33, s32, {2*32*4096}", f"s_add_u32 s35, s32, {3*32*4096}"]
        for qb in (2, 3):
            for s_ in range(4):
                n = qb*4 + s_
                T = Preg(1, 0) + (n % 2)*8
                for i in range(8): r.append(f"v_accvgpr_read_b32 v{T+i}, a{Oreg(2*s_ + i//4, qb) + i % 4}")
                if n < 8 + nplain:
                    for i in range(8): r.append(f"v_mul_f32 v{T+i}, v{T+i}, v{192+qb}")
                else:
                    for i in range(4): r.append(f"v_pk_mul_f32 {v(T+2*i,2)}, {v(T+2*i,2)}, v[194:195] op_sel:[0,{qb%2}] op_sel_hi:[1,{qb%2}]")
                for i in range(4): r.append(f"v_cvt_pk_bf16_f32 v{packed(n)+i}, v{T+2*i}, v{T+2*i+1}")
                r.append(f"buffer_store_dwordx4 {v(packed(n),4)}, v{V_L16}, s[{SRD_WS}:{SRD_WS+3}], s{33 if qb == 2 else 35} offen offset:{s_*1024} sc1")
        return r
    def epi_st(n):
        qb, s_ = n//4, n % 4
        return ([f"s_add_u32 s33, s32, {qb*32*4096}"] if s_ == 0 else []) + \
               [f"buffer_store_dwordx4 {v(packed(n),4)}, v{V_L16}, s[{SRD_WS}:{SRD_WS+3}], s33 offen offset:{s_*1024} sc1"]
    def load_QA():
        A.I(f"s_add_u32 s{S_TMP}, s61, 16384")
        A.I(f"buffer_load_dwordx4 v[200:203], v{V_L16}, s[{SRD_WS}:{SRD_WS+3}], s{S_TMP} offen")
        A.I("s_waitcnt lgkmcnt(0)")
        for qb in range(4):
            for s_ in range(4):
                A.I(f"ds_read_b128 {v(Qf(qb,s_),4)}, v31 offset:{(qb*4+s_)*1024}")
        A.I("s_waitcnt lgkmcnt(0)")
    def fin_QA(n):
        A.I(f"s_waitcnt vmcnt({n})")
        A.I("s_nop 3")
        for qb in range(4):
            for r in range(4): A.I(f"v_mov_b32 v{NEGM(qb)+r}, v{200+qb}")
        A.I("s_nop 1")
    A.I(f"s_sub_u32 s32, s{S_T2}, 1")
    A.I(f"s_sub_u32 s33, s{S_T2}, 2")
    A.I(f"s_cmp_eq_u32 s{S_WAVE}, 2")
    A.I(f"s_cbranch_scc1 {L('role2')}")
    A.I(f"s_cmp_eq_u32 s{S_WAVE}, 3")
    A.I(f"s_cbranch_scc1 {L('role3')}")
    A.I(f"s_cmp_eq_u32 s{S_T}, 0")
    A.I(f"s_cbranch_scc1 {L('r01_t0')}")
    call("full", "full", True, "fd")
    A.I(f"s_branch {L('r01_c')}")
    A.label(L("r01_t0"))
    call("full", "full", True, "t0")
    A.label(L("r01_c"))
    loop("d", "s32", "r01d")
    A.I(f"s_cmp_eq_u32 s{S_WAVE}, 0")
    A.I(f"s_cbranch_scc1 {L('role0')}")
    loop("s", 15, "r1s")
    call(None, "full", False, "lastlo")
    A.I(f"s_branch {L('merge')}")
    A.label(L("w_role0")); A.I(f"s_setpc_b64 s[{S_RET}:{S_RET+1}]")
    A.label(L("role0"))
    loop("s", f"s{S_T2}", "r0s")
    call("diag", "full")
    A.I(f"s_cmp_eq_u32 s{S_T}, 7")
    A.I(f"s_cbranch_scc1 {L('role0_t7')}")
    call("full", "diag")
    loop("s", 15, "r0s2")
    call(None, "full", False, "lastlo")
    A.I(f"s_branch {L('merge')}")
    A.label(L("role0_t7"))
    call(None, "diag", False, "lastlo")
    A.I(f"s_branch {L('merge')}")
    A.label(L("w_role2")); A.I(f"s_setpc_b64 s[{S_RET}:{S_RET+1}]")
    A.label(L("role2"))
    A.I(f"s_cmp_eq_u32 s{S_T}, 0")
    A.I(f"s_cbranch_scc1 {L('role2_t0')}")
    call("full", "full", True, "fd")
    loop("d", "s33", "r2d")
    call("diag", "full")
    call(None, "diag", False, "epi")
    A.I(f"s_branch {L('role2_b')}")
    A.label(L("role2_t0"))
    call(None, "diag", True, "epi")
    A.label(L("role2_b"))
    fin_QA(16)
    call("diag", None, False, "st")
    A.I(f"s_cmp_eq_u32 s{S_T}, 7")
    A.I(f"s_cbranch_scc1 {L('role2_t7')}")
    call("full", "diag", True)
    flag(F_B, True)
    loop("s", 15, "r2s")
    call(None, "full", False, "lasthi")
    A.I(f"s_branch {L('merge')}")
    A.label(L("role2_t7"))
    call(None, "diag", True, "lasthi")
    flag(F_B, True)
    A.I(f"s_branch {L('merge')}")
    A.label(L("w_role3")); A.I(f"s_setpc_b64 s[{S_RET}:{S_RET+1}]")
    A.label(L("role3"))
    A.I(f"s_cmp_eq_u32 s{S_T}, 0")
    A.I(f"s_cbranch_scc1 {L('role3_t0')}")
    call("full", "full", True, "fd")
    loop("d", "s32", "r3d")
    call("diag", "full")
    A.I(f"s_branch {L('role3_b')}")
    A.label(L("role3_t0"))
    call("diag", "full", True)
    A.label(L("role3_b"))
    call(None, "diag", False, "epi")
    fin_QA(16)
    A.I(f"s_cmp_eq_u32 s{S_T}, 7")
    A.I(f"s_cbranch_scc1 {L('role3_t7')}")
    call("full", None, False, "st")
    call("full", "full", True)
    flag(F_B, True)
    loop("s", 15, "r3s")
    call(None, "full", False, "lasthi")
    A.I(f"s_branch {L('merge')}")
    A.label(L("role3_t7"))
    call(None, None, False, "lastst")
    for i in range(64): A.I(f"v_mov_b32 v{OWN+i}, 0")
    for i in range(16): A.I(f"v_accvgpr_write_b32 a{Lreg(0)+i}, 0")
    for i in range(16): A.I(f"ds_write_b128 v197, {v(OWN,4)} offset:{i*1024}")
    flag(F_B, True)
    A.I(f"s_branch {L('merge')}")
    A.label(L("w_merge")); A.I(f"s_setpc_b64 s[{S_RET}:{S_RET+1}]")
    A.label(L("merge"))
    if ST.on: A.I("v_writelane_b32 v0, s76, 57")
    ST.stamp()
    for qb in range(4): A.I(f"v_accvgpr_read_b32 v{192+qb}, a{Lreg(qb)}")
    A.I(f"v_mov_b32 v196, {LTHR}")
    for qb in range(4):
        A.I(f"v_cmp_nle_f32 vcc, v{192+qb}, v196")
        A.I(f"s_or_b32 s{S_FAIL}, s{S_FAIL}, vcc_lo")
        A.I(f"s_or_b32 s{S_FAIL}, s{S_FAIL}, vcc_hi")
    A.I(f"v_mov_b32 v202, s{S_FAIL}")
    A.I(f"ds_write_b128 v199, v[192:195]")
    A.I(f"ds_write_b32 v201, v202")
    A.I(f"s_cmp_ge_u32 s{S_WAVE}, 2")
    A.I(f"s_cbranch_scc1 {L('mhi')}")
    def merge_half(keep, u):
        A.I("s_waitcnt lgkmcnt(0)")
        A.I("s_barrier")
        A.I(f"v_mov_b32 v201, {131072+4096}")
        A.I(f"ds_read_b128 v[204:207], v201")
        A.I(f"ds_read_b128 v[208:211], v200")
        R = 64
        for i in range(16):
            A.I(f"ds_read_b128 {v(R+4*i,4)}, v198 offset:{i*1024}")
        A.I(f"s_lshl_b32 s32, s{S_QA}, 5")
        A.I(f"s_add_u32 s32, s32, s{S_H}")
        A.I(f"s_lshl_b32 s32, s32, 12")
        A.I(f"s_add_u32 s32, s32, {WS_CTX}")
        A.I("s_waitcnt lgkmcnt(15)")
        A.I("v_or_b32 v204, v204, v205")
        A.I("v_or3_b32 v204, v204, v206, v207")
        for qb in keep:
            A.I(f"v_add_f32 v{192+qb}, v{192+qb}, v{208+qb}")
        A.I(f"v_readfirstlane_b32 s{S_FAIL}, v204")
        for qb in keep:
            A.I(f"v_rcp_f32 v{192+qb}, v{192+qb}")
        n = 0
        for i, qb in enumerate(keep):
            A.I(f"s_add_u32 s33, s32, {qb*32*4096}")
            for s_ in range(4):
                T = OWN + i*32 + s_*8
                A.I(f"s_waitcnt lgkmcnt({14 - (i*8+2*s_)})")
                for k in range(4): A.I(f"v_pk_add_f32 {v(T+2*k,2)}, {v(T+2*k,2)}, {v(R + (i*8+2*s_)*4 + 2*k,2)}")
                for k in range(4): A.I(f"v_pk_mul_f32 {v(T+2*k,2)}, {v(T+2*k,2)}, {v(192+2*(qb//2),2)} op_sel:[0,{qb%2}] op_sel_hi:[1,{qb%2}]")
                for k in range(4): A.I(f"v_cvt_pk_bf16_f32 v{T+k}, v{T+2*k}, v{T+2*k+1}")
                A.I(f"buffer_store_dwordx4 {v(T,4)}, v{V_L16}, s[{SRD_WS}:{SRD_WS+3}], s33 offen offset:{s_*1024} sc1")
    merge_half([0, 1], "lo")
    A.I(f"s_branch {L('done')}")
    A.label(L("w_mhi")); A.I(f"s_setpc_b64 s[{S_RET}:{S_RET+1}]")
    A.label(L("mhi"))
    merge_half([2, 3], "hi")
    A.label(L("done"))
    ST.stamp()
    A.I(f"s_and_b32 s34, s{S_FAIL}, s{S_SAFE}")
    A.I(f"s_cbranch_scc1 {L('saferestart')}")
    oproj()
    A.label(L("end"))
    A.I("s_endpgm")
    A.label(L("maddr"))
    A.I(f"s_mul_i32 s6, s{S_WAVE}, 0x4000")
    A.I(f"s_add_u32 s6, s6, 0xc000")
    A.I(f"s_cmp_eq_u32 s{S_WAVE}, 0")
    A.I(f"s_cselect_b32 s6, 0x4000, s6")
    A.I(f"s_cselect_b32 s7, 0x1c000, 0")
    A.I(f"s_cmp_eq_u32 s{S_WAVE}, 3")
    A.I(f"s_cselect_b32 s6, 0x1c000, s6")
    A.I(f"s_cselect_b32 s7, 0x4000, s7")
    A.I(f"s_cmp_eq_u32 s{S_WAVE}, 1")
    A.I(f"s_cselect_b32 s7, 0x14000, s7")
    A.I(f"s_cmp_eq_u32 s{S_WAVE}, 2")
    A.I(f"s_cselect_b32 s7, 0x10000, s7")
    A.I(f"v_add_u32 v197, s6, v{V_L16}")
    A.I(f"v_add_u32 v198, s7, v{V_L16}")
    A.I(f"s_lshl_b32 s34, s{S_WAVE}, 10")
    A.I(f"s_add_u32 s34, s34, 131072")
    A.I(f"v_add_u32 v199, s34, v{V_L16}")
    A.I(f"s_xor_b32 s34, s34, 3072")
    A.I(f"v_add_u32 v200, s34, v{V_L16}")
    A.I(f"s_lshl_b32 s34, s{S_WAVE}, 2")
    A.I(f"s_add_u32 s34, s34, {131072+4096}")
    A.I(f"v_mov_b32 v201, s34")
    A.I(f"s_setpc_b64 s[{S_RET}:{S_RET+1}]")
    A.label(L("maxpass"))
    M = Asm()
    for qb in range(4): M.I(f"v_mov_b32 v{12+qb}, 0xff7fffff")
    M.I("v_mov_b32 v8, 0xff7fffff")
    M.I(f"v_add_u32 v9, 0x10000, v{V_L16}")
    MI_, ML_ = 64, 65
    M.I(f"s_mov_b32 s{MI_}, 0")
    M.I(f"s_lshr_b32 s{S_CNT}, s{S_Q0}, 2")
    M.I(f"s_sub_u32 s{ML_}, 31, s{S_T2}")
    M.I("s_waitcnt lgkmcnt(0)")
    M.I("s_barrier")
    M.label(L("mp_loop"))
    M.I(f"s_lshl_b32 s{S_TMP}, s{MI_}, 15")
    M.I(f"s_add_u32 s{S_TMP}, s{S_TMP}, s{S_KVB}")
    M.I(f"s_add_u32 m0, s{S_W4K}, 0x10000")
    M.I("s_nop 0")
    for x in dma4(S_TMP, None): M.I(x)
    M.I("s_waitcnt vmcnt(0)")
    M.I("s_barrier")
    M.I(f"s_cmp_gt_u32 s{MI_}, s{S_CNT}")
    M.I(f"s_cbranch_scc1 {L('mp_next')}")
    for kb, base in enumerate((KA_, KB, VA, VB)):
        for s_ in range(4): M.I(rdfrag(base+4*s_, 9, kb*4+s_))
    M.I("s_waitcnt lgkmcnt(0)")
    for kb, base in enumerate((KA_, KB, VA, VB)):
        for qb in range(4):
            for s_ in range(4):
                d = v(Sreg(kb//2, kb % 2, qb), 4)
                M.I(mf(d, a(base+4*s_, 4), v(Qf(qb, s_), 4), "0" if s_ == 0 else d))
    M.I("s_nop 7")
    M.I(f"s_cmp_lg_u32 s{MI_}, s{S_CNT}")
    M.I(f"s_cbranch_scc1 {L('mp_nomask')}")
    for kb in range(4):
        for qb in range(4):
            for r in range(4):
                reg = Sreg(kb//2, kb % 2, qb) + r
                if kb > qb: M.I(f"v_mov_b32 v{reg}, v8")
                elif kb == qb: M.I(f"v_cndmask_b32 v{reg}, v8, v{reg}, s[{S_MASK+2*r}:{S_MASK+2*r+1}]")
    M.label(L("mp_nomask"))
    for qb in range(4):
        regs = [Sreg(kb//2, kb % 2, qb) + r for kb in range(4) for r in range(4)]
        for i in range(0, 16, 2): M.I(f"v_max3_f32 v{12+qb}, v{12+qb}, v{regs[i]}, v{regs[i+1]}")
    M.label(L("mp_next"))
    M.I("s_barrier")
    M.I(f"s_add_u32 s{MI_}, s{MI_}, 1")
    M.I(f"s_cmp_le_u32 s{MI_}, s{ML_}")
    M.I(f"s_cbranch_scc1 {L('mp_loop')}")
    for kb, base in enumerate((KA_, VA, VB, KB)):
        for s_ in range(4): M.I(rdfrag(base+4*s_, V_K, kb*4+s_))
    M.I("s_waitcnt lgkmcnt(0)")
    M.I(f"s_setpc_b64 s[{S_RET}:{S_RET+1}]")
    A.items += M.check(fix=True, seq=M.items)
    saferestart()
    allb = {}
    def lastfill(kind):
        if kind == "lastst": return []
        keep = [0, 1] if kind == "lastlo" else [2, 3]
        send = [q for q in range(4) if q not in keep]
        r = []
        for db in range(8):
            e = (4 if db < 4 else 36) + 8*(db % 4) + 16
            for i, qb in enumerate(send): r.append((e, f"ds_write_b128 v197, {a(Oreg(db,qb),4)} offset:{(i*8+db)*1024}"))
            for i, qb in enumerate(keep):
                for k in range(4): r.append((e, f"v_accvgpr_read_b32 v{OWN + i*32 + db*4 + k}, a{Oreg(db, qb) + k}"))
        return r
    QA = [f"s_add_u32 s34, s61, 16384", f"buffer_load_dwordx4 v[200:203], v{V_L16}, s[{SRD_WS}:{SRD_WS+3}], s34 offen"] + \
         [f"ds_read_b128 {v(Qf(qb,s_),4)}, v31 offset:{(qb*4+s_)*1024}" for qb in range(4) for s_ in range(4)]
    for kind, adma in (("d", False), ("s", True)):
        B = Asm(); l2 = entry_lg(); body(B, "full", "full", False, adma, l2)
        assert l2.q == entry_lg().q, l2.q
        for p in B.check(seq=B.items + B.items, name="main_"+kind): print("HAZARD(main)", p)
        allb["main_"+kind] = B.items
    for key, (qk, pv, first, kind) in used.items():
        B = Asm(); l2 = entry_lg()
        body(B, qk, pv, first, kind != "fd", l2, wo=(kind == "fd" or key in ("b_None_diag_1epi", "b_diag_full_1", "b_full_full_1t0")), vmn={"fd": nyoung, "st": "auto"}.get(kind, 0),
             xst={"epi": {**{(1, 40+(i//2)*8+(i%2)*2): epi_st(i) for i in range(8)}, (1, 20): QA}, }.get(kind), vfill=epi_late({"full": 3, "diag": 2, None: 0}[qk]) if kind in ("st", "lastst") else None, mid=(lambda: epi_half(B, [0, 1])) if kind == "epi" else None, last=lastfill(kind) if kind.startswith("last") else None)
        allb[key] = B.check(fix=True, seq=B.items)
    link = [Ins("s_nop 0"), Ins("s_nop 0")]
    for key, items in allb.items():
        pad = 0
        while True:
            seq = items[-40:] + [Ins("s_nop 0")]*pad + link
            if not any(Asm().check(seq=seq + nxt[:40]) for nxt in allb.values()): break
            pad += 1
        A.I(".p2align 6")
        A.label(L("w_" + key)); A.I(f"s_setpc_b64 s[{S_RET}:{S_RET+1}]")
        A.label(L("w2_" + key)); A.I("s_setpc_b64 s[56:57]")
        A.label(L(key))
        A.items += items
        if key.startswith("main"):
            assert pad == 0
            A.I(f"s_cmp_le_i32 s{S_I}, s{S_CNT}")
            A.I(f"s_cbranch_scc1 {L(key)}")
        elif "last" in key: A.I("s_nop 7")
        elif pad: A.I(f"s_nop {pad-1}")
        A.I(f"s_setpc_b64 s[{S_RET}:{S_RET+1}]")
    return A
```

```python
from common import *
import k2
from k2 import *
import math, struct

F_XN, F_KV, F_H, F_B, F_A, F_P, F_ID = range(7)
S_ID = 45
def flag_base(kind): return WS_FLAG + kind*262144
NLOG2E = f2u(-math.log2(math.e))
S_NONCE = 3
S_ROT = 39

def gen(name, prof=False, rot=False, xsc=' sc1', csc=' sc1', xdiag=0, tlb=False, itlb=True, dense=False, slp=0, fstride=7, apoll=0, fullline=True, xtouch=0, fine=0, swarm=1, pf0=2, xst_t=5, pxg=10, pxc=13, tlbw=0, wqg=4, pft=5, pfs=3, wofb=1, t64=0, prer_mode=1, cpf=1, kvsc='', outsc='', padto=0, qeven=1, k3pace=1, wotouch=0, wot=2, wqt=7, wqtouch=1, barpos=9, noln=0, kspread=0, apollA=0, upfront=2):
    A = Asm(); ST = Stamps(A, prof, 0)
    vm = Cnt("vmcnt", 63); lg = Cnt("lgkmcnt", 15)
    L = lambda x: f"L_{x}"
    WS = f"s[{SRD_WS}:{SRD_WS+3}]"
    uniq = [0]
    def set_flag(kind, vz, vd, st, val=S_NONCE):
        wide = True
        return [f"s_lshl_b32 s{st}, s2, {2 if wide else 5}", f"s_add_u32 s{st}, s{st}, s{S_WAVE}", f"s_lshl_b32 s{st}, s{st}, {7 if wide else 2}",
                f"s_add_u32 s{st}, s{st}, {flag_base(kind)}",
                f"v_mov_b32 v{vd}, s{val}", f"v_lshlrev_b32 v{vz}, 2, v1",
                "s_mov_b32 exec_hi, 0" if fullline else "s_mov_b64 exec, 1", f"buffer_store_dword v{vd}, v{vz}, {WS}, s{st} offen sc1", "s_mov_b64 exec, -1"]
    def pload(vdat, vaddr, atomic=False):
        if atomic:
            return [f"v_mov_b32 v{vdat}, 0", f"buffer_atomic_or v{vdat}, v{vaddr}, {WS}, 0 offen sc0 sc1"]
        return [f"buffer_load_dword v{vdat}, v{vaddr}, {WS}, 0 offen {'sc1' if apoll != 2 else 'sc0 sc1 nt'}"]
    def poll_check(vaddr, vdat, st, vmask=None, atomic=False):
        u = uniq[0]; uniq[0] += 1
        A.I(f"s_mov_b32 s{st}, 0")
        A.label(L(f"poll{u}"))
        if vmask is not None:
            A.I(f"v_and_b32 v{vmask}, 0xffffff00, v{vdat}")
            A.I(f"v_cmp_ne_u32 vcc, s{S_NONCE}, v{vmask}")
        else:
            A.I(f"v_cmp_ne_u32 vcc, s{S_NONCE}, v{vdat}")
        A.I(f"s_cbranch_vccz {L(f'pollok{u}')}")
        A.I(f"s_add_u32 s{st}, s{st}, 1")
        A.I(f"s_cmp_gt_u32 s{st}, 0x80000")
        A.I(f"s_cbranch_scc1 {L(f'pollok{u}')}")
        if slp: A.I(f"s_sleep {slp}")
        for x in pload(vdat, vaddr, atomic): A.I(x)
        A.I("s_waitcnt vmcnt(0)")
        A.I(f"s_branch {L(f'poll{u}')}")
        A.label(L(f"pollok{u}"))
    def code_pf(off, nbytes, vt, vd):
        return [f"s_lshr_b32 s{S_TMP}, s2, 3", f"s_lshl_b32 s{S_TMP}, s{S_TMP}, 2", f"s_add_u32 s{S_TMP}, s{S_TMP}, s{S_WAVE}",
                f"s_lshl_b32 s{S_TMP}, s{S_TMP}, 10", f"s_and_b32 s{S_TMP}, s{S_TMP}, {nbytes-1}", f"s_add_u32 s{S_TMP}, s{S_TMP}, {off}",
                f"v_add_u32 v{vt}, s{S_TMP}, v{V_L16}", f"global_load_dwordx4 {v(vd,4)}, v{vt}, s[62:63]"]

    def stub(i):
        if not swarm: return
        A.I(f"s_branch {L(f'sk{i}')}")
        A.label(L(f"st{i}")); A.I(f"s_branch {L('swret')}")
        A.label(L(f"sk{i}"))
    header(A, name)
    A.I("s_cmp_ge_u32 s2, 256")
    A.I(f"s_cbranch_scc1 {L('end')}")
    ST.stamp()
    A.I(f"s_load_dwordx4 s[4:7], s[0:1], {KA['x']}")
    A.I(f"s_load_dwordx4 s[8:11], s[0:1], {KA['wuk']}")
    A.I(f"s_load_dwordx4 s[12:15], s[0:1], {KA['dbg']}")
    A.I("s_getpc_b64 s[62:63]")
    if pf0:
        A.I("v_lshlrev_b32 v244, 4, v0")
        A.I("global_load_dwordx4 v[252:255], v244, s[62:63]"); vm.issue("pf")
        if pf0 == 2:
            A.I("v_add_u32 v245, 4096, v244")
            A.I("global_load_dwordx4 v[252:255], v245, s[62:63]"); vm.issue("pf")
    A.I("s_memrealtime s[52:53]")
    A.I(f"s_mov_b32 s{S_SAFE}, -1")
    A.I("v_and_b32 v1, 63, v0")
    A.I("v_lshrrev_b32 v248, 6, v0")
    A.I(f"s_and_b32 s{S_H}, s2, 7")
    A.I(f"v_readfirstlane_b32 s{S_WAVE}, v248")
    if swarm:
        A.I("s_nop 0")
        for w in range(4):
            A.I(f"s_cmp_eq_u32 s{S_WAVE}, {w}")
            A.I(f"s_cbranch_scc1 {L(f'st{w}')}")
        A.label(L("swret"))
    A.I(f"s_lshr_b32 s47, s2, 3")
    A.I(f"s_lshl_b32 s{S_H}, s{S_H}, 2")
    A.I(f"s_and_b32 s48, s47, 3")
    A.I(f"s_add_u32 s{S_H}, s{S_H}, s48")
    A.I(f"s_lshr_b32 s{S_T}, s47, 2")
    A.I(f"v_lshlrev_b32 v{V_L16}, 4, v1")
    A.I("v_and_b32 v248, 15, v1")
    A.I("v_lshrrev_b32 v249, 4, v1")
    A.I("v_and_b32 v250, 7, v1")
    A.I("v_xor_b32 v250, v250, v249")
    A.I("v_lshrrev_b32 v251, 3, v1")
    A.I("v_lshlrev_b32 v251, 10, v251")
    A.I("v_lshl_add_u32 v208, v250, 4, v251")
    A.I("v_xor_b32 v250, 4, v250")
    A.I("v_lshl_add_u32 v209, v250, 4, v251")
    A.I(f"v_add_u32 v210, {2*(8192-1024)}, v208")
    A.I(f"v_add_u32 v211, {3*(8192-1024)}, v209")
    A.I(f"v_add_u32 v209, {8192-1024}, v209")
    A.I("v_lshrrev_b32 v250, 1, v248")
    A.I("v_xor_b32 v250, v250, v249")
    A.I("v_and_b32 v251, 1, v248")
    A.I("v_lshlrev_b32 v251, 4, v251")
    A.I("v_lshl_add_u32 v251, v249, 13, v251")
    A.I("v_lshl_add_u32 v4, v250, 5, v251")
    A.I(f"v_add_u32 v5, {32768-1024}, v4")
    A.I("v_xor_b32 v250, 4, v250")
    A.I("v_lshl_add_u32 v6, v250, 5, v251")
    A.I(f"v_add_u32 v6, {2*(32768-1024)}, v6")
    A.I(f"v_add_u32 v7, {32768-1024}, v6")
    stub(0)
    A.I(f"s_lshl_b32 s40, s{S_T}, 8")
    A.I(f"s_lshl_b32 s47, s{S_WAVE}, 6")
    A.I("s_add_u32 s40, s40, s47")
    A.I("s_lshl_b32 s40, s40, 10")
    A.I(f"s_lshl_b32 s42, s{S_WAVE}, 13")
    A.I(f"s_lshl_b32 s44, s{S_WAVE}, 17")
    A.I(f"s_lshl_b32 s47, s{S_H}, 8")
    A.I("s_add_u32 s44, s44, s47")
    A.I(f"s_lshl_b32 s{S_W4K}, s{S_WAVE}, 12")
    A.I("s_waitcnt lgkmcnt(0)")
    srd(A, 24, 8, 4*MB); srd(A, 20, 6, 2*MB)

    def rotk(t, shift, base, dst):
        if not rot: return [f"s_add_u32 s{dst}, s{base}, {t << shift}"]
        return [f"s_add_u32 s{dst}, s{S_ROT}, {t}", f"s_and_b32 s{dst}, s{dst}, 7", f"s_lshl_b32 s{dst}, s{dst}, {shift}", f"s_add_u32 s{dst}, s{dst}, s{base}"]
    def wdma(which, t, slot):
        sr = 24 if which == "k" else 28
        pre = rotk(t, 19, 44, 49) + [f"s_add_u32 m0, s{S_W4K}, {slot*16384}"]
        return [(pre if j == 0 else None, f"buffer_load_dwordx4 v{4+j}, s[{sr}:{sr+3}], s49 offen offset:{j*1024} lds") for j in range(4)]
    def cdma(t):
        r = []
        for i in range(8):
            pre = None
            if i == 0: pre = rotk(t, 7, 40, 43) + [f"s_add_u32 m0, s42, {(t%2)*32768}"]
            if i == 4: pre = [f"s_add_u32 s43, s43, 32768", f"s_add_u32 m0, s42, {(t%2)*32768 + 4096}"]
            r.append((pre, f"buffer_load_dwordx4 v{208+i%4}, s[20:23], s43 offen offset:{(i%4)*1024} lds"))
        return r
    def ccopy(t):
        r = []
        for kk in range(2):
            for kb in range(4):
                r.append(f"ds_read_b128 {a((kb*16+2*t+kk)*4,4)}, v{212 + kk} offset:{(t % 2)*32768 + kb*2048}")
        return r
    def issue(lst, tag):
        for pre, x in lst:
            if pre:
                for y in pre: A.I(y)
                if "lds" in x: A.I("s_nop 0")
            A.I(x); vm.issue(tag)
    A.I("s_lshl_b32 s54, s2, 2")
    A.I(f"s_add_u32 s54, s54, s{S_WAVE}")
    A.I("s_lshl_b32 s55, s54, 12")
    A.I("s_lshl_b32 s54, s54, 11")
    prer = [(None, f"buffer_load_dwordx4 v[252:255], v{V_L16}, s[20:23], s53 offen offset:{j*1024}") for j in range(2)] + \
           [(None, f"buffer_load_dwordx4 v[252:255], v{V_L16}, s[24:27], s55 offen offset:{j*1024}") for j in range(4)]
    A.I("s_mov_b32 s53, s54")
    ST.stamp()
    if upfront in (4, 5, 6): issue(prer, "pr")
    if upfront == 6:
        A.I("v_and_b32 v3, 31, v1"); A.I("v_lshlrev_b32 v3, 7, v3"); A.I("v_add_u32 v3, s55, v3")
        A.I(f"buffer_load_dword v252, v3, s[28:31], 0 offen"); vm.issue("pr")
    issue(wdma("k", 0, 7), "Wk0"); issue(cdma(0), "C0")
    ST.stamp()
    stub(1)
    srd(A, 32, 4, 2*MB); srd(A, SRD_WS, 14, WS_END); srd(A, 28, 10, 4*MB)
    A.I("s_lshl_b32 s47, s2, 3")
    A.I(f"s_lshl_b32 s48, s{S_WAVE}, 1")
    A.I("s_add_u32 s47, s47, s48")
    A.I("v_lshrrev_b32 v241, 5, v1")
    A.I("v_add_u32 v241, s47, v241")
    A.I("v_and_b32 v242, 31, v1")
    A.I("v_lshlrev_b32 v243, 10, v241")
    A.I("v_lshl_add_u32 v243, v242, 4, v243")
    A.I("buffer_load_dwordx4 v[216:219], v243, s[32:35], 0 offen"); vm.issue("x")
    A.I("buffer_load_dwordx4 v[220:223], v243, s[32:35], 0 offen offset:512"); vm.issue("x")
    A.I(f"s_load_dwordx2 s[68:69], s[0:1], {KA['wq']}")
    A.I(f"s_load_dwordx2 s[70:71], s[0:1], {KA['wo']}")
    A.I(f"s_load_dwordx2 s[64:65], s[0:1], {KA['w1']}")
    A.I(f"s_load_dwordx2 s[66:67], s[0:1], {KA['w2']}")
    if upfront == 0:
        issue(prer, "pr"); issue(wdma("k", 1, 8), "Wk1"); issue(cdma(1), "C1")
    elif upfront == 1:
        issue(prer, "pr")
    elif upfront == 2:
        issue(wdma("k", 1, 8), "Wk1"); issue(cdma(1), "C1")
    if upfront == 7:
        issue(wdma("k", 1, 8), "Wk1"); issue(cdma(1), "C1"); issue(prer, "pr")
    stub(2)
    for x in code_pf(0, 131072, 244, 252): A.I(x)
    vm.issue("pf")
    A.I(f"s_or_b32 s47, s2, s{S_WAVE}")
    A.I(f"s_cmp_lg_u32 s47, 0")
    A.I(f"s_cbranch_scc1 {L('nocas')}")
    if padto:
        A.I("v_mov_b32 v184, s52"); A.I("v_mov_b32 v185, 4"); A.I("global_store_dword v185, v184, s[12:13] sc1"); A.I("s_nop 1")
    A.I("s_and_b32 s52, s52, 0xffffff00")
    A.I("s_or_b32 s52, s52, 0x100")
    A.I("v_mov_b32 v184, s52")
    A.I("v_mov_b32 v185, 0")
    A.I("s_mov_b64 exec, 1")
    A.I("global_store_dword v185, v184, s[12:13] sc1")
    A.I("s_mov_b64 exec, -1")
    A.label(L("nocas"))
    ST.stamp()
    A.I("v_lshrrev_b32 v250, 1, v248")
    A.I("v_xor_b32 v250, v250, v249")
    A.I("v_lshlrev_b32 v251, 7, v248")
    A.I("v_add_u32 v251, s42, v251")
    A.I("v_lshl_add_u32 v212, v250, 4, v251")
    A.I("v_xor_b32 v250, 4, v250")
    A.I("v_lshl_add_u32 v213, v250, 4, v251")
    A.I("v_bfe_u32 v248, v1, 2, 2")
    A.I("v_lshlrev_b32 v250, 3, v249")
    A.I("v_add_u32 v250, v250, v248")
    A.I("v_lshlrev_b32 v250, 8, v250")
    A.I("v_and_b32 v251, 3, v1")
    A.I("v_lshl_add_u32 v250, v251, 3, v250")
    A.I("v_add_u32 v250, 114688, v250")
    A.I("v_and_b32 v251, 1, v249")
    A.I("v_lshl_add_u32 v248, v251, 2, v248")
    for nb in range(8):
        A.I(f"v_xor_b32 v251, {nb}, v248")
        A.I(f"v_lshl_add_u32 v{8+nb}, v251, 5, v250")
    stub(3)
    A.I("v_lshrrev_b32 v250, 4, v241")
    A.I("v_lshlrev_b32 v250, 14, v250")
    A.I("v_lshrrev_b32 v251, 2, v242")
    A.I("v_lshl_add_u32 v250, v251, 10, v250")
    A.I("v_and_b32 v251, 3, v242")
    A.I("v_lshl_add_u32 v250, v251, 8, v250")
    A.I("v_and_b32 v251, 15, v241")
    A.I("v_lshl_add_u32 v240, v251, 4, v250")
    A.I(f"s_lshl_b32 s46, s{S_H}, 5")
    A.I(f"s_lshl_b32 s47, s{S_T}, 2")
    A.I("s_add_u32 s46, s46, s47")
    A.I(f"s_add_u32 s46, s46, s{S_WAVE}")
    A.I("s_lshl_b32 s46, s46, 15")
    A.I(f"s_add_u32 s46, s46, {WS_KV}")
    if xtouch:
        A.I("s_lshr_b32 s47, s2, 3"); A.I("s_lshl_b32 s47, s47, 2"); A.I(f"s_add_u32 s47, s47, s{S_WAVE}"); A.I("s_lshl_b32 s47, s47, 15")
        A.I("s_and_b32 s48, s2, 7"); A.I("s_lshl_b32 s48, s48, 10"); A.I("s_add_u32 s47, s47, s48")
        A.I("v_bfe_u32 v3, v1, 3, 2"); A.I("v_lshlrev_b32 v3, 13, v3"); A.I("v_and_b32 v250, 7, v1"); A.I("v_lshl_add_u32 v3, v250, 7, v3")
        A.I("v_add_u32 v3, s47, v3")
    else:
        A.I("v_and_b32 v3, 31, v1" if not t64 else "v_mov_b32 v3, v1")
        A.I(f"v_lshlrev_b32 v3, {7 if not t64 else 6}, v3")
        A.I("v_add_u32 v3, s55, v3")
    A.I("s_mul_i32 s54, s54, 11")
    A.I("s_lshr_b32 s54, s54, 4")
    A.I(f"v_min_u32 v250, {10 if not t64 else 21}, v1")
    A.I(f"v_lshlrev_b32 v250, {7 if not t64 else 6}, v250")
    A.I("v_add_u32 v250, s54, v250")
    A.I(f"v_min_u32 v250, {1376*1024-4}, v250")
    LN = Asm()
    X = 224
    for i in range(8):
        LN.I(f"v_lshlrev_b32 v{X+2*i}, 16, v{216+i}")
        LN.I(f"v_and_b32 v{X+2*i+1}, 0xffff0000, v{216+i}")
    LN.I(f"v_add_f32 v243, v{X}, v{X+1}")
    LN.I(f"v_add_f32 v244, v{X+2}, v{X+3}")
    for i in range(4, 16, 2):
        LN.I(f"v_add_f32 v243, v243, v{X+i}")
        LN.I(f"v_add_f32 v244, v244, v{X+i+1}")
    LN.I("v_add_f32 v243, v243, v244")
    row_allreduce32(LN, 243, 244)
    LN.I("v_mul_f32 v243, 0x3b000000, v243")
    LN.I("v_mov_b32 v245, 0")
    LN.I("v_mov_b32 v246, 0")
    for i in range(16):
        LN.I(f"v_sub_f32 v247, v{X+i}, v243")
        LN.I(f"v_fmac_f32 v{245+i%2}, v247, v247")
    LN.I("v_add_f32 v245, v245, v246")
    row_allreduce32(LN, 245, 244)
    LN.I("v_mul_f32 v245, 0x3b000000, v245")
    LN.I("v_cvt_pk_bf16_f32 v243, v243, v245")
    LN.I("v_and_b32 v245, 0xffff0000, v243")
    LN.I("v_lshlrev_b32 v243, 16, v243")
    LN.I("v_add_f32 v245, 0x3727c5ac, v245")
    LN.I("v_cvt_pk_bf16_f32 v245, v245, v245")
    LN.I("v_lshlrev_b32 v245, 16, v245")
    LN.I("v_sqrt_f32 v245, v245")
    LN.I("s_nop 0")
    LN.I("v_cvt_pk_bf16_f32 v245, v245, v245")
    LN.I("v_lshlrev_b32 v245, 16, v245")
    LN.I("v_rcp_f32 v245, v245")
    for i in range(16):
        LN.I(f"v_sub_f32 v{X+i}, v{X+i}, v243")
    for i in range(8):
        LN.I(f"v_cvt_pk_bf16_f32 v{216+i}, v{X+2*i}, v{X+2*i+1}")
    for i in range(8):
        LN.I(f"v_lshlrev_b32 v{X+2*i}, 16, v{216+i}")
        LN.I(f"v_and_b32 v{X+2*i+1}, 0xffff0000, v{216+i}")
        LN.I(f"v_mul_f32 v{X+2*i}, v{X+2*i}, v245")
        LN.I(f"v_mul_f32 v{X+2*i+1}, v{X+2*i+1}, v245")
    for i in range(8):
        LN.I(f"v_cvt_pk_bf16_f32 v{216+i}, v{X+2*i}, v{X+2*i+1}")
    lnq = [x.text for x in LN.items if not x.text.startswith("s_nop")]
    if noln: lnq = []
    A.I("v_add_u32 v241, 8192, v240")
    A.I(f"s_getreg_b32 s{S_ID}, hwreg(HW_REG_XCC_ID)")
    A.I(f"s_lshr_b32 s47, s{S_ID}, 12")
    A.I(f"s_and_b32 s47, s47, 0xf0")
    A.I(f"s_and_b32 s{S_ID}, s{S_ID}, 15")
    A.I(f"s_or_b32 s{S_ID}, s{S_ID}, s47")

    WF = 144
    wfrag = lambda db, kk: WF + (db*2+kk)*4
    tr = lambda dst, areg, off: f"ds_read_b64_tr_b16 {v(dst,2)}, v{areg} offset:{off}"
    def reads1(t, db):
        r = []
        for kk in range(2):
            off = (t % 3)*16384 + kk*8192
            r += [tr(wfrag(db,kk), 8+db, off), tr(wfrag(db,kk)+2, 8+db, off+1024)]
        return r
    accK = lambda db, kb: 16 + (db*4+kb)*4
    ST.stamp()
    A.I("s_waitcnt lgkmcnt(0)")
    if upfront == 7:
        A.I("s_mov_b64 exec, 1")
        for (va, sp) in ((3, 68), (250, 64), (3, 70), (250, 66)):
            A.I(f"global_load_dword v252, v{va}, s[{sp}:{sp+1}]"); vm.issue("pr")
        A.I("s_mov_b64 exec, -1")
    if itlb == 2:
        for w, lab in enumerate(["main_d", "main_s", "b_full_full_1fd", "b_None_diag_0epi"]):
            A.I(f"s_cmp_lg_u32 s{S_WAVE}, {w}")
            A.I(f"s_cbranch_scc1 {L(f'nsu{w}')}")
            A.I(f"s_call_b64 s[56:57], {L('w2_' + lab)}")
            A.label(L(f"nsu{w}"))
    A.I(vm.wait("x"))
    A.I("s_barrier")
    for x in ccopy(0): A.I(x); lg.issue("c0")
    for db in range(7):
        for x in reads1(0, db): A.I(x); lg.issue(f"R0_{db}")
    if upfront == 3:
        issue(wdma("k", 1, 8), "Wk1"); issue(cdma(1), "C1"); issue(prer, "pr")
    if upfront in (1, 4, 6):
        issue(wdma("k", 1, 8), "Wk1"); issue(cdma(1), "C1")
    elif upfront == 2:
        if prer_mode == 1: issue(prer, "pr")
        if tlbw:
            A.I("s_mov_b64 exec, 1")
            for (va, sp) in ((3, 68), (250, 64), (3, 70), (250, 66)):
                A.I(f"global_load_dword v252, v{va}, s[{sp}:{sp+1}]"); vm.issue("pr")
            A.I("s_mov_b64 exec, -1")
        elif prer_mode == 2:
            A.I("v_lshrrev_b32 v244, 1, v3"); A.I("v_and_b32 v244, 0xffffffc0, v244")
            A.I("buffer_load_dword v252, v244, s[20:23], 0 offen"); vm.issue("pr")
            A.I("buffer_load_dword v252, v3, s[24:27], 0 offen"); vm.issue("pr")
    vslot = lambda tt: [4,5,6,0,1,7,2,3][tt]
    p2addr = lambda G: (G//8, (G//2) % 4, G % 2)
    p2areg = lambda p, dbl, win: 240 + (p % 2)*4 + dbl*2 + win
    def reads2(G):
        p, ksg, dbl = p2addr(G)
        r = []
        for k4 in range(4):
            ks = ksg*4 + k4
            byte = vslot(ks//2)*16384 + (ks % 2)*8192
            dst = WF + (G % 4)*16 + k4*4
            r += [tr(dst, p2areg(p, dbl, byte//65536), byte % 65536), tr(dst+2, p2areg(p, dbl, byte//65536), byte % 65536 + 1024)]
        return r
    def p2setup(p):
        return [f"v_subrev_u32 v{p2areg(p,dbl,win)}, {114688 - win*65536}, v{8+2*p+dbl}" for dbl in range(2) for win in (0, 1)]
    def pubxn():
        assert vm.need("nonce") is None
        A.I(f"s_mov_b32 s47, 0")
        A.label(L("npoll"))
        A.I(f"v_readfirstlane_b32 s{S_NONCE}, v249")
        A.I("s_nop 0")
        A.I(f"s_cmp_lg_u32 s{S_NONCE}, 0")
        A.I(f"s_cbranch_scc1 {L('npollok')}")
        A.I("s_add_u32 s47, s47, 1")
        A.I("s_cmp_gt_u32 s47, 0x80000")
        A.I(f"s_cbranch_scc1 {L('npollok')}")
        A.I("s_sleep 2")
        A.I("global_load_dword v249, v248, s[12:13] sc1")
        A.I("s_waitcnt vmcnt(0)")
        A.I(f"s_branch {L('npoll')}")
        A.label(L("npollok"))
        A.I(f"s_add_u32 s{S_ID}, s{S_ID}, s{S_NONCE}")
        for x in set_flag(F_XN, 248, 249, 47, S_ID): A.I(x)
        vm.issue("fl")
    lastln = [None]
    kj0 = [(accK(0,kb), accK(1,kb), kb*4) for kb in range(2)]
    BAR = barpos
    for t in range(8):
        M = []
        for db in range(8):
            for kb in range(4):
                for kk in range(2):
                    c = v(accK(db,kb),4)
                    M.append(mf(c, v(wfrag(db,kk),4), a((kb*16+2*t+kk)*4,4), "0" if (t==0 and kk==0) else c))
        A.I(lg.wait([f"R{t}_0", f"c{t}", f"c{t}_0"]))
        if t in (0, 4) or fine: ST.stamp()
        if t < 6: ops = [(d, f"Wk{t+2}", pre) for pre, d in wdma("k", t+2, 7 + (t+2) % 3)] + [(d, f"C{t+2}_{i//2}", pre) for i, (pre, d) in enumerate(cdma(t+2))]
        else: ops = [(d, f"Wv{tt}", pre) for tt in range(3*(t-6), 3*(t-6)+3) for pre, d in wdma("v", tt, vslot(tt))]
        vg = [1, 5, 11, 15, 21, 25, 29, 33, 37, 41, 45, 51] if t < 7 else [1, 5, 11, 15, 21, 27, 31, 37, 43, 49, 55, 61]
        if t == 6: vg = [BAR+2 + 4*i for i in range(12)] if False else vg
        vpos = {vg[i]: op for i, op in enumerate(ops)}
        rq = []
        if t < 7:
            for db in range(7): rq += [(8*db+8, x, f"R{t+1}_{db}") for x in reads1(t+1, db)]
        else:
            for G in range(2): rq += [(16*G+16, x, f"S{G}") for x in reads2(G)]
        cpos = {}
        if t < 7:
            cc = ccopy(t+1)
            for kb in range(4):
                for kk in range(2): cpos[[47, 49, 53, 55, 57, 59, 61, 63][kb*2+kk]] = (cc[kk*4+kb], kb, kk)
        for g in range(64):
            db = g // 8; q = g % 8
            A.I(M[g])
            if g == BAR:
                A.I((vm.wait(f"Wk{t+1}" if t < 7 else "Wv1") or "s_waitcnt") + " lgkmcnt(0)"); lg.drain()
                A.I("s_barrier")
            if t == 1 and g == 52:
                A.I(f"buffer_load_dword v252, v3, s[28:31], 0 offen"); vm.issue("pr")
            if (t, g) in ((wot, 52), (wot, 54)) and not wofb:
                A.I("global_load_dword v252, v3, s[70:71]" if g == 52 else "global_load_dword v253, v250, s[66:67]"); vm.issue("pr")
            if t == wqt and g in (53, 57) and wqtouch and not wqg:
                A.I("global_load_dword v252, v3, s[68:69]" if g == 53 else "global_load_dword v253, v250, s[64:65]"); vm.issue("pr")
            if t == xst_t and g == 63:
                assert not lnq
                A.I(f"buffer_store_dwordx4 v[216:219], v240, {WS}, 0 offen sc1"); vm.issue("xs")
                A.I(f"buffer_store_dwordx4 v[220:223], v241, {WS}, 0 offen sc1"); vm.issue("xs")
                A.I("v_mov_b32 v248, 0")
                A.I("global_load_dword v249, v248, s[12:13] sc1"); vm.issue("nonce")
            if itlb == 1 and g == BAR-1 and t in (0, 1, 2, 3):
                WARM = [["main_d", "main_s", "b_full_full_1fd", "b_full_full_1"], ["b_diag_full_0", "b_full_diag_0", "b_None_diag_0epi", "b_diag_None_0st"],
                        ["b_full_diag_1", "b_full_None_0st", "b_None_full_0lastlo", "merge"], ["role0", "role2", "role3", "mhi"]][t]
                for w in range(4):
                    A.I(f"s_cmp_lg_u32 s{S_WAVE}, {w}")
                    A.I(f"s_cbranch_scc1 {L(f'nst{t}_{w}')}")
                    A.I(f"s_call_b64 s[{S_RET}:{S_RET+1}], {L('w_' + WARM[w])}")
                    A.label(L(f"nst{t}_{w}"))
            if g+1 in vpos and vpos[g+1][2]:
                for x in vpos[g+1][2]: A.I(x)
                if not (db == 0 and q % 2 == 0): A.I("s_nop 0") if False else None
            if q == 7 and db < 7: A.I(lg.wait(f"R{t}_{db+1}"))
            if g in (1, 3, 5): A.I(lg.wait(f"c{t}_{(g+1)//2}"))
            nds = 0
            if db == 0 and q % 2 == 0:
                A.I(reads1(t, 7)[q//2]); lg.issue(f"R{t}_7"); nds = 1
            if g > BAR and g % 2 == 0 or (g > BAR and g not in vpos and g not in cpos and rq and rq[0][0] <= g - 6):
                if rq and rq[0][0] <= g:
                    x = rq.pop(0); A.I(x[1]); lg.issue(x[2]); nds += 1
            if g in cpos:
                if cpos[g][2] == 0: A.I(vm.wait([f"C{t+1}_{cpos[g][1]}", f"C{t+1}"]))
                A.I(cpos[g][0]); lg.issue(f"c{t+1}_{cpos[g][1]}"); nds += 1
            if xst_t < 6 and t == xst_t + 2 and g == BAR + 1: pubxn()
            if t == 7 and g == 8:
                for x in p2setup(0): A.I(x)
                A.I(f"s_mov_b32 s52, {QSCALE}")
            if t == 7 and g in (18, 34, 50):
                s_ = (g-18)//16
                lnq += [f"v_mul_f32 v{r+k}, s52, v{r+k}" for kb in range(4) for r in (accK(2*s_,kb), accK(2*s_+1,kb)) for k in range(4)]
            if g in vpos:
                A.I(vpos[g][0]); vm.issue(vpos[g][1])
            nln = 0 if (g in vpos or nds > 1) else (1 if nds else 2)
            while nln and lnq:
                x = lnq[0]
                sp = ("row_ror" in x or "permlane" in x or "sqrt" in x or "rcp" in x)
                if sp and nln == 2 and lastln[0] == (t, g): break
                A.I(lnq.pop(0)); nln -= 1
                dep = sp or (lnq and ("row_ror" in lnq[0] or "permlane" in lnq[0]))
                lastln[0] = (t, g)
                if dep:
                    if lnq and ("row_ror" in lnq[0] or "permlane" in lnq[0]): A.I("s_nop 0")
                    break
        assert not rq, (t, len(rq))
    ST.stamp()
    def cvt_frag(r0, r1):
        return [f"v_cvt_pk_bf16_f32 v{r0}, v{r0}, v{r0+1}", f"v_cvt_pk_bf16_f32 v{r0+1}, v{r0+2}, v{r0+3}",
                f"v_cvt_pk_bf16_f32 v{r0+2}, v{r1}, v{r1+1}", f"v_cvt_pk_bf16_f32 v{r0+3}, v{r1+2}, v{r1+3}"]
    def store_frag(r0, f):
        return [f"s_add_u32 s47, s46, {(f>>2)*4096}", f"buffer_store_dwordx4 {v(r0,4)}, v{V_L16}, {WS}, s47 offen offset:{(f&3)*1024}{kvsc}"]
    accV = lambda p, dbl, kb: (208 + dbl*16 if p % 2 == 0 else (128, 96)[dbl]) + kb*4
    epi = {}
    kj = [(accK(2*s_,kb), accK(2*s_+1,kb), kb*4+s_) for s_ in range(4) for kb in range(4)]
    for i, job in enumerate(kj): epi.setdefault(i//2, []).append(job)
    sts = {}
    for i, job in enumerate(kj): sts[[0,1,2,3, 4,5,6,7, 8,10,12,14, 16,18,20,22][i]] = job
    for p in range(3):
        vj = [(accV(p,dbl,2*j), accV(p,dbl,2*j+1), 16 + j*8 + 2*p+dbl) for dbl in range(2) for j in range(2)]
        for i, job in enumerate(vj):
            G_ = (p+1)*8 + (1 + 2*i if p < 2 else i)
            epi.setdefault(G_, []).append(job); sts[G_] = job
    RB = [138240, 87040, 61440, 112640]
    QBASE = 87040
    def qwdma(t):
        slot = RB[t % 4]
        return [(rotk(t, 19, 44, S_TMP) + [f"s_add_u32 m0, s{S_W4K}, {slot}"], f"buffer_load_dwordx4 v4, s[{SRD_WQ}:{SRD_WQ+3}], s{S_TMP} offen lds")] + \
               [(None, f"buffer_load_dwordx4 v{4+j}, s[{SRD_WQ}:{SRD_WQ+3}], s{S_TMP} offen offset:{j*1024} lds") for j in range(1, 4)] + \
               [([f"s_add_u32 s{S_TMP}, s33, {t*64*2752}",
                  f"s_add_u32 m0, s35, {slot+16384}"], f"buffer_load_dwordx4 v16, s[{SRD_W1}:{SRD_W1+3}], s{S_TMP} offen lds"),
                (None, f"buffer_load_dwordx4 v17, s[{SRD_W1}:{SRD_W1+3}], s{S_TMP} offen offset:1152 lds")]
    def xload(t):
        r = []
        for qb in range(4):
            for kk in range(2):
                pre = None
                if qb == 0 and kk == 0: pre = rotk(t, 11, 34, S_TMP2)
                elif kk == 0: pre = [f"s_add_u32 s{S_TMP2}, s{S_TMP2}, 16384"]
                r.append((pre, f"buffer_load_dwordx4 {a((qb*16+2*t+kk)*4,4)}, v{V_L16}, {WS}, s{S_TMP2} offen offset:{kk*1024}{xsc}"))
        return r
    WR = 208
    def blk(n):
        t, c = n//11, n % 11
        return t, (c if t < 7 else (c+8) % 11)
    def breads(n):
        t, cb = blk(n)
        r = []
        so = RB[t % 4] - QBASE
        if so < 0: so = 0
        for kk in range(2):
            dst = WR + (n % 6)*8 + kk*4
            if cb < 8: off = so + kk*8192; areg = 8+cb; h2 = 1024
            else: off = so + kk*4608 + (cb-8)*32; areg = 18; h2 = 384
            r += [tr(dst, areg, off), tr(dst+2, areg, off+h2)]
        return r
    def bump(n):
        t, cb = blk(n)
        if cb <= 8 and t % 4 in (2, 3):
            areg = 8+cb if cb < 8 else 18
            return [f"v_subrev_u32 v{areg}, {WSLOT}, v{areg}" if t % 4 == 2 else f"v_add_u32 v{areg}, {WSLOT}, v{areg}"]
        return []
    q_setup_s = [
        f"s_load_dwordx2 s[4:5], s[0:1], {KA['wq']}", f"s_load_dwordx4 s[8:11], s[0:1], {KA['w1']}",
        f"s_lshl_b32 s{S_T2}, s{S_T}, 1",
        f"s_lshr_b32 s{S_STRM}, s{S_WAVE}, 1", f"s_lshl_b32 s{S_STRM}, s{S_STRM}, 16",
        f"s_and_b32 s{S_TMP}, s{S_WAVE}, 1", f"s_lshl_b32 s{S_TMP}, s{S_TMP}, 2",
        f"s_lshr_b32 s{S_TMP2}, s{S_WAVE}, 1", f"s_xor_b32 s{S_TMP2}, s{S_TMP2}, s{S_WAVE}", f"s_and_b32 s{S_TMP2}, s{S_TMP2}, 1", f"s_lshl_b32 s{S_TMP2}, s{S_TMP2}, 2",
        f"s_sub_u32 s{S_QA}, 15, s{S_T}", f"s_lshl_b32 s{S_QA}, s{S_QA}, 3", f"s_add_u32 s{S_QA}, s{S_QA}, s{S_TMP2}",
        f"s_lshl_b32 s{S_Q0}, s{S_T}, 3", f"s_add_u32 s{S_Q0}, s{S_Q0}, s{S_TMP}",
        f"s_cmp_lt_u32 s{S_WAVE}, 2", f"s_cselect_b32 s{S_Q0}, s{S_QA}, s{S_Q0}",
        f"s_lshl_b32 s{S_KVB}, s{S_H}, 20", f"s_add_u32 s{S_KVB}, s{S_KVB}, s{S_W4K}", f"s_add_u32 s{S_KVB}, s{S_KVB}, {WS_KV}",
        f"s_and_b32 s7, s{S_H}, 1", "s_lshl_b32 s6, s7, 5", "s_lshl_b32 s7, s7, 1",
        f"s_mul_i32 s32, s{S_H}, 96", f"s_mul_i32 s33, s{S_WAVE}, {16*2752}", f"s_add_u32 s33, s33, s32",
        f"s_lshl_b32 s34, s{S_Q0}, 14", f"s_add_u32 s34, s34, {xdiag}", f"s_mul_i32 s35, s{S_WAVE}, 2304",
        "s_add_u32 s53, s32, s6", "s_lshl_b32 s6, s6, 1", "s_sub_u32 s54, s32, s6"]
    q_setup_v = [
        f"v_mul_u32_u24 v20, 43, v1", "v_lshrrev_b32 v20, 8, v20", "v_mul_u32_u24 v21, 6, v20", "v_sub_u32 v21, v1, v21",
        "v_add_u32 v21, s7, v21", "v_subrev_u32 v22, 6, v21", "v_min_u32 v21, v21, v22",
        "v_mul_u32_u24 v16, 2752, v20", "v_lshl_add_u32 v16, v21, 4, v16", "v_cmp_gt_u32 vcc, 48, v1", f"v_mov_b32 v20, {OOB}",
        "v_lshrrev_b32 v21, 4, v1", "v_cndmask_b32 v16, v20, v16, vcc", f"v_add_u32 v17, {8*2752-1152}, v16",
        "v_mul_u32_u24 v18, 1152, v21", "v_bfe_u32 v22, v1, 2, 2", "v_mul_u32_u24 v22, 96, v22", "v_add_u32 v18, v18, v22",
        "v_and_b32 v22, 3, v1", "v_lshl_add_u32 v18, v22, 3, v18", f"v_add_u32 v18, {QBASE+16384}, v18",
        "v_lshlrev_b32 v19, 3, v21",
        "v_and_b32 v24, 31, v1", "v_lshlrev_b32 v24, 7, v24"]
    def srd_list(dst, ptr, nbytes):
        return [f"s_mov_b32 s{dst}, s{ptr}", f"s_mov_b32 s{dst+1}, s{ptr+1}", f"s_mov_b32 s{dst+2}, {nbytes}", f"s_mov_b32 s{dst+3}, 0x20000"]
    extra = {}
    def put(G, g, items): extra.setdefault((G, g), []).extend(items)
    for i, x in enumerate(q_setup_s): put(2 + i//12, (4, 5, 6, 8, 9, 10, 11, 12, 13, 14, 14, 14)[i % 12] if i < 12 else (0, 1, 2, 3, 4, 5, 8, 9, 10, 11, 12, 13)[i % 12], [x])
    for i, x in enumerate(q_setup_v): put(5 + i//10, (1, 3, 5, 5, 9, 9, 11, 11, 13, 13)[i % 10], [x])
    put(5, 15, ["s_waitcnt lgkmcnt(0)"])


    for i, x in enumerate(srd_list(SRD_WQ, 4, 4*MB) + srd_list(SRD_W1, 8, 512*2752) + srd_list(SRD_B1, 10, 2752)): put(6, i, [x])
    put(8, 1, [f"s_lshl_b32 s{S_TMP}, s{S_Q0}, 10", f"s_add_u32 s{S_TMP}, s{S_TMP}, {flag_base(F_XN)}"])
    put(8, 3, [f"v_add_u32 v24, s{S_TMP}, v24"])
    put(pxg, 13, [(f"buffer_load_dword v25, v24, {WS}, 0 offen sc1", "pollx")])
    for fb in range(3):
        put(8, 7+2*fb, [(f"buffer_load_dwordx2 v[{26+2*fb}:{27+2*fb}], v19, s[{SRD_B1}:{SRD_B1+3}], s{53 if fb < 2 else 54} offen offset:{fb*32}", "b")])
    def put_ops(G0, g0, lst, tag, step=2):
        G, g = G0, g0
        for pre, x in lst:
            if pre: put(G, g-1, [("P", y) for y in pre])
            put(G, g, [(x, tag)])
            g += step
            while g > 15: G += 1; g -= 16
        return G, g
    if tlb:
        tl = [f"s_mul_i32 s39, s{S_Q0}, 49152", f"s_add_u32 s39, s39, {WS_H}",
              f"s_lshl_b32 s39, s{S_Q0}, 17", f"s_add_u32 s39, s39, {WS_CTX}",
              f"s_lshl_b32 s39, s{S_QA}, 17", f"s_add_u32 s39, s39, {WS_CTX}",
              "s_lshl_b32 s39, s2, 15", f"s_add_u32 s39, s39, {WS_PART}"]
        for i in range(4):
            put(tlb, 4*i, [tl[2*i], tl[2*i+1]])
            put(tlb, 4*i+1, [(f"buffer_load_dword v252, v1, {WS}, s39 offen", "pr")])
    put_ops(0, 1, wdma("v", 6, vslot(6)), "Wv6", 4)
    put_ops(1, 1, wdma("v", 7, vslot(7)), "Wv7", 4)
    cp2 = code_pf(32768, 32768, 32, 44)
    put(9, 1, cp2[:3]); put(9, 3, cp2[3:6]); put(9, 5, [cp2[6]]); put(9, 7, [(cp2[7], "pf2")])
    put(9, 11, ["v_add_u32 v33, 0x8000, v32"]); put(9, 13, [("global_load_dwordx4 v[44:47], v33, s[62:63]", "pf2")])
    if wqg:
        put(wqg+1, 1, [("global_load_dword v252, v3, s[68:69]", "pr")]); put(wqg+1, 5, [("global_load_dword v253, v250, s[64:65]", "pr")])
    put_ops(pxc+9, 3, qwdma(0), "W0", 6)
    XS = lambda i: (64, 48, 32, 80)[i//4] + (i % 4)*4
    xs01 = [(pre, x.replace(x.split()[1], v(XS(i), 4) + ",")) for i, (pre, x) in enumerate(xload(0) + xload(1))]
    put_ops(pxc, 7, xs01, "X01", 8)
    for nb in range(8): put(23, 1+2*nb, [f"v_subrev_u32 v{8+nb}, {114688-QBASE}, v{8+nb}"])
    put(27, 0, ["WAITX"])
    mv = []
    for i in range(16):
        t_, qb, kk = i//8, (i//2) % 4, i % 2
        mv += [f"v_accvgpr_write_b32 a{(qb*16+2*t_+kk)*4+r}, v{XS(i)+r}" for r in range(4)]
    for i, x in enumerate(mv): put(27 + i//16, 1 + 2*((i % 16)//2), [x])
    put_ops(28, 3, qwdma(1), "W1", 4)
    put_ops(30, 1, xload(2), "X2", 4)
    for G in range(32):
        p, ksg, dbl = p2addr(G)
        M = []
        for kb in range(4):
            for k4 in range(4):
                ks = ksg*4+k4
                c = v(accV(p,dbl,kb),4)
                M.append(mf(c, a((kb*16+ks)*4,4), v(WF + (G%4)*16 + k4*4,4), "0" if ks == 0 else c))
        w = lg.wait(f"S{G}")
        if w: A.I(w)
        if G in (4, 12, 20, 27) and not fine or (fine and G % 4 == 0 and G > 0): ST.stamp()
        if G == pxc:
            A.I(vm.wait(["pollx", "b"]))
            poll_check(24, 25, S_TMP, vmask=23)
            for fb in range(3):
                for k in range(2):
                    A.I(f"v_lshlrev_b32 v{32+fb*4+2*k}, 16, v{26+2*fb+k}")
                    A.I(f"v_and_b32 v{33+fb*4+2*k}, 0xffff0000, v{26+2*fb+k}")
            for i in range(12): A.I(f"v_mov_b32 v{20+i}, v{32+i}")
        if G in (0, 2, 5):
            A.I(vm.wait({0: "Wv3", 2: "Wv5", 5: "Wv7"}[G]))
            A.I("s_barrier")
        if G == 0 and xst_t == 6: pubxn()
        rsched = {0: [2], 1: [3], 2: [4], 3: [5], 4: [], 5: [6, 7], 6: [8, 9]}.get(G, [G+3] if G+3 < 32 else [])
        rl = [(x, f"S{G2}") for G2 in rsched for x in reads2(G2)]
        if G == 28:
            A.I(vm.wait("W0"))
            A.I("s_barrier")
        jobs = epi.get(G, [])
        ml = []
        if G < 8:
            if G == 0: lnq += [f"v_mul_f32 v{r+k}, s52, v{r+k}" for kb in range(4) for r in (accK(6,kb), accK(7,kb)) for k in range(4)]
            ml = lnq
            while len(lnq) > 128 - 16*(G+1): A.I(lnq.pop(0)); print("flush mul", G)
        cv = []; st = {}
        for i, (r0, r1, f) in enumerate(jobs): cv += cvt_frag(r0, r1)
        if G in sts: st[15 if G < 8 else 11] = store_frag(sts[G][0], sts[G][2])
        for g in range(16):
            A.I(M[g])
            ex = extra.get((G, g), [])
            for x in ex:
                if x == "WAITX": A.I(vm.wait("X01"))
                elif isinstance(x, tuple) and x[0] == "P": A.I(x[1])
                elif isinstance(x, str) and x.startswith("s_"):
                    A.I(x)
                    if x == "s_waitcnt lgkmcnt(0)": lg.drain()
            if g in st: A.I(st[g][0])
            if rl and g not in st and (g % 2 == 0 or len(rsched) > 1):
                for _ in range(2 if len(rl) > 15 - g and len(rsched) > 1 else 1):
                    if rl:
                        x = rl.pop(0); A.I(x[0]); lg.issue(x[1])
            if G >= 29 and g % 2 == 0:
                n = (G-29)*2 + g//8
                if n < 5: A.I(breads(n)[(g//2) % 4]); lg.issue(f"R{n}")
            if g in st:
                A.I(st[g][1]); vm.issue("st")
            for x in ex:
                if isinstance(x, tuple) and x[0] != "P": A.I(x[0]); vm.issue(x[1])
                elif isinstance(x, str) and not x.startswith("s_") and x != "WAITX": A.I(x)
            if g % 2 == 1 and g not in st:
                for _ in range(0 if any(isinstance(x, tuple) and x[0] != 'P' for x in ex) else 2):
                    if ml: A.I(ml.pop(0))
            if len(jobs) > 1:
                if g % 2 == 0: A.I(cv[g//2])
            elif len(jobs) == 1 and g % 2 == 0 and g < 8:
                A.I(cv[g//2])
            if (G+4) % 8 == 0 and G+4 < 32 and g in (1, 3, 5, 9):
                A.I(p2setup((G+4)//8)[(1,3,5,9).index(g)])
        assert not rl, G
    A.I("s_barrier")
    ST.stamp()
    A.label(L("qgemm"))
    def kvdma(tile, voff, ldsoff):
        return [([f"s_add_u32 s{S_TMP}, s{S_KVB}, {tile*32768+voff}", f"s_add_u32 m0, s{S_W4K}, {ldsoff}"] if j == 0 else None,
                 f"buffer_load_dwordx4 v{V_L16}, {WS}, s{S_TMP} offen offset:{j*1024} sc1 lds") for j in range(4)]
    xt = {t: f"X{t}" for t in range(8)}
    pend = []
    gel = []
    for qb in range(4):
        for fb in range(3):
            x0 = accF(fb, qb); T = [20+r for r in range(4)]
            for r in range(4): gel.append(f"v_mul_f32 v{T[r]}, v{x0+r}, v{x0+r}")
            for r in range(4): gel.append(f"v_fma_f32 v{T[r]}, v{T[r]}, s32, v28")
            for r in range(4): gel.append(f"v_mul_f32 v{T[r]}, v{T[r]}, v{x0+r}")
            for r in range(4): gel.append(f"v_exp_f32 v{T[r]}, v{T[r]}")
            for r in range(4): gel.append(f"v_add_f32 v{T[r]}, 1.0, v{T[r]}")
            for r in range(4): gel.append(f"v_rcp_f32 v{T[r]}, v{T[r]}")
            for r in range(4): gel.append(f"v_mul_f32 v{x0+r}, v{x0+r}, v{T[r]}")
            d0 = accF(0, qb) + 2*fb if fb < 2 else x0
            gel.append(f"v_cvt_pk_bf16_f32 v{d0}, v{x0}, v{x0+1}")
            gel.append(f"v_cvt_pk_bf16_f32 v{d0+1}, v{x0+2}, v{x0+3}")
            if fb == 1:
                gel.append(f"s_add_u32 s35, s34, {qb*49152}")
                gel.append(f"buffer_store_dwordx4 {v(accF(0,qb),4)}, v29, {WS}, s35 offen sc1")
            if fb == 2:
                gel.append(f"buffer_store_dwordx2 {v(x0,2)}, v30, {WS}, s35 offen sc1")
    qfin = []
    for s_ in range(4):
        grp = []
        for qb in range(4):
            r0, r1 = accQ(2*s_, qb), accQ(2*s_+1, qb)
            grp += cvt_frag(r0, r1)
            grp.append(f"ds_write_b128 v27, {v(r0,4)} offset:{(qb*4+s_)*1024}")
        qfin.append(grp)
    vq = []; sq = []
    def take(budget):
        while budget > 0 and (vq or (gel and gel_ok[0])):
            src = vq if vq else gel
            x = src[0]
            cost = 2 if ("v_exp" in x or "v_rcp" in x or "buffer" in x or "ds_write" in x) else (0 if x.startswith("s_") else 1)
            if cost > budget: break
            A.I(src.pop(0)); budget -= cost
            if "buffer" in x: vm.issue("hs")
            if "ds_write" in x: lg.issue("qs")
    gel_ok = [False]
    kq = [(rdfrag(base+4*s_, V_K, kb*4+s_), f"k{kb}") for kb, base in enumerate((KA_, VA, VB)) for s_ in range(4)]
    pfq = []
    slotok = lambda gg, t: (gg % 6 == 1) if qeven else (gg % 4 == 1)
    tail = []
    for dbl in (1, 0):
        for j in range(2):
            r0, r1 = accV(3,dbl,2*j), accV(3,dbl,2*j+1)
            tail.append((cvt_frag(r0, r1), store_frag(r0, 16 + j*8 + 6+dbl)))
    for n in range(88):
        t, cb = blk(n)
        c_ = n % 11
        if n == 66:
            for x in [f"s_mov_b32 s32, {G2}", f"s_mov_b32 s33, {G1}", "v_mov_b32 v28, s33",
                      f"s_mul_i32 s34, s{S_Q0}, 49152", f"s_add_u32 s34, s34, {WS_H}",
                      f"s_mul_i32 s47, s{S_H}, 3", "s_add_u32 s35, s47, 1", "s_lshr_b32 s35, s35, 1", "s_lshl_b32 s35, s35, 10",
                      f"v_add_u32 v29, s35, v{V_L16}",
                      f"s_and_b32 s47, s{S_H}, 1", f"s_mul_i32 s47, s47, {8-2048}", "s_add_u32 s47, s47, 1024", "v_add_u32 v30, s47, v29",
                      "s_lshl_b32 s61, s2, 1", f"s_lshr_b32 s47, s{S_WAVE}, 1", f"s_xor_b32 s47, s47, s{S_WAVE}", "s_and_b32 s47, s47, 1",
                      "s_add_u32 s61, s61, s47", "s_lshl_b32 s61, s61, 10", f"s_add_u32 s61, s61, {WS_NEGM - 16384}",
                      "s_lshl_b32 s47, s47, 14", "s_add_u32 s47, s47, 131072", f"v_add_u32 v31, s47, v{V_L16}",
                      f"s_cmp_lt_u32 s{S_WAVE}, 2", f"s_cselect_b32 s47, s47, 0x10000", f"v_add_u32 v27, s47, v{V_L16}"]: A.I(x)
        if n == 68:
            sq += [f"s_mov_b32 s{S_I}, -1", f"s_add_u32 s{S_E}, s{S_T2}, 2", f"s_add_u32 s{S_C}, s{S_T2}, 4", f"s_sub_u32 s{S_DG}, 30, s{S_T2}", f"s_mov_b32 s{S_FAIL}, 0"] + \
                  tile_calc(S_K0, 3, 0, 0) + tile_calc(S_V0, 2, 0, 16384) + lds_calc() + tile_calc(S_K1, 3, 1, 0) + tile_calc(S_V1, 2, 1, 16384) + [f"s_mov_b32 s{S_I}, 0"]
            vq += ["v_and_b32 v24, 15, v1", "v_lshrrev_b32 v25, 4, v1", "v_lshlrev_b32 v25, 2, v25"]
            for r in range(4):
                vq += [f"v_add_u32 v26, {r}, v25", f"v_cmp_le_u32 s[{S_MASK+2*r}:{S_MASK+2*r+1}], v26, v24"]
            vq += ["v_and_b32 v24, 3, v1", "v_cmp_eq_u32 vcc, 0, v24", "v_mov_b32 v25, 0x3f803f80", "v_nop", "v_cndmask_b32 v24, 0, v25, vcc"]
            vq += [f"v_accvgpr_write_b32 a{ONES+i}, v24" for i in range(4)]
        if t == 7:
            if c_ == 4:
                gel_ok[0] = True
                A.I(vm.wait("KV0"))
                A.I("s_barrier")
                A.I(f"v_mov_b32 v{V_K}, v{V_L16}")
            if c_ >= 6 and c_ % 2 == 0: vq += qfin[(c_-6)//2]
        if c_ == 0:
            w = vm.wait(xt[t])
            if w: A.I(w)
            if t <= 5: pend += [(p, x, f"W{t+2}") for p, x in qwdma(t+2)]
            if t <= 4: pend += [(p, x, f"X{t+3}") for p, x in xload(t+3)]
            if t == 0:
                A.I(f"s_and_b32 s{S_TMP}, s2, 31")
                A.I(f"s_lshl_b32 s{S_TMP}, s{S_TMP}, 9")
                A.I(f"s_add_u32 s{S_TMP}, s{S_TMP}, {flag_base(F_XN)}")
                A.I("v_bfe_u32 v3, v1, 2, 3")
                A.I("v_lshlrev_b32 v3, 14, v3")
                A.I("v_and_b32 v19, 3, v1")
                A.I("v_lshl_add_u32 v3, v19, 7, v3")
                A.I(f"v_add_u32 v3, s{S_TMP}, v3")
                A.I(f"buffer_load_dword v19, v3, {WS}, 0 offen sc1"); vm.issue("pollid")
            if t == 5:
                cp3 = code_pf(34816, 65536, 3, 20)
                for x in cp3: A.I(x)
                vm.issue("pf3")
            if t == 5: pend += [(p, x, "KV0") for p, x in kvdma(0, 0, 0) + kvdma(1, 0, 16384)]
            if t == pft:
                for i in range(4): A.I(f"v_accvgpr_write_b32 a{i}, -1")
                for x in [f"s_lshl_b32 s64, s2, 2", f"s_add_u32 s64, s64, s{S_WAVE}", f"s_lshl_b32 s64, s64, 13", f"s_add_u32 s64, s64, {WS_PART}", f"s_add_u32 s65, s64, 4096"]: A.I(x)
                pfq += [f"buffer_store_dwordx4 a[0:3], v{V_L16}, {WS}, s{64+i//4} offen offset:{(i%4)*1024} sc1" for i in range(8)]
            if t == 6: pend += [(p, x, "KV0") for p, x in kvdma(0, 16384, 32768)]
            if t == 3:
                A.I(f"v_add_u32 v3, {flag_base(F_KV) - flag_base(F_XN)}, v3")
                A.I(f"buffer_load_dword v19, v3, {WS}, 0 offen sc1"); vm.issue("pollkv")
            if t == 4:
                A.I(vm.wait("pollkv"))
                poll_check(3, 19, 47)
        w = lg.wait(f"R{n}")
        if w: A.I(w)
        if c_ == 0 and (t in (2, 4, 6) or (fine and t > 0)): ST.stamp()
        if c_ == 6 and t < 7:
            tags = [f"W{t+1}"] + (["st"] if t == 1 else [])
            A.I(vm.wait(tags))
            A.I("s_barrier")
            if t == 1:
                assert vm.need("pollid") is None
                poll_check(3, 19, 47, vmask=31)
                A.I(f"v_cmp_ne_u32 vcc, s{S_ID}, v19")
                A.I(f"s_cbranch_vccz {L('samexcd')}")
                A.I("buffer_wbl2 sc1")
                A.I("s_waitcnt vmcnt(0)")
                A.label(L("samexcd"))
                for x in set_flag(F_KV, 31, 19, 47): A.I(x)
                vm.issue("fl")
        nx = n+5
        rds = breads(nx) if nx < 88 else []
        if nx < 88:
            for x in bump(nx): A.I(x)
        i = 0
        for qb in range(4):
            for kk in range(2):
                if cb < 8: d = v(accQ(cb, qb), 4); c0 = "0"
                else: d = v(accF(cb-8, qb), 4); c0 = v(20+(cb-8)*4, 4)
                A.I(mf(d, v(WR + (n % 6)*8 + kk*4, 4), a((qb*16+2*t+kk)*4, 4), c0 if (t == 0 and kk == 0) else d))
                if i % 2 == 0:
                    if pend and pend[0][0] and slotok(c_*8 + i + 1, t):
                        for y in pend[0][0]: A.I(y)
                        pend[0] = (None,) + pend[0][1:]
                        if not rds: A.I("s_nop 0")
                    if rds: A.I(rds[i//2]); lg.issue(f"R{nx}")
                elif pend and slotok(c_*8 + i, t) and not pend[0][0]:
                    p, x, tag = pend.pop(0)
                    A.I(x); vm.issue(tag)
                if pfq and i == 3 and n % pfs == 0:
                    A.I(pfq.pop(0)); vm.issue("pfl")
                tn = {1: 0, 2: 1, 4: 2, 5: 3}.get(n)
                if tn is not None:
                    if i % 2 == 0: A.I(tail[tn][0][i//2])
                    if i == 7:
                        for x in tail[tn][1]: A.I(x)
                        vm.issue("st")
                if n >= 83 and i % 2 == 0 and kq:
                    x = kq.pop(0); A.I(x[0]); lg.issue(x[1])
                if n >= 68:
                    if sq: A.I(sq.pop(0))
                    take(1 if (i % 2 == 0 and (rds or n < 86)) else (0 if (i == 3 and n % pfs == 0 and n < 55 + 8*pfs) else 2))
                i += 1
    assert not pend and not pfq
    assert not sq
    qrest = vq + qfin[3]
    k2.WTOUCH[:] = ["s_lshl_b32 s7, s2, 2", f"s_add_u32 s7, s7, s{S_WAVE}", "v_and_b32 v18, 31, v1", "v_lshlrev_b32 v18, 7, v18", "v_min_u32 v17, 0x500, v18",
              "s_lshl_b32 s33, s7, 12", "v_add_u32 v18, s33, v18", "s_mul_i32 s7, s7, 1408", "v_add_u32 v17, s7, v17", f"v_min_u32 v17, {1376*1024-4}, v17",
              "global_load_dword v4, v18, s[70:71]", "global_load_dword v4, v17, s[66:67]"]
    k2.WOFB[0] = wofb
    if wofb: k2.WTOUCH[:] = k2.WTOUCH[:-2]
    elif not wotouch: k2.WTOUCH[:] = []
    ST.stamp()
    SP, SRT, SCT, SQH, SKH, SBB, SBS, SNV, SWB, SM0 = 64, 65, 66, 67, 68, 69, 70, 71, 4, 5
    T0, T1, T2 = 6, 7, 35
    SEARLY = 58
    WW, SX, SO, SB2 = 20, 24, 28, 12
    vm4 = Cnt("vmcnt", 63)
    def slot4(u):
        return ([2, 0, 1, 3][(u-1) % 4] if u > 0 else 2)*16384
    def w4dma(u):
        r = []
        for i in range(8):
            pre = None
            if i % 4 == 0:
                m0 = f"s_add_u32 m0, s{SM0}, {slot4(u) + (i//4)*4096}" if u != 1 else f"s_add_u32 m0, s39, {(i//4)*4096}"
                pre = [f"s_add_u32 s{T0}, s{SWB}, {u*65536 + (i//4)*16384}", m0]
            r.append((pre, f"buffer_load_dwordx4 v{4+i%4}, s[{WW}:{WW+3}], s{T0} offen offset:{(i%4)*1024} lds"))
        return r
    def issue4(lst, tag):
        for pre, x in lst:
            if pre:
                for y in pre: A.I(y)
                if "lds" in x: A.I("s_nop 0")
            A.I(x); vm4.issue(tag)
    Bf = lambda u, qb, kk: 128 + (u % 4)*32 + (qb*2+kk)*4
    def bload(u):
        r = []
        for qb in range(4):
            for kk in range(2):
                ks = 2*u+kk
                pre = []
                if qb == 0 and kk == 0: pre.append(f"s_add_u32 s{T1}, s{SBB}, {(ks>>2)*4096}")
                elif kk == 0: pre.append(f"s_add_u32 s{T1}, s{T1}, s{SBS if qb != 2 else 48}")
                so = T1
                if ks >= 18:
                    pre += [f"s_cmp_gt_u32 s{SNV}, {ks}", f"s_cselect_b32 s{T2}, s{T1}, {OOB}"]
                    so = T2
                r.append((pre or None, f"buffer_load_dwordx4 {a(Bf(u,qb,kk),4)}, v{V_L16}, {WS}, s{so} offen offset:{(ks&3)*1024}{csc}"))
        return r
    def oproj_setup(stage):
        if stage == 0:
            Z = Asm()
            Z.I(f"s_load_dwordx2 s[8:9], s[0:1], {KA['wo']}")
            Z.I(f"s_load_dwordx4 s[12:15], s[0:1], {KA['w2']}")
            Z.I(f"s_load_dwordx2 s[24:25], s[0:1], {KA['x']}")
            Z.I(f"s_load_dwordx2 s[28:29], s[0:1], {KA['out']}")
            Z.I(f"s_and_b32 s{SP}, s2, 3")
            Z.I(f"s_lshr_b32 s{T0}, s2, 3")
            Z.I(f"s_and_b32 s{SCT}, s{T0}, 3")
            Z.I(f"s_lshr_b32 s{SRT}, s{T0}, 2")
            Z.I(f"s_and_b32 s{T1}, s2, 4")
            Z.I(f"s_lshl_b32 s{T1}, s{T1}, 1")
            Z.I(f"s_add_u32 s{SRT}, s{SRT}, s{T1}")
            Z.I(f"s_and_b32 s{SQH}, s{S_WAVE}, 1")
            Z.I(f"s_lshr_b32 s{SKH}, s{S_WAVE}, 1")
            Z.I(f"s_lshl_b32 s{T0}, s{SP}, 1")
            Z.I(f"s_add_u32 s{T0}, s{T0}, s{SKH}")
            Z.I(f"s_cmp_eq_u32 s{T0}, 5")
            Z.I(f"s_cselect_b32 s{SNV}, 18, 22")
            Z.I(f"s_sub_u32 s{T1}, 22, s{SKH}")
            Z.I(f"s_cmp_eq_u32 s{SP}, 3")
            Z.I(f"s_cselect_b32 s{SNV}, s{T1}, s{SNV}")
            Z.I(f"s_cselect_b32 s{T0}, s{SKH}, s{T0}")
            Z.I(f"s_mov_b32 s{T2}, 131072")
            Z.I(f"s_cselect_b32 s{SBS}, 49152, s{T2}")
            Z.I(f"s_mov_b32 s{T2}, {WS_CTX}")
            Z.I(f"s_cselect_b32 s{SBB}, {WS_H}, s{T2}")
            Z.I(f"s_mul_i32 s{T0}, s{T0}, 22")
            Z.I(f"s_lshl_b32 s{T1}, s{SRT}, 3")
            Z.I(f"s_lshl_b32 s{T2}, s{SQH}, 2")
            Z.I(f"s_add_u32 s{T1}, s{T1}, s{T2}")
            Z.I(f"s_lshl_b32 s{T2}, s{SKH}, 1")
            Z.I(f"s_add_u32 s{T1}, s{T1}, s{T2}")
            Z.I(f"s_lshl_b32 s49, s{T1}, 14")
            Z.I(f"s_mul_i32 s48, s{SKH}, -4")
            Z.I(f"s_add_i32 s48, s48, 1")
            Z.I(f"s_mul_i32 s48, s48, s{SBS}")
            Z.I(f"s_mul_i32 s{T1}, s{T1}, s{SBS}")
            Z.I(f"s_add_u32 s{SBB}, s{SBB}, s{T1}")
            Z.I(f"s_lshl_b32 s{T1}, s{T0}, 10")
            Z.I(f"s_add_u32 s{SBB}, s{SBB}, s{T1}")
            Z.I(f"s_add_u32 s{T0}, s{T0}, s{SQH}")
            Z.I(f"s_lshl_b32 s{SWB}, s{T0}, 15")
            Z.I(f"s_lshl_b32 s{T1}, s{SCT}, 8")
            Z.I(f"s_add_u32 s{SWB}, s{SWB}, s{T1}")
            Z.I(f"s_lshl_b32 s{SM0}, s{SKH}, 16")
            Z.I(f"s_lshl_b32 s{T1}, s{SQH}, 13")
            Z.I(f"s_add_u32 s{SM0}, s{SM0}, s{T1}")
            Z.I("v_and_b32 v16, 15, v1")
            Z.I("v_lshrrev_b32 v17, 4, v1")
            Z.I("v_lshrrev_b32 v18, 1, v16")
            Z.I("v_xor_b32 v18, v18, v17")
            Z.I("v_and_b32 v19, 1, v16")
            Z.I("v_lshlrev_b32 v19, 4, v19")
            Z.I("v_lshl_add_u32 v19, v17, 10, v19")
            Z.I("v_lshl_add_u32 v4, v18, 5, v19")
            Z.I("v_xor_b32 v18, 4, v18")
            Z.I("v_lshl_add_u32 v5, v18, 5, v19")
            Z.I(f"v_add_u32 v6, {2*3072}, v4")
            Z.I(f"v_add_u32 v7, {3*3072}, v5")
            Z.I(f"v_add_u32 v5, {3072}, v5")
            Z.I("s_waitcnt lgkmcnt(0)")
            Z.I(f"s_cmp_eq_u32 s{SP}, 3")
            Z.I(f"s_cselect_b32 s{WW}, s12, s8")
            Z.I(f"s_cselect_b32 s{WW+1}, s13, s9")
            Z.I(f"s_mov_b32 s{T1}, {4*MB}")
            Z.I(f"s_cselect_b32 s{WW+2}, {1376*1024}, s{T1}")
            Z.I(f"s_mov_b32 s{WW+3}, 0x20000")
            Z.I(f"s_mov_b32 s12, s14"); Z.I(f"s_mov_b32 s13, s15"); Z.I(f"s_mov_b32 s14, 1024"); Z.I(f"s_mov_b32 s15, 0x20000")
            Z.I(f"s_mov_b32 s26, {2*MB}"); Z.I("s_mov_b32 s27, 0x20000"); Z.I(f"s_mov_b32 s30, {2*MB}"); Z.I("s_mov_b32 s31, 0x20000")
            Z.I(f"s_lshl_b32 s{T1}, s{SKH}, 14")
            Z.I(f"s_lshl_b32 s{T2}, s{SQH}, 13")
            Z.I(f"s_add_u32 s{T1}, s{T1}, s{T2}")
            Z.I(f"s_add_u32 s39, s{T1}, 131072")
            for pre, x in w4dma(0):
                for y in (pre or []): Z.I(y)
                if pre: Z.I("s_nop 0")
                Z.I(x)
            Z.I("v_bfe_u32 v16, v1, 2, 2")
            Z.I("v_lshl_add_u32 v18, v17, 2, v16")
            Z.I("v_lshlrev_b32 v18, 8, v18")
            Z.I("v_and_b32 v19, 3, v1")
            Z.I("v_lshl_add_u32 v18, v19, 3, v18")
            Z.I(f"s_lshl_b32 s{T1}, s{SKH}, 16")
            Z.I(f"v_add_u32 v18, s{T1}, v18")
            Z.I("v_and_b32 v19, 1, v17")
            Z.I("v_lshl_add_u32 v16, v19, 2, v16")
            Z.I(f"s_mul_i32 s{T1}, s{SKH}, {16384-65536}")
            Z.I(f"s_add_u32 s{T1}, s{T1}, 131072")
            for nb in range(8):
                Z.I(f"v_xor_b32 v19, {nb}, v16")
                Z.I(f"v_lshl_add_u32 v{8+nb}, v19, 5, v18")
                Z.I(f"v_add_u32 v{20+nb}, s{T1}, v{8+nb}")
            Z.I(f"s_mul_i32 s{T0}, s{SP}, 11")
            Z.I(f"s_add_u32 s{T1}, s{T0}, 10")
            Z.I(f"s_min_u32 s{T1}, s{T1}, 31")
            Z.I(f"s_cmp_eq_u32 s{SP}, 3")
            Z.I(f"s_cselect_b32 s{T0}, 0, s{T0}")
            Z.I(f"s_cselect_b32 s{T1}, 28, s{T1}")
            Z.I("v_and_b32 v28, 31, v1")
            Z.I(f"v_add_u32 v28, s{T0}, v28")
            Z.I(f"v_cmp_ge_u32 s[{SEARLY}:{SEARLY+1}], s{T1}, v28")
            Z.I(f"v_min_u32 v28, s{T1}, v28")
            Z.I("v_lshrrev_b32 v29, 2, v28")
            Z.I("v_and_b32 v28, 3, v28")
            Z.I("v_lshl_add_u32 v28, v28, 3, v29")
            Z.I("v_lshlrev_b32 v28, 9, v28")
            Z.I(f"s_sub_u32 s{T0}, 15, s{SRT}")
            Z.I(f"s_min_u32 s{T0}, s{T0}, s{SRT}")
            Z.I(f"s_lshl_b32 s{T0}, s{T0}, 14")
            Z.I(f"s_lshl_b32 s{T1}, s{SQH}, 7")
            Z.I(f"s_add_u32 s{T0}, s{T0}, s{T1}")
            Z.I(f"s_cmp_lt_u32 s{SRT}, 8")
            Z.I(f"s_cselect_b32 s{T1}, 256, 0")
            Z.I(f"s_add_u32 s{T0}, s{T0}, s{T1}")
            Z.I(f"s_cmp_lt_u32 s{SRT}, 8")
            Z.I(f"s_mov_b32 s{T1}, {flag_base(F_A)}")
            Z.I(f"s_cselect_b32 s{T1}, {flag_base(F_B)}, s{T1}")
            Z.I(f"s_mul_i32 s{T2}, s{SQH}, -256")
            Z.I(f"s_addk_i32 s{T2}, 384")
            Z.I(f"s_cmp_lt_u32 s{SRT}, 8")
            Z.I(f"s_cselect_b32 s{T2}, 0, s{T2}")
            Z.I(f"s_cmp_eq_u32 s{SP}, 3")
            Z.I(f"s_cselect_b32 s{T1}, {flag_base(F_H)}, s{T1}")
            Z.I(f"s_cselect_b32 s{T2}, 0, s{T2}")
            Z.I(f"s_add_u32 s{T0}, s{T0}, s{T1}")
            Z.I(f"v_add_u32 v28, s{T0}, v28")
            Z.I("v_lshrrev_b32 v29, 5, v1")
            Z.I(f"v_mul_u32_u24 v29, s{T2}, v29")
            Z.I("v_add_u32 v28, v28, v29")
            if apollA:
                Z.I(f"v_mov_b32 v29, s{S_NONCE}")
                Z.I(f"s_mov_b64 exec, s[{SEARLY}:{SEARLY+1}]")
                for x in pload(29, 28, True): Z.I(x)
                Z.I("s_mov_b64 exec, -1")
            else: Z.I(f"buffer_load_dword v29, v28, {WS}, 0 offen sc1")
            return [x.text for x in Z.check(fix=True, seq=Z.items)]
    def oproj():
        lg4 = Cnt("lgkmcnt", 15)
        WF4 = 192
        wf = lambda mb, kk: WF4 + (mb*2+kk)*4
        def reads(u, mb):
            r = []
            for kk in range(2):
                off = (slot4(u) if u != 1 else 0) + kk*8192
                areg = (8 if u != 1 else 20) + mb
                r += [tr(wf(mb,kk), areg, off), tr(wf(mb,kk)+2, areg, off+4096)]
            return r
        acc = lambda mb, qb: 64 + (mb*4+qb)*4
        def emit(lst):
            for pre, x in lst:
                for y in (pre or []): A.I(y)
                if pre and "lds" in x: A.I("s_nop 0")
                A.I(x)
        su0 = oproj_setup(0)
        k0 = min(i for i, x in enumerate(su0) if " lds" in x) - 3
        for x in su0[:k0]: A.I(x)
        A.I("s_waitcnt vmcnt(0)")
        for x in set_flag(F_A, 30, 31, 34): A.I(x)
        for x in su0[k0:]: A.I(x)
        A.I("s_waitcnt vmcnt(0)")
        A.I("s_barrier")
        for mb in range(7):
            for x in reads(0, mb): A.I(x); lg4.issue(f"R0_{mb}")
        A.I(f"v_cmp_ne_u32 vcc, s{S_NONCE}, v29")
        A.I(f"s_cbranch_vccnz {L('late')}")
        emit(bload(0) + w4dma(1) + w4dma(2) + w4dma(3) + w4dma(4))
        A.I("s_waitcnt vmcnt(32)")
        A.I(f"s_branch {L('haveB')}")
        A.label(L("late"))
        if apollA: A.I(f"s_mov_b64 exec, s[{SEARLY}:{SEARLY+1}]")
        for x in pload(29, 28, apollA): A.I(x)
        A.I("s_mov_b64 exec, -1")
        emit(w4dma(1) + w4dma(2) + w4dma(3) + w4dma(4))
        A.I("s_waitcnt vmcnt(32)")
        if apollA: A.I(f"s_mov_b64 exec, s[{SEARLY}:{SEARLY+1}]")
        poll_check(28, 29, T0, atomic=apollA)
        A.I("s_mov_b64 exec, -1")
        emit(bload(0))
        A.I("s_waitcnt vmcnt(0)")
        A.label(L("haveB"))
        vE = Cnt("vmcnt", 63); vL = Cnt("vmcnt", 63)
        for tg in ["W1"]*8 + ["W2"]*8 + ["W3"]*8 + ["W4"]*8: vE.issue(tg)
        class Both:
            def issue(self, t): vE.issue(t); vL.issue(t)
            def wait(self, t):
                a_, b_ = vE.need(t), vL.need(t)
                n_ = [x for x in (a_, b_) if x is not None]
                return f"s_waitcnt vmcnt({min(n_)})" if n_ else None
        vm4 = Both()
        NU = 11
        su = [f"s_lshl_b32 s50, s{SCT}, 8", f"s_lshl_b32 s51, s{SP}, 6", "s_add_u32 s50, s50, s51", "s_add_u32 s54, s49, s50",
              "v_and_b32 v16, 15, v1", "v_lshrrev_b32 v17, 4, v1", "v_lshlrev_b32 v18, 3, v17", "v_lshl_add_u32 v19, v16, 10, v18", "v_add_u32 v20, 16384, v19",
              f"s_lshl_b32 s51, s{SKH}, 16", f"s_lshl_b32 s55, s{SQH}, 15", "s_add_u32 s51, s51, s55", "s_add_u32 s51, s51, 16384",
              f"v_add_u32 v21, s51, v{V_L16}", "s_xor_b32 s51, s51, 0x10000", f"v_add_u32 v22, s51, v{V_L16}",
              "s_and_b32 s55, s2, 0xfc", "s_lshl_b32 s56, s55, 9", "s_lshl_b32 s55, s55, 15", f"s_lshl_b32 s51, s{S_WAVE}, 13", "s_add_u32 s55, s55, s51",
              f"s_add_u32 s55, s55, {WS_PART}", f"s_lshl_b32 s51, s{S_WAVE}, 7", "s_add_u32 s56, s56, s51", f"s_add_u32 s56, s56, {flag_base(F_H)}",
              "v_and_b32 v23, 3, v1", "v_lshlrev_b32 v23, 9, v23", "v_add_u32 v23, s56, v23",
              f"s_lshl_b32 s51, s{SP}, 15", "s_add_u32 s56, s55, s51", f"s_lshl_b32 s51, s{SP}, 11", "s_add_u32 s55, s55, s51"]
        for q_ in range(4):
            su += [f"s_add_u32 s{40+q_}, s55, {q_*32768}", f"s_add_u32 s{44+q_}, s56, {q_*2048}", f"s_cmp_eq_u32 s{SP}, {q_}",
                   f"s_cselect_b32 s{40+q_}, {OOB}, s{40+q_}", f"s_cselect_b32 s{44+q_}, {OOB}, s{44+q_}"]
        xl = [f"buffer_load_dwordx2 v[{24+(i*2+j)*2}:{25+(i*2+j)*2}], v{19+i}, s[{SX}:{SX+3}], s54 offen offset:{j*32}" for i in range(2) for j in range(2)] + \
             [f"buffer_load_dwordx2 v[{32+j*2}:{33+j*2}], v18, s[{SB2}:{SB2+3}], s50 offen offset:{j*32}" for j in range(2)] + \
             [f"buffer_load_dword v38, v23, {WS}, 0 offen sc1"]
        for u in range(NU):
            w = vm4.wait(f"B{u}")
            if w: A.I(w)
            w = lg4.wait(f"R{u}_0")
            if w: A.I(w)
            if u == 0: ST.stamp()
            ops = []
            if u+3 < NU: ops += [(p, x, f"B{u+3}") for p, x in bload(u+3)]
            if k3pace:
                wl = [(p, x, f"W{u+3}") for p, x in w4dma(u+3)] if (u >= 1 and u+3 < NU) else []
                ops = ops[:2] + [y for pair in zip(wl[:6], ops[2:]) for y in pair] + wl[6:] if wl else ops
                step = 4 if wl else 8
                if u < 2:
                    ops = [(p, x, f"B{b_}") for b_ in (2*u+1, 2*u+2) for p, x in bload(b_)]
                    vpos = {1 + 4*i: op for i, op in enumerate(ops)}
                else: vpos = {1 + step*i: op for i, op in enumerate(ops)}
            else:
                if u >= 1 and u+3 < NU: ops = [(p, x, f"W{u+3}") for p, x in w4dma(u+3)] + ops
                odd = [g for g in range(9, 64) if g % 2 == 1]
                vpos = {odd[(i*len(odd))//len(ops)]: op for i, op in enumerate(ops)} if ops else {}
            g = 0
            for mb in range(8):
                for qb in range(4):
                    for kk in range(2):
                        q = g % 8
                        c = v(acc(mb,qb),4)
                        A.I(mf(c, v(wf(mb,kk),4), a(Bf(u,qb,kk),4), "0" if (u == 0 and kk == 0) else c))
                        if g == 7 and u+1 < NU:
                            w = vm4.wait(f"W{u+1}")
                            if w: A.I(w)
                            A.I("s_barrier")
                        if g+1 in vpos and vpos[g+1][0]:
                            for x in vpos[g+1][0]: A.I(x)
                        if q == 7 and mb < 7:
                            w = lg4.wait(f"R{u}_{mb+1}")
                            if w: A.I(w)
                        if q % 2 == 0:
                            rd = None
                            if mb == 0: rd = (reads(u, 7)[q//2], f"R{u}_7")
                            elif u+1 < NU: rd = (reads(u+1, mb-1)[q//2], f"R{u+1}_{mb-1}")
                            if rd: A.I(rd[0]); lg4.issue(rd[1])
                        if g in vpos:
                            A.I(vpos[g][1]); vm4.issue(vpos[g][2])
                        if u == 8 and su and g % 2 == 1:
                            A.I(su.pop(0))
                            if su and su[0].startswith("s_"): A.I(su.pop(0))
                        if u == 10 and mb >= 2 and q in (1, 5):
                            A.I(f"ds_write_b128 v21, {v(acc(mb-2, 2+q//4),4)} offset:{((mb-2)*2+q//4)*1024}")
                        if u == 9 and xl and g % 8 == 3:
                            A.I(xl.pop(0)); vm4.issue("x")
                        g += 1
        ST.stamp()
        A.I("s_waitcnt vmcnt(0)")
        for mb in range(6, 8):
            if mb == 7: A.I("s_nop 4")
            for i in range(2):
                A.I(f"ds_write_b128 v21, {v(acc(mb,2+i),4)} offset:{(mb*2+i)*1024}")
        for n in range(4):
            for k in range(2):
                A.I(f"v_lshlrev_b32 v{acc(n,2)+2*k}, 16, v{24+n*2+k}")
                A.I(f"v_and_b32 v{acc(n,2)+2*k+1}, 0xffff0000, v{24+n*2+k}")
        for j in range(2):
            for k in range(2):
                A.I(f"v_lshlrev_b32 v{acc(4+j,2)+2*k}, 16, v{32+j*2+k}")
                A.I(f"v_and_b32 v{acc(4+j,2)+2*k+1}, 0xffff0000, v{32+j*2+k}")
        poll_check(23, 38, T0)
        A.I("s_waitcnt lgkmcnt(0)")
        A.I("s_barrier")
        for b in range(16):
            A.I(f"ds_read_b128 {v(WF4+4*b,4)}, v22 offset:{b*1024}")
        for pq in range(4):
            regs = [acc((4*pq+x)//2, x % 2) for x in range(4)]
            for x in range(4):
                A.I(f"s_waitcnt lgkmcnt({15-4*pq-x})")
                for k in range(2): A.I(f"v_pk_add_f32 {v(regs[x]+2*k,2)}, {v(regs[x]+2*k,2)}, {v(WF4+4*(4*pq+x)+2*k,2)}")
            T = 40 + (pq % 2)*8
            for x in range(4):
                A.I(f"v_cvt_pk_bf16_f32 v{T+2*x}, v{regs[x]}, v{regs[x]+1}")
                A.I(f"v_cvt_pk_bf16_f32 v{T+1+2*x}, v{regs[x]+2}, v{regs[x]+3}")
            A.I(f"buffer_store_dwordx4 {v(T,4)}, v{V_L16}, {WS}, s{44+pq} offen sc1")
            A.I(f"buffer_store_dwordx4 {v(T+4,4)}, v{V_L16}, {WS}, s{44+pq} offen offset:1024 sc1")
        ST.stamp()
        def dload():
            for src in range(4):
                for hb in range(2):
                    A.I(f"buffer_load_dwordx4 {v(WF4+(src*2+hb)*4,4)}, v{V_L16}, {WS}, s{40+src} offen offset:{hb*1024} sc1")
        dload()
        for pq in range(4):
            regs = [acc((4*pq+x)//2, x % 2) for x in range(4)]
            A.I(f"s_cmp_lg_u32 s{SP}, {pq}")
            A.I(f"s_cbranch_scc1 {L(f'nown{pq}')}")
            for x in range(4):
                for k in range(4):
                    A.I(f"v_mov_b32 v{(224 if pq < 3 else 240)+4*x+k}, v{regs[x]+k}")
                    A.I(f"v_mov_b32 v{(240 if pq < 3 else 224)+4*x+k}, 0")
            A.label(L(f"nown{pq}"))
        A.I(f"s_mov_b32 s{T2}, {NLOG2E}")
        A.I(f"s_mov_b32 s{T0}, 0")
        A.label(L("dpoll"))
        A.I("s_waitcnt vmcnt(0)")
        A.I("v_max3_u32 v36, v192, v193, v194")
        A.I("v_max3_u32 v37, v195, v196, v197")
        for x in range(198, 222, 4):
            A.I(f"v_max3_u32 v36, v36, v{x}, v{x+1}")
            A.I(f"v_max3_u32 v37, v37, v{x+2}, v{x+3}")
        A.I("v_max3_u32 v36, v36, v222, v223")
        A.I("v_max_u32 v36, v36, v37")
        A.I("v_cmp_eq_u32 vcc, -1, v36")
        A.I(f"s_cbranch_vccz {L('dok')}")
        A.I(f"s_add_u32 s{T0}, s{T0}, 1")
        A.I(f"s_cmp_gt_u32 s{T0}, 0x40000")
        A.I(f"s_cbranch_scc1 {L('dok')}")
        dload()
        A.I(f"s_branch {L('dpoll')}")
        A.label(L("w_kh1")); A.I(f"s_setpc_b64 s[{S_RET}:{S_RET+1}]")
        A.label(L("dok"))
        ST.stamp()
        for src in range(4):
            dst = 224 if src < 3 else 240
            for x in range(8):
                A.I(f"v_lshlrev_b32 v{40+2*x}, 16, v{WF4+src*8+x}")
                A.I(f"v_and_b32 v{41+2*x}, 0xffff0000, v{WF4+src*8+x}")
            for x in range(8): A.I(f"v_pk_add_f32 {v(dst+2*x,2)}, {v(dst+2*x,2)}, {v(40+2*x,2)}")
        for b in range(4):
            for k in range(2): A.I(f"v_pk_add_f32 {v(240+b*4+2*k,2)}, {v(240+b*4+2*k,2)}, {v(acc(4+b//2,2)+2*k,2)}")
        for x in range(16): A.I(f"v_mul_f32 v{40+x}, s{T2}, v{240+x}")
        for x in range(16): A.I(f"v_exp_f32 v{40+x}, v{40+x}")
        for x in range(16): A.I(f"v_add_f32 v{40+x}, 1.0, v{40+x}")
        for x in range(16): A.I(f"v_rcp_f32 v{40+x}, v{40+x}")
        for x in range(8): A.I(f"v_pk_mul_f32 {v(240+2*x,2)}, {v(240+2*x,2)}, {v(40+2*x,2)}")
        for b in range(4):
            j, i = b//2, b % 2
            n = i*2+j
            for k in range(2): A.I(f"v_pk_fma_f32 {v(224+b*4+2*k,2)}, {v(224+b*4+2*k,2)}, {v(240+b*4+2*k,2)}, {v(acc(n,2)+2*k,2)}")
            A.I(f"v_cvt_pk_bf16_f32 v{224+b*4}, v{224+b*4}, v{224+b*4+1}")
            A.I(f"v_cvt_pk_bf16_f32 v{224+b*4+1}, v{224+b*4+2}, v{224+b*4+3}")
            A.I(f"buffer_store_dwordx2 {v(224+b*4,2)}, v{19+i}, s[{SO}:{SO+3}], s54 offen offset:{j*32}{outsc}")
        if padto:
            A.I(f"s_load_dwordx2 s[40:41], s[0:1], {KA['dbg']}")
            A.I("s_waitcnt lgkmcnt(0)")
            A.I("v_mov_b32 v4, 4")
            A.I("global_load_dword v5, v4, s[40:41] sc1")
            A.I("s_waitcnt vmcnt(0)")
            A.I("v_readfirstlane_b32 s42, v5")
            A.I("s_memrealtime s[44:45]")
            A.I("s_waitcnt lgkmcnt(0)")
            A.I("s_sub_u32 s46, s44, s42")
            A.I("v_mov_b32 v6, s46"); A.I("v_mov_b32 v4, 8")
            A.I("s_mov_b64 exec, 1")
            A.I("global_atomic_umax v4, v6, s[40:41] sc1") if padto == 1 else None
            A.label(L("padloop"))
            A.I("s_sleep 8")
            A.I("s_memrealtime s[44:45]")
            A.I("s_waitcnt lgkmcnt(0)")
            A.I("s_sub_u32 s46, s44, s42")
            A.I(f"s_cmp_lt_u32 s46, {padto}")
            A.I(f"s_cbranch_scc1 {L('padloop')}")
        ST.flush(SRD_WS, S_WAVE)
    def saferestart():
        A.label(L("saferestart"))
        R = Asm()
        R.I(f"s_mov_b32 s{S_SAFE}, 0")
        R.I("s_waitcnt vmcnt(0) lgkmcnt(0)")
        R.I("s_barrier")
        for x in q_setup_s: R.I(x)
        R.I(f"s_lshl_b32 s44, s{S_WAVE}, 17")
        R.I(f"s_lshl_b32 s47, s{S_H}, 8")
        R.I("s_add_u32 s44, s44, s47")
        R.I(f"s_mov_b32 s{S_ID}, 0")
        R.I(f"s_mov_b32 s46, {OOB}")
        for x in q_setup_v: R.I(x)
        R.I("s_waitcnt lgkmcnt(0)")
        for x in srd_list(SRD_WQ, 4, 4*MB) + srd_list(SRD_W1, 8, 512*2752) + srd_list(SRD_B1, 10, 2752): R.I(x)
        for fb in range(3):
            R.I(f"buffer_load_dwordx2 v[{26+2*fb}:{27+2*fb}], v19, s[{SRD_B1}:{SRD_B1+3}], s{53 if fb < 2 else 54} offen offset:{fb*32}")
        R.I("v_and_b32 v248, 15, v1")
        R.I("v_lshrrev_b32 v249, 4, v1")
        R.I("v_lshrrev_b32 v250, 1, v248")
        R.I("v_xor_b32 v250, v250, v249")
        R.I("v_and_b32 v251, 1, v248")
        R.I("v_lshlrev_b32 v251, 4, v251")
        R.I("v_lshl_add_u32 v251, v249, 13, v251")
        R.I("v_lshl_add_u32 v4, v250, 5, v251")
        R.I(f"v_add_u32 v5, {32768-1024}, v4")
        R.I("v_xor_b32 v250, 4, v250")
        R.I("v_lshl_add_u32 v6, v250, 5, v251")
        R.I(f"v_add_u32 v6, {2*(32768-1024)}, v6")
        R.I(f"v_add_u32 v7, {32768-1024}, v6")
        R.I("v_bfe_u32 v248, v1, 2, 2")
        R.I("v_lshlrev_b32 v250, 3, v249")
        R.I("v_add_u32 v250, v250, v248")
        R.I("v_lshlrev_b32 v250, 8, v250")
        R.I("v_and_b32 v251, 3, v1")
        R.I("v_lshl_add_u32 v250, v251, 3, v250")
        R.I(f"v_add_u32 v250, {QBASE}, v250")
        R.I("v_and_b32 v251, 1, v249")
        R.I("v_lshl_add_u32 v248, v251, 2, v248")
        for nb in range(8):
            R.I(f"v_xor_b32 v251, {nb}, v248")
            R.I(f"v_lshl_add_u32 v{8+nb}, v251, 5, v250")
        for pre, x in qwdma(0) + qwdma(1) + xload(0) + xload(1) + xload(2):
            for y in (pre or []): R.I(y)
            if pre: R.I("s_nop 0")
            R.I(x)
        R.I("s_waitcnt vmcnt(0)")
        for fb in range(3):
            for k in range(2):
                R.I(f"v_lshlrev_b32 v{32+fb*4+2*k}, 16, v{26+2*fb+k}")
                R.I(f"v_and_b32 v{33+fb*4+2*k}, 0xffff0000, v{26+2*fb+k}")
        for i in range(12): R.I(f"v_mov_b32 v{20+i}, v{32+i}")
        R.I("s_barrier")
        for n in range(5):
            for x in breads(n): R.I(x)
        R.I("s_waitcnt lgkmcnt(0)")
        R.I(f"s_branch {L('qgemm')}")
        A.items += R.check(fix=True, seq=R.items)
    k2.CPF[0] = cpf
    k2.attention(A, L, ST, vm, lg, set_flag, F_H, F_B, F_A, qrest, gel, oproj_setup, oproj, saferestart)
    return A
```

```python
from common import *
import k2
from k2 import *
import math, struct

F_XN, F_KV, F_H, F_B, F_A, F_P, F_ID = range(7)
S_ID = 45
def flag_base(kind): return WS_FLAG + kind*262144
NLOG2E = f2u(-math.log2(math.e))
S_NONCE = 3
S_ROT = 39

def gen(name, prof=False, rot=False, xsc=' sc1', csc=' sc1', xdiag=0, tlb=False, itlb=True, dense=False, slp=0, fstride=7, apoll=0, fullline=True, xtouch=0, fine=0, lnt=0, warm_t=(0, 1, 2), swarm=1, pf0=2, xst_t=5, pxg=10, pxc=13, tlbw=0, wqg=4, pft=5, pfs=3, wofb=1, t64=0, prer_mode=1, cpf=1, kvsc='', outsc='', padto=0, qeven=1, k3pace=1, wotouch=0, wot=2, wqt=7, wqtouch=1, barpos=9, noln=0, kspread=0, apollA=0, upfront=2):
    A = Asm(); ST = Stamps(A, prof, 0)
    vm = Cnt("vmcnt", 63); lg = Cnt("lgkmcnt", 15)
    L = lambda x: f"L_{x}"
    WS = f"s[{SRD_WS}:{SRD_WS+3}]"
    uniq = [0]
    def set_flag(kind, vz, vd, st, val=S_NONCE):
        wide = True
        return [f"s_lshl_b32 s{st}, s2, {2 if wide else 5}", f"s_add_u32 s{st}, s{st}, s{S_WAVE}", f"s_lshl_b32 s{st}, s{st}, {7 if wide else 2}",
                f"s_add_u32 s{st}, s{st}, {flag_base(kind)}",
                f"v_mov_b32 v{vd}, s{val}", f"v_lshlrev_b32 v{vz}, 2, v1",
                "s_mov_b32 exec_hi, 0" if fullline else "s_mov_b64 exec, 1", f"buffer_store_dword v{vd}, v{vz}, {WS}, s{st} offen sc1", "s_mov_b64 exec, -1"]
    def pload(vdat, vaddr, atomic=False):
        if atomic:
            return [f"v_mov_b32 v{vdat}, 0", f"buffer_atomic_or v{vdat}, v{vaddr}, {WS}, 0 offen sc0 sc1"]
        return [f"buffer_load_dword v{vdat}, v{vaddr}, {WS}, 0 offen {'sc1' if apoll != 2 else 'sc0 sc1 nt'}"]
    def poll_check(vaddr, vdat, st, vmask=None, atomic=False):
        u = uniq[0]; uniq[0] += 1
        A.I(f"s_mov_b32 s{st}, 0")
        A.label(L(f"poll{u}"))
        if vmask is not None:
            A.I(f"v_and_b32 v{vmask}, 0xffffff00, v{vdat}")
            A.I(f"v_cmp_ne_u32 vcc, s{S_NONCE}, v{vmask}")
        else:
            A.I(f"v_cmp_ne_u32 vcc, s{S_NONCE}, v{vdat}")
        A.I(f"s_cbranch_vccz {L(f'pollok{u}')}")
        A.I(f"s_add_u32 s{st}, s{st}, 1")
        A.I(f"s_cmp_gt_u32 s{st}, 0x80000")
        A.I(f"s_cbranch_scc1 {L(f'pollok{u}')}")
        if slp: A.I(f"s_sleep {slp}")
        for x in pload(vdat, vaddr, atomic): A.I(x)
        A.I("s_waitcnt vmcnt(0)")
        A.I(f"s_branch {L(f'poll{u}')}")
        A.label(L(f"pollok{u}"))
    def code_pf(off, nbytes, vt, vd):
        return [f"s_lshr_b32 s{S_TMP}, s2, 3", f"s_lshl_b32 s{S_TMP}, s{S_TMP}, 2", f"s_add_u32 s{S_TMP}, s{S_TMP}, s{S_WAVE}",
                f"s_lshl_b32 s{S_TMP}, s{S_TMP}, 10", f"s_and_b32 s{S_TMP}, s{S_TMP}, {nbytes-1}", f"s_add_u32 s{S_TMP}, s{S_TMP}, {off}",
                f"v_add_u32 v{vt}, s{S_TMP}, v{V_L16}", f"global_load_dwordx4 {v(vd,4)}, v{vt}, s[62:63]"]

    def stub(i):
        if not swarm: return
        A.I(f"s_branch {L(f'sk{i}')}")
        A.label(L(f"st{i}")); A.I(f"s_branch {L('swret')}")
        A.label(L(f"sk{i}"))
    header(A, name)
    A.I("s_cmp_ge_u32 s2, 256")
    A.I(f"s_cbranch_scc1 {L('end')}")
    ST.stamp()
    A.I(f"s_load_dwordx4 s[4:7], s[0:1], {KA['x']}")
    A.I(f"s_load_dwordx4 s[8:11], s[0:1], {KA['wuk']}")
    A.I(f"s_load_dwordx4 s[12:15], s[0:1], {KA['dbg']}")
    A.I("s_getpc_b64 s[62:63]")
    if pf0:
        A.I("v_lshlrev_b32 v244, 4, v0")
        A.I("global_load_dwordx4 v[252:255], v244, s[62:63]"); vm.issue("pf")
        if pf0 == 2:
            A.I("v_add_u32 v245, 4096, v244")
            A.I("global_load_dwordx4 v[252:255], v245, s[62:63]"); vm.issue("pf")
    A.I("s_memrealtime s[52:53]")
    A.I(f"s_mov_b32 s{S_SAFE}, -1")
    A.I("v_and_b32 v1, 63, v0")
    A.I("v_lshrrev_b32 v248, 6, v0")
    A.I(f"s_and_b32 s{S_H}, s2, 7")
    A.I(f"v_readfirstlane_b32 s{S_WAVE}, v248")
    if swarm:
        A.I("s_nop 0")
        for w in range(4):
            A.I(f"s_cmp_eq_u32 s{S_WAVE}, {w}")
            A.I(f"s_cbranch_scc1 {L(f'st{w}')}")
        A.label(L("swret"))
    A.I(f"s_lshr_b32 s47, s2, 3")
    A.I(f"s_lshl_b32 s{S_H}, s{S_H}, 2")
    A.I(f"s_and_b32 s48, s47, 3")
    A.I(f"s_add_u32 s{S_H}, s{S_H}, s48")
    A.I(f"s_lshr_b32 s{S_T}, s47, 2")
    A.I(f"v_lshlrev_b32 v{V_L16}, 4, v1")
    A.I("v_and_b32 v248, 15, v1")
    A.I("v_lshrrev_b32 v249, 4, v1")
    A.I("v_and_b32 v250, 7, v1")
    A.I("v_xor_b32 v250, v250, v249")
    A.I("v_lshrrev_b32 v251, 3, v1")
    A.I("v_lshlrev_b32 v251, 10, v251")
    A.I("v_lshl_add_u32 v208, v250, 4, v251")
    A.I("v_xor_b32 v250, 4, v250")
    A.I("v_lshl_add_u32 v209, v250, 4, v251")
    A.I(f"v_add_u32 v210, {2*(8192-1024)}, v208")
    A.I(f"v_add_u32 v211, {3*(8192-1024)}, v209")
    A.I(f"v_add_u32 v209, {8192-1024}, v209")
    A.I("v_lshrrev_b32 v250, 1, v248")
    A.I("v_xor_b32 v250, v250, v249")
    A.I("v_and_b32 v251, 1, v248")
    A.I("v_lshlrev_b32 v251, 4, v251")
    A.I("v_lshl_add_u32 v251, v249, 13, v251")
    A.I("v_lshl_add_u32 v4, v250, 5, v251")
    A.I(f"v_add_u32 v5, {32768-1024}, v4")
    A.I("v_xor_b32 v250, 4, v250")
    A.I("v_lshl_add_u32 v6, v250, 5, v251")
    A.I(f"v_add_u32 v6, {2*(32768-1024)}, v6")
    A.I(f"v_add_u32 v7, {32768-1024}, v6")
    stub(0)
    A.I(f"s_lshl_b32 s40, s{S_T}, 8")
    A.I(f"s_lshl_b32 s47, s{S_WAVE}, 6")
    A.I("s_add_u32 s40, s40, s47")
    A.I("s_lshl_b32 s40, s40, 10")
    A.I(f"s_lshl_b32 s42, s{S_WAVE}, 13")
    A.I(f"s_lshl_b32 s44, s{S_WAVE}, 17")
    A.I(f"s_lshl_b32 s47, s{S_H}, 8")
    A.I("s_add_u32 s44, s44, s47")
    A.I(f"s_lshl_b32 s{S_W4K}, s{S_WAVE}, 12")
    A.I("s_waitcnt lgkmcnt(0)")
    srd(A, 24, 8, 4*MB); srd(A, 20, 6, 2*MB)

    def rotk(t, shift, base, dst):
        if not rot: return [f"s_add_u32 s{dst}, s{base}, {t << shift}"]
        return [f"s_add_u32 s{dst}, s{S_ROT}, {t}", f"s_and_b32 s{dst}, s{dst}, 7", f"s_lshl_b32 s{dst}, s{dst}, {shift}", f"s_add_u32 s{dst}, s{dst}, s{base}"]
    def wdma(which, t, slot):
        sr = 24 if which == "k" else 28
        pre = rotk(t, 19, 44, 49) + [f"s_add_u32 m0, s{S_W4K}, {slot*16384}"]
        return [(pre if j == 0 else None, f"buffer_load_dwordx4 v{4+j}, s[{sr}:{sr+3}], s49 offen offset:{j*1024} lds") for j in range(4)]
    def cdma(t):
        r = []
        for i in range(8):
            pre = None
            if i == 0: pre = rotk(t, 7, 40, 43) + [f"s_add_u32 m0, s42, {(t%2)*32768}"]
            if i == 4: pre = [f"s_add_u32 s43, s43, 32768", f"s_add_u32 m0, s42, {(t%2)*32768 + 4096}"]
            r.append((pre, f"buffer_load_dwordx4 v{208+i%4}, s[20:23], s43 offen offset:{(i%4)*1024} lds"))
        return r
    def ccopy(t):
        r = []
        for kk in range(2):
            for kb in range(4):
                r.append(f"ds_read_b128 {a((kb*16+2*t+kk)*4,4)}, v{212 + kk} offset:{(t % 2)*32768 + kb*2048}")
        return r
    def issue(lst, tag):
        for pre, x in lst:
            if pre:
                for y in pre: A.I(y)
                if "lds" in x: A.I("s_nop 0")
            A.I(x); vm.issue(tag)
    A.I("s_lshl_b32 s54, s2, 2")
    A.I(f"s_add_u32 s54, s54, s{S_WAVE}")
    A.I("s_lshl_b32 s55, s54, 12")
    A.I("s_lshl_b32 s54, s54, 11")
    prer = [(None, f"buffer_load_dwordx4 v[252:255], v{V_L16}, s[20:23], s53 offen offset:{j*1024}") for j in range(2)] + \
           [(None, f"buffer_load_dwordx4 v[252:255], v{V_L16}, s[24:27], s55 offen offset:{j*1024}") for j in range(4)]
    A.I("s_mov_b32 s53, s54")
    ST.stamp()
    if upfront in (4, 5, 6): issue(prer, "pr")
    if upfront == 6:
        A.I("v_and_b32 v3, 31, v1"); A.I("v_lshlrev_b32 v3, 7, v3"); A.I("v_add_u32 v3, s55, v3")
        A.I(f"buffer_load_dword v252, v3, s[28:31], 0 offen"); vm.issue("pr")
    issue(wdma("k", 0, 7), "Wk0"); issue(cdma(0), "C0")
    ST.stamp()
    stub(1)
    srd(A, 32, 4, 2*MB); srd(A, SRD_WS, 14, WS_END); srd(A, 28, 10, 4*MB)
    A.I("s_lshl_b32 s47, s2, 3")
    A.I(f"s_lshl_b32 s48, s{S_WAVE}, 1")
    A.I("s_add_u32 s47, s47, s48")
    A.I("v_lshrrev_b32 v241, 5, v1")
    A.I("v_add_u32 v241, s47, v241")
    A.I("v_and_b32 v242, 31, v1")
    A.I("v_lshlrev_b32 v243, 10, v241")
    A.I("v_lshl_add_u32 v243, v242, 4, v243")
    A.I("buffer_load_dwordx4 v[216:219], v243, s[32:35], 0 offen"); vm.issue("x")
    A.I("buffer_load_dwordx4 v[220:223], v243, s[32:35], 0 offen offset:512"); vm.issue("x")
    A.I(f"s_load_dwordx2 s[68:69], s[0:1], {KA['wq']}")
    A.I(f"s_load_dwordx2 s[70:71], s[0:1], {KA['wo']}")
    A.I(f"s_load_dwordx2 s[64:65], s[0:1], {KA['w1']}")
    A.I(f"s_load_dwordx2 s[66:67], s[0:1], {KA['w2']}")
    if upfront == 0:
        issue(prer, "pr"); issue(wdma("k", 1, 8), "Wk1"); issue(cdma(1), "C1")
    elif upfront == 1:
        issue(prer, "pr")
    elif upfront == 2:
        issue(wdma("k", 1, 8), "Wk1"); issue(cdma(1), "C1")
    if upfront == 7:
        issue(wdma("k", 1, 8), "Wk1"); issue(cdma(1), "C1"); issue(prer, "pr")
    stub(2)
    for x in code_pf(0, 131072, 244, 252): A.I(x)
    vm.issue("pf")
    A.I(f"s_or_b32 s47, s2, s{S_WAVE}")
    A.I(f"s_cmp_lg_u32 s47, 0")
    A.I(f"s_cbranch_scc1 {L('nocas')}")
    if padto:
        A.I("v_mov_b32 v184, s52"); A.I("v_mov_b32 v185, 4"); A.I("global_store_dword v185, v184, s[12:13] sc1"); A.I("s_nop 1")
    A.I("s_and_b32 s52, s52, 0xffffff00")
    A.I("s_or_b32 s52, s52, 0x100")
    A.I("v_mov_b32 v184, s52")
    A.I("v_mov_b32 v185, 0")
    A.I("s_mov_b64 exec, 1")
    A.I("global_store_dword v185, v184, s[12:13] sc1")
    A.I("s_mov_b64 exec, -1")
    A.label(L("nocas"))
    ST.stamp()
    A.I("v_lshrrev_b32 v250, 1, v248")
    A.I("v_xor_b32 v250, v250, v249")
    A.I("v_lshlrev_b32 v251, 7, v248")
    A.I("v_add_u32 v251, s42, v251")
    A.I("v_lshl_add_u32 v212, v250, 4, v251")
    A.I("v_xor_b32 v250, 4, v250")
    A.I("v_lshl_add_u32 v213, v250, 4, v251")
    A.I("v_bfe_u32 v248, v1, 2, 2")
    A.I("v_lshlrev_b32 v250, 3, v249")
    A.I("v_add_u32 v250, v250, v248")
    A.I("v_lshlrev_b32 v250, 8, v250")
    A.I("v_and_b32 v251, 3, v1")
    A.I("v_lshl_add_u32 v250, v251, 3, v250")
    A.I("v_add_u32 v250, 114688, v250")
    A.I("v_and_b32 v251, 1, v249")
    A.I("v_lshl_add_u32 v248, v251, 2, v248")
    for nb in range(8):
        A.I(f"v_xor_b32 v251, {nb}, v248")
        A.I(f"v_lshl_add_u32 v{8+nb}, v251, 5, v250")
    stub(3)
    A.I("v_lshrrev_b32 v250, 4, v241")
    A.I("v_lshlrev_b32 v250, 14, v250")
    A.I("v_lshrrev_b32 v251, 2, v242")
    A.I("v_lshl_add_u32 v250, v251, 10, v250")
    A.I("v_and_b32 v251, 3, v242")
    A.I("v_lshl_add_u32 v250, v251, 8, v250")
    A.I("v_and_b32 v251, 15, v241")
    A.I("v_lshl_add_u32 v240, v251, 4, v250")
    A.I(f"s_lshl_b32 s46, s{S_H}, 5")
    A.I(f"s_lshl_b32 s47, s{S_T}, 2")
    A.I("s_add_u32 s46, s46, s47")
    A.I(f"s_add_u32 s46, s46, s{S_WAVE}")
    A.I("s_lshl_b32 s46, s46, 15")
    A.I(f"s_add_u32 s46, s46, {WS_KV}")
    if xtouch:
        A.I("s_lshr_b32 s47, s2, 3"); A.I("s_lshl_b32 s47, s47, 2"); A.I(f"s_add_u32 s47, s47, s{S_WAVE}"); A.I("s_lshl_b32 s47, s47, 15")
        A.I("s_and_b32 s48, s2, 7"); A.I("s_lshl_b32 s48, s48, 10"); A.I("s_add_u32 s47, s47, s48")
        A.I("v_bfe_u32 v3, v1, 3, 2"); A.I("v_lshlrev_b32 v3, 13, v3"); A.I("v_and_b32 v250, 7, v1"); A.I("v_lshl_add_u32 v3, v250, 7, v3")
        A.I("v_add_u32 v3, s47, v3")
    else:
        A.I("v_and_b32 v3, 31, v1" if not t64 else "v_mov_b32 v3, v1")
        A.I(f"v_lshlrev_b32 v3, {7 if not t64 else 6}, v3")
        A.I("v_add_u32 v3, s55, v3")
    A.I("s_mul_i32 s54, s54, 11")
    A.I("s_lshr_b32 s54, s54, 4")
    A.I(f"v_min_u32 v250, {10 if not t64 else 21}, v1")
    A.I(f"v_lshlrev_b32 v250, {7 if not t64 else 6}, v250")
    A.I("v_add_u32 v250, s54, v250")
    A.I(f"v_min_u32 v250, {1376*1024-4}, v250")
    LN = Asm()
    X = 224
    for i in range(8):
        LN.I(f"v_lshlrev_b32 v{X+2*i}, 16, v{216+i}")
        LN.I(f"v_and_b32 v{X+2*i+1}, 0xffff0000, v{216+i}")
    LN.I(f"v_add_f32 v243, v{X}, v{X+1}")
    LN.I(f"v_add_f32 v244, v{X+2}, v{X+3}")
    for i in range(4, 16, 2):
        LN.I(f"v_add_f32 v243, v243, v{X+i}")
        LN.I(f"v_add_f32 v244, v244, v{X+i+1}")
    LN.I("v_add_f32 v243, v243, v244")
    row_allreduce32(LN, 243, 244)
    LN.I("v_mul_f32 v243, 0x3b000000, v243")
    LN.I("v_mov_b32 v245, 0")
    LN.I("v_mov_b32 v246, 0")
    for i in range(16):
        LN.I(f"v_sub_f32 v247, v{X+i}, v243")
        LN.I(f"v_fmac_f32 v{245+i%2}, v247, v247")
    LN.I("v_add_f32 v245, v245, v246")
    row_allreduce32(LN, 245, 244)
    LN.I("v_mul_f32 v245, 0x3b000000, v245")
    LN.I("v_cvt_pk_bf16_f32 v243, v243, v245")
    LN.I("v_and_b32 v245, 0xffff0000, v243")
    LN.I("v_lshlrev_b32 v243, 16, v243")
    LN.I("v_add_f32 v245, 0x3727c5ac, v245")
    LN.I("v_cvt_pk_bf16_f32 v245, v245, v245")
    LN.I("v_lshlrev_b32 v245, 16, v245")
    LN.I("v_sqrt_f32 v245, v245")
    LN.I("s_nop 0")
    LN.I("v_cvt_pk_bf16_f32 v245, v245, v245")
    LN.I("v_lshlrev_b32 v245, 16, v245")
    LN.I("v_rcp_f32 v245, v245")
    for i in range(16):
        LN.I(f"v_sub_f32 v{X+i}, v{X+i}, v243")
    for i in range(8):
        LN.I(f"v_cvt_pk_bf16_f32 v{216+i}, v{X+2*i}, v{X+2*i+1}")
    for i in range(8):
        LN.I(f"v_lshlrev_b32 v{X+2*i}, 16, v{216+i}")
        LN.I(f"v_and_b32 v{X+2*i+1}, 0xffff0000, v{216+i}")
        LN.I(f"v_mul_f32 v{X+2*i}, v{X+2*i}, v245")
        LN.I(f"v_mul_f32 v{X+2*i+1}, v{X+2*i+1}, v245")
    for i in range(8):
        LN.I(f"v_cvt_pk_bf16_f32 v{216+i}, v{X+2*i}, v{X+2*i+1}")
    lnq = [x.text for x in LN.items if not x.text.startswith("s_nop")]
    if noln: lnq = []
    A.I("v_add_u32 v241, 8192, v240")
    A.I(f"s_getreg_b32 s{S_ID}, hwreg(HW_REG_XCC_ID)")
    A.I(f"s_lshr_b32 s47, s{S_ID}, 12")
    A.I(f"s_and_b32 s47, s47, 0xf0")
    A.I(f"s_and_b32 s{S_ID}, s{S_ID}, 15")
    A.I(f"s_or_b32 s{S_ID}, s{S_ID}, s47")

    WF = 144
    wfrag = lambda db, kk: WF + (db*2+kk)*4
    tr = lambda dst, areg, off: f"ds_read_b64_tr_b16 {v(dst,2)}, v{areg} offset:{off}"
    def reads1(t, db):
        r = []
        for kk in range(2):
            off = (t % 3)*16384 + kk*8192
            r += [tr(wfrag(db,kk), 8+db, off), tr(wfrag(db,kk)+2, 8+db, off+1024)]
        return r
    accK = lambda db, kb: 16 + (db*4+kb)*4
    ST.stamp()
    A.I("s_waitcnt lgkmcnt(0)")
    if upfront == 7:
        A.I("s_mov_b64 exec, 1")
        for (va, sp) in ((3, 68), (250, 64), (3, 70), (250, 66)):
            A.I(f"global_load_dword v252, v{va}, s[{sp}:{sp+1}]"); vm.issue("pr")
        A.I("s_mov_b64 exec, -1")
    if itlb == 2:
        for w, lab in enumerate(["main_d", "main_s", "b_full_full_1fd", "b_None_diag_0epi"]):
            A.I(f"s_cmp_lg_u32 s{S_WAVE}, {w}")
            A.I(f"s_cbranch_scc1 {L(f'nsu{w}')}")
            A.I(f"s_call_b64 s[56:57], {L('w2_' + lab)}")
            A.label(L(f"nsu{w}"))
    A.I(vm.wait("x"))
    A.I("s_barrier")
    for x in ccopy(0): A.I(x); lg.issue("c0")
    for db in range(7):
        for x in reads1(0, db): A.I(x); lg.issue(f"R0_{db}")
    if upfront == 3:
        issue(wdma("k", 1, 8), "Wk1"); issue(cdma(1), "C1"); issue(prer, "pr")
    if upfront in (1, 4, 6):
        issue(wdma("k", 1, 8), "Wk1"); issue(cdma(1), "C1")
    elif upfront == 2:
        if prer_mode == 1: issue(prer, "pr")
        if tlbw:
            A.I("s_mov_b64 exec, 1")
            for (va, sp) in ((3, 68), (250, 64), (3, 70), (250, 66)):
                A.I(f"global_load_dword v252, v{va}, s[{sp}:{sp+1}]"); vm.issue("pr")
            A.I("s_mov_b64 exec, -1")
        elif prer_mode == 2:
            A.I("v_lshrrev_b32 v244, 1, v3"); A.I("v_and_b32 v244, 0xffffffc0, v244")
            A.I("buffer_load_dword v252, v244, s[20:23], 0 offen"); vm.issue("pr")
            A.I("buffer_load_dword v252, v3, s[24:27], 0 offen"); vm.issue("pr")
    vslot = lambda tt: [4,5,6,0,1,7,2,3][tt]
    p2addr = lambda G: (G//8, (G//2) % 4, G % 2)
    p2areg = lambda p, dbl, win: 240 + (p % 2)*4 + dbl*2 + win
    def reads2(G):
        p, ksg, dbl = p2addr(G)
        r = []
        for k4 in range(4):
            ks = ksg*4 + k4
            byte = vslot(ks//2)*16384 + (ks % 2)*8192
            dst = WF + (G % 4)*16 + k4*4
            r += [tr(dst, p2areg(p, dbl, byte//65536), byte % 65536), tr(dst+2, p2areg(p, dbl, byte//65536), byte % 65536 + 1024)]
        return r
    def p2setup(p):
        return [f"v_subrev_u32 v{p2areg(p,dbl,win)}, {114688 - win*65536}, v{8+2*p+dbl}" for dbl in range(2) for win in (0, 1)]
    def pubxn():
        assert vm.need("nonce") is None
        A.I(f"s_mov_b32 s47, 0")
        A.label(L("npoll"))
        A.I(f"v_readfirstlane_b32 s{S_NONCE}, v249")
        A.I("s_nop 0")
        A.I(f"s_cmp_lg_u32 s{S_NONCE}, 0")
        A.I(f"s_cbranch_scc1 {L('npollok')}")
        A.I("s_add_u32 s47, s47, 1")
        A.I("s_cmp_gt_u32 s47, 0x80000")
        A.I(f"s_cbranch_scc1 {L('npollok')}")
        A.I("s_sleep 2")
        A.I("global_load_dword v249, v248, s[12:13] sc1")
        A.I("s_waitcnt vmcnt(0)")
        A.I(f"s_branch {L('npoll')}")
        A.label(L("npollok"))
        A.I(f"s_add_u32 s{S_ID}, s{S_ID}, s{S_NONCE}")
        for x in set_flag(F_XN, 248, 249, 47, S_ID): A.I(x)
        vm.issue("fl")
    lastln = [None]
    kj0 = [(accK(0,kb), accK(1,kb), kb*4) for kb in range(2)]
    BAR = barpos
    for t in range(8):
        M = []
        for db in range(8):
            for kb in range(4):
                for kk in range(2):
                    c = v(accK(db,kb),4)
                    M.append(mf(c, v(wfrag(db,kk),4), a((kb*16+2*t+kk)*4,4), "0" if (t==0 and kk==0) else c))
        A.I(lg.wait([f"R{t}_0", f"c{t}", f"c{t}_0"]))
        if t in (0, 4) or fine: ST.stamp()
        if t < 6: ops = [(d, f"Wk{t+2}", pre) for pre, d in wdma("k", t+2, 7 + (t+2) % 3)] + [(d, f"C{t+2}_{i//2}", pre) for i, (pre, d) in enumerate(cdma(t+2))]
        else: ops = [(d, f"Wv{tt}", pre) for tt in range(3*(t-6), 3*(t-6)+3) for pre, d in wdma("v", tt, vslot(tt))]
        vg = [1, 5, 11, 15, 21, 25, 29, 33, 37, 41, 45, 51] if t < 7 else [1, 5, 11, 15, 21, 27, 31, 37, 43, 49, 55, 61]
        if t == 6: vg = [BAR+2 + 4*i for i in range(12)] if False else vg
        vpos = {vg[i]: op for i, op in enumerate(ops)}
        rq = []
        if t < 7:
            for db in range(7): rq += [(8*db+8, x, f"R{t+1}_{db}") for x in reads1(t+1, db)]
        else:
            for G in range(2): rq += [(16*G+16, x, f"S{G}") for x in reads2(G)]
        cpos = {}
        if t < 7:
            cc = ccopy(t+1)
            for kb in range(4):
                for kk in range(2): cpos[[47, 49, 53, 55, 57, 59, 61, 63][kb*2+kk]] = (cc[kk*4+kb], kb, kk)
        for g in range(64):
            db = g // 8; q = g % 8
            A.I(M[g])
            if g == BAR:
                A.I((vm.wait(f"Wk{t+1}" if t < 7 else "Wv1") or "s_waitcnt") + " lgkmcnt(0)"); lg.drain()
                A.I("s_barrier")
            if t == 1 and g == 52:
                A.I(f"buffer_load_dword v252, v3, s[28:31], 0 offen"); vm.issue("pr")
            if (t, g) in ((wot, 52), (wot, 54)) and not wofb:
                A.I("global_load_dword v252, v3, s[70:71]" if g == 52 else "global_load_dword v253, v250, s[66:67]"); vm.issue("pr")
            if t == wqt and g in (53, 57) and wqtouch and not wqg:
                A.I("global_load_dword v252, v3, s[68:69]" if g == 53 else "global_load_dword v253, v250, s[64:65]"); vm.issue("pr")
            if t == xst_t and g == 63:
                assert not lnq
                A.I(f"buffer_store_dwordx4 v[216:219], v240, {WS}, 0 offen sc1"); vm.issue("xs")
                A.I(f"buffer_store_dwordx4 v[220:223], v241, {WS}, 0 offen sc1"); vm.issue("xs")
                A.I("v_mov_b32 v248, 0")
                A.I("global_load_dword v249, v248, s[12:13] sc1"); vm.issue("nonce")
            if itlb == 1 and g == BAR-1 and t in warm_t:
                WARM = [["main_d", "main_s", "b_full_full_1fd", "b_full_full_1"], ["b_diag_full_0", "b_full_diag_0", "b_None_diag_0epi", "b_diag_None_0st"],
                        ["b_full_diag_1", "b_full_None_0st", "b_None_full_0lastlo", "merge"], ["role0", "role2", "role3", "mhi"]][warm_t.index(t)]
                for w in range(4):
                    A.I(f"s_cmp_lg_u32 s{S_WAVE}, {w}")
                    A.I(f"s_cbranch_scc1 {L(f'nst{t}_{w}')}")
                    A.I(f"s_call_b64 s[{S_RET}:{S_RET+1}], {L('w_' + WARM[w])}")
                    A.label(L(f"nst{t}_{w}"))
            if g+1 in vpos and vpos[g+1][2]:
                for x in vpos[g+1][2]: A.I(x)
                if not (db == 0 and q % 2 == 0): A.I("s_nop 0") if False else None
            if q == 7 and db < 7: A.I(lg.wait(f"R{t}_{db+1}"))
            if g in (1, 3, 5): A.I(lg.wait(f"c{t}_{(g+1)//2}"))
            nds = 0
            if db == 0 and q % 2 == 0:
                A.I(reads1(t, 7)[q//2]); lg.issue(f"R{t}_7"); nds = 1
            if g > BAR and g % 2 == 0 or (g > BAR and g not in vpos and g not in cpos and rq and rq[0][0] <= g - 6):
                if rq and rq[0][0] <= g:
                    x = rq.pop(0); A.I(x[1]); lg.issue(x[2]); nds += 1
            if g in cpos:
                if cpos[g][2] == 0: A.I(vm.wait([f"C{t+1}_{cpos[g][1]}", f"C{t+1}"]))
                A.I(cpos[g][0]); lg.issue(f"c{t+1}_{cpos[g][1]}"); nds += 1
            if xst_t < 6 and t == xst_t + 2 and g == BAR + 1: pubxn()
            if t == 7 and g == 8:
                for x in p2setup(0): A.I(x)
                A.I(f"s_mov_b32 s52, {QSCALE}")
            if t == 7 and g in (18, 34, 50):
                s_ = (g-18)//16
                lnq += [f"v_mul_f32 v{r+k}, s52, v{r+k}" for kb in range(4) for r in (accK(2*s_,kb), accK(2*s_+1,kb)) for k in range(4)]
            if g in vpos:
                A.I(vpos[g][0]); vm.issue(vpos[g][1])
            nln = 0 if (g in vpos or nds > 1 or t < lnt) else (1 if nds else 2)
            while nln and lnq:
                x = lnq[0]
                sp = ("row_ror" in x or "permlane" in x or "sqrt" in x or "rcp" in x)
                if sp and nln == 2 and lastln[0] == (t, g): break
                A.I(lnq.pop(0)); nln -= 1
                dep = sp or (lnq and ("row_ror" in lnq[0] or "permlane" in lnq[0]))
                lastln[0] = (t, g)
                if dep:
                    if lnq and ("row_ror" in lnq[0] or "permlane" in lnq[0]): A.I("s_nop 0")
                    break
        assert not rq, (t, len(rq))
    ST.stamp()
    def cvt_frag(r0, r1):
        return [f"v_cvt_pk_bf16_f32 v{r0}, v{r0}, v{r0+1}", f"v_cvt_pk_bf16_f32 v{r0+1}, v{r0+2}, v{r0+3}",
                f"v_cvt_pk_bf16_f32 v{r0+2}, v{r1}, v{r1+1}", f"v_cvt_pk_bf16_f32 v{r0+3}, v{r1+2}, v{r1+3}"]
    def store_frag(r0, f):
        return [f"s_add_u32 s47, s46, {(f>>2)*4096}", f"buffer_store_dwordx4 {v(r0,4)}, v{V_L16}, {WS}, s47 offen offset:{(f&3)*1024}{kvsc}"]
    accV = lambda p, dbl, kb: (208 + dbl*16 if p % 2 == 0 else (128, 96)[dbl]) + kb*4
    epi = {}
    kj = [(accK(2*s_,kb), accK(2*s_+1,kb), kb*4+s_) for s_ in range(4) for kb in range(4)]
    for i, job in enumerate(kj): epi.setdefault(i//2, []).append(job)
    sts = {}
    for i, job in enumerate(kj): sts[[0,1,2,3, 4,5,6,7, 8,10,12,14, 16,18,20,22][i]] = job
    for p in range(3):
        vj = [(accV(p,dbl,2*j), accV(p,dbl,2*j+1), 16 + j*8 + 2*p+dbl) for dbl in range(2) for j in range(2)]
        for i, job in enumerate(vj):
            G_ = (p+1)*8 + (1 + 2*i if p < 2 else i)
            epi.setdefault(G_, []).append(job); sts[G_] = job
    RB = [138240, 87040, 61440, 112640]
    QBASE = 87040
    def qwdma(t):
        slot = RB[t % 4]
        return [(rotk(t, 19, 44, S_TMP) + [f"s_add_u32 m0, s{S_W4K}, {slot}"], f"buffer_load_dwordx4 v4, s[{SRD_WQ}:{SRD_WQ+3}], s{S_TMP} offen lds")] + \
               [(None, f"buffer_load_dwordx4 v{4+j}, s[{SRD_WQ}:{SRD_WQ+3}], s{S_TMP} offen offset:{j*1024} lds") for j in range(1, 4)] + \
               [([f"s_add_u32 s{S_TMP}, s33, {t*64*2752}",
                  f"s_add_u32 m0, s35, {slot+16384}"], f"buffer_load_dwordx4 v16, s[{SRD_W1}:{SRD_W1+3}], s{S_TMP} offen lds"),
                (None, f"buffer_load_dwordx4 v17, s[{SRD_W1}:{SRD_W1+3}], s{S_TMP} offen offset:1152 lds")]
    def xload(t):
        r = []
        for qb in range(4):
            for kk in range(2):
                pre = None
                if qb == 0 and kk == 0: pre = rotk(t, 11, 34, S_TMP2)
                elif kk == 0: pre = [f"s_add_u32 s{S_TMP2}, s{S_TMP2}, 16384"]
                r.append((pre, f"buffer_load_dwordx4 {a((qb*16+2*t+kk)*4,4)}, v{V_L16}, {WS}, s{S_TMP2} offen offset:{kk*1024}{xsc}"))
        return r
    WR = 208
    def blk(n):
        t, c = n//11, n % 11
        return t, (c if t < 7 else (c+8) % 11)
    def breads(n):
        t, cb = blk(n)
        r = []
        so = RB[t % 4] - QBASE
        if so < 0: so = 0
        for kk in range(2):
            dst = WR + (n % 6)*8 + kk*4
            if cb < 8: off = so + kk*8192; areg = 8+cb; h2 = 1024
            else: off = so + kk*4608 + (cb-8)*32; areg = 18; h2 = 384
            r += [tr(dst, areg, off), tr(dst+2, areg, off+h2)]
        return r
    def bump(n):
        t, cb = blk(n)
        if cb <= 8 and t % 4 in (2, 3):
            areg = 8+cb if cb < 8 else 18
            return [f"v_subrev_u32 v{areg}, {WSLOT}, v{areg}" if t % 4 == 2 else f"v_add_u32 v{areg}, {WSLOT}, v{areg}"]
        return []
    q_setup_s = [
        f"s_load_dwordx2 s[4:5], s[0:1], {KA['wq']}", f"s_load_dwordx4 s[8:11], s[0:1], {KA['w1']}",
        f"s_lshl_b32 s{S_T2}, s{S_T}, 1",
        f"s_lshr_b32 s{S_STRM}, s{S_WAVE}, 1", f"s_lshl_b32 s{S_STRM}, s{S_STRM}, 16",
        f"s_and_b32 s{S_TMP}, s{S_WAVE}, 1", f"s_lshl_b32 s{S_TMP}, s{S_TMP}, 2",
        f"s_lshr_b32 s{S_TMP2}, s{S_WAVE}, 1", f"s_xor_b32 s{S_TMP2}, s{S_TMP2}, s{S_WAVE}", f"s_and_b32 s{S_TMP2}, s{S_TMP2}, 1", f"s_lshl_b32 s{S_TMP2}, s{S_TMP2}, 2",
        f"s_sub_u32 s{S_QA}, 15, s{S_T}", f"s_lshl_b32 s{S_QA}, s{S_QA}, 3", f"s_add_u32 s{S_QA}, s{S_QA}, s{S_TMP2}",
        f"s_lshl_b32 s{S_Q0}, s{S_T}, 3", f"s_add_u32 s{S_Q0}, s{S_Q0}, s{S_TMP}",
        f"s_cmp_lt_u32 s{S_WAVE}, 2", f"s_cselect_b32 s{S_Q0}, s{S_QA}, s{S_Q0}",
        f"s_lshl_b32 s{S_KVB}, s{S_H}, 20", f"s_add_u32 s{S_KVB}, s{S_KVB}, s{S_W4K}", f"s_add_u32 s{S_KVB}, s{S_KVB}, {WS_KV}",
        f"s_and_b32 s7, s{S_H}, 1", "s_lshl_b32 s6, s7, 5", "s_lshl_b32 s7, s7, 1",
        f"s_mul_i32 s32, s{S_H}, 96", f"s_mul_i32 s33, s{S_WAVE}, {16*2752}", f"s_add_u32 s33, s33, s32",
        f"s_lshl_b32 s34, s{S_Q0}, 14", f"s_add_u32 s34, s34, {xdiag}", f"s_mul_i32 s35, s{S_WAVE}, 2304",
        "s_add_u32 s53, s32, s6", "s_lshl_b32 s6, s6, 1", "s_sub_u32 s54, s32, s6"]
    q_setup_v = [
        f"v_mul_u32_u24 v20, 43, v1", "v_lshrrev_b32 v20, 8, v20", "v_mul_u32_u24 v21, 6, v20", "v_sub_u32 v21, v1, v21",
        "v_add_u32 v21, s7, v21", "v_subrev_u32 v22, 6, v21", "v_min_u32 v21, v21, v22",
        "v_mul_u32_u24 v16, 2752, v20", "v_lshl_add_u32 v16, v21, 4, v16", "v_cmp_gt_u32 vcc, 48, v1", f"v_mov_b32 v20, {OOB}",
        "v_lshrrev_b32 v21, 4, v1", "v_cndmask_b32 v16, v20, v16, vcc", f"v_add_u32 v17, {8*2752-1152}, v16",
        "v_mul_u32_u24 v18, 1152, v21", "v_bfe_u32 v22, v1, 2, 2", "v_mul_u32_u24 v22, 96, v22", "v_add_u32 v18, v18, v22",
        "v_and_b32 v22, 3, v1", "v_lshl_add_u32 v18, v22, 3, v18", f"v_add_u32 v18, {QBASE+16384}, v18",
        "v_lshlrev_b32 v19, 3, v21",
        "v_and_b32 v24, 31, v1", "v_lshlrev_b32 v24, 7, v24"]
    def srd_list(dst, ptr, nbytes):
        return [f"s_mov_b32 s{dst}, s{ptr}", f"s_mov_b32 s{dst+1}, s{ptr+1}", f"s_mov_b32 s{dst+2}, {nbytes}", f"s_mov_b32 s{dst+3}, 0x20000"]
    extra = {}
    def put(G, g, items): extra.setdefault((G, g), []).extend(items)
    for i, x in enumerate(q_setup_s): put(2 + i//12, (4, 5, 6, 8, 9, 10, 11, 12, 13, 14, 14, 14)[i % 12] if i < 12 else (0, 1, 2, 3, 4, 5, 8, 9, 10, 11, 12, 13)[i % 12], [x])
    for i, x in enumerate(q_setup_v): put(5 + i//10, (1, 3, 5, 5, 9, 9, 11, 11, 13, 13)[i % 10], [x])
    put(5, 15, ["s_waitcnt lgkmcnt(0)"])


    for i, x in enumerate(srd_list(SRD_WQ, 4, 4*MB) + srd_list(SRD_W1, 8, 512*2752) + srd_list(SRD_B1, 10, 2752)): put(6, i, [x])
    put(8, 1, [f"s_lshl_b32 s{S_TMP}, s{S_Q0}, 10", f"s_add_u32 s{S_TMP}, s{S_TMP}, {flag_base(F_XN)}"])
    put(8, 3, [f"v_add_u32 v24, s{S_TMP}, v24"])
    put(pxg, 13, [(f"buffer_load_dword v25, v24, {WS}, 0 offen sc1", "pollx")])
    for fb in range(3):
        put(8, 7+2*fb, [(f"buffer_load_dwordx2 v[{26+2*fb}:{27+2*fb}], v19, s[{SRD_B1}:{SRD_B1+3}], s{53 if fb < 2 else 54} offen offset:{fb*32}", "b")])
    def put_ops(G0, g0, lst, tag, step=2):
        G, g = G0, g0
        for pre, x in lst:
            if pre: put(G, g-1, [("P", y) for y in pre])
            put(G, g, [(x, tag)])
            g += step
            while g > 15: G += 1; g -= 16
        return G, g
    if tlb:
        tl = [f"s_mul_i32 s39, s{S_Q0}, 49152", f"s_add_u32 s39, s39, {WS_H}",
              f"s_lshl_b32 s39, s{S_Q0}, 17", f"s_add_u32 s39, s39, {WS_CTX}",
              f"s_lshl_b32 s39, s{S_QA}, 17", f"s_add_u32 s39, s39, {WS_CTX}",
              "s_lshl_b32 s39, s2, 15", f"s_add_u32 s39, s39, {WS_PART}"]
        for i in range(4):
            put(tlb, 4*i, [tl[2*i], tl[2*i+1]])
            put(tlb, 4*i+1, [(f"buffer_load_dword v252, v1, {WS}, s39 offen", "pr")])
    put_ops(0, 1, wdma("v", 6, vslot(6)), "Wv6", 4)
    put_ops(1, 1, wdma("v", 7, vslot(7)), "Wv7", 4)
    cp2 = code_pf(32768, 32768, 32, 44)
    put(9, 1, cp2[:3]); put(9, 3, cp2[3:6]); put(9, 5, [cp2[6]]); put(9, 7, [(cp2[7], "pf2")])
    put(9, 11, ["v_add_u32 v33, 0x8000, v32"]); put(9, 13, [("global_load_dwordx4 v[44:47], v33, s[62:63]", "pf2")])
    if wqg:
        put(wqg+1, 1, [("global_load_dword v252, v3, s[68:69]", "pr")]); put(wqg+1, 5, [("global_load_dword v253, v250, s[64:65]", "pr")])
    put_ops(pxc+9, 3, qwdma(0), "W0", 6)
    XS = lambda i: (64, 48, 32, 80)[i//4] + (i % 4)*4
    xs01 = [(pre, x.replace(x.split()[1], v(XS(i), 4) + ",")) for i, (pre, x) in enumerate(xload(0) + xload(1))]
    put_ops(pxc, 7, xs01, "X01", 8)
    for nb in range(8): put(23, 1+2*nb, [f"v_subrev_u32 v{8+nb}, {114688-QBASE}, v{8+nb}"])
    put(27, 0, ["WAITX"])
    mv = []
    for i in range(16):
        t_, qb, kk = i//8, (i//2) % 4, i % 2
        mv += [f"v_accvgpr_write_b32 a{(qb*16+2*t_+kk)*4+r}, v{XS(i)+r}" for r in range(4)]
    for i, x in enumerate(mv): put(27 + i//16, 1 + 2*((i % 16)//2), [x])
    put_ops(28, 3, qwdma(1), "W1", 4)
    put_ops(30, 1, xload(2), "X2", 4)
    for G in range(32):
        p, ksg, dbl = p2addr(G)
        M = []
        for kb in range(4):
            for k4 in range(4):
                ks = ksg*4+k4
                c = v(accV(p,dbl,kb),4)
                M.append(mf(c, a((kb*16+ks)*4,4), v(WF + (G%4)*16 + k4*4,4), "0" if ks == 0 else c))
        w = lg.wait(f"S{G}")
        if w: A.I(w)
        if G in (4, 12, 20, 27) and not fine or (fine and G % 4 == 0 and G > 0): ST.stamp()
        if G == pxc:
            A.I(vm.wait(["pollx", "b"]))
            poll_check(24, 25, S_TMP, vmask=23)
            for fb in range(3):
                for k in range(2):
                    A.I(f"v_lshlrev_b32 v{32+fb*4+2*k}, 16, v{26+2*fb+k}")
                    A.I(f"v_and_b32 v{33+fb*4+2*k}, 0xffff0000, v{26+2*fb+k}")
            for i in range(12): A.I(f"v_mov_b32 v{20+i}, v{32+i}")
        if G in (0, 2, 5):
            A.I(vm.wait({0: "Wv3", 2: "Wv5", 5: "Wv7"}[G]))
            A.I("s_barrier")
        if G == 0 and xst_t == 6: pubxn()
        rsched = {0: [2], 1: [3], 2: [4], 3: [5], 4: [], 5: [6, 7], 6: [8, 9]}.get(G, [G+3] if G+3 < 32 else [])
        rl = [(x, f"S{G2}") for G2 in rsched for x in reads2(G2)]
        if G == 28:
            A.I(vm.wait("W0"))
            A.I("s_barrier")
        jobs = epi.get(G, [])
        ml = []
        if G < 8:
            if G == 0: lnq += [f"v_mul_f32 v{r+k}, s52, v{r+k}" for kb in range(4) for r in (accK(6,kb), accK(7,kb)) for k in range(4)]
            ml = lnq
            while len(lnq) > 128 - 16*(G+1): A.I(lnq.pop(0)); print("flush mul", G)
        cv = []; st = {}
        for i, (r0, r1, f) in enumerate(jobs): cv += cvt_frag(r0, r1)
        if G in sts: st[15 if G < 8 else 11] = store_frag(sts[G][0], sts[G][2])
        for g in range(16):
            A.I(M[g])
            ex = extra.get((G, g), [])
            for x in ex:
                if x == "WAITX": A.I(vm.wait("X01"))
                elif isinstance(x, tuple) and x[0] == "P": A.I(x[1])
                elif isinstance(x, str) and x.startswith("s_"):
                    A.I(x)
                    if x == "s_waitcnt lgkmcnt(0)": lg.drain()
            if g in st: A.I(st[g][0])
            if rl and g not in st and (g % 2 == 0 or len(rsched) > 1):
                for _ in range(2 if len(rl) > 15 - g and len(rsched) > 1 else 1):
                    if rl:
                        x = rl.pop(0); A.I(x[0]); lg.issue(x[1])
            if G >= 29 and g % 2 == 0:
                n = (G-29)*2 + g//8
                if n < 5: A.I(breads(n)[(g//2) % 4]); lg.issue(f"R{n}")
            if g in st:
                A.I(st[g][1]); vm.issue("st")
            for x in ex:
                if isinstance(x, tuple) and x[0] != "P": A.I(x[0]); vm.issue(x[1])
                elif isinstance(x, str) and not x.startswith("s_") and x != "WAITX": A.I(x)
            if g % 2 == 1 and g not in st:
                for _ in range(0 if any(isinstance(x, tuple) and x[0] != 'P' for x in ex) else 2):
                    if ml: A.I(ml.pop(0))
            if len(jobs) > 1:
                if g % 2 == 0: A.I(cv[g//2])
            elif len(jobs) == 1 and g % 2 == 0 and g < 8:
                A.I(cv[g//2])
            if (G+4) % 8 == 0 and G+4 < 32 and g in (1, 3, 5, 9):
                A.I(p2setup((G+4)//8)[(1,3,5,9).index(g)])
        assert not rl, G
    A.I("s_barrier")
    ST.stamp()
    A.label(L("qgemm"))
    def kvdma(tile, voff, ldsoff):
        return [([f"s_add_u32 s{S_TMP}, s{S_KVB}, {tile*32768+voff}", f"s_add_u32 m0, s{S_W4K}, {ldsoff}"] if j == 0 else None,
                 f"buffer_load_dwordx4 v{V_L16}, {WS}, s{S_TMP} offen offset:{j*1024} sc1 lds") for j in range(4)]
    xt = {t: f"X{t}" for t in range(8)}
    pend = []
    gel = []
    for qb in range(4):
        for fb in range(3):
            x0 = accF(fb, qb); T = [20+r for r in range(4)]
            for r in range(4): gel.append(f"v_mul_f32 v{T[r]}, v{x0+r}, v{x0+r}")
            for r in range(4): gel.append(f"v_fma_f32 v{T[r]}, v{T[r]}, s32, v28")
            for r in range(4): gel.append(f"v_mul_f32 v{T[r]}, v{T[r]}, v{x0+r}")
            for r in range(4): gel.append(f"v_exp_f32 v{T[r]}, v{T[r]}")
            for r in range(4): gel.append(f"v_add_f32 v{T[r]}, 1.0, v{T[r]}")
            for r in range(4): gel.append(f"v_rcp_f32 v{T[r]}, v{T[r]}")
            for r in range(4): gel.append(f"v_mul_f32 v{x0+r}, v{x0+r}, v{T[r]}")
            d0 = accF(0, qb) + 2*fb if fb < 2 else x0
            gel.append(f"v_cvt_pk_bf16_f32 v{d0}, v{x0}, v{x0+1}")
            gel.append(f"v_cvt_pk_bf16_f32 v{d0+1}, v{x0+2}, v{x0+3}")
            if fb == 1:
                gel.append(f"s_add_u32 s35, s34, {qb*49152}")
                gel.append(f"buffer_store_dwordx4 {v(accF(0,qb),4)}, v29, {WS}, s35 offen sc1")
            if fb == 2:
                gel.append(f"buffer_store_dwordx2 {v(x0,2)}, v30, {WS}, s35 offen sc1")
    qfin = []
    for s_ in range(4):
        grp = []
        for qb in range(4):
            r0, r1 = accQ(2*s_, qb), accQ(2*s_+1, qb)
            grp += cvt_frag(r0, r1)
            grp.append(f"ds_write_b128 v27, {v(r0,4)} offset:{(qb*4+s_)*1024}")
        qfin.append(grp)
    vq = []; sq = []
    def take(budget):
        while budget > 0 and (vq or (gel and gel_ok[0])):
            src = vq if vq else gel
            x = src[0]
            cost = 2 if ("v_exp" in x or "v_rcp" in x or "buffer" in x or "ds_write" in x) else (0 if x.startswith("s_") else 1)
            if cost > budget: break
            A.I(src.pop(0)); budget -= cost
            if "buffer" in x: vm.issue("hs")
            if "ds_write" in x: lg.issue("qs")
    gel_ok = [False]
    kq = [(rdfrag(base+4*s_, V_K, kb*4+s_), f"k{kb}") for kb, base in enumerate((KA_, VA, VB)) for s_ in range(4)]
    pfq = []
    slotok = lambda gg, t: (gg % 6 == 1) if qeven else (gg % 4 == 1)
    tail = []
    for dbl in (1, 0):
        for j in range(2):
            r0, r1 = accV(3,dbl,2*j), accV(3,dbl,2*j+1)
            tail.append((cvt_frag(r0, r1), store_frag(r0, 16 + j*8 + 6+dbl)))
    for n in range(88):
        t, cb = blk(n)
        c_ = n % 11
        if n == 66:
            for x in [f"s_mov_b32 s32, {G2}", f"s_mov_b32 s33, {G1}", "v_mov_b32 v28, s33",
                      f"s_mul_i32 s34, s{S_Q0}, 49152", f"s_add_u32 s34, s34, {WS_H}",
                      f"s_mul_i32 s47, s{S_H}, 3", "s_add_u32 s35, s47, 1", "s_lshr_b32 s35, s35, 1", "s_lshl_b32 s35, s35, 10",
                      f"v_add_u32 v29, s35, v{V_L16}",
                      f"s_and_b32 s47, s{S_H}, 1", f"s_mul_i32 s47, s47, {8-2048}", "s_add_u32 s47, s47, 1024", "v_add_u32 v30, s47, v29",
                      "s_lshl_b32 s61, s2, 1", f"s_lshr_b32 s47, s{S_WAVE}, 1", f"s_xor_b32 s47, s47, s{S_WAVE}", "s_and_b32 s47, s47, 1",
                      "s_add_u32 s61, s61, s47", "s_lshl_b32 s61, s61, 10", f"s_add_u32 s61, s61, {WS_NEGM - 16384}",
                      "s_lshl_b32 s47, s47, 14", "s_add_u32 s47, s47, 131072", f"v_add_u32 v31, s47, v{V_L16}",
                      f"s_cmp_lt_u32 s{S_WAVE}, 2", f"s_cselect_b32 s47, s47, 0x10000", f"v_add_u32 v27, s47, v{V_L16}"]: A.I(x)
        if n == 68:
            sq += [f"s_mov_b32 s{S_I}, -1", f"s_add_u32 s{S_E}, s{S_T2}, 2", f"s_add_u32 s{S_C}, s{S_T2}, 4", f"s_sub_u32 s{S_DG}, 30, s{S_T2}", f"s_mov_b32 s{S_FAIL}, 0"] + \
                  tile_calc(S_K0, 3, 0, 0) + tile_calc(S_V0, 2, 0, 16384) + lds_calc() + tile_calc(S_K1, 3, 1, 0) + tile_calc(S_V1, 2, 1, 16384) + [f"s_mov_b32 s{S_I}, 0"]
            vq += ["v_and_b32 v24, 15, v1", "v_lshrrev_b32 v25, 4, v1", "v_lshlrev_b32 v25, 2, v25"]
            for r in range(4):
                vq += [f"v_add_u32 v26, {r}, v25", f"v_cmp_le_u32 s[{S_MASK+2*r}:{S_MASK+2*r+1}], v26, v24"]
            vq += ["v_and_b32 v24, 3, v1", "v_cmp_eq_u32 vcc, 0, v24", "v_mov_b32 v25, 0x3f803f80", "v_nop", "v_cndmask_b32 v24, 0, v25, vcc"]
            vq += [f"v_accvgpr_write_b32 a{ONES+i}, v24" for i in range(4)]
        if t == 7:
            if c_ == 4:
                gel_ok[0] = True
                A.I(vm.wait("KV0"))
                A.I("s_barrier")
                A.I(f"v_mov_b32 v{V_K}, v{V_L16}")
            if c_ >= 6 and c_ % 2 == 0: vq += qfin[(c_-6)//2]
        if c_ == 0:
            w = vm.wait(xt[t])
            if w: A.I(w)
            if t <= 5: pend += [(p, x, f"W{t+2}") for p, x in qwdma(t+2)]
            if t <= 4: pend += [(p, x, f"X{t+3}") for p, x in xload(t+3)]
            if t == 0:
                A.I(f"s_and_b32 s{S_TMP}, s2, 31")
                A.I(f"s_lshl_b32 s{S_TMP}, s{S_TMP}, 9")
                A.I(f"s_add_u32 s{S_TMP}, s{S_TMP}, {flag_base(F_XN)}")
                A.I("v_bfe_u32 v3, v1, 2, 3")
                A.I("v_lshlrev_b32 v3, 14, v3")
                A.I("v_and_b32 v19, 3, v1")
                A.I("v_lshl_add_u32 v3, v19, 7, v3")
                A.I(f"v_add_u32 v3, s{S_TMP}, v3")
                A.I(f"buffer_load_dword v19, v3, {WS}, 0 offen sc1"); vm.issue("pollid")
            if t == 5:
                cp3 = code_pf(34816, 65536, 3, 20)
                for x in cp3: A.I(x)
                vm.issue("pf3")
            if t == 5: pend += [(p, x, "KV0") for p, x in kvdma(0, 0, 0) + kvdma(1, 0, 16384)]
            if t == pft:
                for i in range(4): A.I(f"v_accvgpr_write_b32 a{i}, -1")
                for x in [f"s_lshl_b32 s64, s2, 2", f"s_add_u32 s64, s64, s{S_WAVE}", f"s_lshl_b32 s64, s64, 13", f"s_add_u32 s64, s64, {WS_PART}", f"s_add_u32 s65, s64, 4096"]: A.I(x)
                pfq += [f"buffer_store_dwordx4 a[0:3], v{V_L16}, {WS}, s{64+i//4} offen offset:{(i%4)*1024} sc1" for i in range(8)]
            if t == 6: pend += [(p, x, "KV0") for p, x in kvdma(0, 16384, 32768)]
            if t == 3:
                A.I(f"v_add_u32 v3, {flag_base(F_KV) - flag_base(F_XN)}, v3")
                A.I(f"buffer_load_dword v19, v3, {WS}, 0 offen sc1"); vm.issue("pollkv")
            if t == 4:
                A.I(vm.wait("pollkv"))
                poll_check(3, 19, 47)
        w = lg.wait(f"R{n}")
        if w: A.I(w)
        if c_ == 0 and (t in (2, 4, 6) or (fine and t > 0)): ST.stamp()
        if c_ == 6 and t < 7:
            tags = [f"W{t+1}"] + (["st"] if t == 1 else [])
            A.I(vm.wait(tags))
            A.I("s_barrier")
            if t == 1:
                assert vm.need("pollid") is None
                poll_check(3, 19, 47, vmask=31)
                A.I(f"v_cmp_ne_u32 vcc, s{S_ID}, v19")
                A.I(f"s_cbranch_vccz {L('samexcd')}")
                A.I("buffer_wbl2 sc1")
                A.I("s_waitcnt vmcnt(0)")
                A.label(L("samexcd"))
                for x in set_flag(F_KV, 31, 19, 47): A.I(x)
                vm.issue("fl")
        nx = n+5
        rds = breads(nx) if nx < 88 else []
        if nx < 88:
            for x in bump(nx): A.I(x)
        i = 0
        for qb in range(4):
            for kk in range(2):
                if cb < 8: d = v(accQ(cb, qb), 4); c0 = "0"
                else: d = v(accF(cb-8, qb), 4); c0 = v(20+(cb-8)*4, 4)
                A.I(mf(d, v(WR + (n % 6)*8 + kk*4, 4), a((qb*16+2*t+kk)*4, 4), c0 if (t == 0 and kk == 0) else d))
                if i % 2 == 0:
                    if pend and pend[0][0] and slotok(c_*8 + i + 1, t):
                        for y in pend[0][0]: A.I(y)
                        pend[0] = (None,) + pend[0][1:]
                        if not rds: A.I("s_nop 0")
                    if rds: A.I(rds[i//2]); lg.issue(f"R{nx}")
                elif pend and slotok(c_*8 + i, t) and not pend[0][0]:
                    p, x, tag = pend.pop(0)
                    A.I(x); vm.issue(tag)
                if pfq and i == 3 and n % pfs == 0:
                    A.I(pfq.pop(0)); vm.issue("pfl")
                tn = {1: 0, 2: 1, 4: 2, 5: 3}.get(n)
                if tn is not None:
                    if i % 2 == 0: A.I(tail[tn][0][i//2])
                    if i == 7:
                        for x in tail[tn][1]: A.I(x)
                        vm.issue("st")
                if n >= 83 and i % 2 == 0 and kq:
                    x = kq.pop(0); A.I(x[0]); lg.issue(x[1])
                if n >= 68:
                    if sq: A.I(sq.pop(0))
                    take(1 if (i % 2 == 0 and (rds or n < 86)) else (0 if (i == 3 and n % pfs == 0 and n < 55 + 8*pfs) else 2))
                i += 1
    assert not pend and not pfq
    assert not sq
    qrest = vq + qfin[3]
    k2.WTOUCH[:] = ["s_lshl_b32 s7, s2, 2", f"s_add_u32 s7, s7, s{S_WAVE}", "v_and_b32 v18, 31, v1", "v_lshlrev_b32 v18, 7, v18", "v_min_u32 v17, 0x500, v18",
              "s_lshl_b32 s33, s7, 12", "v_add_u32 v18, s33, v18", "s_mul_i32 s7, s7, 1408", "v_add_u32 v17, s7, v17", f"v_min_u32 v17, {1376*1024-4}, v17",
              "global_load_dword v4, v18, s[70:71]", "global_load_dword v4, v17, s[66:67]"]
    k2.WOFB[0] = wofb
    if wofb: k2.WTOUCH[:] = k2.WTOUCH[:-2]
    elif not wotouch: k2.WTOUCH[:] = []
    ST.stamp()
    SP, SRT, SCT, SQH, SKH, SBB, SBS, SNV, SWB, SM0 = 64, 65, 66, 67, 68, 69, 70, 71, 4, 5
    T0, T1, T2 = 6, 7, 35
    SEARLY = 58
    WW, SX, SO, SB2 = 20, 24, 28, 12
    vm4 = Cnt("vmcnt", 63)
    def slot4(u):
        return ([2, 0, 1, 3][(u-1) % 4] if u > 0 else 2)*16384
    def w4dma(u):
        r = []
        for i in range(8):
            pre = None
            if i % 4 == 0:
                m0 = f"s_add_u32 m0, s{SM0}, {slot4(u) + (i//4)*4096}" if u != 1 else f"s_add_u32 m0, s39, {(i//4)*4096}"
                pre = [f"s_add_u32 s{T0}, s{SWB}, {u*65536 + (i//4)*16384}", m0]
            r.append((pre, f"buffer_load_dwordx4 v{4+i%4}, s[{WW}:{WW+3}], s{T0} offen offset:{(i%4)*1024} lds"))
        return r
    def issue4(lst, tag):
        for pre, x in lst:
            if pre:
                for y in pre: A.I(y)
                if "lds" in x: A.I("s_nop 0")
            A.I(x); vm4.issue(tag)
    Bf = lambda u, qb, kk: 128 + (u % 4)*32 + (qb*2+kk)*4
    def bload(u):
        r = []
        for qb in range(4):
            for kk in range(2):
                ks = 2*u+kk
                pre = []
                if qb == 0 and kk == 0: pre.append(f"s_add_u32 s{T1}, s{SBB}, {(ks>>2)*4096}")
                elif kk == 0: pre.append(f"s_add_u32 s{T1}, s{T1}, s{SBS if qb != 2 else 48}")
                so = T1
                if ks >= 18:
                    pre += [f"s_cmp_gt_u32 s{SNV}, {ks}", f"s_cselect_b32 s{T2}, s{T1}, {OOB}"]
                    so = T2
                r.append((pre or None, f"buffer_load_dwordx4 {a(Bf(u,qb,kk),4)}, v{V_L16}, {WS}, s{so} offen offset:{(ks&3)*1024}{csc}"))
        return r
    def oproj_setup(stage):
        if stage == 0:
            Z = Asm()
            Z.I(f"s_load_dwordx2 s[8:9], s[0:1], {KA['wo']}")
            Z.I(f"s_load_dwordx4 s[12:15], s[0:1], {KA['w2']}")
            Z.I(f"s_load_dwordx2 s[24:25], s[0:1], {KA['x']}")
            Z.I(f"s_load_dwordx2 s[28:29], s[0:1], {KA['out']}")
            Z.I(f"s_and_b32 s{SP}, s2, 3")
            Z.I(f"s_lshr_b32 s{T0}, s2, 3")
            Z.I(f"s_and_b32 s{SCT}, s{T0}, 3")
            Z.I(f"s_lshr_b32 s{SRT}, s{T0}, 2")
            Z.I(f"s_and_b32 s{T1}, s2, 4")
            Z.I(f"s_lshl_b32 s{T1}, s{T1}, 1")
            Z.I(f"s_add_u32 s{SRT}, s{SRT}, s{T1}")
            Z.I(f"s_and_b32 s{SQH}, s{S_WAVE}, 1")
            Z.I(f"s_lshr_b32 s{SKH}, s{S_WAVE}, 1")
            Z.I(f"s_lshl_b32 s{T0}, s{SP}, 1")
            Z.I(f"s_add_u32 s{T0}, s{T0}, s{SKH}")
            Z.I(f"s_cmp_eq_u32 s{T0}, 5")
            Z.I(f"s_cselect_b32 s{SNV}, 18, 22")
            Z.I(f"s_sub_u32 s{T1}, 22, s{SKH}")
            Z.I(f"s_cmp_eq_u32 s{SP}, 3")
            Z.I(f"s_cselect_b32 s{SNV}, s{T1}, s{SNV}")
            Z.I(f"s_cselect_b32 s{T0}, s{SKH}, s{T0}")
            Z.I(f"s_mov_b32 s{T2}, 131072")
            Z.I(f"s_cselect_b32 s{SBS}, 49152, s{T2}")
            Z.I(f"s_mov_b32 s{T2}, {WS_CTX}")
            Z.I(f"s_cselect_b32 s{SBB}, {WS_H}, s{T2}")
            Z.I(f"s_mul_i32 s{T0}, s{T0}, 22")
            Z.I(f"s_lshl_b32 s{T1}, s{SRT}, 3")
            Z.I(f"s_lshl_b32 s{T2}, s{SQH}, 2")
            Z.I(f"s_add_u32 s{T1}, s{T1}, s{T2}")
            Z.I(f"s_lshl_b32 s{T2}, s{SKH}, 1")
            Z.I(f"s_add_u32 s{T1}, s{T1}, s{T2}")
            Z.I(f"s_lshl_b32 s49, s{T1}, 14")
            Z.I(f"s_mul_i32 s48, s{SKH}, -4")
            Z.I(f"s_add_i32 s48, s48, 1")
            Z.I(f"s_mul_i32 s48, s48, s{SBS}")
            Z.I(f"s_mul_i32 s{T1}, s{T1}, s{SBS}")
            Z.I(f"s_add_u32 s{SBB}, s{SBB}, s{T1}")
            Z.I(f"s_lshl_b32 s{T1}, s{T0}, 10")
            Z.I(f"s_add_u32 s{SBB}, s{SBB}, s{T1}")
            Z.I(f"s_add_u32 s{T0}, s{T0}, s{SQH}")
            Z.I(f"s_lshl_b32 s{SWB}, s{T0}, 15")
            Z.I(f"s_lshl_b32 s{T1}, s{SCT}, 8")
            Z.I(f"s_add_u32 s{SWB}, s{SWB}, s{T1}")
            Z.I(f"s_lshl_b32 s{SM0}, s{SKH}, 16")
            Z.I(f"s_lshl_b32 s{T1}, s{SQH}, 13")
            Z.I(f"s_add_u32 s{SM0}, s{SM0}, s{T1}")
            Z.I("v_and_b32 v16, 15, v1")
            Z.I("v_lshrrev_b32 v17, 4, v1")
            Z.I("v_lshrrev_b32 v18, 1, v16")
            Z.I("v_xor_b32 v18, v18, v17")
            Z.I("v_and_b32 v19, 1, v16")
            Z.I("v_lshlrev_b32 v19, 4, v19")
            Z.I("v_lshl_add_u32 v19, v17, 10, v19")
            Z.I("v_lshl_add_u32 v4, v18, 5, v19")
            Z.I("v_xor_b32 v18, 4, v18")
            Z.I("v_lshl_add_u32 v5, v18, 5, v19")
            Z.I(f"v_add_u32 v6, {2*3072}, v4")
            Z.I(f"v_add_u32 v7, {3*3072}, v5")
            Z.I(f"v_add_u32 v5, {3072}, v5")
            Z.I("s_waitcnt lgkmcnt(0)")
            Z.I(f"s_cmp_eq_u32 s{SP}, 3")
            Z.I(f"s_cselect_b32 s{WW}, s12, s8")
            Z.I(f"s_cselect_b32 s{WW+1}, s13, s9")
            Z.I(f"s_mov_b32 s{T1}, {4*MB}")
            Z.I(f"s_cselect_b32 s{WW+2}, {1376*1024}, s{T1}")
            Z.I(f"s_mov_b32 s{WW+3}, 0x20000")
            Z.I(f"s_mov_b32 s12, s14"); Z.I(f"s_mov_b32 s13, s15"); Z.I(f"s_mov_b32 s14, 1024"); Z.I(f"s_mov_b32 s15, 0x20000")
            Z.I(f"s_mov_b32 s26, {2*MB}"); Z.I("s_mov_b32 s27, 0x20000"); Z.I(f"s_mov_b32 s30, {2*MB}"); Z.I("s_mov_b32 s31, 0x20000")
            Z.I(f"s_lshl_b32 s{T1}, s{SKH}, 14")
            Z.I(f"s_lshl_b32 s{T2}, s{SQH}, 13")
            Z.I(f"s_add_u32 s{T1}, s{T1}, s{T2}")
            Z.I(f"s_add_u32 s39, s{T1}, 131072")
            for pre, x in w4dma(0):
                for y in (pre or []): Z.I(y)
                if pre: Z.I("s_nop 0")
                Z.I(x)
            Z.I("v_bfe_u32 v16, v1, 2, 2")
            Z.I("v_lshl_add_u32 v18, v17, 2, v16")
            Z.I("v_lshlrev_b32 v18, 8, v18")
            Z.I("v_and_b32 v19, 3, v1")
            Z.I("v_lshl_add_u32 v18, v19, 3, v18")
            Z.I(f"s_lshl_b32 s{T1}, s{SKH}, 16")
            Z.I(f"v_add_u32 v18, s{T1}, v18")
            Z.I("v_and_b32 v19, 1, v17")
            Z.I("v_lshl_add_u32 v16, v19, 2, v16")
            Z.I(f"s_mul_i32 s{T1}, s{SKH}, {16384-65536}")
            Z.I(f"s_add_u32 s{T1}, s{T1}, 131072")
            for nb in range(8):
                Z.I(f"v_xor_b32 v19, {nb}, v16")
                Z.I(f"v_lshl_add_u32 v{8+nb}, v19, 5, v18")
                Z.I(f"v_add_u32 v{20+nb}, s{T1}, v{8+nb}")
            Z.I(f"s_mul_i32 s{T0}, s{SP}, 11")
            Z.I(f"s_add_u32 s{T1}, s{T0}, 10")
            Z.I(f"s_min_u32 s{T1}, s{T1}, 31")
            Z.I(f"s_cmp_eq_u32 s{SP}, 3")
            Z.I(f"s_cselect_b32 s{T0}, 0, s{T0}")
            Z.I(f"s_cselect_b32 s{T1}, 28, s{T1}")
            Z.I("v_and_b32 v28, 31, v1")
            Z.I(f"v_add_u32 v28, s{T0}, v28")
            Z.I(f"v_cmp_ge_u32 s[{SEARLY}:{SEARLY+1}], s{T1}, v28")
            Z.I(f"v_min_u32 v28, s{T1}, v28")
            Z.I("v_lshrrev_b32 v29, 2, v28")
            Z.I("v_and_b32 v28, 3, v28")
            Z.I("v_lshl_add_u32 v28, v28, 3, v29")
            Z.I("v_lshlrev_b32 v28, 9, v28")
            Z.I(f"s_sub_u32 s{T0}, 15, s{SRT}")
            Z.I(f"s_min_u32 s{T0}, s{T0}, s{SRT}")
            Z.I(f"s_lshl_b32 s{T0}, s{T0}, 14")
            Z.I(f"s_lshl_b32 s{T1}, s{SQH}, 7")
            Z.I(f"s_add_u32 s{T0}, s{T0}, s{T1}")
            Z.I(f"s_cmp_lt_u32 s{SRT}, 8")
            Z.I(f"s_cselect_b32 s{T1}, 256, 0")
            Z.I(f"s_add_u32 s{T0}, s{T0}, s{T1}")
            Z.I(f"s_cmp_lt_u32 s{SRT}, 8")
            Z.I(f"s_mov_b32 s{T1}, {flag_base(F_A)}")
            Z.I(f"s_cselect_b32 s{T1}, {flag_base(F_B)}, s{T1}")
            Z.I(f"s_mul_i32 s{T2}, s{SQH}, -256")
            Z.I(f"s_addk_i32 s{T2}, 384")
            Z.I(f"s_cmp_lt_u32 s{SRT}, 8")
            Z.I(f"s_cselect_b32 s{T2}, 0, s{T2}")
            Z.I(f"s_cmp_eq_u32 s{SP}, 3")
            Z.I(f"s_cselect_b32 s{T1}, {flag_base(F_H)}, s{T1}")
            Z.I(f"s_cselect_b32 s{T2}, 0, s{T2}")
            Z.I(f"s_add_u32 s{T0}, s{T0}, s{T1}")
            Z.I(f"v_add_u32 v28, s{T0}, v28")
            Z.I("v_lshrrev_b32 v29, 5, v1")
            Z.I(f"v_mul_u32_u24 v29, s{T2}, v29")
            Z.I("v_add_u32 v28, v28, v29")
            if apollA:
                Z.I(f"v_mov_b32 v29, s{S_NONCE}")
                Z.I(f"s_mov_b64 exec, s[{SEARLY}:{SEARLY+1}]")
                for x in pload(29, 28, True): Z.I(x)
                Z.I("s_mov_b64 exec, -1")
            else: Z.I(f"buffer_load_dword v29, v28, {WS}, 0 offen sc1")
            return [x.text for x in Z.check(fix=True, seq=Z.items)]
    def oproj():
        lg4 = Cnt("lgkmcnt", 15)
        WF4 = 192
        wf = lambda mb, kk: WF4 + (mb*2+kk)*4
        def reads(u, mb):
            r = []
            for kk in range(2):
                off = (slot4(u) if u != 1 else 0) + kk*8192
                areg = (8 if u != 1 else 20) + mb
                r += [tr(wf(mb,kk), areg, off), tr(wf(mb,kk)+2, areg, off+4096)]
            return r
        acc = lambda mb, qb: 64 + (mb*4+qb)*4
        def emit(lst):
            for pre, x in lst:
                for y in (pre or []): A.I(y)
                if pre and "lds" in x: A.I("s_nop 0")
                A.I(x)
        su0 = oproj_setup(0)
        k0 = min(i for i, x in enumerate(su0) if " lds" in x) - 3
        for x in su0[:k0]: A.I(x)
        A.I("s_waitcnt vmcnt(0)")
        for x in set_flag(F_A, 30, 31, 34): A.I(x)
        for x in su0[k0:]: A.I(x)
        A.I("s_waitcnt vmcnt(0)")
        A.I("s_barrier")
        for mb in range(7):
            for x in reads(0, mb): A.I(x); lg4.issue(f"R0_{mb}")
        A.I(f"v_cmp_ne_u32 vcc, s{S_NONCE}, v29")
        A.I(f"s_cbranch_vccnz {L('late')}")
        emit(bload(0) + w4dma(1) + w4dma(2) + w4dma(3) + w4dma(4))
        A.I("s_waitcnt vmcnt(32)")
        A.I(f"s_branch {L('haveB')}")
        A.label(L("late"))
        if apollA: A.I(f"s_mov_b64 exec, s[{SEARLY}:{SEARLY+1}]")
        for x in pload(29, 28, apollA): A.I(x)
        A.I("s_mov_b64 exec, -1")
        emit(w4dma(1) + w4dma(2) + w4dma(3) + w4dma(4))
        A.I("s_waitcnt vmcnt(32)")
        if apollA: A.I(f"s_mov_b64 exec, s[{SEARLY}:{SEARLY+1}]")
        poll_check(28, 29, T0, atomic=apollA)
        A.I("s_mov_b64 exec, -1")
        emit(bload(0))
        A.I("s_waitcnt vmcnt(0)")
        A.label(L("haveB"))
        vE = Cnt("vmcnt", 63); vL = Cnt("vmcnt", 63)
        for tg in ["W1"]*8 + ["W2"]*8 + ["W3"]*8 + ["W4"]*8: vE.issue(tg)
        class Both:
            def issue(self, t): vE.issue(t); vL.issue(t)
            def wait(self, t):
                a_, b_ = vE.need(t), vL.need(t)
                n_ = [x for x in (a_, b_) if x is not None]
                return f"s_waitcnt vmcnt({min(n_)})" if n_ else None
        vm4 = Both()
        NU = 11
        su = [f"s_lshl_b32 s50, s{SCT}, 8", f"s_lshl_b32 s51, s{SP}, 6", "s_add_u32 s50, s50, s51", "s_add_u32 s54, s49, s50",
              "v_and_b32 v16, 15, v1", "v_lshrrev_b32 v17, 4, v1", "v_lshlrev_b32 v18, 3, v17", "v_lshl_add_u32 v19, v16, 10, v18", "v_add_u32 v20, 16384, v19",
              f"s_lshl_b32 s51, s{SKH}, 16", f"s_lshl_b32 s55, s{SQH}, 15", "s_add_u32 s51, s51, s55", "s_add_u32 s51, s51, 16384",
              f"v_add_u32 v21, s51, v{V_L16}", "s_xor_b32 s51, s51, 0x10000", f"v_add_u32 v22, s51, v{V_L16}",
              "s_and_b32 s55, s2, 0xfc", "s_lshl_b32 s56, s55, 9", "s_lshl_b32 s55, s55, 15", f"s_lshl_b32 s51, s{S_WAVE}, 13", "s_add_u32 s55, s55, s51",
              f"s_add_u32 s55, s55, {WS_PART}", f"s_lshl_b32 s51, s{S_WAVE}, 7", "s_add_u32 s56, s56, s51", f"s_add_u32 s56, s56, {flag_base(F_H)}",
              "v_and_b32 v23, 3, v1", "v_lshlrev_b32 v23, 9, v23", "v_add_u32 v23, s56, v23",
              f"s_lshl_b32 s51, s{SP}, 15", "s_add_u32 s56, s55, s51", f"s_lshl_b32 s51, s{SP}, 11", "s_add_u32 s55, s55, s51"]
        for q_ in range(4):
            su += [f"s_add_u32 s{40+q_}, s55, {q_*32768}", f"s_add_u32 s{44+q_}, s56, {q_*2048}", f"s_cmp_eq_u32 s{SP}, {q_}",
                   f"s_cselect_b32 s{40+q_}, {OOB}, s{40+q_}", f"s_cselect_b32 s{44+q_}, {OOB}, s{44+q_}"]
        xl = [f"buffer_load_dwordx2 v[{24+(i*2+j)*2}:{25+(i*2+j)*2}], v{19+i}, s[{SX}:{SX+3}], s54 offen offset:{j*32}" for i in range(2) for j in range(2)] + \
             [f"buffer_load_dwordx2 v[{32+j*2}:{33+j*2}], v18, s[{SB2}:{SB2+3}], s50 offen offset:{j*32}" for j in range(2)] + \
             [f"buffer_load_dword v38, v23, {WS}, 0 offen sc1"]
        for u in range(NU):
            w = vm4.wait(f"B{u}")
            if w: A.I(w)
            w = lg4.wait(f"R{u}_0")
            if w: A.I(w)
            if u == 0: ST.stamp()
            ops = []
            if u+3 < NU: ops += [(p, x, f"B{u+3}") for p, x in bload(u+3)]
            if k3pace:
                wl = [(p, x, f"W{u+3}") for p, x in w4dma(u+3)] if (u >= 1 and u+3 < NU) else []
                ops = ops[:2] + [y for pair in zip(wl[:6], ops[2:]) for y in pair] + wl[6:] if wl else ops
                step = 4 if wl else 8
                if u < 2:
                    ops = [(p, x, f"B{b_}") for b_ in (2*u+1, 2*u+2) for p, x in bload(b_)]
                    vpos = {1 + 4*i: op for i, op in enumerate(ops)}
                else: vpos = {1 + step*i: op for i, op in enumerate(ops)}
            else:
                if u >= 1 and u+3 < NU: ops = [(p, x, f"W{u+3}") for p, x in w4dma(u+3)] + ops
                odd = [g for g in range(9, 64) if g % 2 == 1]
                vpos = {odd[(i*len(odd))//len(ops)]: op for i, op in enumerate(ops)} if ops else {}
            g = 0
            for mb in range(8):
                for qb in range(4):
                    for kk in range(2):
                        q = g % 8
                        c = v(acc(mb,qb),4)
                        A.I(mf(c, v(wf(mb,kk),4), a(Bf(u,qb,kk),4), "0" if (u == 0 and kk == 0) else c))
                        if g == 7 and u+1 < NU:
                            w = vm4.wait(f"W{u+1}")
                            if w: A.I(w)
                            A.I("s_barrier")
                        if g+1 in vpos and vpos[g+1][0]:
                            for x in vpos[g+1][0]: A.I(x)
                        if q == 7 and mb < 7:
                            w = lg4.wait(f"R{u}_{mb+1}")
                            if w: A.I(w)
                        if q % 2 == 0:
                            rd = None
                            if mb == 0: rd = (reads(u, 7)[q//2], f"R{u}_7")
                            elif u+1 < NU: rd = (reads(u+1, mb-1)[q//2], f"R{u+1}_{mb-1}")
                            if rd: A.I(rd[0]); lg4.issue(rd[1])
                        if g in vpos:
                            A.I(vpos[g][1]); vm4.issue(vpos[g][2])
                        if u == 8 and su and g % 2 == 1:
                            A.I(su.pop(0))
                            if su and su[0].startswith("s_"): A.I(su.pop(0))
                        if u == 10 and mb >= 2 and q in (1, 5):
                            A.I(f"ds_write_b128 v21, {v(acc(mb-2, 2+q//4),4)} offset:{((mb-2)*2+q//4)*1024}")
                        if u == 9 and xl and g % 8 == 3:
                            A.I(xl.pop(0)); vm4.issue("x")
                        g += 1
        ST.stamp()
        A.I("s_waitcnt vmcnt(0)")
        for mb in range(6, 8):
            if mb == 7: A.I("s_nop 4")
            for i in range(2):
                A.I(f"ds_write_b128 v21, {v(acc(mb,2+i),4)} offset:{(mb*2+i)*1024}")
        for n in range(4):
            for k in range(2):
                A.I(f"v_lshlrev_b32 v{acc(n,2)+2*k}, 16, v{24+n*2+k}")
                A.I(f"v_and_b32 v{acc(n,2)+2*k+1}, 0xffff0000, v{24+n*2+k}")
        for j in range(2):
            for k in range(2):
                A.I(f"v_lshlrev_b32 v{acc(4+j,2)+2*k}, 16, v{32+j*2+k}")
                A.I(f"v_and_b32 v{acc(4+j,2)+2*k+1}, 0xffff0000, v{32+j*2+k}")
        poll_check(23, 38, T0)
        A.I("s_waitcnt lgkmcnt(0)")
        A.I("s_barrier")
        for b in range(16):
            A.I(f"ds_read_b128 {v(WF4+4*b,4)}, v22 offset:{b*1024}")
        for pq in range(4):
            regs = [acc((4*pq+x)//2, x % 2) for x in range(4)]
            for x in range(4):
                A.I(f"s_waitcnt lgkmcnt({15-4*pq-x})")
                for k in range(2): A.I(f"v_pk_add_f32 {v(regs[x]+2*k,2)}, {v(regs[x]+2*k,2)}, {v(WF4+4*(4*pq+x)+2*k,2)}")
            T = 40 + (pq % 2)*8
            for x in range(4):
                A.I(f"v_cvt_pk_bf16_f32 v{T+2*x}, v{regs[x]}, v{regs[x]+1}")
                A.I(f"v_cvt_pk_bf16_f32 v{T+1+2*x}, v{regs[x]+2}, v{regs[x]+3}")
            A.I(f"buffer_store_dwordx4 {v(T,4)}, v{V_L16}, {WS}, s{44+pq} offen sc1")
            A.I(f"buffer_store_dwordx4 {v(T+4,4)}, v{V_L16}, {WS}, s{44+pq} offen offset:1024 sc1")
        ST.stamp()
        def dload():
            for src in range(4):
                for hb in range(2):
                    A.I(f"buffer_load_dwordx4 {v(WF4+(src*2+hb)*4,4)}, v{V_L16}, {WS}, s{40+src} offen offset:{hb*1024} sc1")
        dload()
        for pq in range(4):
            regs = [acc((4*pq+x)//2, x % 2) for x in range(4)]
            A.I(f"s_cmp_lg_u32 s{SP}, {pq}")
            A.I(f"s_cbranch_scc1 {L(f'nown{pq}')}")
            for x in range(4):
                for k in range(4):
                    A.I(f"v_mov_b32 v{(224 if pq < 3 else 240)+4*x+k}, v{regs[x]+k}")
                    A.I(f"v_mov_b32 v{(240 if pq < 3 else 224)+4*x+k}, 0")
            A.label(L(f"nown{pq}"))
        A.I(f"s_mov_b32 s{T2}, {NLOG2E}")
        A.I(f"s_mov_b32 s{T0}, 0")
        A.label(L("dpoll"))
        A.I("s_waitcnt vmcnt(0)")
        A.I("v_max3_u32 v36, v192, v193, v194")
        A.I("v_max3_u32 v37, v195, v196, v197")
        for x in range(198, 222, 4):
            A.I(f"v_max3_u32 v36, v36, v{x}, v{x+1}")
            A.I(f"v_max3_u32 v37, v37, v{x+2}, v{x+3}")
        A.I("v_max3_u32 v36, v36, v222, v223")
        A.I("v_max_u32 v36, v36, v37")
        A.I("v_cmp_eq_u32 vcc, -1, v36")
        A.I(f"s_cbranch_vccz {L('dok')}")
        A.I(f"s_add_u32 s{T0}, s{T0}, 1")
        A.I(f"s_cmp_gt_u32 s{T0}, 0x40000")
        A.I(f"s_cbranch_scc1 {L('dok')}")
        dload()
        A.I(f"s_branch {L('dpoll')}")
        A.label(L("w_kh1")); A.I(f"s_setpc_b64 s[{S_RET}:{S_RET+1}]")
        A.label(L("dok"))
        ST.stamp()
        for src in range(4):
            dst = 224 if src < 3 else 240
            for x in range(8):
                A.I(f"v_lshlrev_b32 v{40+2*x}, 16, v{WF4+src*8+x}")
                A.I(f"v_and_b32 v{41+2*x}, 0xffff0000, v{WF4+src*8+x}")
            for x in range(8): A.I(f"v_pk_add_f32 {v(dst+2*x,2)}, {v(dst+2*x,2)}, {v(40+2*x,2)}")
        for b in range(4):
            for k in range(2): A.I(f"v_pk_add_f32 {v(240+b*4+2*k,2)}, {v(240+b*4+2*k,2)}, {v(acc(4+b//2,2)+2*k,2)}")
        for x in range(16): A.I(f"v_mul_f32 v{40+x}, s{T2}, v{240+x}")
        for x in range(16): A.I(f"v_exp_f32 v{40+x}, v{40+x}")
        for x in range(16): A.I(f"v_add_f32 v{40+x}, 1.0, v{40+x}")
        for x in range(16): A.I(f"v_rcp_f32 v{40+x}, v{40+x}")
        for x in range(8): A.I(f"v_pk_mul_f32 {v(240+2*x,2)}, {v(240+2*x,2)}, {v(40+2*x,2)}")
        for b in range(4):
            j, i = b//2, b % 2
            n = i*2+j
            for k in range(2): A.I(f"v_pk_fma_f32 {v(224+b*4+2*k,2)}, {v(224+b*4+2*k,2)}, {v(240+b*4+2*k,2)}, {v(acc(n,2)+2*k,2)}")
            A.I(f"v_cvt_pk_bf16_f32 v{224+b*4}, v{224+b*4}, v{224+b*4+1}")
            A.I(f"v_cvt_pk_bf16_f32 v{224+b*4+1}, v{224+b*4+2}, v{224+b*4+3}")
            A.I(f"buffer_store_dwordx2 {v(224+b*4,2)}, v{19+i}, s[{SO}:{SO+3}], s54 offen offset:{j*32}{outsc}")
        if padto:
            A.I(f"s_load_dwordx2 s[40:41], s[0:1], {KA['dbg']}")
            A.I("s_waitcnt lgkmcnt(0)")
            A.I("v_mov_b32 v4, 4")
            A.I("global_load_dword v5, v4, s[40:41] sc1")
            A.I("s_waitcnt vmcnt(0)")
            A.I("v_readfirstlane_b32 s42, v5")
            A.I("s_memrealtime s[44:45]")
            A.I("s_waitcnt lgkmcnt(0)")
            A.I("s_sub_u32 s46, s44, s42")
            A.I("v_mov_b32 v6, s46"); A.I("v_mov_b32 v4, 8")
            A.I("s_mov_b64 exec, 1")
            A.I("global_atomic_umax v4, v6, s[40:41] sc1") if padto == 1 else None
            A.label(L("padloop"))
            A.I("s_sleep 8")
            A.I("s_memrealtime s[44:45]")
            A.I("s_waitcnt lgkmcnt(0)")
            A.I("s_sub_u32 s46, s44, s42")
            A.I(f"s_cmp_lt_u32 s46, {padto}")
            A.I(f"s_cbranch_scc1 {L('padloop')}")
        ST.flush(SRD_WS, S_WAVE)
    def saferestart():
        A.label(L("saferestart"))
        R = Asm()
        R.I(f"s_mov_b32 s{S_SAFE}, 0")
        R.I("s_waitcnt vmcnt(0) lgkmcnt(0)")
        R.I("s_barrier")
        for x in q_setup_s: R.I(x)
        R.I(f"s_lshl_b32 s44, s{S_WAVE}, 17")
        R.I(f"s_lshl_b32 s47, s{S_H}, 8")
        R.I("s_add_u32 s44, s44, s47")
        R.I(f"s_mov_b32 s{S_ID}, 0")
        R.I(f"s_mov_b32 s46, {OOB}")
        for x in q_setup_v: R.I(x)
        R.I("s_waitcnt lgkmcnt(0)")
        for x in srd_list(SRD_WQ, 4, 4*MB) + srd_list(SRD_W1, 8, 512*2752) + srd_list(SRD_B1, 10, 2752): R.I(x)
        for fb in range(3):
            R.I(f"buffer_load_dwordx2 v[{26+2*fb}:{27+2*fb}], v19, s[{SRD_B1}:{SRD_B1+3}], s{53 if fb < 2 else 54} offen offset:{fb*32}")
        R.I("v_and_b32 v248, 15, v1")
        R.I("v_lshrrev_b32 v249, 4, v1")
        R.I("v_lshrrev_b32 v250, 1, v248")
        R.I("v_xor_b32 v250, v250, v249")
        R.I("v_and_b32 v251, 1, v248")
        R.I("v_lshlrev_b32 v251, 4, v251")
        R.I("v_lshl_add_u32 v251, v249, 13, v251")
        R.I("v_lshl_add_u32 v4, v250, 5, v251")
        R.I(f"v_add_u32 v5, {32768-1024}, v4")
        R.I("v_xor_b32 v250, 4, v250")
        R.I("v_lshl_add_u32 v6, v250, 5, v251")
        R.I(f"v_add_u32 v6, {2*(32768-1024)}, v6")
        R.I(f"v_add_u32 v7, {32768-1024}, v6")
        R.I("v_bfe_u32 v248, v1, 2, 2")
        R.I("v_lshlrev_b32 v250, 3, v249")
        R.I("v_add_u32 v250, v250, v248")
        R.I("v_lshlrev_b32 v250, 8, v250")
        R.I("v_and_b32 v251, 3, v1")
        R.I("v_lshl_add_u32 v250, v251, 3, v250")
        R.I(f"v_add_u32 v250, {QBASE}, v250")
        R.I("v_and_b32 v251, 1, v249")
        R.I("v_lshl_add_u32 v248, v251, 2, v248")
        for nb in range(8):
            R.I(f"v_xor_b32 v251, {nb}, v248")
            R.I(f"v_lshl_add_u32 v{8+nb}, v251, 5, v250")
        for pre, x in qwdma(0) + qwdma(1) + xload(0) + xload(1) + xload(2):
            for y in (pre or []): R.I(y)
            if pre: R.I("s_nop 0")
            R.I(x)
        R.I("s_waitcnt vmcnt(0)")
        for fb in range(3):
            for k in range(2):
                R.I(f"v_lshlrev_b32 v{32+fb*4+2*k}, 16, v{26+2*fb+k}")
                R.I(f"v_and_b32 v{33+fb*4+2*k}, 0xffff0000, v{26+2*fb+k}")
        for i in range(12): R.I(f"v_mov_b32 v{20+i}, v{32+i}")
        R.I("s_barrier")
        for n in range(5):
            for x in breads(n): R.I(x)
        R.I("s_waitcnt lgkmcnt(0)")
        R.I(f"s_branch {L('qgemm')}")
        A.items += R.check(fix=True, seq=R.items)
    k2.CPF[0] = cpf
    k2.attention(A, L, ST, vm, lg, set_flag, F_H, F_B, F_A, qrest, gel, oproj_setup, oproj, saferestart)
    return A
```

```python
from common import *
import math, struct
def f2u(x): return struct.unpack("<I", struct.pack("<f", x))[0]

QSCALE = f2u(math.log2(math.e) / math.sqrt(128.0))
G1 = f2u(-2.0 * math.log2(math.e) * math.sqrt(2.0 / math.pi))
G2 = f2u(-2.0 * math.log2(math.e) * math.sqrt(2.0 / math.pi) * 0.044715)
LTHR = f2u(2.0 ** 62)
OOB = 0x40000000

V_LANE, V_L16, V_K, V_V = 1, 2, 3, 19
accQ = lambda db, qb: 32 + (db*4+qb)*4
accF = lambda fb, qb: 160 + (fb*4+qb)*4
Qf = lambda qb, s_: accQ(2*s_, qb)
def Sreg(buf, kbl, qb):
    i = buf*8 + kbl*4 + qb
    return accQ(2*(i//4)+1, i % 4)
Preg = lambda buf, qb: 208 + buf*16 + qb*4
NEGM = lambda qb: 240 + qb*4
TMP = 160
Oreg = lambda db, qb: (db*4+qb)*4
VA, KA_, VB, KB = 128, 144, 160, 176
Lreg = lambda qb: 192 + qb*4
ONES = 208
S_WAVE, S_H, S_T, S_I = 36, 37, 38, 39
S_KVB = 40
S_W4K = 41
S_K0, S_V0, S_K1, S_V1 = 42, 43, 44, 45
S_AK, S_AV = 46, 47
S_STRM = 48
S_T2 = 49
S_TMP, S_TMP2 = 50, 51
S_RET = 52
S_CNT = 54
S_FAIL = 55
S_Q0 = 56
S_QA = 57
S_MASK = 8
S_MK, S_MV = 58, 59
S_SAFE = 60
SRD_WS, SRD_WQ, SRD_W1, SRD_B1 = 16, 20, 24, 28
WRING = 61440; WSLOT = 25600

def dma4(soff, m0expr):
    return [f"buffer_load_dwordx4 v{V_L16}, s[{SRD_WS}:{SRD_WS+3}], s{soff} offen offset:{j*1024}{DSC[0]} lds" for j in range(4)]

S_E, S_C, S_DG = 4, 5, 6
def tile_calc(dst, nadd, strm, voff):
    r = [f"s_add_u32 s{S_TMP}, s{S_I}, {nadd}",
         f"s_lshl_b32 s{S_TMP2}, s{S_TMP}, 1",
         f"s_sub_u32 s{S_TMP2}, s{S_TMP2}, s{S_C}",
         f"s_cmp_eq_u32 s{S_TMP}, s{S_E}",
         f"s_cselect_b32 s{S_TMP2}, s{S_DG}, s{S_TMP2}"]
    if strm: r += [f"s_add_u32 s{S_TMP2}, s{S_TMP2}, 1"]
    r += [f"s_cmp_lt_u32 s{S_TMP}, s{S_E}",
          f"s_cselect_b32 s{S_TMP2}, s{S_TMP}, s{S_TMP2}" if strm == 0 else f"s_cselect_b32 s{S_TMP2}, 0x8000, s{S_TMP2}",
          f"s_cmp_gt_u32 s{S_TMP}, 16",
          f"s_cselect_b32 s{S_TMP2}, 0x8000, s{S_TMP2}",
          f"s_lshl_b32 s{S_TMP2}, s{S_TMP2}, 15",
          f"s_add_u32 s{dst}, s{S_TMP2}, s{S_KVB}"]
    if voff: r += [f"s_add_u32 s{dst}, s{dst}, {voff}"]
    return r

def lds_calc():
    return [f"s_and_b32 s{S_TMP}, s{S_I}, 1",
            f"s_lshl_b32 s{S_TMP}, s{S_TMP}, 14",
            f"s_add_u32 s{S_TMP2}, s{S_I}, 2",
            f"s_sub_u32 s{S_TMP2}, s{S_TMP2}, s{S_T2}",
            f"s_cmp_ge_i32 s{S_TMP2}, 2",
            f"s_cselect_b32 s{S_AK}, s{S_STRM}, 0",
            f"s_add_u32 s{S_AK}, s{S_AK}, s{S_TMP}",
            f"s_cmp_ge_i32 s{S_TMP2}, 3",
            f"s_cselect_b32 s{S_AV}, s{S_STRM}, 0",
            f"s_xor_b32 s{S_TMP2}, s{S_TMP}, 0x4000",
            f"s_add_u32 s{S_AV}, s{S_AV}, s{S_TMP2}",
            f"s_add_u32 s{S_AV}, s{S_AV}, 0x8000",
            f"s_add_u32 s{S_MK}, s{S_TMP2}, s{S_W4K}",
            f"s_add_u32 s{S_MV}, s{S_TMP}, s{S_W4K}",
            f"s_add_u32 s{S_MV}, s{S_MV}, 0x8000"]

def rdfrag(dst, areg, f): return f"ds_read_b128 {a(dst,4)}, v{areg} offset:{f*1024}"

PROF = [0]
CPF = [1]
PVB = [0]
DSC = [' sc1']
WOFB = [0]
WTOUCH = []
def body(A, qk, pv, first, adma, lg, mid=None, last=None, vmn=0, xst=None, vfill=None, wo=False):
    if PROF[0]:
        A.I(f"s_add_u32 m0, s{S_I}, 40")
        A.I("s_nop 0")
        A.I("v_writelane_b32 v0, s76, m0")
        A.I("s_memtime s[76:77]" if PROF[0] == 2 else "s_memrealtime s[76:77]")
    for per in range(2):
        spine = [None]*68; gaps = [[] for _ in range(68)]
        pre = [[] for _ in range(68)]
        eb = 1 - per
        etype = pv if per == 0 else qk
        if pv:
            qbs = [2, 3] if (pv == "diag" and per == 1) else [0, 1, 2, 3]
            cz = first and per == 0
            for qb in qbs:
                d = a(Lreg(qb), 4)
                spine[qb] = mf(d, a(ONES, 4), v(Preg(per, qb), 4), "0" if cz else d)
                for db in range(8):
                    d = a(Oreg(db, qb), 4)
                    fr = (VA if db < 4 else VB) + (db % 4)*4
                    pos = (4 if db < 4 else 36) + (((db % 4)*4 + qb) if not (PVB[0] and qk) else (qb*4 + db % 4))*(1 if qk else 2)
                    spine[pos] = mf(d, a(fr, 4), v(Preg(per, qb), 4), "0" if cz else d)
        if qk:
            for kbl in range(2):
                kb = per*2 + kbl
                for qb in range(4):
                    if qk == "diag" and kb > qb: continue
                    for s_ in range(4):
                        d = v(Sreg(per, kbl, qb), 4)
                        pos = ((20 if kbl == 0 else 52) + qb*4 + s_) if pv else ((4 if kbl == 0 else 36) + (qb*4 + s_)*2)
                        spine[pos] = mf(d, a((KA_ if kbl == 0 else KB) + s_*4, 4), v(Qf(qb, s_), 4), v(NEGM(qb), 4) if s_ == 0 else d)
        if etype:
            ehalf = 1 if per == 0 else 0
            for e in range(32):
                qb, kbl, r = e//8, (e//4) % 2, e % 4
                kb = ehalf*2 + kbl
                reg = Sreg(eb, kbl, qb) + r
                if etype == "diag" and ehalf == 1 and qb < 2: continue
                if etype == "diag" and kb > qb:
                    gaps[2*e].append(f"v_mov_b32 v{reg}, 0")
                else:
                    gaps[2*e].append(f"v_exp_f32 v{reg}, v{reg}")
                    if etype == "diag" and kb == qb:
                        gaps[2*e+1].append(f"v_cndmask_b32 v{reg}, 0, v{reg}, s[{S_MASK+2*r}:{S_MASK+2*r+1}]")
            for c in range(16):
                qb, k = c//4, c % 4
                if etype == "diag" and ehalf == 1 and qb < 2: continue
                src = Sreg(eb, k//2, qb) + (k % 2)*2
                gaps[4*c+3].append(f"v_cvt_pk_bf16_f32 v{Preg(eb,qb)+k}, v{src}, v{src+1}")
        kbpos = [3, 7, 11, 15] if per == 0 else [1, 3, 5, 7]
        rd = {}
        for i in range(4):
            rd[kbpos[i]] = (rdfrag(KB + 4*i, V_K, (per*2+1)*4 + i), "KB")
            rd[23+4*i] = (rdfrag(VA + 4*i, V_V, (1-per)*8 + i), "VA")
            rd[39+4*i] = (rdfrag(KA_ + 4*i, V_K, ((1-per)*2)*4 + i), "KA")
            rd[55+4*i] = (rdfrag(VB + 4*i, V_V, (1-per)*8 + 4 + i), "VB")
        waits = {2: "VA", 18: "KA", 34: "VB", 50: "KB"}
        if pv is None: waits = {2: "KA", 34: "KB"}
        if qk is None: rd = {g: x for g, x in rd.items() if not (x[1] == "KB" or (per == 0 and x[1] == "KA"))}
        if pv is None and per == 0: rd = {g: x for g, x in rd.items() if x[1] not in ("VA", "VB")}
        if last is not None:
            rd = {g: x for g, x in rd.items() if per == 0 and x[1] in ("VA", "VB")}
            waits = {2: "VA", 34: "VB"}
        dm = {}
        salu = []
        if per == 0:
            if adma:
                for i, x in enumerate(dma4(S_K1, None)): dm[5+4*i] = x
                for i, x in enumerate(dma4(S_V1, None)): dm[21+4*i] = x
                pre[4].append(f"s_add_u32 m0, s{S_MK}, 0x10000")
                pre[20].append(f"s_add_u32 m0, s{S_MV}, 0x10000")
            salu = tile_calc(S_K0, 3, 0, 0) + tile_calc(S_V0, 2, 0, 16384)
            spos = [g for g in range(22, 64, 2) if g not in (34, 50)] + [64, 65, 65, 66, 66]
        else:
            for i, x in enumerate(dma4(S_K0, None)): dm[25+4*i] = x
            for i, x in enumerate(dma4(S_V0, None)): dm[41+4*i] = x
            pre[24].append(f"s_mov_b32 m0, s{S_MK}")
            pre[40].append(f"s_mov_b32 m0, s{S_MV}")
            lc = lds_calc()
            for i, x in enumerate(lc): pre[[0,4,6,8,9,9,10,11,12,13,13,14,16,17,17][i]].append(x)
            salu = tile_calc(S_K1, 3, 1, 0) + tile_calc(S_V1, 2, 1, 16384) + [f"s_add_u32 s{S_I}, s{S_I}, 1"]
            spos = [g for g in range(26, 64, 2) if g not in (34, 40, 50)] + [57, 57, 61, 61, 64, 64, 65, 65, 66, 66]
            spos.sort()
        if last is not None:
            dm = {}; salu = []; pre = [[] for _ in range(68)]
        if per == 1 and mid: mid()
        if per == 1 and last is not None: A.I("s_waitcnt vmcnt(0)")
        assert len(salu) <= len(spos), (len(salu), len(spos))
        for i, x in enumerate(salu): pre[spos[i]].append(x)
        for g in range(68):
            if spine[g]: A.I(spine[g])
            for x in pre[g]: A.I(x)
            if g in waits:
                w = lg.wait(waits[g])
                if w: A.I(w)
            if per == 1 and last is not None and spine[g]:
                k = 2
                while k > 0 and last and last[0][0] <= g:
                    x = last.pop(0)[1]; A.I(x); k -= 2 if x.startswith("ds_") else 1
            if per == 1 and g == 19 and last is None:
                if vmn == "auto":
                    tl = [x.text for x in A.items if isinstance(x, Ins) and x.kind in ("dma", "store")]
                    vmn = len(tl) - 1 - max(i for i, x in enumerate(tl) if " lds" in x)
                dbg = PROF[0] == 2 and ((vmn != 0 and first) or mid is not None)
                base = 58 if vmn else 61
                if dbg: A.I("s_memtime s[78:79]")
                A.I(f"s_waitcnt vmcnt({vmn}) lgkmcnt(0)"); lg.drain()
                if dbg:
                    A.I(f"v_writelane_b32 v0, s78, {base}"); A.I("s_memtime s[78:79]"); A.I("s_waitcnt lgkmcnt(0)"); A.I(f"v_writelane_b32 v0, s78, {base+1}")
                A.I("s_barrier")
                if dbg:
                    A.I("s_memtime s[78:79]"); A.I("s_waitcnt lgkmcnt(0)"); A.I(f"v_writelane_b32 v0, s78, {base+2}")
            if per == 1 and g == 21 and last is None:
                A.I(f"v_add_u32 v{V_K}, s{S_AK}, v{V_L16}")
                A.I(f"v_add_u32 v{V_V}, s{S_AV}, v{V_L16}")
            if g in rd:
                A.I(rd[g][0]); lg.issue(rd[g][1])
            if g in dm: A.I(dm[g])
            if WOFB[0] and wo and per == 1 and g in (57, 61):
                A.I("global_load_dword v4, v18, s[70:71]" if g == 57 else "global_load_dword v4, v17, s[66:67]")
            if CPF[0] and per == 0 and g == 37 and qk == "full" and pv == "full" and not first:
                A.I("global_load_dwordx4 v[12:15], v16, s[62:63]")
            if xst and (per, g) in xst:
                for x in xst[(per, g)]: A.I(x)
            for x in gaps[g]: A.I(x)
            if vfill and per == 0 and spine[g]:
                k = 2
                while k and vfill:
                    x = vfill.pop(0); A.I(x)
                    if x.startswith("buffer"): break
                    if not x.startswith("s_"): k -= 1
        if vfill and per == 0:
            while vfill: A.I(vfill.pop(0))
    if last is not None:
        for x in last: A.I(x[1])

def entry_lg():
    lg = Cnt("lgkmcnt", 15)
    for t in ["VA"]*4 + ["KA"]*4 + ["VB"]*4: lg.issue(t)
    return lg

def attention(A, L, ST, vm, lg, set_flag, F_H, F_B, F_A, qrest, gel, oproj_setup, oproj, saferestart):
    WSS = f"s[{SRD_WS}:{SRD_WS+3}]"
    PROF[0] = int(ST.on)
    for s_ in range(4):
        A.I(rdfrag(KB+4*s_, V_K, 3*4+s_)); lg.issue("k3")
    for x in qrest: A.I(x)
    A.I(f"s_cmp_lg_u32 s{S_SAFE}, 0")
    A.I(f"s_cbranch_scc1 {L('nomaxpass')}")
    A.I(f"s_call_b64 s[{S_RET}:{S_RET+1}], {L('maxpass')}")
    A.label(L("nomaxpass"))
    vq = []
    def fill(budget, usegel=True):
        while budget > 0 and (vq or (gel and usegel)):
            src = vq if vq else gel
            x = src[0]
            cost = 2 if ("v_exp" in x or "v_rcp" in x or "buffer" in x) else (0 if x.startswith("s_") else 1)
            if cost > budget: break
            A.I(src.pop(0)); budget -= cost
    def qk0(kb, base):
        A.I(lg.wait(f"k{kb}"))
        for qb in range(4):
            for s_ in range(4):
                d = v(Sreg(kb//2, kb % 2, qb), 4)
                c0 = "0" if kb == 0 else v(NEGM(qb), 4)
                A.I(mf(d, a(base+4*s_, 4), v(Qf(qb, s_), 4), c0 if s_ == 0 else d))
                fill(2)
    if ST.on == 2: ST.stamp()
    qk0(0, KA_)
    fill(8)
    A.I(f"s_cmp_lg_u32 s{S_Q0}, 0")
    A.I(f"s_cbranch_scc1 {L('nodiag0')}")
    A.I("v_mov_b32 v8, 0xff7fffff")
    for r in range(4):
        reg = Sreg(0, 0, 0) + r
        A.I(f"v_cndmask_b32 v{reg}, v8, v{reg}, s[{S_MASK+2*r}:{S_MASK+2*r+1}]")
    A.label(L("nodiag0"))
    for qb in range(4):
        r0 = Sreg(0, 0, qb)
        A.I(f"v_max3_f32 v{NEGM(qb)}, v{r0}, v{r0+1}, v{r0+2}")
    for qb in range(4):
        A.I(f"v_max_f32 v{NEGM(qb)}, v{NEGM(qb)}, v{Sreg(0, 0, qb)+3}")
    A.I(f"s_cmp_lg_u32 s{S_SAFE}, 0")
    A.I(f"s_cbranch_scc1 {L('fastmax')}")
    for qb in range(4): A.I(f"v_mov_b32 v{NEGM(qb)}, v{12+qb}")
    A.label(L("fastmax"))
    for swp in ("v_permlane16_swap_b32", "v_permlane32_swap_b32"):
        for qb in range(4): A.I(f"v_mov_b32 v{NEGM(qb)+1}, v{NEGM(qb)}")
        A.I("s_nop 0")
        for qb in range(4): A.I(f"{swp} v{NEGM(qb)}, v{NEGM(qb)+1}")
        A.I("s_nop 0")
        for qb in range(4): A.I(f"v_max_f32 v{NEGM(qb)}, v{NEGM(qb)}, v{NEGM(qb)+1}")
    for qb in range(4):
        A.I(f"v_sub_f32 v{NEGM(qb)}, 0, v{NEGM(qb)}")
    for qb in range(4):
        for r in range(1, 4): A.I(f"v_mov_b32 v{NEGM(qb)+r}, v{NEGM(qb)}")
    for qb in range(4):
        for r in range(4): vq.append(f"v_add_f32 v{Sreg(0,0,qb)+r}, v{Sreg(0,0,qb)+r}, v{NEGM(qb)}")
    for qb in range(4):
        for r in range(4): vq.append(f"v_exp_f32 v{Sreg(0,0,qb)+r}, v{Sreg(0,0,qb)+r}")
    A.I("s_nop 0")
    if ST.on == 2: ST.stamp()
    qk0(1, VA)
    qk0(2, VB)
    for qb in range(4):
        for r in range(4): vq.append(f"v_exp_f32 v{Sreg(0,1,qb)+r}, v{Sreg(0,1,qb)+r}")
    qk0(3, KB)
    if ST.on == 2: ST.stamp()
    A.I("s_barrier")
    A.I(f"v_add_u32 v{V_K}, s{S_AK}, v{V_L16}")
    A.I(f"v_add_u32 v{V_V}, s{S_AV}, v{V_L16}")
    side = [f"s_mov_b32 m0, s{S_MK}"] + dma4(S_K0, None) + [f"s_mov_b32 m0, s{S_MV}"] + dma4(S_V0, None) + \
           [rdfrag(VA+4*i, V_V, i) for i in range(4)] + [rdfrag(KA_+4*i, V_K, i) for i in range(4)] + [rdfrag(VB+4*i, V_V, 4+i) for i in range(4)]
    i0 = len(A.items)
    if ST.on == 2: ST.stamp()
    for x in WTOUCH: A.I(x)
    nyoung = (2 if (WTOUCH and not WOFB[0]) else 0) + sum(1 for x in gel if "buffer" in x)
    import re as _re
    isstart = lambda x: _re.match(r"v_mul_f32 v20, v(\d+), v\1$", x)
    while vq or (gel and not isstart(gel[0])): fill(2)
    A.I("v_mov_b32 v8, 1.0"); A.I("v_mov_b32 v9, 1.0"); A.I("v_mov_b32 v10, v28"); A.I("v_mov_b32 v11, v28"); A.I("s_mov_b32 s33, s32")
    k_ = 0
    while gel:
        x0 = int(isstart(gel[0]).group(1)); T = 20 if k_ % 2 == 0 else 12; k_ += 1
        gel[:] = gel[28:]
        for h_ in range(2): A.I(f"v_pk_mul_f32 {v(T+2*h_,2)}, {v(x0+2*h_,2)}, {v(x0+2*h_,2)}")
        for h_ in range(2): A.I(f"v_pk_fma_f32 {v(T+2*h_,2)}, {v(T+2*h_,2)}, s[32:33], v[10:11]")
        for h_ in range(2): A.I(f"v_pk_mul_f32 {v(T+2*h_,2)}, {v(T+2*h_,2)}, {v(x0+2*h_,2)}")
        for r in range(4): A.I(f"v_exp_f32 v{T+r}, v{T+r}")
        for h_ in range(2): A.I(f"v_pk_add_f32 {v(T+2*h_,2)}, {v(T+2*h_,2)}, v[8:9]")
        for r in range(4): A.I(f"v_rcp_f32 v{T+r}, v{T+r}")
        for h_ in range(2): A.I(f"v_pk_mul_f32 {v(x0+2*h_,2)}, {v(x0+2*h_,2)}, {v(T+2*h_,2)}")
        while gel and not isstart(gel[0]): A.I(gel.pop(0))
    tail = A.items[i0:]; A.items[i0:] = []
    k = 0
    for it in tail:
        if side and k % 3 == 0 and not (isinstance(it, Ins) and it.kind == "store"): A.I(side.pop(0))
        A.items.append(it); k += 1
    assert not side
    tl = [x for x in A.items[i0:] if isinstance(x, Ins) and x.kind in ("dma", "store", "vmem")]
    nyoung = len(tl) - 1 - max(i for i, x in enumerate(tl) if x.kind == "dma")
    ST.stamp()
    A.I(f"s_cmp_ge_u32 s{S_WAVE}, 2")
    A.I(f"s_cbranch_scc1 {L('nostash2')}")
    for qb in range(4): A.I(f"v_mov_b32 v{8+qb}, v{NEGM(qb)}")
    A.I(f"s_add_u32 s{S_TMP}, s61, 16384")
    A.I(f"buffer_store_dwordx4 v[8:11], v{V_L16}, s[{SRD_WS}:{SRD_WS+3}], s{S_TMP} offen")
    A.label(L("nostash2"))
    A.I(f"s_cmp_lg_u32 s{S_Q0}, 0")
    A.I(f"s_cbranch_scc1 {L('nodiag1')}")
    for r in range(4):
        A.I(f"v_mov_b32 v{Sreg(0,1,0)+r}, 0")
        A.I(f"v_cndmask_b32 v{Sreg(0,1,1)+r}, 0, v{Sreg(0,1,1)+r}, s[{S_MASK+2*r}:{S_MASK+2*r+1}]")
    A.label(L("nodiag1"))
    for qb in range(4):
        for k in range(4):
            src = Sreg(0, k//2, qb) + (k % 2)*2
            A.I(f"v_cvt_pk_bf16_f32 v{Preg(0,qb)+k}, v{src}, v{src+1}")
    ST.stamp()
    if ST.on == 2: ST.stamp()
    A.I(f"s_lshr_b32 s32, s2, 3"); A.I("s_lshl_b32 s32, s32, 2"); A.I(f"s_add_u32 s32, s32, s{S_WAVE}"); A.I("s_and_b32 s32, s32, 63")
    A.I("s_lshl_b32 s32, s32, 10"); A.I("s_add_u32 s32, s32, 34816"); A.I("s_min_u32 s32, s32, L_codeend-L_pcbase-1024"); A.I(f"v_add_u32 v16, s32, v{V_L16}")
    A.I("s_nop 1")
    used = {}
    OWN = 128
    def flag(kind, cond=False):
        if cond:
            u = f"nf{len(A.items)}"
            A.I(f"s_and_b32 s34, s{S_FAIL}, s{S_SAFE}")
            A.I(f"s_cbranch_scc1 {L(u)}")
        for x in set_flag(kind, 204, 205, 34): A.I(x)
        if cond: A.label(L(u))
    def call(qk, pv, first=False, kind=""):
        key = f"b_{qk}_{pv}_{int(first)}{kind}"
        used[key] = (qk, pv, first, kind)
        if kind.startswith("last"):
            flag(F_H)
            A.I(f"s_call_b64 s[{S_RET}:{S_RET+1}], {L('maddr')}")
        A.I(f"s_call_b64 s[{S_RET}:{S_RET+1}], {L(key)}")
    def loop(kind, last_expr_sgpr_or_imm, uniq):
        A.I(f"s_mov_b32 s{S_CNT}, {last_expr_sgpr_or_imm}")
        A.I(f"s_cmp_gt_i32 s{S_I}, s{S_CNT}")
        A.I(f"s_cbranch_scc1 {L('skip_'+uniq)}")
        A.I(f"s_call_b64 s[{S_RET}:{S_RET+1}], {L('main_'+kind)}")
        A.label(L("skip_"+uniq))
    FREE = [Sreg(b_, k_, q_) for b_ in range(2) for k_ in range(2) for q_ in range(4)]
    def packed(n): return FREE[8+n] if n < 8 else TMP + (n-8)*4
    def epi_half(B, qbs):
        B.I("s_nop 7")
        for qb in qbs: B.I(f"v_accvgpr_read_b32 v{192+qb}, a{Lreg(qb)}")
        B.I(f"v_mov_b32 v196, {LTHR}")
        for qb in qbs:
            B.I(f"v_cmp_nle_f32 vcc, v{192+qb}, v196")
            B.I(f"s_or_b32 s{S_FAIL}, s{S_FAIL}, vcc_lo")
            B.I(f"s_or_b32 s{S_FAIL}, s{S_FAIL}, vcc_hi")
        for qb in qbs: B.I(f"v_rcp_f32 v{192+qb}, v{192+qb}")
        if qbs[0] == 0:
            B.I(f"s_lshl_b32 s32, s{S_Q0}, 5")
            B.I(f"s_add_u32 s32, s32, s{S_H}")
            B.I(f"s_lshl_b32 s32, s32, 12")
            B.I(f"s_add_u32 s32, s32, {WS_CTX}")
        for qb in qbs:
            for s_ in range(4):
                n = qb*4 + s_
                T = [FREE[(2*n) % 8], FREE[(2*n+1) % 8]]
                for i in range(8): B.I(f"v_accvgpr_read_b32 v{T[i//4] + i % 4}, a{Oreg(2*s_ + i//4, qb) + i % 4}")
                for i in range(4):
                    r = T[i//2] + 2*(i % 2)
                    B.I(f"v_pk_mul_f32 {v(r,2)}, {v(r,2)}, {v(192+2*(qb//2),2)} op_sel:[0,{qb%2}] op_sel_hi:[1,{qb%2}]")
                for i in range(4):
                    r = T[i//2] + 2*(i % 2)
                    B.I(f"v_cvt_pk_bf16_f32 v{packed(n)+i}, v{r}, v{r+1}")
    def epi_late(nplain):
        r = []
        for qb in (2, 3): r.append(f"v_accvgpr_read_b32 v{192+qb}, a{Lreg(qb)}")
        r.append(f"v_mov_b32 v196, {LTHR}")
        for qb in (2, 3):
            r += [f"v_cmp_nle_f32 vcc, v{192+qb}, v196", f"s_or_b32 s34, vcc_lo, vcc_hi", f"s_or_b32 s{S_FAIL}, s{S_FAIL}, s34"]
        for qb in (2, 3): r.append(f"v_rcp_f32 v{192+qb}, v{192+qb}")
        r += [f"s_add_u32 s33, s32, {2*32*4096}", f"s_add_u32 s35, s32, {3*32*4096}"]
        for qb in (2, 3):
            for s_ in range(4):
                n = qb*4 + s_
                T = Preg(1, 0) + (n % 2)*8
                for i in range(8): r.append(f"v_accvgpr_read_b32 v{T+i}, a{Oreg(2*s_ + i//4, qb) + i % 4}")
                if n < 8 + nplain:
                    for i in range(8): r.append(f"v_mul_f32 v{T+i}, v{T+i}, v{192+qb}")
                else:
                    for i in range(4): r.append(f"v_pk_mul_f32 {v(T+2*i,2)}, {v(T+2*i,2)}, v[194:195] op_sel:[0,{qb%2}] op_sel_hi:[1,{qb%2}]")
                for i in range(4): r.append(f"v_cvt_pk_bf16_f32 v{packed(n)+i}, v{T+2*i}, v{T+2*i+1}")
                r.append(f"buffer_store_dwordx4 {v(packed(n),4)}, v{V_L16}, s[{SRD_WS}:{SRD_WS+3}], s{33 if qb == 2 else 35} offen offset:{s_*1024} sc1")
        return r
    def epi_st(n):
        qb, s_ = n//4, n % 4
        return ([f"s_add_u32 s33, s32, {qb*32*4096}"] if s_ == 0 else []) + \
               [f"buffer_store_dwordx4 {v(packed(n),4)}, v{V_L16}, s[{SRD_WS}:{SRD_WS+3}], s33 offen offset:{s_*1024} sc1"]
    def load_QA():
        A.I(f"s_add_u32 s{S_TMP}, s61, 16384")
        A.I(f"buffer_load_dwordx4 v[200:203], v{V_L16}, s[{SRD_WS}:{SRD_WS+3}], s{S_TMP} offen")
        A.I("s_waitcnt lgkmcnt(0)")
        for qb in range(4):
            for s_ in range(4):
                A.I(f"ds_read_b128 {v(Qf(qb,s_),4)}, v31 offset:{(qb*4+s_)*1024}")
        A.I("s_waitcnt lgkmcnt(0)")
    def fin_QA(n):
        A.I(f"s_waitcnt vmcnt({n})")
        A.I("s_nop 3")
        for qb in range(4):
            for r in range(4): A.I(f"v_mov_b32 v{NEGM(qb)+r}, v{200+qb}")
        A.I("s_nop 1")
    A.I(f"s_sub_u32 s32, s{S_T2}, 1")
    A.I(f"s_sub_u32 s33, s{S_T2}, 2")
    A.I(f"s_cmp_eq_u32 s{S_WAVE}, 2")
    A.I(f"s_cbranch_scc1 {L('role2')}")
    A.I(f"s_cmp_eq_u32 s{S_WAVE}, 3")
    A.I(f"s_cbranch_scc1 {L('role3')}")
    A.I(f"s_cmp_eq_u32 s{S_T}, 0")
    A.I(f"s_cbranch_scc1 {L('r01_t0')}")
    call("full", "full", True, "fd")
    A.I(f"s_branch {L('r01_c')}")
    A.label(L("r01_t0"))
    call("full", "full", True, "t0")
    A.label(L("r01_c"))
    loop("d", "s32", "r01d")
    A.I(f"s_cmp_eq_u32 s{S_WAVE}, 0")
    A.I(f"s_cbranch_scc1 {L('role0')}")
    loop("s", 15, "r1s")
    call(None, "full", False, "lastlo")
    A.I(f"s_branch {L('merge')}")
    A.label(L("w_role0")); A.I(f"s_setpc_b64 s[{S_RET}:{S_RET+1}]")
    A.label(L("role0"))
    loop("s", f"s{S_T2}", "r0s")
    call("diag", "full")
    A.I(f"s_cmp_eq_u32 s{S_T}, 7")
    A.I(f"s_cbranch_scc1 {L('role0_t7')}")
    call("full", "diag")
    loop("s", 15, "r0s2")
    call(None, "full", False, "lastlo")
    A.I(f"s_branch {L('merge')}")
    A.label(L("role0_t7"))
    call(None, "diag", False, "lastlo")
    A.I(f"s_branch {L('merge')}")
    A.label(L("w_role2")); A.I(f"s_setpc_b64 s[{S_RET}:{S_RET+1}]")
    A.label(L("role2"))
    A.I(f"s_cmp_eq_u32 s{S_T}, 0")
    A.I(f"s_cbranch_scc1 {L('role2_t0')}")
    call("full", "full", True, "fd")
    loop("d", "s33", "r2d")
    call("diag", "full")
    call(None, "diag", False, "epi")
    A.I(f"s_branch {L('role2_b')}")
    A.label(L("role2_t0"))
    call(None, "diag", True, "epi")
    A.label(L("role2_b"))
    fin_QA(16)
    call("diag", None, False, "st")
    A.I(f"s_cmp_eq_u32 s{S_T}, 7")
    A.I(f"s_cbranch_scc1 {L('role2_t7')}")
    call("full", "diag", True)
    flag(F_B, True)
    loop("s", 15, "r2s")
    call(None, "full", False, "lasthi")
    A.I(f"s_branch {L('merge')}")
    A.label(L("role2_t7"))
    call(None, "diag", True, "lasthi")
    flag(F_B, True)
    A.I(f"s_branch {L('merge')}")
    A.label(L("w_role3")); A.I(f"s_setpc_b64 s[{S_RET}:{S_RET+1}]")
    A.label(L("role3"))
    A.I(f"s_cmp_eq_u32 s{S_T}, 0")
    A.I(f"s_cbranch_scc1 {L('role3_t0')}")
    call("full", "full", True, "fd")
    loop("d", "s32", "r3d")
    call("diag", "full")
    A.I(f"s_branch {L('role3_b')}")
    A.label(L("role3_t0"))
    call("diag", "full", True)
    A.label(L("role3_b"))
    call(None, "diag", False, "epi")
    fin_QA(16)
    A.I(f"s_cmp_eq_u32 s{S_T}, 7")
    A.I(f"s_cbranch_scc1 {L('role3_t7')}")
    call("full", None, False, "st")
    call("full", "full", True)
    flag(F_B, True)
    loop("s", 15, "r3s")
    call(None, "full", False, "lasthi")
    A.I(f"s_branch {L('merge')}")
    A.label(L("role3_t7"))
    call(None, None, False, "lastst")
    for i in range(64): A.I(f"v_mov_b32 v{OWN+i}, 0")
    for i in range(16): A.I(f"v_accvgpr_write_b32 a{Lreg(0)+i}, 0")
    for i in range(16): A.I(f"ds_write_b128 v197, {v(OWN,4)} offset:{i*1024}")
    flag(F_B, True)
    A.I(f"s_branch {L('merge')}")
    A.label(L("w_merge")); A.I(f"s_setpc_b64 s[{S_RET}:{S_RET+1}]")
    A.label(L("merge"))
    if ST.on: A.I("v_writelane_b32 v0, s76, 57")
    ST.stamp()
    for qb in range(4): A.I(f"v_accvgpr_read_b32 v{192+qb}, a{Lreg(qb)}")
    A.I(f"v_mov_b32 v196, {LTHR}")
    for qb in range(4):
        A.I(f"v_cmp_nle_f32 vcc, v{192+qb}, v196")
        A.I(f"s_or_b32 s{S_FAIL}, s{S_FAIL}, vcc_lo")
        A.I(f"s_or_b32 s{S_FAIL}, s{S_FAIL}, vcc_hi")
    A.I(f"v_mov_b32 v202, s{S_FAIL}")
    A.I(f"ds_write_b128 v199, v[192:195]")
    A.I(f"ds_write_b32 v201, v202")
    A.I(f"s_cmp_ge_u32 s{S_WAVE}, 2")
    A.I(f"s_cbranch_scc1 {L('mhi')}")
    def merge_half(keep, u):
        A.I("s_waitcnt lgkmcnt(0)")
        A.I("s_barrier")
        A.I(f"v_mov_b32 v201, {131072+4096}")
        A.I(f"ds_read_b128 v[204:207], v201")
        A.I(f"ds_read_b128 v[208:211], v200")
        R = 64
        for i in range(16):
            A.I(f"ds_read_b128 {v(R+4*i,4)}, v198 offset:{i*1024}")
        A.I(f"s_lshl_b32 s32, s{S_QA}, 5")
        A.I(f"s_add_u32 s32, s32, s{S_H}")
        A.I(f"s_lshl_b32 s32, s32, 12")
        A.I(f"s_add_u32 s32, s32, {WS_CTX}")
        A.I("s_waitcnt lgkmcnt(15)")
        A.I("v_or_b32 v204, v204, v205")
        A.I("v_or3_b32 v204, v204, v206, v207")
        for qb in keep:
            A.I(f"v_add_f32 v{192+qb}, v{192+qb}, v{208+qb}")
        A.I(f"v_readfirstlane_b32 s{S_FAIL}, v204")
        for qb in keep:
            A.I(f"v_rcp_f32 v{192+qb}, v{192+qb}")
        n = 0
        for i, qb in enumerate(keep):
            A.I(f"s_add_u32 s33, s32, {qb*32*4096}")
            for s_ in range(4):
                T = OWN + i*32 + s_*8
                A.I(f"s_waitcnt lgkmcnt({14 - (i*8+2*s_)})")
                for k in range(4): A.I(f"v_pk_add_f32 {v(T+2*k,2)}, {v(T+2*k,2)}, {v(R + (i*8+2*s_)*4 + 2*k,2)}")
                for k in range(4): A.I(f"v_pk_mul_f32 {v(T+2*k,2)}, {v(T+2*k,2)}, {v(192+2*(qb//2),2)} op_sel:[0,{qb%2}] op_sel_hi:[1,{qb%2}]")
                for k in range(4): A.I(f"v_cvt_pk_bf16_f32 v{T+k}, v{T+2*k}, v{T+2*k+1}")
                A.I(f"buffer_store_dwordx4 {v(T,4)}, v{V_L16}, s[{SRD_WS}:{SRD_WS+3}], s33 offen offset:{s_*1024} sc1")
    merge_half([0, 1], "lo")
    A.I(f"s_branch {L('done')}")
    A.label(L("w_mhi")); A.I(f"s_setpc_b64 s[{S_RET}:{S_RET+1}]")
    A.label(L("mhi"))
    merge_half([2, 3], "hi")
    A.label(L("done"))
    ST.stamp()
    A.I(f"s_and_b32 s34, s{S_FAIL}, s{S_SAFE}")
    A.I(f"s_cbranch_scc1 {L('saferestart')}")
    oproj()
    A.label(L("end"))
    A.I("s_endpgm")
    A.label(L("maddr"))
    A.I(f"s_mul_i32 s6, s{S_WAVE}, 0x4000")
    A.I(f"s_add_u32 s6, s6, 0xc000")
    A.I(f"s_cmp_eq_u32 s{S_WAVE}, 0")
    A.I(f"s_cselect_b32 s6, 0x4000, s6")
    A.I(f"s_cselect_b32 s7, 0x1c000, 0")
    A.I(f"s_cmp_eq_u32 s{S_WAVE}, 3")
    A.I(f"s_cselect_b32 s6, 0x1c000, s6")
    A.I(f"s_cselect_b32 s7, 0x4000, s7")
    A.I(f"s_cmp_eq_u32 s{S_WAVE}, 1")
    A.I(f"s_cselect_b32 s7, 0x14000, s7")
    A.I(f"s_cmp_eq_u32 s{S_WAVE}, 2")
    A.I(f"s_cselect_b32 s7, 0x10000, s7")
    A.I(f"v_add_u32 v197, s6, v{V_L16}")
    A.I(f"v_add_u32 v198, s7, v{V_L16}")
    A.I(f"s_lshl_b32 s34, s{S_WAVE}, 10")
    A.I(f"s_add_u32 s34, s34, 131072")
    A.I(f"v_add_u32 v199, s34, v{V_L16}")
    A.I(f"s_xor_b32 s34, s34, 3072")
    A.I(f"v_add_u32 v200, s34, v{V_L16}")
    A.I(f"s_lshl_b32 s34, s{S_WAVE}, 2")
    A.I(f"s_add_u32 s34, s34, {131072+4096}")
    A.I(f"v_mov_b32 v201, s34")
    A.I(f"s_setpc_b64 s[{S_RET}:{S_RET+1}]")
    A.label(L("maxpass"))
    M = Asm()
    for qb in range(4): M.I(f"v_mov_b32 v{12+qb}, 0xff7fffff")
    M.I("v_mov_b32 v8, 0xff7fffff")
    M.I(f"v_add_u32 v9, 0x10000, v{V_L16}")
    MI_, ML_ = 64, 65
    M.I(f"s_mov_b32 s{MI_}, 0")
    M.I(f"s_lshr_b32 s{S_CNT}, s{S_Q0}, 2")
    M.I(f"s_sub_u32 s{ML_}, 31, s{S_T2}")
    M.I("s_waitcnt lgkmcnt(0)")
    M.I("s_barrier")
    M.label(L("mp_loop"))
    M.I(f"s_lshl_b32 s{S_TMP}, s{MI_}, 15")
    M.I(f"s_add_u32 s{S_TMP}, s{S_TMP}, s{S_KVB}")
    M.I(f"s_add_u32 m0, s{S_W4K}, 0x10000")
    M.I("s_nop 0")
    for x in dma4(S_TMP, None): M.I(x)
    M.I("s_waitcnt vmcnt(0)")
    M.I("s_barrier")
    M.I(f"s_cmp_gt_u32 s{MI_}, s{S_CNT}")
    M.I(f"s_cbranch_scc1 {L('mp_next')}")
    for kb, base in enumerate((KA_, KB, VA, VB)):
        for s_ in range(4): M.I(rdfrag(base+4*s_, 9, kb*4+s_))
    M.I("s_waitcnt lgkmcnt(0)")
    for kb, base in enumerate((KA_, KB, VA, VB)):
        for qb in range(4):
            for s_ in range(4):
                d = v(Sreg(kb//2, kb % 2, qb), 4)
                M.I(mf(d, a(base+4*s_, 4), v(Qf(qb, s_), 4), "0" if s_ == 0 else d))
    M.I("s_nop 7")
    M.I(f"s_cmp_lg_u32 s{MI_}, s{S_CNT}")
    M.I(f"s_cbranch_scc1 {L('mp_nomask')}")
    for kb in range(4):
        for qb in range(4):
            for r in range(4):
                reg = Sreg(kb//2, kb % 2, qb) + r
                if kb > qb: M.I(f"v_mov_b32 v{reg}, v8")
                elif kb == qb: M.I(f"v_cndmask_b32 v{reg}, v8, v{reg}, s[{S_MASK+2*r}:{S_MASK+2*r+1}]")
    M.label(L("mp_nomask"))
    for qb in range(4):
        regs = [Sreg(kb//2, kb % 2, qb) + r for kb in range(4) for r in range(4)]
        for i in range(0, 16, 2): M.I(f"v_max3_f32 v{12+qb}, v{12+qb}, v{regs[i]}, v{regs[i+1]}")
    M.label(L("mp_next"))
    M.I("s_barrier")
    M.I(f"s_add_u32 s{MI_}, s{MI_}, 1")
    M.I(f"s_cmp_le_u32 s{MI_}, s{ML_}")
    M.I(f"s_cbranch_scc1 {L('mp_loop')}")
    for kb, base in enumerate((KA_, VA, VB, KB)):
        for s_ in range(4): M.I(rdfrag(base+4*s_, V_K, kb*4+s_))
    M.I("s_waitcnt lgkmcnt(0)")
    M.I(f"s_setpc_b64 s[{S_RET}:{S_RET+1}]")
    A.items += M.check(fix=True, seq=M.items)
    saferestart()
    allb = {}
    def lastfill(kind):
        if kind == "lastst": return []
        keep = [0, 1] if kind == "lastlo" else [2, 3]
        send = [q for q in range(4) if q not in keep]
        r = []
        for db in range(8):
            e = (4 if db < 4 else 36) + 8*(db % 4) + 16
            for i, qb in enumerate(send): r.append((e, f"ds_write_b128 v197, {a(Oreg(db,qb),4)} offset:{(i*8+db)*1024}"))
            for i, qb in enumerate(keep):
                for k in range(4): r.append((e, f"v_accvgpr_read_b32 v{OWN + i*32 + db*4 + k}, a{Oreg(db, qb) + k}"))
        return r
    QA = [f"s_add_u32 s34, s61, 16384", f"buffer_load_dwordx4 v[200:203], v{V_L16}, s[{SRD_WS}:{SRD_WS+3}], s34 offen"] + \
         [f"ds_read_b128 {v(Qf(qb,s_),4)}, v31 offset:{(qb*4+s_)*1024}" for qb in range(4) for s_ in range(4)]
    for kind, adma in (("d", False), ("s", True)):
        B = Asm(); l2 = entry_lg(); body(B, "full", "full", False, adma, l2)
        assert l2.q == entry_lg().q, l2.q
        for p in B.check(seq=B.items + B.items, name="main_"+kind): print("HAZARD(main)", p)
        allb["main_"+kind] = B.items
    for key, (qk, pv, first, kind) in used.items():
        B = Asm(); l2 = entry_lg()
        body(B, qk, pv, first, kind != "fd", l2, wo=(kind == "fd" or key in ("b_None_diag_1epi", "b_diag_full_1", "b_full_full_1t0")), vmn={"fd": nyoung, "st": "auto"}.get(kind, 0),
             xst={"epi": {**{(1, 40+(i//2)*8+(i%2)*2): epi_st(i) for i in range(8)}, (1, 20): QA}, }.get(kind), vfill=epi_late({"full": 3, "diag": 2, None: 0}[qk]) if kind in ("st", "lastst") else None, mid=(lambda: epi_half(B, [0, 1])) if kind == "epi" else None, last=lastfill(kind) if kind.startswith("last") else None)
        allb[key] = B.check(fix=True, seq=B.items)
    link = [Ins("s_nop 0"), Ins("s_nop 0")]
    for key, items in allb.items():
        pad = 0
        while True:
            seq = items[-40:] + [Ins("s_nop 0")]*pad + link
            if not any(Asm().check(seq=seq + nxt[:40]) for nxt in allb.values()): break
            pad += 1
        A.I(".p2align 6")
        A.label(L("w_" + key)); A.I(f"s_setpc_b64 s[{S_RET}:{S_RET+1}]")
        A.label(L("w2_" + key)); A.I("s_setpc_b64 s[56:57]")
        A.label(L(key))
        A.items += items
        if key.startswith("main"):
            assert pad == 0
            A.I(f"s_cmp_le_i32 s{S_I}, s{S_CNT}")
            A.I(f"s_cbranch_scc1 {L(key)}")
        elif "last" in key: A.I("s_nop 7")
        elif pad: A.I(f"s_nop {pad-1}")
        A.I(f"s_setpc_b64 s[{S_RET}:{S_RET+1}]")
    A.label("L_codeend")
    return A
```

```python
from common import *
import k2
from k2 import *
import math, struct

F_XN, F_KV, F_H, F_B, F_A, F_P, F_ID = range(7)
S_ID = 45
def flag_base(kind): return WS_FLAG + kind*262144
NLOG2E = f2u(-math.log2(math.e))
S_NONCE = 3
S_ROT = 39

def gen(name, prof=False, rot=False, xsc=' sc1', csc=' sc1', xdiag=0, tlb=False, itlb=True, dense=False, slp=0, fstride=7, apoll=0, fullline=True, xtouch=0, fine=0, pvb=0, dsc=' sc1', lnt=0, warm_t=(0, 1, 2), swarm=1, pf0=2, xst_t=5, pxg=10, pxc=13, tlbw=0, wqg=4, pft=5, pfs=3, wofb=1, t64=0, prer_mode=1, cpf=1, kvsc='', outsc='', padto=0, qeven=1, k3pace=1, wotouch=0, wot=2, wqt=7, wqtouch=1, barpos=9, noln=0, kspread=0, apollA=0, upfront=2):
    A = Asm(); ST = Stamps(A, prof, 0)
    vm = Cnt("vmcnt", 63); lg = Cnt("lgkmcnt", 15)
    L = lambda x: f"L_{x}"
    WS = f"s[{SRD_WS}:{SRD_WS+3}]"
    uniq = [0]
    def set_flag(kind, vz, vd, st, val=S_NONCE):
        wide = True
        return [f"s_lshl_b32 s{st}, s2, {2 if wide else 5}", f"s_add_u32 s{st}, s{st}, s{S_WAVE}", f"s_lshl_b32 s{st}, s{st}, {7 if wide else 2}",
                f"s_add_u32 s{st}, s{st}, {flag_base(kind)}",
                f"v_mov_b32 v{vd}, s{val}", f"v_lshlrev_b32 v{vz}, 2, v1",
                "s_mov_b32 exec_hi, 0" if fullline else "s_mov_b64 exec, 1", f"buffer_store_dword v{vd}, v{vz}, {WS}, s{st} offen sc1", "s_mov_b64 exec, -1"]
    def pload(vdat, vaddr, atomic=False):
        if atomic:
            return [f"v_mov_b32 v{vdat}, 0", f"buffer_atomic_or v{vdat}, v{vaddr}, {WS}, 0 offen sc0 sc1"]
        return [f"buffer_load_dword v{vdat}, v{vaddr}, {WS}, 0 offen {'sc1' if apoll != 2 else 'sc0 sc1 nt'}"]
    def poll_check(vaddr, vdat, st, vmask=None, atomic=False):
        u = uniq[0]; uniq[0] += 1
        A.I(f"s_mov_b32 s{st}, 0")
        A.label(L(f"poll{u}"))
        if vmask is not None:
            A.I(f"v_and_b32 v{vmask}, 0xffffff00, v{vdat}")
            A.I(f"v_cmp_ne_u32 vcc, s{S_NONCE}, v{vmask}")
        else:
            A.I(f"v_cmp_ne_u32 vcc, s{S_NONCE}, v{vdat}")
        A.I(f"s_cbranch_vccz {L(f'pollok{u}')}")
        A.I(f"s_add_u32 s{st}, s{st}, 1")
        A.I(f"s_cmp_gt_u32 s{st}, 0x80000")
        A.I(f"s_cbranch_scc1 {L(f'pollok{u}')}")
        if slp: A.I(f"s_sleep {slp}")
        for x in pload(vdat, vaddr, atomic): A.I(x)
        A.I("s_waitcnt vmcnt(0)")
        A.I(f"s_branch {L(f'poll{u}')}")
        A.label(L(f"pollok{u}"))
    def code_pf(off, nbytes, vt, vd):
        return [f"s_lshr_b32 s{S_TMP}, s2, 3", f"s_lshl_b32 s{S_TMP}, s{S_TMP}, 2", f"s_add_u32 s{S_TMP}, s{S_TMP}, s{S_WAVE}",
                f"s_lshl_b32 s{S_TMP}, s{S_TMP}, 10", f"s_and_b32 s{S_TMP}, s{S_TMP}, {nbytes-1}", f"s_add_u32 s{S_TMP}, s{S_TMP}, {off}",
                f"s_min_u32 s{S_TMP}, s{S_TMP}, L_codeend-L_pcbase-1024",
                f"v_add_u32 v{vt}, s{S_TMP}, v{V_L16}", f"global_load_dwordx4 {v(vd,4)}, v{vt}, s[62:63]"]

    def stub(i):
        if not swarm: return
        A.I(f"s_branch {L(f'sk{i}')}")
        A.label(L(f"st{i}")); A.I(f"s_branch {L('swret')}")
        A.label(L(f"sk{i}"))
    header(A, name)
    A.I("s_cmp_ge_u32 s2, 256")
    A.I(f"s_cbranch_scc1 {L('end')}")
    ST.stamp()
    A.I(f"s_load_dwordx4 s[4:7], s[0:1], {KA['x']}")
    A.I(f"s_load_dwordx4 s[8:11], s[0:1], {KA['wuk']}")
    A.I(f"s_load_dwordx4 s[12:15], s[0:1], {KA['dbg']}")
    A.I("s_getpc_b64 s[62:63]")
    A.label("L_pcbase")
    if pf0:
        A.I("v_lshlrev_b32 v244, 4, v0")
        A.I("global_load_dwordx4 v[252:255], v244, s[62:63]"); vm.issue("pf")
        if pf0 == 2:
            A.I("v_add_u32 v245, 4096, v244")
            A.I("global_load_dwordx4 v[252:255], v245, s[62:63]"); vm.issue("pf")
    A.I("s_memrealtime s[52:53]")
    A.I(f"s_mov_b32 s{S_SAFE}, -1")
    A.I("v_and_b32 v1, 63, v0")
    A.I("v_lshrrev_b32 v248, 6, v0")
    A.I(f"s_and_b32 s{S_H}, s2, 7")
    A.I(f"v_readfirstlane_b32 s{S_WAVE}, v248")
    if swarm:
        A.I("s_nop 0")
        for w in range(4):
            A.I(f"s_cmp_eq_u32 s{S_WAVE}, {w}")
            A.I(f"s_cbranch_scc1 {L(f'st{w}')}")
        A.label(L("swret"))
    A.I(f"s_lshr_b32 s47, s2, 3")
    A.I(f"s_lshl_b32 s{S_H}, s{S_H}, 2")
    A.I(f"s_and_b32 s48, s47, 3")
    A.I(f"s_add_u32 s{S_H}, s{S_H}, s48")
    A.I(f"s_lshr_b32 s{S_T}, s47, 2")
    A.I(f"v_lshlrev_b32 v{V_L16}, 4, v1")
    A.I("v_and_b32 v248, 15, v1")
    A.I("v_lshrrev_b32 v249, 4, v1")
    A.I("v_and_b32 v250, 7, v1")
    A.I("v_xor_b32 v250, v250, v249")
    A.I("v_lshrrev_b32 v251, 3, v1")
    A.I("v_lshlrev_b32 v251, 10, v251")
    A.I("v_lshl_add_u32 v208, v250, 4, v251")
    A.I("v_xor_b32 v250, 4, v250")
    A.I("v_lshl_add_u32 v209, v250, 4, v251")
    A.I(f"v_add_u32 v210, {2*(8192-1024)}, v208")
    A.I(f"v_add_u32 v211, {3*(8192-1024)}, v209")
    A.I(f"v_add_u32 v209, {8192-1024}, v209")
    A.I("v_lshrrev_b32 v250, 1, v248")
    A.I("v_xor_b32 v250, v250, v249")
    A.I("v_and_b32 v251, 1, v248")
    A.I("v_lshlrev_b32 v251, 4, v251")
    A.I("v_lshl_add_u32 v251, v249, 13, v251")
    A.I("v_lshl_add_u32 v4, v250, 5, v251")
    A.I(f"v_add_u32 v5, {32768-1024}, v4")
    A.I("v_xor_b32 v250, 4, v250")
    A.I("v_lshl_add_u32 v6, v250, 5, v251")
    A.I(f"v_add_u32 v6, {2*(32768-1024)}, v6")
    A.I(f"v_add_u32 v7, {32768-1024}, v6")
    stub(0)
    A.I(f"s_lshl_b32 s40, s{S_T}, 8")
    A.I(f"s_lshl_b32 s47, s{S_WAVE}, 6")
    A.I("s_add_u32 s40, s40, s47")
    A.I("s_lshl_b32 s40, s40, 10")
    A.I(f"s_lshl_b32 s42, s{S_WAVE}, 13")
    A.I(f"s_lshl_b32 s44, s{S_WAVE}, 17")
    A.I(f"s_lshl_b32 s47, s{S_H}, 8")
    A.I("s_add_u32 s44, s44, s47")
    A.I(f"s_lshl_b32 s{S_W4K}, s{S_WAVE}, 12")
    A.I("s_waitcnt lgkmcnt(0)")
    srd(A, 24, 8, 4*MB); srd(A, 20, 6, 2*MB)

    def rotk(t, shift, base, dst):
        if not rot: return [f"s_add_u32 s{dst}, s{base}, {t << shift}"]
        return [f"s_add_u32 s{dst}, s{S_ROT}, {t}", f"s_and_b32 s{dst}, s{dst}, 7", f"s_lshl_b32 s{dst}, s{dst}, {shift}", f"s_add_u32 s{dst}, s{dst}, s{base}"]
    def wdma(which, t, slot):
        sr = 24 if which == "k" else 28
        pre = rotk(t, 19, 44, 49) + [f"s_add_u32 m0, s{S_W4K}, {slot*16384}"]
        return [(pre if j == 0 else None, f"buffer_load_dwordx4 v{4+j}, s[{sr}:{sr+3}], s49 offen offset:{j*1024} lds") for j in range(4)]
    def cdma(t):
        r = []
        for i in range(8):
            pre = None
            if i == 0: pre = rotk(t, 7, 40, 43) + [f"s_add_u32 m0, s42, {(t%2)*32768}"]
            if i == 4: pre = [f"s_add_u32 s43, s43, 32768", f"s_add_u32 m0, s42, {(t%2)*32768 + 4096}"]
            r.append((pre, f"buffer_load_dwordx4 v{208+i%4}, s[20:23], s43 offen offset:{(i%4)*1024} lds"))
        return r
    def ccopy(t):
        r = []
        for kk in range(2):
            for kb in range(4):
                r.append(f"ds_read_b128 {a((kb*16+2*t+kk)*4,4)}, v{212 + kk} offset:{(t % 2)*32768 + kb*2048}")
        return r
    def issue(lst, tag):
        for pre, x in lst:
            if pre:
                for y in pre: A.I(y)
                if "lds" in x: A.I("s_nop 0")
            A.I(x); vm.issue(tag)
    A.I("s_lshl_b32 s54, s2, 2")
    A.I(f"s_add_u32 s54, s54, s{S_WAVE}")
    A.I("s_lshl_b32 s55, s54, 12")
    A.I("s_lshl_b32 s54, s54, 11")
    prer = [(None, f"buffer_load_dwordx4 v[252:255], v{V_L16}, s[20:23], s53 offen offset:{j*1024}") for j in range(2)] + \
           [(None, f"buffer_load_dwordx4 v[252:255], v{V_L16}, s[24:27], s55 offen offset:{j*1024}") for j in range(4)]
    A.I("s_mov_b32 s53, s54")
    ST.stamp()
    if upfront in (4, 5, 6): issue(prer, "pr")
    if upfront == 6:
        A.I("v_and_b32 v3, 31, v1"); A.I("v_lshlrev_b32 v3, 7, v3"); A.I("v_add_u32 v3, s55, v3")
        A.I(f"buffer_load_dword v252, v3, s[28:31], 0 offen"); vm.issue("pr")
    issue(wdma("k", 0, 7), "Wk0"); issue(cdma(0), "C0")
    ST.stamp()
    stub(1)
    srd(A, 32, 4, 2*MB); srd(A, SRD_WS, 14, WS_END); srd(A, 28, 10, 4*MB)
    A.I("s_lshl_b32 s47, s2, 3")
    A.I(f"s_lshl_b32 s48, s{S_WAVE}, 1")
    A.I("s_add_u32 s47, s47, s48")
    A.I("v_lshrrev_b32 v241, 5, v1")
    A.I("v_add_u32 v241, s47, v241")
    A.I("v_and_b32 v242, 31, v1")
    A.I("v_lshlrev_b32 v243, 10, v241")
    A.I("v_lshl_add_u32 v243, v242, 4, v243")
    A.I("buffer_load_dwordx4 v[216:219], v243, s[32:35], 0 offen"); vm.issue("x")
    A.I("buffer_load_dwordx4 v[220:223], v243, s[32:35], 0 offen offset:512"); vm.issue("x")
    A.I(f"s_load_dwordx2 s[68:69], s[0:1], {KA['wq']}")
    A.I(f"s_load_dwordx2 s[70:71], s[0:1], {KA['wo']}")
    A.I(f"s_load_dwordx2 s[64:65], s[0:1], {KA['w1']}")
    A.I(f"s_load_dwordx2 s[66:67], s[0:1], {KA['w2']}")
    if upfront == 0:
        issue(prer, "pr"); issue(wdma("k", 1, 8), "Wk1"); issue(cdma(1), "C1")
    elif upfront == 1:
        issue(prer, "pr")
    elif upfront == 2:
        issue(wdma("k", 1, 8), "Wk1"); issue(cdma(1), "C1")
    if upfront == 7:
        issue(wdma("k", 1, 8), "Wk1"); issue(cdma(1), "C1"); issue(prer, "pr")
    stub(2)
    for x in code_pf(0, 131072, 244, 252): A.I(x)
    vm.issue("pf")
    A.I(f"s_or_b32 s47, s2, s{S_WAVE}")
    A.I(f"s_cmp_lg_u32 s47, 0")
    A.I(f"s_cbranch_scc1 {L('nocas')}")
    if padto:
        A.I("v_mov_b32 v184, s52"); A.I("v_mov_b32 v185, 4"); A.I("global_store_dword v185, v184, s[12:13] sc1"); A.I("s_nop 1")
    A.I("s_and_b32 s52, s52, 0xffffff00")
    A.I("s_or_b32 s52, s52, 0x100")
    A.I("v_mov_b32 v184, s52")
    A.I("v_mov_b32 v185, 0")
    A.I("s_mov_b64 exec, 1")
    A.I("global_store_dword v185, v184, s[12:13] sc1")
    A.I("s_mov_b64 exec, -1")
    A.label(L("nocas"))
    ST.stamp()
    A.I("v_lshrrev_b32 v250, 1, v248")
    A.I("v_xor_b32 v250, v250, v249")
    A.I("v_lshlrev_b32 v251, 7, v248")
    A.I("v_add_u32 v251, s42, v251")
    A.I("v_lshl_add_u32 v212, v250, 4, v251")
    A.I("v_xor_b32 v250, 4, v250")
    A.I("v_lshl_add_u32 v213, v250, 4, v251")
    A.I("v_bfe_u32 v248, v1, 2, 2")
    A.I("v_lshlrev_b32 v250, 3, v249")
    A.I("v_add_u32 v250, v250, v248")
    A.I("v_lshlrev_b32 v250, 8, v250")
    A.I("v_and_b32 v251, 3, v1")
    A.I("v_lshl_add_u32 v250, v251, 3, v250")
    A.I("v_add_u32 v250, 114688, v250")
    A.I("v_and_b32 v251, 1, v249")
    A.I("v_lshl_add_u32 v248, v251, 2, v248")
    for nb in range(8):
        A.I(f"v_xor_b32 v251, {nb}, v248")
        A.I(f"v_lshl_add_u32 v{8+nb}, v251, 5, v250")
    stub(3)
    A.I("v_lshrrev_b32 v250, 4, v241")
    A.I("v_lshlrev_b32 v250, 14, v250")
    A.I("v_lshrrev_b32 v251, 2, v242")
    A.I("v_lshl_add_u32 v250, v251, 10, v250")
    A.I("v_and_b32 v251, 3, v242")
    A.I("v_lshl_add_u32 v250, v251, 8, v250")
    A.I("v_and_b32 v251, 15, v241")
    A.I("v_lshl_add_u32 v240, v251, 4, v250")
    A.I(f"s_lshl_b32 s46, s{S_H}, 5")
    A.I(f"s_lshl_b32 s47, s{S_T}, 2")
    A.I("s_add_u32 s46, s46, s47")
    A.I(f"s_add_u32 s46, s46, s{S_WAVE}")
    A.I("s_lshl_b32 s46, s46, 15")
    A.I(f"s_add_u32 s46, s46, {WS_KV}")
    if xtouch:
        A.I("s_lshr_b32 s47, s2, 3"); A.I("s_lshl_b32 s47, s47, 2"); A.I(f"s_add_u32 s47, s47, s{S_WAVE}"); A.I("s_lshl_b32 s47, s47, 15")
        A.I("s_and_b32 s48, s2, 7"); A.I("s_lshl_b32 s48, s48, 10"); A.I("s_add_u32 s47, s47, s48")
        A.I("v_bfe_u32 v3, v1, 3, 2"); A.I("v_lshlrev_b32 v3, 13, v3"); A.I("v_and_b32 v250, 7, v1"); A.I("v_lshl_add_u32 v3, v250, 7, v3")
        A.I("v_add_u32 v3, s47, v3")
    else:
        A.I("v_and_b32 v3, 31, v1" if not t64 else "v_mov_b32 v3, v1")
        A.I(f"v_lshlrev_b32 v3, {7 if not t64 else 6}, v3")
        A.I("v_add_u32 v3, s55, v3")
    A.I("s_mul_i32 s54, s54, 11")
    A.I("s_lshr_b32 s54, s54, 4")
    A.I(f"v_min_u32 v250, {10 if not t64 else 21}, v1")
    A.I(f"v_lshlrev_b32 v250, {7 if not t64 else 6}, v250")
    A.I("v_add_u32 v250, s54, v250")
    A.I(f"v_min_u32 v250, {1376*1024-4}, v250")
    LN = Asm()
    X = 224
    for i in range(8):
        LN.I(f"v_lshlrev_b32 v{X+2*i}, 16, v{216+i}")
        LN.I(f"v_and_b32 v{X+2*i+1}, 0xffff0000, v{216+i}")
    LN.I(f"v_add_f32 v243, v{X}, v{X+1}")
    LN.I(f"v_add_f32 v244, v{X+2}, v{X+3}")
    for i in range(4, 16, 2):
        LN.I(f"v_add_f32 v243, v243, v{X+i}")
        LN.I(f"v_add_f32 v244, v244, v{X+i+1}")
    LN.I("v_add_f32 v243, v243, v244")
    row_allreduce32(LN, 243, 244)
    LN.I("v_mul_f32 v243, 0x3b000000, v243")
    LN.I("v_mov_b32 v245, 0")
    LN.I("v_mov_b32 v246, 0")
    for i in range(16):
        LN.I(f"v_sub_f32 v247, v{X+i}, v243")
        LN.I(f"v_fmac_f32 v{245+i%2}, v247, v247")
    LN.I("v_add_f32 v245, v245, v246")
    row_allreduce32(LN, 245, 244)
    LN.I("v_mul_f32 v245, 0x3b000000, v245")
    LN.I("v_cvt_pk_bf16_f32 v243, v243, v245")
    LN.I("v_and_b32 v245, 0xffff0000, v243")
    LN.I("v_lshlrev_b32 v243, 16, v243")
    LN.I("v_add_f32 v245, 0x3727c5ac, v245")
    LN.I("v_cvt_pk_bf16_f32 v245, v245, v245")
    LN.I("v_lshlrev_b32 v245, 16, v245")
    LN.I("v_sqrt_f32 v245, v245")
    LN.I("s_nop 0")
    LN.I("v_cvt_pk_bf16_f32 v245, v245, v245")
    LN.I("v_lshlrev_b32 v245, 16, v245")
    LN.I("v_rcp_f32 v245, v245")
    for i in range(16):
        LN.I(f"v_sub_f32 v{X+i}, v{X+i}, v243")
    for i in range(8):
        LN.I(f"v_cvt_pk_bf16_f32 v{216+i}, v{X+2*i}, v{X+2*i+1}")
    for i in range(8):
        LN.I(f"v_lshlrev_b32 v{X+2*i}, 16, v{216+i}")
        LN.I(f"v_and_b32 v{X+2*i+1}, 0xffff0000, v{216+i}")
        LN.I(f"v_mul_f32 v{X+2*i}, v{X+2*i}, v245")
        LN.I(f"v_mul_f32 v{X+2*i+1}, v{X+2*i+1}, v245")
    for i in range(8):
        LN.I(f"v_cvt_pk_bf16_f32 v{216+i}, v{X+2*i}, v{X+2*i+1}")
    lnq = [x.text for x in LN.items if not x.text.startswith("s_nop")]
    if noln: lnq = []
    A.I("v_add_u32 v241, 8192, v240")
    A.I(f"s_getreg_b32 s{S_ID}, hwreg(HW_REG_XCC_ID)")
    A.I(f"s_lshr_b32 s47, s{S_ID}, 12")
    A.I(f"s_and_b32 s47, s47, 0xf0")
    A.I(f"s_and_b32 s{S_ID}, s{S_ID}, 15")
    A.I(f"s_or_b32 s{S_ID}, s{S_ID}, s47")

    WF = 144
    wfrag = lambda db, kk: WF + (db*2+kk)*4
    tr = lambda dst, areg, off: f"ds_read_b64_tr_b16 {v(dst,2)}, v{areg} offset:{off}"
    def reads1(t, db):
        r = []
        for kk in range(2):
            off = (t % 3)*16384 + kk*8192
            r += [tr(wfrag(db,kk), 8+db, off), tr(wfrag(db,kk)+2, 8+db, off+1024)]
        return r
    accK = lambda db, kb: 16 + (db*4+kb)*4
    ST.stamp()
    A.I("s_waitcnt lgkmcnt(0)")
    if upfront == 7:
        A.I("s_mov_b64 exec, 1")
        for (va, sp) in ((3, 68), (250, 64), (3, 70), (250, 66)):
            A.I(f"global_load_dword v252, v{va}, s[{sp}:{sp+1}]"); vm.issue("pr")
        A.I("s_mov_b64 exec, -1")
    if itlb == 2:
        for w, lab in enumerate(["main_d", "main_s", "b_full_full_1fd", "b_None_diag_0epi"]):
            A.I(f"s_cmp_lg_u32 s{S_WAVE}, {w}")
            A.I(f"s_cbranch_scc1 {L(f'nsu{w}')}")
            A.I(f"s_call_b64 s[56:57], {L('w2_' + lab)}")
            A.label(L(f"nsu{w}"))
    A.I(vm.wait("x"))
    A.I("s_barrier")
    for x in ccopy(0): A.I(x); lg.issue("c0")
    for db in range(7):
        for x in reads1(0, db): A.I(x); lg.issue(f"R0_{db}")
    if upfront == 3:
        issue(wdma("k", 1, 8), "Wk1"); issue(cdma(1), "C1"); issue(prer, "pr")
    if upfront in (1, 4, 6):
        issue(wdma("k", 1, 8), "Wk1"); issue(cdma(1), "C1")
    elif upfront == 2:
        if prer_mode == 1: issue(prer, "pr")
        if tlbw:
            A.I("s_mov_b64 exec, 1")
            for (va, sp) in ((3, 68), (250, 64), (3, 70), (250, 66)):
                A.I(f"global_load_dword v252, v{va}, s[{sp}:{sp+1}]"); vm.issue("pr")
            A.I("s_mov_b64 exec, -1")
        elif prer_mode == 2:
            A.I("v_lshrrev_b32 v244, 1, v3"); A.I("v_and_b32 v244, 0xffffffc0, v244")
            A.I("buffer_load_dword v252, v244, s[20:23], 0 offen"); vm.issue("pr")
            A.I("buffer_load_dword v252, v3, s[24:27], 0 offen"); vm.issue("pr")
    vslot = lambda tt: [4,5,6,0,1,7,2,3][tt]
    p2addr = lambda G: (G//8, (G//2) % 4, G % 2)
    p2areg = lambda p, dbl, win: 240 + (p % 2)*4 + dbl*2 + win
    def reads2(G):
        p, ksg, dbl = p2addr(G)
        r = []
        for k4 in range(4):
            ks = ksg*4 + k4
            byte = vslot(ks//2)*16384 + (ks % 2)*8192
            dst = WF + (G % 4)*16 + k4*4
            r += [tr(dst, p2areg(p, dbl, byte//65536), byte % 65536), tr(dst+2, p2areg(p, dbl, byte//65536), byte % 65536 + 1024)]
        return r
    def p2setup(p):
        return [f"v_subrev_u32 v{p2areg(p,dbl,win)}, {114688 - win*65536}, v{8+2*p+dbl}" for dbl in range(2) for win in (0, 1)]
    def pubxn():
        assert vm.need("nonce") is None
        A.I(f"s_mov_b32 s47, 0")
        A.label(L("npoll"))
        A.I(f"v_readfirstlane_b32 s{S_NONCE}, v249")
        A.I("s_nop 0")
        A.I(f"s_cmp_lg_u32 s{S_NONCE}, 0")
        A.I(f"s_cbranch_scc1 {L('npollok')}")
        A.I("s_add_u32 s47, s47, 1")
        A.I("s_cmp_gt_u32 s47, 0x80000")
        A.I(f"s_cbranch_scc1 {L('npollok')}")
        A.I("s_sleep 2")
        A.I("global_load_dword v249, v248, s[12:13] sc1")
        A.I("s_waitcnt vmcnt(0)")
        A.I(f"s_branch {L('npoll')}")
        A.label(L("npollok"))
        A.I(f"s_add_u32 s{S_ID}, s{S_ID}, s{S_NONCE}")
        for x in set_flag(F_XN, 248, 249, 47, S_ID): A.I(x)
        vm.issue("fl")
    lastln = [None]
    kj0 = [(accK(0,kb), accK(1,kb), kb*4) for kb in range(2)]
    BAR = barpos
    for t in range(8):
        M = []
        for db in range(8):
            for kb in range(4):
                for kk in range(2):
                    c = v(accK(db,kb),4)
                    M.append(mf(c, v(wfrag(db,kk),4), a((kb*16+2*t+kk)*4,4), "0" if (t==0 and kk==0) else c))
        A.I(lg.wait([f"R{t}_0", f"c{t}", f"c{t}_0"]))
        if t in (0, 4) or fine: ST.stamp()
        if t < 6: ops = [(d, f"Wk{t+2}", pre) for pre, d in wdma("k", t+2, 7 + (t+2) % 3)] + [(d, f"C{t+2}_{i//2}", pre) for i, (pre, d) in enumerate(cdma(t+2))]
        else: ops = [(d, f"Wv{tt}", pre) for tt in range(3*(t-6), 3*(t-6)+3) for pre, d in wdma("v", tt, vslot(tt))]
        vg = [1, 5, 11, 15, 21, 25, 29, 33, 37, 41, 45, 51] if t < 7 else [1, 5, 11, 15, 21, 27, 31, 37, 43, 49, 55, 61]
        if t == 6: vg = [BAR+2 + 4*i for i in range(12)] if False else vg
        vpos = {vg[i]: op for i, op in enumerate(ops)}
        rq = []
        if t < 7:
            for db in range(7): rq += [(8*db+8, x, f"R{t+1}_{db}") for x in reads1(t+1, db)]
        else:
            for G in range(2): rq += [(16*G+16, x, f"S{G}") for x in reads2(G)]
        cpos = {}
        if t < 7:
            cc = ccopy(t+1)
            for kb in range(4):
                for kk in range(2): cpos[[47, 49, 53, 55, 57, 59, 61, 63][kb*2+kk]] = (cc[kk*4+kb], kb, kk)
        for g in range(64):
            db = g // 8; q = g % 8
            A.I(M[g])
            if g == BAR:
                A.I((vm.wait(f"Wk{t+1}" if t < 7 else "Wv1") or "s_waitcnt") + " lgkmcnt(0)"); lg.drain()
                A.I("s_barrier")
            if t == 1 and g == 52:
                A.I(f"buffer_load_dword v252, v3, s[28:31], 0 offen"); vm.issue("pr")
            if (t, g) in ((wot, 52), (wot, 54)) and not wofb:
                A.I("global_load_dword v252, v3, s[70:71]" if g == 52 else "global_load_dword v253, v250, s[66:67]"); vm.issue("pr")
            if t == wqt and g in (53, 57) and wqtouch and not wqg:
                A.I("global_load_dword v252, v3, s[68:69]" if g == 53 else "global_load_dword v253, v250, s[64:65]"); vm.issue("pr")
            if t == xst_t and g == 63:
                assert not lnq
                A.I(f"buffer_store_dwordx4 v[216:219], v240, {WS}, 0 offen sc1"); vm.issue("xs")
                A.I(f"buffer_store_dwordx4 v[220:223], v241, {WS}, 0 offen sc1"); vm.issue("xs")
                A.I("v_mov_b32 v248, 0")
                A.I("global_load_dword v249, v248, s[12:13] sc1"); vm.issue("nonce")
            if itlb == 1 and g == BAR-1 and t in warm_t:
                WARM = [["main_d", "main_s", "b_full_full_1fd", "b_full_full_1"], ["b_diag_full_0", "b_full_diag_0", "b_None_diag_0epi", "b_diag_None_0st"],
                        ["b_full_diag_1", "b_full_None_0st", "b_None_full_0lastlo", "merge"], ["role0", "role2", "role3", "mhi"]][warm_t.index(t)]
                for w in range(4):
                    A.I(f"s_cmp_lg_u32 s{S_WAVE}, {w}")
                    A.I(f"s_cbranch_scc1 {L(f'nst{t}_{w}')}")
                    A.I(f"s_call_b64 s[{S_RET}:{S_RET+1}], {L('w_' + WARM[w])}")
                    A.label(L(f"nst{t}_{w}"))
            if g+1 in vpos and vpos[g+1][2]:
                for x in vpos[g+1][2]: A.I(x)
                if not (db == 0 and q % 2 == 0): A.I("s_nop 0") if False else None
            if q == 7 and db < 7: A.I(lg.wait(f"R{t}_{db+1}"))
            if g in (1, 3, 5): A.I(lg.wait(f"c{t}_{(g+1)//2}"))
            nds = 0
            if db == 0 and q % 2 == 0:
                A.I(reads1(t, 7)[q//2]); lg.issue(f"R{t}_7"); nds = 1
            if g > BAR and g % 2 == 0 or (g > BAR and g not in vpos and g not in cpos and rq and rq[0][0] <= g - 6):
                if rq and rq[0][0] <= g:
                    x = rq.pop(0); A.I(x[1]); lg.issue(x[2]); nds += 1
            if g in cpos:
                if cpos[g][2] == 0: A.I(vm.wait([f"C{t+1}_{cpos[g][1]}", f"C{t+1}"]))
                A.I(cpos[g][0]); lg.issue(f"c{t+1}_{cpos[g][1]}"); nds += 1
            if xst_t < 6 and t == xst_t + 2 and g == BAR + 1: pubxn()
            if t == 7 and g == 8:
                for x in p2setup(0): A.I(x)
                A.I(f"s_mov_b32 s52, {QSCALE}")
            if t == 7 and g in (18, 34, 50):
                s_ = (g-18)//16
                lnq += [f"v_mul_f32 v{r+k}, s52, v{r+k}" for kb in range(4) for r in (accK(2*s_,kb), accK(2*s_+1,kb)) for k in range(4)]
            if g in vpos:
                A.I(vpos[g][0]); vm.issue(vpos[g][1])
            nln = 0 if (g in vpos or nds > 1 or t < lnt) else (1 if nds else 2)
            while nln and lnq:
                x = lnq[0]
                sp = ("row_ror" in x or "permlane" in x or "sqrt" in x or "rcp" in x)
                if sp and nln == 2 and lastln[0] == (t, g): break
                A.I(lnq.pop(0)); nln -= 1
                dep = sp or (lnq and ("row_ror" in lnq[0] or "permlane" in lnq[0]))
                lastln[0] = (t, g)
                if dep:
                    if lnq and ("row_ror" in lnq[0] or "permlane" in lnq[0]): A.I("s_nop 0")
                    break
        assert not rq, (t, len(rq))
    ST.stamp()
    def cvt_frag(r0, r1):
        return [f"v_cvt_pk_bf16_f32 v{r0}, v{r0}, v{r0+1}", f"v_cvt_pk_bf16_f32 v{r0+1}, v{r0+2}, v{r0+3}",
                f"v_cvt_pk_bf16_f32 v{r0+2}, v{r1}, v{r1+1}", f"v_cvt_pk_bf16_f32 v{r0+3}, v{r1+2}, v{r1+3}"]
    def store_frag(r0, f):
        return [f"s_add_u32 s47, s46, {(f>>2)*4096}", f"buffer_store_dwordx4 {v(r0,4)}, v{V_L16}, {WS}, s47 offen offset:{(f&3)*1024}{kvsc}"]
    accV = lambda p, dbl, kb: (208 + dbl*16 if p % 2 == 0 else (128, 96)[dbl]) + kb*4
    epi = {}
    kj = [(accK(2*s_,kb), accK(2*s_+1,kb), kb*4+s_) for s_ in range(4) for kb in range(4)]
    for i, job in enumerate(kj): epi.setdefault(i//2, []).append(job)
    sts = {}
    for i, job in enumerate(kj): sts[[0,1,2,3, 4,5,6,7, 8,10,12,14, 16,18,20,22][i]] = job
    for p in range(3):
        vj = [(accV(p,dbl,2*j), accV(p,dbl,2*j+1), 16 + j*8 + 2*p+dbl) for dbl in range(2) for j in range(2)]
        for i, job in enumerate(vj):
            G_ = (p+1)*8 + (1 + 2*i if p < 2 else i)
            epi.setdefault(G_, []).append(job); sts[G_] = job
    RB = [138240, 87040, 61440, 112640]
    QBASE = 87040
    def qwdma(t):
        slot = RB[t % 4]
        return [(rotk(t, 19, 44, S_TMP) + [f"s_add_u32 m0, s{S_W4K}, {slot}"], f"buffer_load_dwordx4 v4, s[{SRD_WQ}:{SRD_WQ+3}], s{S_TMP} offen lds")] + \
               [(None, f"buffer_load_dwordx4 v{4+j}, s[{SRD_WQ}:{SRD_WQ+3}], s{S_TMP} offen offset:{j*1024} lds") for j in range(1, 4)] + \
               [([f"s_add_u32 s{S_TMP}, s33, {t*64*2752}",
                  f"s_add_u32 m0, s35, {slot+16384}"], f"buffer_load_dwordx4 v16, s[{SRD_W1}:{SRD_W1+3}], s{S_TMP} offen lds"),
                (None, f"buffer_load_dwordx4 v17, s[{SRD_W1}:{SRD_W1+3}], s{S_TMP} offen offset:1152 lds")]
    def xload(t):
        r = []
        for qb in range(4):
            for kk in range(2):
                pre = None
                if qb == 0 and kk == 0: pre = rotk(t, 11, 34, S_TMP2)
                elif kk == 0: pre = [f"s_add_u32 s{S_TMP2}, s{S_TMP2}, 16384"]
                r.append((pre, f"buffer_load_dwordx4 {a((qb*16+2*t+kk)*4,4)}, v{V_L16}, {WS}, s{S_TMP2} offen offset:{kk*1024}{xsc}"))
        return r
    WR = 208
    def blk(n):
        t, c = n//11, n % 11
        return t, (c if t < 7 else (c+8) % 11)
    def breads(n):
        t, cb = blk(n)
        r = []
        so = RB[t % 4] - QBASE
        if so < 0: so = 0
        for kk in range(2):
            dst = WR + (n % 6)*8 + kk*4
            if cb < 8: off = so + kk*8192; areg = 8+cb; h2 = 1024
            else: off = so + kk*4608 + (cb-8)*32; areg = 18; h2 = 384
            r += [tr(dst, areg, off), tr(dst+2, areg, off+h2)]
        return r
    def bump(n):
        t, cb = blk(n)
        if cb <= 8 and t % 4 in (2, 3):
            areg = 8+cb if cb < 8 else 18
            return [f"v_subrev_u32 v{areg}, {WSLOT}, v{areg}" if t % 4 == 2 else f"v_add_u32 v{areg}, {WSLOT}, v{areg}"]
        return []
    q_setup_s = [
        f"s_load_dwordx2 s[4:5], s[0:1], {KA['wq']}", f"s_load_dwordx4 s[8:11], s[0:1], {KA['w1']}",
        f"s_lshl_b32 s{S_T2}, s{S_T}, 1",
        f"s_lshr_b32 s{S_STRM}, s{S_WAVE}, 1", f"s_lshl_b32 s{S_STRM}, s{S_STRM}, 16",
        f"s_and_b32 s{S_TMP}, s{S_WAVE}, 1", f"s_lshl_b32 s{S_TMP}, s{S_TMP}, 2",
        f"s_lshr_b32 s{S_TMP2}, s{S_WAVE}, 1", f"s_xor_b32 s{S_TMP2}, s{S_TMP2}, s{S_WAVE}", f"s_and_b32 s{S_TMP2}, s{S_TMP2}, 1", f"s_lshl_b32 s{S_TMP2}, s{S_TMP2}, 2",
        f"s_sub_u32 s{S_QA}, 15, s{S_T}", f"s_lshl_b32 s{S_QA}, s{S_QA}, 3", f"s_add_u32 s{S_QA}, s{S_QA}, s{S_TMP2}",
        f"s_lshl_b32 s{S_Q0}, s{S_T}, 3", f"s_add_u32 s{S_Q0}, s{S_Q0}, s{S_TMP}",
        f"s_cmp_lt_u32 s{S_WAVE}, 2", f"s_cselect_b32 s{S_Q0}, s{S_QA}, s{S_Q0}",
        f"s_lshl_b32 s{S_KVB}, s{S_H}, 20", f"s_add_u32 s{S_KVB}, s{S_KVB}, s{S_W4K}", f"s_add_u32 s{S_KVB}, s{S_KVB}, {WS_KV}",
        f"s_and_b32 s7, s{S_H}, 1", "s_lshl_b32 s6, s7, 5", "s_lshl_b32 s7, s7, 1",
        f"s_mul_i32 s32, s{S_H}, 96", f"s_mul_i32 s33, s{S_WAVE}, {16*2752}", f"s_add_u32 s33, s33, s32",
        f"s_lshl_b32 s34, s{S_Q0}, 14", f"s_add_u32 s34, s34, {xdiag}", f"s_mul_i32 s35, s{S_WAVE}, 2304",
        "s_add_u32 s53, s32, s6", "s_lshl_b32 s6, s6, 1", "s_sub_u32 s54, s32, s6"]
    q_setup_v = [
        f"v_mul_u32_u24 v20, 43, v1", "v_lshrrev_b32 v20, 8, v20", "v_mul_u32_u24 v21, 6, v20", "v_sub_u32 v21, v1, v21",
        "v_add_u32 v21, s7, v21", "v_subrev_u32 v22, 6, v21", "v_min_u32 v21, v21, v22",
        "v_mul_u32_u24 v16, 2752, v20", "v_lshl_add_u32 v16, v21, 4, v16", "v_cmp_gt_u32 vcc, 48, v1", f"v_mov_b32 v20, {OOB}",
        "v_lshrrev_b32 v21, 4, v1", "v_cndmask_b32 v16, v20, v16, vcc", f"v_add_u32 v17, {8*2752-1152}, v16",
        "v_mul_u32_u24 v18, 1152, v21", "v_bfe_u32 v22, v1, 2, 2", "v_mul_u32_u24 v22, 96, v22", "v_add_u32 v18, v18, v22",
        "v_and_b32 v22, 3, v1", "v_lshl_add_u32 v18, v22, 3, v18", f"v_add_u32 v18, {QBASE+16384}, v18",
        "v_lshlrev_b32 v19, 3, v21",
        "v_and_b32 v24, 31, v1", "v_lshlrev_b32 v24, 7, v24"]
    def srd_list(dst, ptr, nbytes):
        return [f"s_mov_b32 s{dst}, s{ptr}", f"s_mov_b32 s{dst+1}, s{ptr+1}", f"s_mov_b32 s{dst+2}, {nbytes}", f"s_mov_b32 s{dst+3}, 0x20000"]
    extra = {}
    def put(G, g, items): extra.setdefault((G, g), []).extend(items)
    for i, x in enumerate(q_setup_s): put(2 + i//12, (4, 5, 6, 8, 9, 10, 11, 12, 13, 14, 14, 14)[i % 12] if i < 12 else (0, 1, 2, 3, 4, 5, 8, 9, 10, 11, 12, 13)[i % 12], [x])
    for i, x in enumerate(q_setup_v): put(5 + i//10, (1, 3, 5, 5, 9, 9, 11, 11, 13, 13)[i % 10], [x])
    put(5, 15, ["s_waitcnt lgkmcnt(0)"])


    for i, x in enumerate(srd_list(SRD_WQ, 4, 4*MB) + srd_list(SRD_W1, 8, 512*2752) + srd_list(SRD_B1, 10, 2752)): put(6, i, [x])
    put(8, 1, [f"s_lshl_b32 s{S_TMP}, s{S_Q0}, 10", f"s_add_u32 s{S_TMP}, s{S_TMP}, {flag_base(F_XN)}"])
    put(8, 3, [f"v_add_u32 v24, s{S_TMP}, v24"])
    put(pxg, 13, [(f"buffer_load_dword v25, v24, {WS}, 0 offen sc1", "pollx")])
    for fb in range(3):
        put(8, 7+2*fb, [(f"buffer_load_dwordx2 v[{26+2*fb}:{27+2*fb}], v19, s[{SRD_B1}:{SRD_B1+3}], s{53 if fb < 2 else 54} offen offset:{fb*32}", "b")])
    def put_ops(G0, g0, lst, tag, step=2):
        G, g = G0, g0
        for pre, x in lst:
            if pre: put(G, g-1, [("P", y) for y in pre])
            put(G, g, [(x, tag)])
            g += step
            while g > 15: G += 1; g -= 16
        return G, g
    if tlb:
        tl = [f"s_mul_i32 s39, s{S_Q0}, 49152", f"s_add_u32 s39, s39, {WS_H}",
              f"s_lshl_b32 s39, s{S_Q0}, 17", f"s_add_u32 s39, s39, {WS_CTX}",
              f"s_lshl_b32 s39, s{S_QA}, 17", f"s_add_u32 s39, s39, {WS_CTX}",
              "s_lshl_b32 s39, s2, 15", f"s_add_u32 s39, s39, {WS_PART}"]
        for i in range(4):
            put(tlb, 4*i, [tl[2*i], tl[2*i+1]])
            put(tlb, 4*i+1, [(f"buffer_load_dword v252, v1, {WS}, s39 offen", "pr")])
    put_ops(0, 1, wdma("v", 6, vslot(6)), "Wv6", 4)
    put_ops(1, 1, wdma("v", 7, vslot(7)), "Wv7", 4)
    cp2 = code_pf(32768, 32768, 32, 44)
    put(9, 1, cp2[:3]); put(9, 3, cp2[3:7]); put(9, 5, [cp2[7]]); put(9, 7, [(cp2[8], "pf2")])
    put(9, 11, ["v_add_u32 v33, 0x7c00, v32"]); put(9, 13, [("global_load_dwordx4 v[44:47], v33, s[62:63]", "pf2")])
    if wqg:
        put(wqg+1, 1, [("global_load_dword v252, v3, s[68:69]", "pr")]); put(wqg+1, 5, [("global_load_dword v253, v250, s[64:65]", "pr")])
    put_ops(pxc+9, 3, qwdma(0), "W0", 6)
    XS = lambda i: (64, 48, 32, 80)[i//4] + (i % 4)*4
    xs01 = [(pre, x.replace(x.split()[1], v(XS(i), 4) + ",")) for i, (pre, x) in enumerate(xload(0) + xload(1))]
    put_ops(pxc, 7, xs01, "X01", 8)
    for nb in range(8): put(23, 1+2*nb, [f"v_subrev_u32 v{8+nb}, {114688-QBASE}, v{8+nb}"])
    put(27, 0, ["WAITX"])
    mv = []
    for i in range(16):
        t_, qb, kk = i//8, (i//2) % 4, i % 2
        mv += [f"v_accvgpr_write_b32 a{(qb*16+2*t_+kk)*4+r}, v{XS(i)+r}" for r in range(4)]
    for i, x in enumerate(mv): put(27 + i//16, 1 + 2*((i % 16)//2), [x])
    put_ops(28, 3, qwdma(1), "W1", 4)
    put_ops(30, 1, xload(2), "X2", 4)
    for G in range(32):
        p, ksg, dbl = p2addr(G)
        M = []
        for kb in range(4):
            for k4 in range(4):
                ks = ksg*4+k4
                c = v(accV(p,dbl,kb),4)
                M.append(mf(c, a((kb*16+ks)*4,4), v(WF + (G%4)*16 + k4*4,4), "0" if ks == 0 else c))
        w = lg.wait(f"S{G}")
        if w: A.I(w)
        if G in (4, 12, 20, 27) and not fine or (fine and G % 4 == 0 and G > 0): ST.stamp()
        if G == pxc:
            A.I(vm.wait(["pollx", "b"]))
            poll_check(24, 25, S_TMP, vmask=23)
            for fb in range(3):
                for k in range(2):
                    A.I(f"v_lshlrev_b32 v{32+fb*4+2*k}, 16, v{26+2*fb+k}")
                    A.I(f"v_and_b32 v{33+fb*4+2*k}, 0xffff0000, v{26+2*fb+k}")
            for i in range(12): A.I(f"v_mov_b32 v{20+i}, v{32+i}")
        if G in (0, 2, 5):
            A.I(vm.wait({0: "Wv3", 2: "Wv5", 5: "Wv7"}[G]))
            A.I("s_barrier")
        if G == 0 and xst_t == 6: pubxn()
        rsched = {0: [2], 1: [3], 2: [4], 3: [5], 4: [], 5: [6, 7], 6: [8, 9]}.get(G, [G+3] if G+3 < 32 else [])
        rl = [(x, f"S{G2}") for G2 in rsched for x in reads2(G2)]
        if G == 28:
            A.I(vm.wait("W0"))
            A.I("s_barrier")
        jobs = epi.get(G, [])
        ml = []
        if G < 8:
            if G == 0: lnq += [f"v_mul_f32 v{r+k}, s52, v{r+k}" for kb in range(4) for r in (accK(6,kb), accK(7,kb)) for k in range(4)]
            ml = lnq
            while len(lnq) > 128 - 16*(G+1): A.I(lnq.pop(0)); print("flush mul", G)
        cv = []; st = {}
        for i, (r0, r1, f) in enumerate(jobs): cv += cvt_frag(r0, r1)
        if G in sts: st[15 if G < 8 else 11] = store_frag(sts[G][0], sts[G][2])
        for g in range(16):
            A.I(M[g])
            ex = extra.get((G, g), [])
            for x in ex:
                if x == "WAITX": A.I(vm.wait("X01"))
                elif isinstance(x, tuple) and x[0] == "P": A.I(x[1])
                elif isinstance(x, str) and x.startswith("s_"):
                    A.I(x)
                    if x == "s_waitcnt lgkmcnt(0)": lg.drain()
            if g in st: A.I(st[g][0])
            if rl and g not in st and (g % 2 == 0 or len(rsched) > 1):
                for _ in range(2 if len(rl) > 15 - g and len(rsched) > 1 else 1):
                    if rl:
                        x = rl.pop(0); A.I(x[0]); lg.issue(x[1])
            if G >= 29 and g % 2 == 0:
                n = (G-29)*2 + g//8
                if n < 5: A.I(breads(n)[(g//2) % 4]); lg.issue(f"R{n}")
            if g in st:
                A.I(st[g][1]); vm.issue("st")
            for x in ex:
                if isinstance(x, tuple) and x[0] != "P": A.I(x[0]); vm.issue(x[1])
                elif isinstance(x, str) and not x.startswith("s_") and x != "WAITX": A.I(x)
            if g % 2 == 1 and g not in st:
                for _ in range(0 if any(isinstance(x, tuple) and x[0] != 'P' for x in ex) else 2):
                    if ml: A.I(ml.pop(0))
            if len(jobs) > 1:
                if g % 2 == 0: A.I(cv[g//2])
            elif len(jobs) == 1 and g % 2 == 0 and g < 8:
                A.I(cv[g//2])
            if (G+4) % 8 == 0 and G+4 < 32 and g in (1, 3, 5, 9):
                A.I(p2setup((G+4)//8)[(1,3,5,9).index(g)])
        assert not rl, G
    A.I("s_barrier")
    ST.stamp()
    A.label(L("qgemm"))
    def kvdma(tile, voff, ldsoff):
        return [([f"s_add_u32 s{S_TMP}, s{S_KVB}, {tile*32768+voff}", f"s_add_u32 m0, s{S_W4K}, {ldsoff}"] if j == 0 else None,
                 f"buffer_load_dwordx4 v{V_L16}, {WS}, s{S_TMP} offen offset:{j*1024} sc1 lds") for j in range(4)]
    xt = {t: f"X{t}" for t in range(8)}
    pend = []
    gel = []
    for qb in range(4):
        for fb in range(3):
            x0 = accF(fb, qb); T = [20+r for r in range(4)]
            for r in range(4): gel.append(f"v_mul_f32 v{T[r]}, v{x0+r}, v{x0+r}")
            for r in range(4): gel.append(f"v_fma_f32 v{T[r]}, v{T[r]}, s32, v28")
            for r in range(4): gel.append(f"v_mul_f32 v{T[r]}, v{T[r]}, v{x0+r}")
            for r in range(4): gel.append(f"v_exp_f32 v{T[r]}, v{T[r]}")
            for r in range(4): gel.append(f"v_add_f32 v{T[r]}, 1.0, v{T[r]}")
            for r in range(4): gel.append(f"v_rcp_f32 v{T[r]}, v{T[r]}")
            for r in range(4): gel.append(f"v_mul_f32 v{x0+r}, v{x0+r}, v{T[r]}")
            d0 = accF(0, qb) + 2*fb if fb < 2 else x0
            gel.append(f"v_cvt_pk_bf16_f32 v{d0}, v{x0}, v{x0+1}")
            gel.append(f"v_cvt_pk_bf16_f32 v{d0+1}, v{x0+2}, v{x0+3}")
            if fb == 1:
                gel.append(f"s_add_u32 s35, s34, {qb*49152}")
                gel.append(f"buffer_store_dwordx4 {v(accF(0,qb),4)}, v29, {WS}, s35 offen sc1")
            if fb == 2:
                gel.append(f"buffer_store_dwordx2 {v(x0,2)}, v30, {WS}, s35 offen sc1")
    qfin = []
    for s_ in range(4):
        grp = []
        for qb in range(4):
            r0, r1 = accQ(2*s_, qb), accQ(2*s_+1, qb)
            grp += cvt_frag(r0, r1)
            grp.append(f"ds_write_b128 v27, {v(r0,4)} offset:{(qb*4+s_)*1024}")
        qfin.append(grp)
    vq = []; sq = []
    def take(budget):
        while budget > 0 and (vq or (gel and gel_ok[0])):
            src = vq if vq else gel
            x = src[0]
            cost = 2 if ("v_exp" in x or "v_rcp" in x or "buffer" in x or "ds_write" in x) else (0 if x.startswith("s_") else 1)
            if cost > budget: break
            A.I(src.pop(0)); budget -= cost
            if "buffer" in x: vm.issue("hs")
            if "ds_write" in x: lg.issue("qs")
    gel_ok = [False]
    kq = [(rdfrag(base+4*s_, V_K, kb*4+s_), f"k{kb}") for kb, base in enumerate((KA_, VA, VB)) for s_ in range(4)]
    pfq = []
    slotok = lambda gg, t: (gg % 6 == 1) if qeven else (gg % 4 == 1)
    tail = []
    for dbl in (1, 0):
        for j in range(2):
            r0, r1 = accV(3,dbl,2*j), accV(3,dbl,2*j+1)
            tail.append((cvt_frag(r0, r1), store_frag(r0, 16 + j*8 + 6+dbl)))
    for n in range(88):
        t, cb = blk(n)
        c_ = n % 11
        if n == 66:
            for x in [f"s_mov_b32 s32, {G2}", f"s_mov_b32 s33, {G1}", "v_mov_b32 v28, s33",
                      f"s_mul_i32 s34, s{S_Q0}, 49152", f"s_add_u32 s34, s34, {WS_H}",
                      f"s_mul_i32 s47, s{S_H}, 3", "s_add_u32 s35, s47, 1", "s_lshr_b32 s35, s35, 1", "s_lshl_b32 s35, s35, 10",
                      f"v_add_u32 v29, s35, v{V_L16}",
                      f"s_and_b32 s47, s{S_H}, 1", f"s_mul_i32 s47, s47, {8-2048}", "s_add_u32 s47, s47, 1024", "v_add_u32 v30, s47, v29",
                      "s_lshl_b32 s61, s2, 1", f"s_lshr_b32 s47, s{S_WAVE}, 1", f"s_xor_b32 s47, s47, s{S_WAVE}", "s_and_b32 s47, s47, 1",
                      "s_add_u32 s61, s61, s47", "s_lshl_b32 s61, s61, 10", f"s_add_u32 s61, s61, {WS_NEGM - 16384}",
                      "s_lshl_b32 s47, s47, 14", "s_add_u32 s47, s47, 131072", f"v_add_u32 v31, s47, v{V_L16}",
                      f"s_cmp_lt_u32 s{S_WAVE}, 2", f"s_cselect_b32 s47, s47, 0x10000", f"v_add_u32 v27, s47, v{V_L16}"]: A.I(x)
        if n == 68:
            sq += [f"s_mov_b32 s{S_I}, -1", f"s_add_u32 s{S_E}, s{S_T2}, 2", f"s_add_u32 s{S_C}, s{S_T2}, 4", f"s_sub_u32 s{S_DG}, 30, s{S_T2}", f"s_mov_b32 s{S_FAIL}, 0"] + \
                  tile_calc(S_K0, 3, 0, 0) + tile_calc(S_V0, 2, 0, 16384) + lds_calc() + tile_calc(S_K1, 3, 1, 0) + tile_calc(S_V1, 2, 1, 16384) + [f"s_mov_b32 s{S_I}, 0"]
            vq += ["v_and_b32 v24, 15, v1", "v_lshrrev_b32 v25, 4, v1", "v_lshlrev_b32 v25, 2, v25"]
            for r in range(4):
                vq += [f"v_add_u32 v26, {r}, v25", f"v_cmp_le_u32 s[{S_MASK+2*r}:{S_MASK+2*r+1}], v26, v24"]
            vq += ["v_and_b32 v24, 3, v1", "v_cmp_eq_u32 vcc, 0, v24", "v_mov_b32 v25, 0x3f803f80", "v_nop", "v_cndmask_b32 v24, 0, v25, vcc"]
            vq += [f"v_accvgpr_write_b32 a{ONES+i}, v24" for i in range(4)]
        if t == 7:
            if c_ == 4:
                gel_ok[0] = True
                A.I(vm.wait("KV0"))
                A.I("s_barrier")
                A.I(f"v_mov_b32 v{V_K}, v{V_L16}")
            if c_ >= 6 and c_ % 2 == 0: vq += qfin[(c_-6)//2]
        if c_ == 0:
            w = vm.wait(xt[t])
            if w: A.I(w)
            if t <= 5: pend += [(p, x, f"W{t+2}") for p, x in qwdma(t+2)]
            if t <= 4: pend += [(p, x, f"X{t+3}") for p, x in xload(t+3)]
            if t == 0:
                A.I(f"s_and_b32 s{S_TMP}, s2, 31")
                A.I(f"s_lshl_b32 s{S_TMP}, s{S_TMP}, 9")
                A.I(f"s_add_u32 s{S_TMP}, s{S_TMP}, {flag_base(F_XN)}")
                A.I("v_bfe_u32 v3, v1, 2, 3")
                A.I("v_lshlrev_b32 v3, 14, v3")
                A.I("v_and_b32 v19, 3, v1")
                A.I("v_lshl_add_u32 v3, v19, 7, v3")
                A.I(f"v_add_u32 v3, s{S_TMP}, v3")
                A.I(f"buffer_load_dword v19, v3, {WS}, 0 offen sc1"); vm.issue("pollid")
            if t == 5:
                cp3 = code_pf(34816, 65536, 3, 20)
                for x in cp3: A.I(x)
                vm.issue("pf3")
            if t == 5: pend += [(p, x, "KV0") for p, x in kvdma(0, 0, 0) + kvdma(1, 0, 16384)]
            if t == pft:
                for i in range(4): A.I(f"v_accvgpr_write_b32 a{i}, -1")
                for x in [f"s_lshl_b32 s64, s2, 2", f"s_add_u32 s64, s64, s{S_WAVE}", f"s_lshl_b32 s64, s64, 13", f"s_add_u32 s64, s64, {WS_PART}", f"s_add_u32 s65, s64, 4096"]: A.I(x)
                pfq += [f"buffer_store_dwordx4 a[0:3], v{V_L16}, {WS}, s{64+i//4} offen offset:{(i%4)*1024} sc1" for i in range(8)]
            if t == 6: pend += [(p, x, "KV0") for p, x in kvdma(0, 16384, 32768)]
            if t == 3:
                A.I(f"v_add_u32 v3, {flag_base(F_KV) - flag_base(F_XN)}, v3")
                A.I(f"buffer_load_dword v19, v3, {WS}, 0 offen sc1"); vm.issue("pollkv")
            if t == 4:
                A.I(vm.wait("pollkv"))
                poll_check(3, 19, 47)
        w = lg.wait(f"R{n}")
        if w: A.I(w)
        if c_ == 0 and (t in (2, 4, 6) or (fine and t > 0)): ST.stamp()
        if c_ == 6 and t < 7:
            tags = [f"W{t+1}"] + (["st"] if t == 1 else [])
            A.I(vm.wait(tags))
            A.I("s_barrier")
            if t == 1:
                assert vm.need("pollid") is None
                poll_check(3, 19, 47, vmask=31)
                A.I(f"v_cmp_ne_u32 vcc, s{S_ID}, v19")
                A.I(f"s_cbranch_vccz {L('samexcd')}")
                A.I("buffer_wbl2 sc1")
                A.I("s_waitcnt vmcnt(0)")
                A.label(L("samexcd"))
                for x in set_flag(F_KV, 31, 19, 47): A.I(x)
                vm.issue("fl")
        nx = n+5
        rds = breads(nx) if nx < 88 else []
        if nx < 88:
            for x in bump(nx): A.I(x)
        i = 0
        for qb in range(4):
            for kk in range(2):
                if cb < 8: d = v(accQ(cb, qb), 4); c0 = "0"
                else: d = v(accF(cb-8, qb), 4); c0 = v(20+(cb-8)*4, 4)
                A.I(mf(d, v(WR + (n % 6)*8 + kk*4, 4), a((qb*16+2*t+kk)*4, 4), c0 if (t == 0 and kk == 0) else d))
                if i % 2 == 0:
                    if pend and pend[0][0] and slotok(c_*8 + i + 1, t):
                        for y in pend[0][0]: A.I(y)
                        pend[0] = (None,) + pend[0][1:]
                        if not rds: A.I("s_nop 0")
                    if rds: A.I(rds[i//2]); lg.issue(f"R{nx}")
                elif pend and slotok(c_*8 + i, t) and not pend[0][0]:
                    p, x, tag = pend.pop(0)
                    A.I(x); vm.issue(tag)
                if pfq and i == 3 and n % pfs == 0:
                    A.I(pfq.pop(0)); vm.issue("pfl")
                tn = {1: 0, 2: 1, 4: 2, 5: 3}.get(n)
                if tn is not None:
                    if i % 2 == 0: A.I(tail[tn][0][i//2])
                    if i == 7:
                        for x in tail[tn][1]: A.I(x)
                        vm.issue("st")
                if n >= 83 and i % 2 == 0 and kq:
                    x = kq.pop(0); A.I(x[0]); lg.issue(x[1])
                if n >= 68:
                    if sq: A.I(sq.pop(0))
                    take(1 if (i % 2 == 0 and (rds or n < 86)) else (0 if (i == 3 and n % pfs == 0 and n < 55 + 8*pfs) else 2))
                i += 1
    assert not pend and not pfq
    assert not sq
    qrest = vq + qfin[3]
    k2.WTOUCH[:] = ["s_lshl_b32 s7, s2, 2", f"s_add_u32 s7, s7, s{S_WAVE}", "v_and_b32 v18, 31, v1", "v_lshlrev_b32 v18, 7, v18", "v_min_u32 v17, 0x500, v18",
              "s_lshl_b32 s33, s7, 12", "v_add_u32 v18, s33, v18", "s_mul_i32 s7, s7, 1408", "v_add_u32 v17, s7, v17", f"v_min_u32 v17, {1376*1024-4}, v17",
              "global_load_dword v4, v18, s[70:71]", "global_load_dword v4, v17, s[66:67]"]
    k2.WOFB[0] = wofb
    if wofb: k2.WTOUCH[:] = k2.WTOUCH[:-2]
    elif not wotouch: k2.WTOUCH[:] = []
    ST.stamp()
    SP, SRT, SCT, SQH, SKH, SBB, SBS, SNV, SWB, SM0 = 64, 65, 66, 67, 68, 69, 70, 71, 4, 5
    T0, T1, T2 = 6, 7, 35
    SEARLY = 58
    WW, SX, SO, SB2 = 20, 24, 28, 12
    vm4 = Cnt("vmcnt", 63)
    def slot4(u):
        return ([2, 0, 1, 3][(u-1) % 4] if u > 0 else 2)*16384
    def w4dma(u):
        r = []
        for i in range(8):
            pre = None
            if i % 4 == 0:
                m0 = f"s_add_u32 m0, s{SM0}, {slot4(u) + (i//4)*4096}" if u != 1 else f"s_add_u32 m0, s39, {(i//4)*4096}"
                pre = [f"s_add_u32 s{T0}, s{SWB}, {u*65536 + (i//4)*16384}", m0]
            r.append((pre, f"buffer_load_dwordx4 v{4+i%4}, s[{WW}:{WW+3}], s{T0} offen offset:{(i%4)*1024} lds"))
        return r
    def issue4(lst, tag):
        for pre, x in lst:
            if pre:
                for y in pre: A.I(y)
                if "lds" in x: A.I("s_nop 0")
            A.I(x); vm4.issue(tag)
    Bf = lambda u, qb, kk: 128 + (u % 4)*32 + (qb*2+kk)*4
    def bload(u):
        r = []
        for qb in range(4):
            for kk in range(2):
                ks = 2*u+kk
                pre = []
                if qb == 0 and kk == 0: pre.append(f"s_add_u32 s{T1}, s{SBB}, {(ks>>2)*4096}")
                elif kk == 0: pre.append(f"s_add_u32 s{T1}, s{T1}, s{SBS if qb != 2 else 48}")
                so = T1
                if ks >= 18:
                    pre += [f"s_cmp_gt_u32 s{SNV}, {ks}", f"s_cselect_b32 s{T2}, s{T1}, {OOB}"]
                    so = T2
                r.append((pre or None, f"buffer_load_dwordx4 {a(Bf(u,qb,kk),4)}, v{V_L16}, {WS}, s{so} offen offset:{(ks&3)*1024}{csc}"))
        return r
    def oproj_setup(stage):
        if stage == 0:
            Z = Asm()
            Z.I(f"s_load_dwordx2 s[8:9], s[0:1], {KA['wo']}")
            Z.I(f"s_load_dwordx4 s[12:15], s[0:1], {KA['w2']}")
            Z.I(f"s_load_dwordx2 s[24:25], s[0:1], {KA['x']}")
            Z.I(f"s_load_dwordx2 s[28:29], s[0:1], {KA['out']}")
            Z.I(f"s_and_b32 s{SP}, s2, 3")
            Z.I(f"s_lshr_b32 s{T0}, s2, 3")
            Z.I(f"s_and_b32 s{SCT}, s{T0}, 3")
            Z.I(f"s_lshr_b32 s{SRT}, s{T0}, 2")
            Z.I(f"s_and_b32 s{T1}, s2, 4")
            Z.I(f"s_lshl_b32 s{T1}, s{T1}, 1")
            Z.I(f"s_add_u32 s{SRT}, s{SRT}, s{T1}")
            Z.I(f"s_and_b32 s{SQH}, s{S_WAVE}, 1")
            Z.I(f"s_lshr_b32 s{SKH}, s{S_WAVE}, 1")
            Z.I(f"s_lshl_b32 s{T0}, s{SP}, 1")
            Z.I(f"s_add_u32 s{T0}, s{T0}, s{SKH}")
            Z.I(f"s_cmp_eq_u32 s{T0}, 5")
            Z.I(f"s_cselect_b32 s{SNV}, 18, 22")
            Z.I(f"s_sub_u32 s{T1}, 22, s{SKH}")
            Z.I(f"s_cmp_eq_u32 s{SP}, 3")
            Z.I(f"s_cselect_b32 s{SNV}, s{T1}, s{SNV}")
            Z.I(f"s_cselect_b32 s{T0}, s{SKH}, s{T0}")
            Z.I(f"s_mov_b32 s{T2}, 131072")
            Z.I(f"s_cselect_b32 s{SBS}, 49152, s{T2}")
            Z.I(f"s_mov_b32 s{T2}, {WS_CTX}")
            Z.I(f"s_cselect_b32 s{SBB}, {WS_H}, s{T2}")
            Z.I(f"s_mul_i32 s{T0}, s{T0}, 22")
            Z.I(f"s_lshl_b32 s{T1}, s{SRT}, 3")
            Z.I(f"s_lshl_b32 s{T2}, s{SQH}, 2")
            Z.I(f"s_add_u32 s{T1}, s{T1}, s{T2}")
            Z.I(f"s_lshl_b32 s{T2}, s{SKH}, 1")
            Z.I(f"s_add_u32 s{T1}, s{T1}, s{T2}")
            Z.I(f"s_lshl_b32 s49, s{T1}, 14")
            Z.I(f"s_mul_i32 s48, s{SKH}, -4")
            Z.I(f"s_add_i32 s48, s48, 1")
            Z.I(f"s_mul_i32 s48, s48, s{SBS}")
            Z.I(f"s_mul_i32 s{T1}, s{T1}, s{SBS}")
            Z.I(f"s_add_u32 s{SBB}, s{SBB}, s{T1}")
            Z.I(f"s_lshl_b32 s{T1}, s{T0}, 10")
            Z.I(f"s_add_u32 s{SBB}, s{SBB}, s{T1}")
            Z.I(f"s_add_u32 s{T0}, s{T0}, s{SQH}")
            Z.I(f"s_lshl_b32 s{SWB}, s{T0}, 15")
            Z.I(f"s_lshl_b32 s{T1}, s{SCT}, 8")
            Z.I(f"s_add_u32 s{SWB}, s{SWB}, s{T1}")
            Z.I(f"s_lshl_b32 s{SM0}, s{SKH}, 16")
            Z.I(f"s_lshl_b32 s{T1}, s{SQH}, 13")
            Z.I(f"s_add_u32 s{SM0}, s{SM0}, s{T1}")
            Z.I("v_and_b32 v16, 15, v1")
            Z.I("v_lshrrev_b32 v17, 4, v1")
            Z.I("v_lshrrev_b32 v18, 1, v16")
            Z.I("v_xor_b32 v18, v18, v17")
            Z.I("v_and_b32 v19, 1, v16")
            Z.I("v_lshlrev_b32 v19, 4, v19")
            Z.I("v_lshl_add_u32 v19, v17, 10, v19")
            Z.I("v_lshl_add_u32 v4, v18, 5, v19")
            Z.I("v_xor_b32 v18, 4, v18")
            Z.I("v_lshl_add_u32 v5, v18, 5, v19")
            Z.I(f"v_add_u32 v6, {2*3072}, v4")
            Z.I(f"v_add_u32 v7, {3*3072}, v5")
            Z.I(f"v_add_u32 v5, {3072}, v5")
            Z.I("s_waitcnt lgkmcnt(0)")
            Z.I(f"s_cmp_eq_u32 s{SP}, 3")
            Z.I(f"s_cselect_b32 s{WW}, s12, s8")
            Z.I(f"s_cselect_b32 s{WW+1}, s13, s9")
            Z.I(f"s_mov_b32 s{T1}, {4*MB}")
            Z.I(f"s_cselect_b32 s{WW+2}, {1376*1024}, s{T1}")
            Z.I(f"s_mov_b32 s{WW+3}, 0x20000")
            Z.I(f"s_mov_b32 s12, s14"); Z.I(f"s_mov_b32 s13, s15"); Z.I(f"s_mov_b32 s14, 1024"); Z.I(f"s_mov_b32 s15, 0x20000")
            Z.I(f"s_mov_b32 s26, {2*MB}"); Z.I("s_mov_b32 s27, 0x20000"); Z.I(f"s_mov_b32 s30, {2*MB}"); Z.I("s_mov_b32 s31, 0x20000")
            Z.I(f"s_lshl_b32 s{T1}, s{SKH}, 14")
            Z.I(f"s_lshl_b32 s{T2}, s{SQH}, 13")
            Z.I(f"s_add_u32 s{T1}, s{T1}, s{T2}")
            Z.I(f"s_add_u32 s39, s{T1}, 131072")
            for pre, x in w4dma(0):
                for y in (pre or []): Z.I(y)
                if pre: Z.I("s_nop 0")
                Z.I(x)
            Z.I("v_bfe_u32 v16, v1, 2, 2")
            Z.I("v_lshl_add_u32 v18, v17, 2, v16")
            Z.I("v_lshlrev_b32 v18, 8, v18")
            Z.I("v_and_b32 v19, 3, v1")
            Z.I("v_lshl_add_u32 v18, v19, 3, v18")
            Z.I(f"s_lshl_b32 s{T1}, s{SKH}, 16")
            Z.I(f"v_add_u32 v18, s{T1}, v18")
            Z.I("v_and_b32 v19, 1, v17")
            Z.I("v_lshl_add_u32 v16, v19, 2, v16")
            Z.I(f"s_mul_i32 s{T1}, s{SKH}, {16384-65536}")
            Z.I(f"s_add_u32 s{T1}, s{T1}, 131072")
            for nb in range(8):
                Z.I(f"v_xor_b32 v19, {nb}, v16")
                Z.I(f"v_lshl_add_u32 v{8+nb}, v19, 5, v18")
                Z.I(f"v_add_u32 v{20+nb}, s{T1}, v{8+nb}")
            Z.I(f"s_mul_i32 s{T0}, s{SP}, 11")
            Z.I(f"s_add_u32 s{T1}, s{T0}, 10")
            Z.I(f"s_min_u32 s{T1}, s{T1}, 31")
            Z.I(f"s_cmp_eq_u32 s{SP}, 3")
            Z.I(f"s_cselect_b32 s{T0}, 0, s{T0}")
            Z.I(f"s_cselect_b32 s{T1}, 28, s{T1}")
            Z.I("v_and_b32 v28, 31, v1")
            Z.I(f"v_add_u32 v28, s{T0}, v28")
            Z.I(f"v_cmp_ge_u32 s[{SEARLY}:{SEARLY+1}], s{T1}, v28")
            Z.I(f"v_min_u32 v28, s{T1}, v28")
            Z.I("v_lshrrev_b32 v29, 2, v28")
            Z.I("v_and_b32 v28, 3, v28")
            Z.I("v_lshl_add_u32 v28, v28, 3, v29")
            Z.I("v_lshlrev_b32 v28, 9, v28")
            Z.I(f"s_sub_u32 s{T0}, 15, s{SRT}")
            Z.I(f"s_min_u32 s{T0}, s{T0}, s{SRT}")
            Z.I(f"s_lshl_b32 s{T0}, s{T0}, 14")
            Z.I(f"s_lshl_b32 s{T1}, s{SQH}, 7")
            Z.I(f"s_add_u32 s{T0}, s{T0}, s{T1}")
            Z.I(f"s_cmp_lt_u32 s{SRT}, 8")
            Z.I(f"s_cselect_b32 s{T1}, 256, 0")
            Z.I(f"s_add_u32 s{T0}, s{T0}, s{T1}")
            Z.I(f"s_cmp_lt_u32 s{SRT}, 8")
            Z.I(f"s_mov_b32 s{T1}, {flag_base(F_A)}")
            Z.I(f"s_cselect_b32 s{T1}, {flag_base(F_B)}, s{T1}")
            Z.I(f"s_mul_i32 s{T2}, s{SQH}, -256")
            Z.I(f"s_addk_i32 s{T2}, 384")
            Z.I(f"s_cmp_lt_u32 s{SRT}, 8")
            Z.I(f"s_cselect_b32 s{T2}, 0, s{T2}")
            Z.I(f"s_cmp_eq_u32 s{SP}, 3")
            Z.I(f"s_cselect_b32 s{T1}, {flag_base(F_H)}, s{T1}")
            Z.I(f"s_cselect_b32 s{T2}, 0, s{T2}")
            Z.I(f"s_add_u32 s{T0}, s{T0}, s{T1}")
            Z.I(f"v_add_u32 v28, s{T0}, v28")
            Z.I("v_lshrrev_b32 v29, 5, v1")
            Z.I(f"v_mul_u32_u24 v29, s{T2}, v29")
            Z.I("v_add_u32 v28, v28, v29")
            if apollA:
                Z.I(f"v_mov_b32 v29, s{S_NONCE}")
                Z.I(f"s_mov_b64 exec, s[{SEARLY}:{SEARLY+1}]")
                for x in pload(29, 28, True): Z.I(x)
                Z.I("s_mov_b64 exec, -1")
            else: Z.I(f"buffer_load_dword v29, v28, {WS}, 0 offen sc1")
            return [x.text for x in Z.check(fix=True, seq=Z.items)]
    def oproj():
        lg4 = Cnt("lgkmcnt", 15)
        WF4 = 192
        wf = lambda mb, kk: WF4 + (mb*2+kk)*4
        def reads(u, mb):
            r = []
            for kk in range(2):
                off = (slot4(u) if u != 1 else 0) + kk*8192
                areg = (8 if u != 1 else 20) + mb
                r += [tr(wf(mb,kk), areg, off), tr(wf(mb,kk)+2, areg, off+4096)]
            return r
        acc = lambda mb, qb: 64 + (mb*4+qb)*4
        def emit(lst):
            for pre, x in lst:
                for y in (pre or []): A.I(y)
                if pre and "lds" in x: A.I("s_nop 0")
                A.I(x)
        su0 = oproj_setup(0)
        k0 = min(i for i, x in enumerate(su0) if " lds" in x) - 3
        for x in su0[:k0]: A.I(x)
        A.I("s_waitcnt vmcnt(0)")
        for x in set_flag(F_A, 30, 31, 34): A.I(x)
        for x in su0[k0:]: A.I(x)
        A.I("s_waitcnt vmcnt(0)")
        A.I("s_barrier")
        for mb in range(7):
            for x in reads(0, mb): A.I(x); lg4.issue(f"R0_{mb}")
        A.I(f"v_cmp_ne_u32 vcc, s{S_NONCE}, v29")
        A.I(f"s_cbranch_vccnz {L('late')}")
        emit(bload(0) + w4dma(1) + w4dma(2) + w4dma(3) + w4dma(4))
        A.I("s_waitcnt vmcnt(32)")
        A.I(f"s_branch {L('haveB')}")
        A.label(L("late"))
        if apollA: A.I(f"s_mov_b64 exec, s[{SEARLY}:{SEARLY+1}]")
        for x in pload(29, 28, apollA): A.I(x)
        A.I("s_mov_b64 exec, -1")
        emit(w4dma(1) + w4dma(2) + w4dma(3) + w4dma(4))
        A.I("s_waitcnt vmcnt(32)")
        if apollA: A.I(f"s_mov_b64 exec, s[{SEARLY}:{SEARLY+1}]")
        poll_check(28, 29, T0, atomic=apollA)
        A.I("s_mov_b64 exec, -1")
        emit(bload(0))
        A.I("s_waitcnt vmcnt(0)")
        A.label(L("haveB"))
        vE = Cnt("vmcnt", 63); vL = Cnt("vmcnt", 63)
        for tg in ["W1"]*8 + ["W2"]*8 + ["W3"]*8 + ["W4"]*8: vE.issue(tg)
        class Both:
            def issue(self, t): vE.issue(t); vL.issue(t)
            def wait(self, t):
                a_, b_ = vE.need(t), vL.need(t)
                n_ = [x for x in (a_, b_) if x is not None]
                return f"s_waitcnt vmcnt({min(n_)})" if n_ else None
        vm4 = Both()
        NU = 11
        su = [f"s_lshl_b32 s50, s{SCT}, 8", f"s_lshl_b32 s51, s{SP}, 6", "s_add_u32 s50, s50, s51", "s_add_u32 s54, s49, s50",
              "v_and_b32 v16, 15, v1", "v_lshrrev_b32 v17, 4, v1", "v_lshlrev_b32 v18, 3, v17", "v_lshl_add_u32 v19, v16, 10, v18", "v_add_u32 v20, 16384, v19",
              f"s_lshl_b32 s51, s{SKH}, 16", f"s_lshl_b32 s55, s{SQH}, 15", "s_add_u32 s51, s51, s55", "s_add_u32 s51, s51, 16384",
              f"v_add_u32 v21, s51, v{V_L16}", "s_xor_b32 s51, s51, 0x10000", f"v_add_u32 v22, s51, v{V_L16}",
              "s_and_b32 s55, s2, 0xfc", "s_lshl_b32 s56, s55, 9", "s_lshl_b32 s55, s55, 15", f"s_lshl_b32 s51, s{S_WAVE}, 13", "s_add_u32 s55, s55, s51",
              f"s_add_u32 s55, s55, {WS_PART}", f"s_lshl_b32 s51, s{S_WAVE}, 7", "s_add_u32 s56, s56, s51", f"s_add_u32 s56, s56, {flag_base(F_H)}",
              "v_and_b32 v23, 3, v1", "v_lshlrev_b32 v23, 9, v23", "v_add_u32 v23, s56, v23",
              f"s_lshl_b32 s51, s{SP}, 15", "s_add_u32 s56, s55, s51", f"s_lshl_b32 s51, s{SP}, 11", "s_add_u32 s55, s55, s51"]
        for q_ in range(4):
            su += [f"s_add_u32 s{40+q_}, s55, {q_*32768}", f"s_add_u32 s{44+q_}, s56, {q_*2048}", f"s_cmp_eq_u32 s{SP}, {q_}",
                   f"s_cselect_b32 s{40+q_}, {OOB}, s{40+q_}", f"s_cselect_b32 s{44+q_}, {OOB}, s{44+q_}"]
        xl = [f"buffer_load_dwordx2 v[{24+(i*2+j)*2}:{25+(i*2+j)*2}], v{19+i}, s[{SX}:{SX+3}], s54 offen offset:{j*32}" for i in range(2) for j in range(2)] + \
             [f"buffer_load_dwordx2 v[{32+j*2}:{33+j*2}], v18, s[{SB2}:{SB2+3}], s50 offen offset:{j*32}" for j in range(2)] + \
             [f"buffer_load_dword v38, v23, {WS}, 0 offen sc1"]
        for u in range(NU):
            w = vm4.wait(f"B{u}")
            if w: A.I(w)
            w = lg4.wait(f"R{u}_0")
            if w: A.I(w)
            if u == 0: ST.stamp()
            ops = []
            if u+3 < NU: ops += [(p, x, f"B{u+3}") for p, x in bload(u+3)]
            if k3pace:
                wl = [(p, x, f"W{u+3}") for p, x in w4dma(u+3)] if (u >= 1 and u+3 < NU) else []
                ops = ops[:2] + [y for pair in zip(wl[:6], ops[2:]) for y in pair] + wl[6:] if wl else ops
                step = 4 if wl else 8
                if u < 2:
                    ops = [(p, x, f"B{b_}") for b_ in (2*u+1, 2*u+2) for p, x in bload(b_)]
                    vpos = {1 + 4*i: op for i, op in enumerate(ops)}
                else: vpos = {1 + step*i: op for i, op in enumerate(ops)}
            else:
                if u >= 1 and u+3 < NU: ops = [(p, x, f"W{u+3}") for p, x in w4dma(u+3)] + ops
                odd = [g for g in range(9, 64) if g % 2 == 1]
                vpos = {odd[(i*len(odd))//len(ops)]: op for i, op in enumerate(ops)} if ops else {}
            g = 0
            for mb in range(8):
                for qb in range(4):
                    for kk in range(2):
                        q = g % 8
                        c = v(acc(mb,qb),4)
                        A.I(mf(c, v(wf(mb,kk),4), a(Bf(u,qb,kk),4), "0" if (u == 0 and kk == 0) else c))
                        if g == 7 and u+1 < NU:
                            w = vm4.wait(f"W{u+1}")
                            if w: A.I(w)
                            A.I("s_barrier")
                        if g+1 in vpos and vpos[g+1][0]:
                            for x in vpos[g+1][0]: A.I(x)
                        if q == 7 and mb < 7:
                            w = lg4.wait(f"R{u}_{mb+1}")
                            if w: A.I(w)
                        if q % 2 == 0:
                            rd = None
                            if mb == 0: rd = (reads(u, 7)[q//2], f"R{u}_7")
                            elif u+1 < NU: rd = (reads(u+1, mb-1)[q//2], f"R{u+1}_{mb-1}")
                            if rd: A.I(rd[0]); lg4.issue(rd[1])
                        if g in vpos:
                            A.I(vpos[g][1]); vm4.issue(vpos[g][2])
                        if u == 8 and su and g % 2 == 1:
                            A.I(su.pop(0))
                            if su and su[0].startswith("s_"): A.I(su.pop(0))
                        if u == 10 and mb >= 2 and q in (1, 5):
                            A.I(f"ds_write_b128 v21, {v(acc(mb-2, 2+q//4),4)} offset:{((mb-2)*2+q//4)*1024}")
                        if u == 9 and xl and g % 8 == 3:
                            A.I(xl.pop(0)); vm4.issue("x")
                        g += 1
        ST.stamp()
        A.I("s_waitcnt vmcnt(0)")
        for mb in range(6, 8):
            if mb == 7: A.I("s_nop 4")
            for i in range(2):
                A.I(f"ds_write_b128 v21, {v(acc(mb,2+i),4)} offset:{(mb*2+i)*1024}")
        for n in range(4):
            for k in range(2):
                A.I(f"v_lshlrev_b32 v{acc(n,2)+2*k}, 16, v{24+n*2+k}")
                A.I(f"v_and_b32 v{acc(n,2)+2*k+1}, 0xffff0000, v{24+n*2+k}")
        for j in range(2):
            for k in range(2):
                A.I(f"v_lshlrev_b32 v{acc(4+j,2)+2*k}, 16, v{32+j*2+k}")
                A.I(f"v_and_b32 v{acc(4+j,2)+2*k+1}, 0xffff0000, v{32+j*2+k}")
        poll_check(23, 38, T0)
        A.I("s_waitcnt lgkmcnt(0)")
        A.I("s_barrier")
        for b in range(16):
            A.I(f"ds_read_b128 {v(WF4+4*b,4)}, v22 offset:{b*1024}")
        for pq in range(4):
            regs = [acc((4*pq+x)//2, x % 2) for x in range(4)]
            for x in range(4):
                A.I(f"s_waitcnt lgkmcnt({15-4*pq-x})")
                for k in range(2): A.I(f"v_pk_add_f32 {v(regs[x]+2*k,2)}, {v(regs[x]+2*k,2)}, {v(WF4+4*(4*pq+x)+2*k,2)}")
            T = 40 + (pq % 2)*8
            for x in range(4):
                A.I(f"v_cvt_pk_bf16_f32 v{T+2*x}, v{regs[x]}, v{regs[x]+1}")
                A.I(f"v_cvt_pk_bf16_f32 v{T+1+2*x}, v{regs[x]+2}, v{regs[x]+3}")
            A.I(f"buffer_store_dwordx4 {v(T,4)}, v{V_L16}, {WS}, s{44+pq} offen sc1")
            A.I(f"buffer_store_dwordx4 {v(T+4,4)}, v{V_L16}, {WS}, s{44+pq} offen offset:1024 sc1")
        ST.stamp()
        def dload():
            for src in range(4):
                for hb in range(2):
                    A.I(f"buffer_load_dwordx4 {v(WF4+(src*2+hb)*4,4)}, v{V_L16}, {WS}, s{40+src} offen offset:{hb*1024} sc1")
        dload()
        for pq in range(4):
            regs = [acc((4*pq+x)//2, x % 2) for x in range(4)]
            A.I(f"s_cmp_lg_u32 s{SP}, {pq}")
            A.I(f"s_cbranch_scc1 {L(f'nown{pq}')}")
            for x in range(4):
                for k in range(4):
                    A.I(f"v_mov_b32 v{(224 if pq < 3 else 240)+4*x+k}, v{regs[x]+k}")
                    A.I(f"v_mov_b32 v{(240 if pq < 3 else 224)+4*x+k}, 0")
            A.label(L(f"nown{pq}"))
        A.I(f"s_mov_b32 s{T2}, {NLOG2E}")
        A.I(f"s_mov_b32 s{T0}, 0")
        A.label(L("dpoll"))
        A.I("s_waitcnt vmcnt(0)")
        A.I("v_max3_u32 v36, v192, v193, v194")
        A.I("v_max3_u32 v37, v195, v196, v197")
        for x in range(198, 222, 4):
            A.I(f"v_max3_u32 v36, v36, v{x}, v{x+1}")
            A.I(f"v_max3_u32 v37, v37, v{x+2}, v{x+3}")
        A.I("v_max3_u32 v36, v36, v222, v223")
        A.I("v_max_u32 v36, v36, v37")
        A.I("v_cmp_eq_u32 vcc, -1, v36")
        A.I(f"s_cbranch_vccz {L('dok')}")
        A.I(f"s_add_u32 s{T0}, s{T0}, 1")
        A.I(f"s_cmp_gt_u32 s{T0}, 0x40000")
        A.I(f"s_cbranch_scc1 {L('dok')}")
        dload()
        A.I(f"s_branch {L('dpoll')}")
        A.label(L("w_kh1")); A.I(f"s_setpc_b64 s[{S_RET}:{S_RET+1}]")
        A.label(L("dok"))
        ST.stamp()
        for src in range(4):
            dst = 224 if src < 3 else 240
            for x in range(8):
                A.I(f"v_lshlrev_b32 v{40+2*x}, 16, v{WF4+src*8+x}")
                A.I(f"v_and_b32 v{41+2*x}, 0xffff0000, v{WF4+src*8+x}")
            for x in range(8): A.I(f"v_pk_add_f32 {v(dst+2*x,2)}, {v(dst+2*x,2)}, {v(40+2*x,2)}")
        for b in range(4):
            for k in range(2): A.I(f"v_pk_add_f32 {v(240+b*4+2*k,2)}, {v(240+b*4+2*k,2)}, {v(acc(4+b//2,2)+2*k,2)}")
        for x in range(16): A.I(f"v_mul_f32 v{40+x}, s{T2}, v{240+x}")
        for x in range(16): A.I(f"v_exp_f32 v{40+x}, v{40+x}")
        for x in range(16): A.I(f"v_add_f32 v{40+x}, 1.0, v{40+x}")
        for x in range(16): A.I(f"v_rcp_f32 v{40+x}, v{40+x}")
        for x in range(8): A.I(f"v_pk_mul_f32 {v(240+2*x,2)}, {v(240+2*x,2)}, {v(40+2*x,2)}")
        for b in range(4):
            j, i = b//2, b % 2
            n = i*2+j
            for k in range(2): A.I(f"v_pk_fma_f32 {v(224+b*4+2*k,2)}, {v(224+b*4+2*k,2)}, {v(240+b*4+2*k,2)}, {v(acc(n,2)+2*k,2)}")
            A.I(f"v_cvt_pk_bf16_f32 v{224+b*4}, v{224+b*4}, v{224+b*4+1}")
            A.I(f"v_cvt_pk_bf16_f32 v{224+b*4+1}, v{224+b*4+2}, v{224+b*4+3}")
            A.I(f"buffer_store_dwordx2 {v(224+b*4,2)}, v{19+i}, s[{SO}:{SO+3}], s54 offen offset:{j*32}{outsc}")
        if padto:
            A.I(f"s_load_dwordx2 s[40:41], s[0:1], {KA['dbg']}")
            A.I("s_waitcnt lgkmcnt(0)")
            A.I("v_mov_b32 v4, 4")
            A.I("global_load_dword v5, v4, s[40:41] sc1")
            A.I("s_waitcnt vmcnt(0)")
            A.I("v_readfirstlane_b32 s42, v5")
            A.I("s_memrealtime s[44:45]")
            A.I("s_waitcnt lgkmcnt(0)")
            A.I("s_sub_u32 s46, s44, s42")
            A.I("v_mov_b32 v6, s46"); A.I("v_mov_b32 v4, 8")
            A.I("s_mov_b64 exec, 1")
            A.I("global_atomic_umax v4, v6, s[40:41] sc1") if padto == 1 else None
            A.label(L("padloop"))
            A.I("s_sleep 8")
            A.I("s_memrealtime s[44:45]")
            A.I("s_waitcnt lgkmcnt(0)")
            A.I("s_sub_u32 s46, s44, s42")
            A.I(f"s_cmp_lt_u32 s46, {padto}")
            A.I(f"s_cbranch_scc1 {L('padloop')}")
        ST.flush(SRD_WS, S_WAVE)
    def saferestart():
        A.label(L("saferestart"))
        R = Asm()
        R.I(f"s_mov_b32 s{S_SAFE}, 0")
        R.I("s_waitcnt vmcnt(0) lgkmcnt(0)")
        R.I("s_barrier")
        for x in q_setup_s: R.I(x)
        R.I(f"s_lshl_b32 s44, s{S_WAVE}, 17")
        R.I(f"s_lshl_b32 s47, s{S_H}, 8")
        R.I("s_add_u32 s44, s44, s47")
        R.I(f"s_mov_b32 s{S_ID}, 0")
        R.I(f"s_mov_b32 s46, {OOB}")
        for x in q_setup_v: R.I(x)
        R.I("s_waitcnt lgkmcnt(0)")
        for x in srd_list(SRD_WQ, 4, 4*MB) + srd_list(SRD_W1, 8, 512*2752) + srd_list(SRD_B1, 10, 2752): R.I(x)
        for fb in range(3):
            R.I(f"buffer_load_dwordx2 v[{26+2*fb}:{27+2*fb}], v19, s[{SRD_B1}:{SRD_B1+3}], s{53 if fb < 2 else 54} offen offset:{fb*32}")
        R.I("v_and_b32 v248, 15, v1")
        R.I("v_lshrrev_b32 v249, 4, v1")
        R.I("v_lshrrev_b32 v250, 1, v248")
        R.I("v_xor_b32 v250, v250, v249")
        R.I("v_and_b32 v251, 1, v248")
        R.I("v_lshlrev_b32 v251, 4, v251")
        R.I("v_lshl_add_u32 v251, v249, 13, v251")
        R.I("v_lshl_add_u32 v4, v250, 5, v251")
        R.I(f"v_add_u32 v5, {32768-1024}, v4")
        R.I("v_xor_b32 v250, 4, v250")
        R.I("v_lshl_add_u32 v6, v250, 5, v251")
        R.I(f"v_add_u32 v6, {2*(32768-1024)}, v6")
        R.I(f"v_add_u32 v7, {32768-1024}, v6")
        R.I("v_bfe_u32 v248, v1, 2, 2")
        R.I("v_lshlrev_b32 v250, 3, v249")
        R.I("v_add_u32 v250, v250, v248")
        R.I("v_lshlrev_b32 v250, 8, v250")
        R.I("v_and_b32 v251, 3, v1")
        R.I("v_lshl_add_u32 v250, v251, 3, v250")
        R.I(f"v_add_u32 v250, {QBASE}, v250")
        R.I("v_and_b32 v251, 1, v249")
        R.I("v_lshl_add_u32 v248, v251, 2, v248")
        for nb in range(8):
            R.I(f"v_xor_b32 v251, {nb}, v248")
            R.I(f"v_lshl_add_u32 v{8+nb}, v251, 5, v250")
        for pre, x in qwdma(0) + qwdma(1) + xload(0) + xload(1) + xload(2):
            for y in (pre or []): R.I(y)
            if pre: R.I("s_nop 0")
            R.I(x)
        R.I("s_waitcnt vmcnt(0)")
        for fb in range(3):
            for k in range(2):
                R.I(f"v_lshlrev_b32 v{32+fb*4+2*k}, 16, v{26+2*fb+k}")
                R.I(f"v_and_b32 v{33+fb*4+2*k}, 0xffff0000, v{26+2*fb+k}")
        for i in range(12): R.I(f"v_mov_b32 v{20+i}, v{32+i}")
        R.I("s_barrier")
        for n in range(5):
            for x in breads(n): R.I(x)
        R.I("s_waitcnt lgkmcnt(0)")
        R.I(f"s_branch {L('qgemm')}")
        A.items += R.check(fix=True, seq=R.items)
    k2.CPF[0] = cpf; k2.PVB[0] = pvb; k2.DSC[0] = dsc
    k2.attention(A, L, ST, vm, lg, set_flag, F_H, F_B, F_A, qrest, gel, oproj_setup, oproj, saferestart)
    return A
```

```python
import sys, build, importlib
kf = importlib.import_module(sys.argv.pop(1))
name = sys.argv[1]
kw = {}
for a in sys.argv[2:]:
    k, v = a.split("="); kw[k] = eval(v)
kw.setdefault("prof", True)
build.build1(kf.gen(build.NAME, **kw), f"work/{name}.s", 102)
```
